```python
import torch

def _softmax(x, axis=-1):
    return torch.softmax(x, dim=axis)
def _gelu(x):
    return torch.nn.functional.gelu(x, approximate="tanh")
def _silu(x):
    return torch.nn.functional.silu(x)
def _sigmoid(x):
    return torch.sigmoid(x)
def _layernorm(x, axis=-1, eps=1e-5):
    m = x.mean(dim=axis, keepdim=True)
    v = x.var(dim=axis, keepdim=True, unbiased=False)
    return (x - m) / torch.sqrt(v + eps)
def _scatter_add(tgt, idx, src, axis=0):
    return tgt.clone().index_add_(axis, idx, src)
def _segment_sum(src, seg, n):
    out = torch.zeros((n,) + src.shape[1:], dtype=src.dtype)
    return out.index_add_(0, seg, src)
def _pad(x, pw):
    flat = tuple(v for pair in reversed(pw) for v in pair)
    return torch.nn.functional.pad(x, flat)

kernel_name = 'standalone__moe_arch_mod__prompt'

def setup_inputs():

    _w = (lambda a: (lambda t: t.to(torch.bfloat16) if t.is_floating_point() else t)(torch.as_tensor(a)))
    B, S, D, F, C = 1, 2048, 576, 4608, 2
    return {
        "x": _w((lambda *s: torch.randn(*s, dtype=torch.bfloat16) * 0.1)(B, S, D)),
        "w_r": _w((lambda *s: torch.randn(*s, dtype=torch.bfloat16) * 0.1)(D)),
        "w_gate": _w((lambda *s: torch.randn(*s, dtype=torch.bfloat16) * 0.1)(D, F)),
        "w_up": _w((lambda *s: torch.randn(*s, dtype=torch.bfloat16) * 0.1)(D, F)),
        "w_down": _w((lambda *s: torch.randn(*s, dtype=torch.bfloat16) * 0.1)(F, D)),
    }

def reference(x, w_r, w_gate, w_up, w_down):
    B, S, D = x.shape
    C = 2
    r = x @ w_r
    idx = torch.argsort(-r, axis=-1)[:, :C]
    idx_e = (lambda x, n, axis: torch.repeat_interleave(x, n, dim=axis))(idx.reshape(B, C, 1), D, axis=2)
    x_sel = (lambda x, i, axis: torch.take_along_dim(x, i, dim=axis))(x, idx_e, axis=1)
    g = _silu(x_sel @ w_gate)
    u = x_sel @ w_up
    y = (g * u) @ w_down
    r_sel = _sigmoid((lambda x, i, axis: torch.take_along_dim(x, i, dim=axis))(r, idx, axis=1))
    y = y * r_sel.reshape(B, C, 1)
    b_off = (torch.arange(B) * S).reshape(B, 1)
    flat_idx = (idx + b_off).reshape(B * C)
    zero = (x * 0.0).reshape(B * S, D)
    upd = _scatter_add(zero, flat_idx, y.reshape(B * C, D), axis=0)
    return x + upd.reshape(B, S, D)
```

```python
import sys
NAME = "standalone__moe_arch_mod__prompt"
S, D, F = 2048, 576, 4608
XB = S*D*2
WB = D*F*2
WS_GRAN = 0
WS_TOP2 = 4096
WS_SLAB = 8192
WS_SIZE = 1 << 20

out = []
def e(s=""): out.append(s)
def srd(base, koff, size):
    e(f"  s_load_dwordx2 s[{base}:{base+1}], s[0:1], {koff}")
    e(f"  s_mov_b32 s{base+2}, {size}")
    e(f"  s_mov_b32 s{base+3}, 0x20000")

hdr = open('cdna_kernels/%s.s.ref' % NAME).read().split('\n')
for l in hdr:
    if l.startswith('; Override') : break
    e(l)
e("; @launch kernel=k1_kernel grid=(256,1,1) block=(64,1,1) lds=0")
e("; @launch kernel=k2_kernel grid=(144,1,1) block=(320,1,1) lds=81920")
e("; @launch kernel=k3_kernel grid=(72,1,1) block=(64,1,1) lds=0")
e('.amdgcn_target "amdgcn-amd-amdhsa--gfx950"')
e(".text")

def kstart(n):
    e(f".globl {n}"); e(".p2align 8"); e(f".type {n},@function"); e(f"{n}:")

DPPM = "row_mask:0xf bank_mask:0xf"

kstart("k1_kernel")
e("  s_cmp_ge_u32 s2, 256")
e("  s_cbranch_scc1 K1_END")
srd(4, 0, XB); srd(8, 8, D*2); srd(12, 40, XB); srd(16, 56, WS_SIZE)
e("  v_and_b32 v1, 7, v0")
e("  v_lshlrev_b32 v1, 4, v1")
e("  v_lshrrev_b32 v2, 3, v0")
e("  v_mul_u32_u24 v3, 1152, v2")
e("  v_add_u32 v3, v3, v1")
e("  s_mul_i32 s20, s2, 9216")
e("  s_lshl_b32 s21, s2, 3")
e("  s_sub_u32 s21, 2047, s21")
e("  v_sub_u32 v4, s21, v2")
e("  s_mov_b32 s22, 0xffff0000")
e("  s_lshl_b32 s23, s2, 4")
e("  v_mov_b32 v5, s23")
e("  s_waitcnt lgkmcnt(0)")
W, X = 16, 52
for i in range(9):
    e(f"  buffer_load_dwordx4 v[{W+4*i}:{W+4*i+3}], v1, s[8:11], 0 offen offset:{128*i}")
for i in range(9):
    e(f"  buffer_load_dwordx4 v[{X+4*i}:{X+4*i+3}], v3, s[4:7], s20 offen offset:{128*i}")
for j in range(4): e(f"  v_mov_b32 v{8+j}, 0")
for i in range(9):
    e(f"  s_waitcnt vmcnt({8-i})")
    for j in range(4):
        e(f"  v_dot2c_f32_bf16 v{8+j}, v{X+4*i+j}, v{W+4*i+j}")
e("  s_nop 2")
e("  v_add_f32 v8, v8, v9")
e("  v_add_f32 v10, v10, v11")
e("  v_add_f32 v8, v8, v10")
e("  s_nop 1")
e(f"  v_add_f32_dpp v8, v8, v8 quad_perm:[1,0,3,2] {DPPM}")
e("  s_nop 1")
e(f"  v_add_f32_dpp v8, v8, v8 quad_perm:[2,3,0,1] {DPPM}")
e("  s_nop 1")
e(f"  v_add_f32_dpp v8, v8, v8 row_half_mirror {DPPM}")
e("  v_cvt_pk_bf16_f32 v9, v8, v8")
e("  v_cmp_u_f32 vcc, v8, v8")
e("  v_ashrrev_i32 v10, 31, v9")
e("  v_or_b32 v10, 0x80000000, v10")
e("  v_xor_b32 v9, v9, v10")
e("  v_cndmask_b32 v9, v9, 0, vcc")
e("  v_and_or_b32 v9, v9, s22, v4")
e("  s_nop 1")
e(f"  v_max_u32_dpp v12, v9, v9 row_ror:8 {DPPM}")
e(f"  v_min_u32_dpp v13, v9, v9 row_ror:8 {DPPM}")
for ctl in ("row_bcast:15 row_mask:0xa bank_mask:0xf", "row_bcast:31 row_mask:0xc bank_mask:0xf"):
    e("  s_nop 1")
    e(f"  v_min_u32_dpp v10, v12, v12 {ctl}")
    e(f"  v_max_u32_dpp v11, v13, v13 {ctl}")
    e(f"  v_max_u32_dpp v12, v12, v12 {ctl}")
    e(f"  v_max_u32 v13, v10, v11")
e("  v_mov_b32 v14, 0")
e("  v_mov_b32 v15, 0")
e("  s_mov_b64 s[24:25], exec")
e("  s_lshl_b64 exec, 1, 63")
e(f"  buffer_store_dwordx4 v[12:15], v5, s[16:19], 0 offen offset:{WS_GRAN}")
e("  s_mov_b64 exec, s[24:25]")
for i in range(9):
    e(f"  buffer_store_dwordx4 v[{X+4*i}:{X+4*i+3}], v3, s[12:15], s20 offen offset:{128*i}")
e("K1_END:")
e("  s_endpgm")

XIMG = 73728
TEX = XIMG + 3072
kstart("k2_kernel")
e("  s_cmp_ge_u32 s2, 144")
e("  s_cbranch_scc1 K2_END")
srd(4, 0, XB); srd(12, 32, WB); srd(16, 56, WS_SIZE)
e("  s_load_dwordx4 s[24:27], s[0:1], 16")
e("  s_mov_b32 s10, %d" % WB)
e("  s_mov_b32 s11, 0x20000")
e("  v_lshrrev_b32 v1, 6, v0")
e("  v_and_b32 v0, 63, v0")
e("  v_readfirstlane_b32 s3, v1")
e("  v_and_b32 v2, 15, v0")
e("  v_lshrrev_b32 v3, 4, v0")
e("  v_mul_u32_u24 v4, 9216, v3")
e("  v_lshl_add_u32 v4, v2, 4, v4")
e("  s_mul_i32 s20, s2, %d" % (32*1152))
e("  s_lshl_b32 s21, s3, 8")
e("  s_add_u32 s20, s20, s21")
e("  s_add_u32 s21, s20, 4608")
e("  v_lshrrev_b32 v5, 2, v2")
e("  v_lshl_add_u32 v5, v3, 3, v5")
e("  v_lshlrev_b32 v5, 3, v5")
e("  v_and_b32 v6, 2, v0")
e("  v_lshl_add_u32 v5, v6, 1, v5")
e(f"  v_add_u32 v5, {TEX}, v5")
e("  v_and_b32 v6, 1, v0")
e("  v_cmp_eq_u32 vcc, 1, v6")
e("  v_mov_b32 v6, 0xffff")
e("  v_mov_b32 v7, 0xffff0000")
e("  v_cndmask_b32 v6, v6, v7, vcc")
e("  v_lshlrev_b32 v7, 6, v2")
e("  v_lshl_add_u32 v7, v3, 4, v7")
e("  s_mul_i32 s22, s2, 4608")
e("  s_lshl_b32 s23, s3, 10")
e("  s_add_u32 s22, s22, s23")
e(f"  s_add_u32 s22, s22, {WS_SLAB}")
AD = 160
WD = 128
BF = 48
AF = 12
ACC = 120
for j in range(32): e(f"  v_mov_b32 v{AD+j}, 0")
e("  s_cmp_eq_u32 s3, 4")
e("  s_cbranch_scc1 K2_POLL")
e("  v_lshrrev_b32 v8, 2, v0")
e("  v_mul_u32_u24 v8, 9216, v8")
e("  v_lshrrev_b32 v9, 4, v0")
e("  v_and_b32 v9, 2, v9")
e("  v_xor_b32 v9, v9, v0")
e("  v_and_b32 v9, 3, v9")
e("  v_lshl_add_u32 v8, v9, 4, v8")
e("  s_and_b32 s28, s3, 1")
e("  s_mul_i32 s28, s28, %d" % (288*9216))
e("  s_lshl_b32 s29, s2, 6")
e("  s_add_u32 s28, s28, s29")
e("  s_mul_i32 s30, s3, 18432")
e("  s_mov_b32 m0, s30")
e("  s_add_u32 s31, s30, 18432")
e("  s_cmp_ge_u32 s3, 2")
e("  s_waitcnt lgkmcnt(0)")
e("  s_cselect_b32 s8, s26, s24")
e("  s_cselect_b32 s9, s27, s25")
e("K2_DMA:")
e("  buffer_load_dwordx4 v8, s[8:11], s28 offen lds")
e("  s_addk_i32 m0, 0x400")
e("  s_add_u32 s28, s28, %d" % (16*9216))
e("  s_cmp_lt_u32 m0, s31")
e("  s_cbranch_scc1 K2_DMA")
for mp in range(8):
    e(f"  buffer_load_dwordx4 v[{WD+4*mp}:{WD+4*mp+3}], v4, s[12:15], s{20+(mp>>2)} offen offset:{1152*(mp&3)}")
e("  v_lshlrev_b32 v8, 9, v3")
e("  v_bfe_u32 v9, v0, 2, 2")
e("  v_lshl_add_u32 v8, v9, 6, v8")
e("  v_and_b32 v9, 3, v0")
e("  v_lshl_add_u32 v8, v9, 3, v8")
e("  v_and_b32 v9, 1, v3")
e("  v_lshl_add_u32 v8, v9, 5, v8")
e("  v_add_u32 v8, s30, v8")
e("  v_xor_b32 v9, 32, v8")
e("  v_and_b32 v10, 1, v0")
e("  v_mul_u32_u24 v10, 1152, v10")
e("  v_lshl_add_u32 v10, v3, 4, v10")
e("  s_and_b32 s28, s3, 1")
e("  s_mul_i32 s28, s28, 576")
e(f"  s_add_u32 s28, s28, {XIMG}")
e("  v_add_u32 v10, s28, v10")
e("  s_lshl_b32 s28, s3, 8")
e(f"  s_add_u32 s28, s28, {TEX}")
e("  v_lshl_add_u32 v11, v2, 3, s28")
for s in range(9):
    e(f"  s_waitcnt vmcnt({24-2*s})")
    for hh in range(2):
        for u in range(2):
            r = BF + 8*s + 4*hh + 2*u
            e(f"  ds_read_b64_tr_b16 v[{r}:{r+1}], v{8+hh} offset:{2048*s+256*u}")
e("  s_waitcnt lgkmcnt(0)")
e("  s_barrier")
for s in range(9):
    e(f"  ds_read_b128 v[{AF+4*s}:{AF+4*s+3}], v10 offset:{64*s}")
for s in range(9):
    e(f"  s_waitcnt lgkmcnt({8-s})")
    for hh in range(2):
        c = "0" if s == 0 else f"v[{ACC+4*hh}:{ACC+4*hh+3}]"
        r = BF + 8*s + 4*hh
        e(f"  v_mfma_f32_16x16x32_bf16 v[{ACC+4*hh}:{ACC+4*hh+3}], v[{AF+4*s}:{AF+4*s+3}], v[{r}:{r+3}], {c}")
e("  s_mov_b64 exec, 0xffff")
e("  s_nop 7")
e(f"  ds_write_b64 v11, v[{ACC}:{ACC+1}]")
e(f"  ds_write_b64 v11, v[{ACC+4}:{ACC+5}] offset:128")
e("  s_mov_b64 exec, -1")
e("  s_branch K2_JOIN")
e("K2_POLL:")
e("  v_lshlrev_b32 v8, 4, v0")
e("  s_waitcnt lgkmcnt(0)")
for j in range(4):
    e(f"  buffer_load_dwordx4 v[{12+4*j}:{15+4*j}], v8, s[16:19], 0 offen offset:{WS_GRAN+1024*j}")
e("  s_mov_b64 exec, 0x00ff00ff")
e("  s_mov_b32 exec_hi, 0x00ff00ff")
for mp in range(8):
    e(f"  buffer_load_dwordx4 v[{WD+4*mp}:{WD+4*mp+3}], v4, s[12:15], s{20+(mp>>2)} offen offset:{1152*(mp&3)}")
e("  s_mov_b64 exec, -1")
e("  s_waitcnt vmcnt(8)")
def merge(a1, a2, b1, b2, t):
    e(f"  v_min_u32 v{t}, v{a1}, v{b1}")
    e(f"  v_max_u32 v{a1}, v{a1}, v{b1}")
    e(f"  v_max3_u32 v{a2}, v{t}, v{a2}, v{b2}")
merge(12, 13, 16, 17, 9); merge(20, 21, 24, 25, 10); merge(12, 13, 20, 21, 9)
for ctl in (f"quad_perm:[1,0,3,2] {DPPM}", f"quad_perm:[2,3,0,1] {DPPM}", f"row_ror:4 {DPPM}", f"row_ror:8 {DPPM}",
            "row_bcast:15 row_mask:0xa bank_mask:0xf", "row_bcast:31 row_mask:0xc bank_mask:0xf"):
    e("  s_nop 1")
    e(f"  v_min_u32_dpp v10, v12, v12 {ctl}")
    e(f"  v_max_u32_dpp v11, v13, v13 {ctl}")
    e(f"  v_max_u32_dpp v12, v12, v12 {ctl}")
    e(f"  v_max_u32 v13, v10, v11")
e("  s_nop 0")
e("  v_readlane_b32 s32, v12, 63")
e("  v_readlane_b32 s33, v13, 63")
e("  s_and_b32 s34, s32, 0xffff")
e("  s_and_b32 s35, s33, 0xffff")
e("  s_sub_u32 s34, 2047, s34")
e("  s_sub_u32 s35, 2047, s35")
e("  s_mul_i32 s34, s34, 1152")
e("  s_mul_i32 s35, s35, 1152")
e("  v_cmp_gt_u32 vcc, 8, v0")
e("  s_sub_u32 s36, s35, 128")
e("  s_add_u32 s37, s34, 1024")
e("  s_add_u32 s38, s35, 896")
e(f"  s_mov_b32 m0, {XIMG}")
e("  v_mov_b32 v9, s36")
e("  v_mov_b32 v10, s37")
e("  buffer_load_dwordx4 v8, s[4:7], s34 offen lds")
e("  s_addk_i32 m0, 0x400")
e("  v_cndmask_b32 v9, v9, v10, vcc")
e("  v_add_u32 v9, v9, v8")
e("  buffer_load_dwordx4 v9, s[4:7], 0 offen lds")
e("  s_addk_i32 m0, 0x400")
e("  s_mov_b64 exec, 0xffff")
e("  buffer_load_dwordx4 v8, s[4:7], s38 offen lds")
e("  s_mov_b64 exec, 1")
e("  v_mov_b32 v12, s32")
e("  v_mov_b32 v13, s33")
e(f"  v_mov_b32 v14, {WS_TOP2}")
e(f"  buffer_store_dwordx2 v[12:13], v14, s[16:19], 0 offen")
e("  s_mov_b64 exec, -1")
e("  s_waitcnt vmcnt(0)")
e("  s_barrier")
e("K2_JOIN:")
e("  s_waitcnt lgkmcnt(0)")
e("  s_barrier")
e("  ds_read2_b32 v[12:13], v5 offset0:0 offset1:64")
e("  ds_read2_b32 v[14:15], v5 offset0:128 offset1:192")
e("  ds_read2_b32 v[16:17], v5 offset0:8 offset1:72")
e("  ds_read2_b32 v[18:19], v5 offset0:136 offset1:200")
e("  s_mov_b32 s40, 0xbfb8aa3b")
e("  s_waitcnt lgkmcnt(0)")
seqs = []
for b, t in ((12, 20), (16, 24)):
    q = []
    q.append(f"v_add_f32 v{b}, v{b}, v{b+1}")
    q.append(f"v_add_f32 v{b+2}, v{b+2}, v{b+3}")
    q.append(f"v_cvt_pk_bf16_f32 v{b}, v{b}, v{b+2}")
    q.append(f"v_and_b32 v{b+2}, 0xffff0000, v{b}")
    q.append(f"v_lshlrev_b32 v{b}, 16, v{b}")
    q.append(f"v_mul_f32 v{b+1}, s40, v{b}")
    q.append(f"v_exp_f32 v{b+1}, v{b+1}")
    q.append(f"v_nop")
    q.append(f"v_add_f32 v{b+1}, 1.0, v{b+1}")
    q.append(f"v_rcp_f32 v{b+1}, v{b+1}")
    q.append(f"v_nop")
    q.append(f"v_mul_f32 v{b}, v{b}, v{b+1}")
    q.append(f"v_cvt_pk_bf16_f32 v{b}, v{b}, v{b}")
    q.append(f"v_and_b32 v{b}, 0xffff0000, v{b}")
    q.append(f"v_mul_f32 v{b}, v{b}, v{b+2}")
    q.append(f"v_cvt_pk_bf16_f32 v{b}, v{b}, v{b}")
    q.append(f"v_and_b32 v{b}, v{b}, v6")
    seqs.append(q)
for a, b in zip(*seqs):
    if a == "v_nop": continue
    e("  " + a); e("  " + b)
e("  s_nop 1")
for mp in range(8):
    src = 12 if mp < 4 else 16
    q = mp & 3
    for r in range(4):
        n = (4*(r-q)) % 16
        ctl = "quad_perm:[0,1,2,3]" if n == 0 else f"row_ror:{n}"
        e(f"  v_mov_b32_dpp v{AD+4*mp+r}, v{src} {ctl} row_mask:0xf bank_mask:{hex(1<<r)}")
e("  s_waitcnt vmcnt(0)")
e("  s_nop 1")
for mp in range(8):
    c = "0" if mp == 0 else f"v[{ACC}:{ACC+3}]"
    e(f"  v_mfma_f32_16x16x32_bf16 v[{ACC}:{ACC+3}], v[{AD+4*mp}:{AD+4*mp+3}], v[{WD+4*mp}:{WD+4*mp+3}], {c}")
e("  s_cmp_eq_u32 s3, 4")
e("  s_cselect_b32 exec_lo, 0x00ff00ff, -1")
e("  s_cselect_b32 exec_hi, 0x00ff00ff, -1")
e("  s_nop 7")
e(f"  buffer_store_dwordx4 v[{ACC}:{ACC+3}], v7, s[16:19], s22 offen")
e("K2_END:")
e("  s_endpgm")

kstart("k3_kernel")
e("  s_cmp_ge_u32 s2, 72")
e("  s_cbranch_scc1 K3_END")
srd(4, 0, XB); srd(12, 40, XB); srd(16, 56, WS_SIZE)
e("  v_lshrrev_b32 v1, 2, v0")
e("  v_mul_u32_u24 v1, 4608, v1")
e("  v_and_b32 v2, 3, v0")
e("  v_lshl_add_u32 v1, v2, 4, v1")
e("  s_lshl_b32 s20, s2, 6")
e(f"  s_add_u32 s20, s20, {WS_SLAB}")
e(f"  v_mov_b32 v3, {WS_TOP2}")
e("  s_waitcnt lgkmcnt(0)")
e("  buffer_load_dwordx2 v[4:5], v3, s[16:19], 0 offen")
for t in range(9):
    e(f"  buffer_load_dwordx4 v[{16+4*t}:{19+4*t}], v1, s[16:19], s20 offen")
    e(f"  s_add_u32 s20, s20, {16*4608}")
e("  s_waitcnt vmcnt(9)")
e("  v_and_b32 v6, 4, v0")
e("  v_cmp_eq_u32 s[22:23], 0, v6")
e("  s_nop 1")
e("  v_cndmask_b32 v4, v5, v4, s[22:23]")
e("  v_and_b32 v5, 0xffff, v4")
e("  v_sub_u32 v5, 2047, v5")
e("  v_mul_u32_u24 v5, 1152, v5")
e("  v_lshl_add_u32 v5, v2, 2, v5")
e("  s_lshl_b32 s21, s2, 4")
e("  buffer_load_dword v7, v5, s[4:7], s21 offen")
e("  v_not_b32 v8, v4")
e("  v_ashrrev_i32 v8, 31, v8")
e("  v_or_b32 v8, 0x80000000, v8")
e("  v_xor_b32 v8, v8, v4")
e("  v_and_b32 v8, 0xffff0000, v8")
e("  v_mul_f32 v8, 0xbfb8aa3b, v8")
e("  v_exp_f32 v8, v8")
e("  s_nop 0")
e("  v_add_f32 v8, 1.0, v8")
e("  v_rcp_f32 v8, v8")
e("  s_nop 0")
e("  v_cvt_pk_bf16_f32 v8, v8, v8")
e("  v_and_b32 v8, 0xffff0000, v8")
e("  s_waitcnt vmcnt(0)")
for t in range(1, 9):
    e(f"  v_pk_add_f32 v[16:17], v[16:17], v[{16+4*t}:{17+4*t}]")
    e(f"  v_pk_add_f32 v[18:19], v[18:19], v[{18+4*t}:{19+4*t}]")
for ctl in (f"row_ror:4 {DPPM}", f"row_ror:8 {DPPM}"):
    e("  s_nop 1")
    for j in range(4):
        e(f"  v_add_f32_dpp v{16+j}, v{16+j}, v{16+j} {ctl}")
for sw in ("v_permlane16_swap_b32", "v_permlane32_swap_b32"):
    for j in range(4):
        e(f"  v_mov_b32 v{20+j}, v{16+j}")
    e("  s_nop 1")
    for j in range(4):
        e(f"  {sw} v{16+j}, v{20+j}")
    for j in range(4):
        e(f"  v_add_f32 v{16+j}, v{16+j}, v{20+j}")
e("  v_cndmask_b32 v16, v18, v16, s[22:23]")
e("  v_cndmask_b32 v17, v19, v17, s[22:23]")
e("  v_cvt_pk_bf16_f32 v16, v16, v17")
e("  v_and_b32 v17, 0xffff0000, v16")
e("  v_lshlrev_b32 v16, 16, v16")
e("  v_mul_f32 v16, v16, v8")
e("  v_mul_f32 v17, v17, v8")
e("  v_cvt_pk_bf16_f32 v16, v16, v17")
e("  v_and_b32 v17, 0xffff0000, v16")
e("  v_lshlrev_b32 v16, 16, v16")
e("  v_and_b32 v19, 0xffff0000, v7")
e("  v_lshlrev_b32 v18, 16, v7")
e("  v_add_f32 v16, v16, v18")
e("  v_add_f32 v17, v17, v19")
e("  v_cvt_pk_bf16_f32 v16, v16, v17")
e("  s_mov_b64 exec, 0xff")
e("  buffer_store_dword v16, v5, s[12:15], s21 offen")
e("K3_END:")
e("  s_endpgm")

def kd(n, v, s):
    e('.section .rodata,"a"'); e(".p2align 6")
    e(f".amdhsa_kernel {n}")
    e(f"  .amdhsa_next_free_vgpr {v}")
    e(f"  .amdhsa_next_free_sgpr {s}")
    e(f"  .amdhsa_accum_offset {(v+3)//4*4}")
    e("  .amdhsa_group_segment_fixed_size 0")
    e("  .amdhsa_kernarg_size 64")
    e("  .amdhsa_user_sgpr_count 2")
    e("  .amdhsa_user_sgpr_kernarg_segment_ptr 1")
    e("  .amdhsa_system_sgpr_workgroup_id_x 1")
    e("  .amdhsa_float_denorm_mode_32 3")
    e(".end_amdhsa_kernel")
kd("k1_kernel", 88, 48); kd("k2_kernel", 192, 48); kd("k3_kernel", 56, 48)
open(sys.argv[1], "w").write("\n".join(out) + "\n")
```

```python
import sys
NAME = "standalone__moe_arch_mod__prompt"
S, D, F = 2048, 576, 4608
XB = S*D*2
WB = D*F*2
WS_E = 0
WS_GRAN = 4096
WS_DONE = 8192
WS_SLAB = 16384
WS_SIZE = 1 << 20
WS_STAMP = 1 << 21

opts = dict(a.split("=") for a in sys.argv[2:] if "=" in a)
STAMP = int(opts.get("stamp", 0))
COPYF = opts.get("copyf", "sc1")
WNT = opts.get("wnt", "")
NX = 112

out = []
def e(s=""): out.append(s)
def srd(base, koff, size):
    e(f"  s_load_dwordx2 s[{base}:{base+1}], s[0:1], {koff}")
    e(f"  s_mov_b32 s{base+2}, {size}")
    e(f"  s_mov_b32 s{base+3}, 0x20000")
def stamp(i, wait=True):
    if STAMP:
        e(f"  s_memrealtime s[{64+2*i}:{65+2*i}]")
        if wait: e("  s_waitcnt lgkmcnt(0)")
def stamp_flush():
    if STAMP:
        stamp(7)
        e("  s_mov_b64 exec, 1")
        e("  s_lshl_b32 s60, s2, 3")
        e("  s_add_u32 s60, s60, s3")
        e("  s_lshl_b32 s60, s60, 6")
        e(f"  s_add_u32 s60, s60, {WS_STAMP}")
        e("  s_mov_b32 s18, 0x1000000")
        e("  v_mov_b32 v1, 0")
        for j in range(4):
            for k in range(4):
                e(f"  v_mov_b32 v{4+k}, s{64+4*j+k}")
            e(f"  buffer_store_dwordx4 v[4:7], v1, s[16:19], s60 offen offset:{16*j}")
            e("  s_nop 1")

hdr = open('cdna_kernels/%s.s.ref' % NAME).read().split('\n')
for l in hdr:
    if l.startswith('; @launch'): break
    e(l)
LDS = 81920
e(f"; @launch grid=(256,1,1) block=(320,1,1) lds={LDS}")
e('.amdgcn_target "amdgcn-amd-amdhsa--gfx950"')
e(".text")
K = NAME + "_kernel"
e(f".globl {K}"); e(".p2align 8"); e(f".type {K},@function"); e(f"{K}:")
DPPM = "row_mask:0xf bank_mask:0xf"

if STAMP:
    for i in range(16): e(f"  s_mov_b32 s{64+i}, 0")
stamp(0, False)
srd(4, 0, XB); srd(16, 56, WS_SIZE)
e("  v_lshrrev_b32 v1, 6, v0")
e("  v_and_b32 v0, 63, v0")
e("  v_readfirstlane_b32 s3, v1")
e(f"  s_cmp_ge_u32 s2, {NX}")
e("  s_cbranch_scc1 L_W")
srd(8, 8, D*2); srd(12, 40, XB)
e(f"  s_mul_i32 s24, s3, {NX}")
e("  s_add_u32 s24, s24, s2")
e("  s_cmp_ge_u32 s24, 256")
e("  s_cbranch_scc1 L_END")
e("  v_and_b32 v1, 7, v0")
e("  v_lshlrev_b32 v1, 4, v1")
e("  v_lshrrev_b32 v2, 3, v0")
e("  v_mul_u32_u24 v3, 1152, v2")
e("  v_add_u32 v3, v3, v1")
e("  s_mul_i32 s20, s24, 9216")
e("  s_lshl_b32 s21, s24, 3")
e("  s_sub_u32 s21, 2047, s21")
e("  v_sub_u32 v4, s21, v2")
e("  s_mov_b32 s22, 0xffff0000")
e("  s_lshl_b32 s23, s24, 4")
e("  v_mov_b32 v5, s23")
e("  v_lshrrev_b32 v6, 2, v5")
e("  s_waitcnt lgkmcnt(0)")
stamp(1, False)
W, X = 16, 52
for i in range(9):
    e(f"  buffer_load_dwordx4 v[{X+4*i}:{X+4*i+3}], v3, s[4:7], s20 offen offset:{128*i}")
for i in range(9):
    e(f"  buffer_load_dwordx4 v[{W+4*i}:{W+4*i+3}], v1, s[8:11], 0 offen offset:{128*i}")
e(f"  s_load_dword s26, s[16:17], {WS_E}")
for j in range(4): e(f"  v_mov_b32 v{8+j}, 0")
for i in range(9):
    e(f"  s_waitcnt vmcnt({8-i})")
    for j in range(4):
        e(f"  v_dot2c_f32_bf16 v{8+j}, v{X+4*i+j}, v{W+4*i+j}")
stamp(2, False)
e("  s_waitcnt lgkmcnt(0)")
e("  s_add_u32 s26, s26, 0x01010101")
e("  s_nop 0")
e("  v_add_f32 v8, v8, v9")
e("  v_add_f32 v10, v10, v11")
e("  v_add_f32 v8, v8, v10")
e("  v_mov_b32 v14, s26")
e("  v_mov_b32 v15, s26")
e(f"  v_add_f32_dpp v8, v8, v8 quad_perm:[1,0,3,2] {DPPM}")
e("  s_nop 1")
e(f"  v_add_f32_dpp v8, v8, v8 quad_perm:[2,3,0,1] {DPPM}")
e("  s_nop 1")
e(f"  v_add_f32_dpp v8, v8, v8 row_half_mirror {DPPM}")
e("  v_cvt_pk_bf16_f32 v9, v8, v8")
e("  v_cmp_u_f32 vcc, v8, v8")
e("  v_ashrrev_i32 v10, 31, v9")
e("  v_or_b32 v10, 0x80000000, v10")
e("  v_xor_b32 v9, v9, v10")
e("  v_cndmask_b32 v9, v9, 0, vcc")
e("  v_and_or_b32 v9, v9, s22, v4")
e("  s_nop 1")
e(f"  v_max_u32_dpp v12, v9, v9 row_ror:8 {DPPM}")
e(f"  v_min_u32_dpp v13, v9, v9 row_ror:8 {DPPM}")
for ctl in ("row_bcast:15 row_mask:0xa bank_mask:0xf", "row_bcast:31 row_mask:0xc bank_mask:0xf"):
    e("  s_nop 1")
    e(f"  v_min_u32_dpp v10, v12, v12 {ctl}")
    e(f"  v_max_u32_dpp v11, v13, v13 {ctl}")
    e(f"  v_max_u32_dpp v12, v12, v12 {ctl}")
    e(f"  v_max_u32 v13, v10, v11")
e("  s_lshl_b64 exec, 1, 63")
e(f"  buffer_store_dwordx4 v[12:15], v5, s[16:19], 0 offen offset:{WS_GRAN-1 if 0 else 0} sc1".replace("0 offen offset:0", "s27 offen"))
out.insert(len(out)-2, f"  s_mov_b32 s27, {WS_GRAN}")
e("  s_mov_b64 exec, -1")
stamp(3, False)
for i in range(9):
    e(f"  buffer_store_dwordx4 v[{X+4*i}:{X+4*i+3}], v3, s[12:15], s20 offen offset:{128*i} {COPYF}")
e(f"  s_mov_b32 s27, {WS_DONE}")
e("  s_mov_b64 exec, 1")
e("  s_waitcnt vmcnt(0)")
e(f"  buffer_store_dword v14, v6, s[16:19], s27 offen sc1")
stamp_flush()
e("  s_endpgm")

XIMG = 73728
TEX = XIMG + 3072
e("L_W:")
e("  s_cmp_ge_u32 s2, 256")
e("  s_cbranch_scc1 L_END")
srd(12, 32, WB)
e("  s_load_dwordx4 s[24:27], s[0:1], 16")
e("  s_mov_b32 s10, %d" % WB)
e("  s_mov_b32 s11, 0x20000")
e(f"  s_sub_u32 s44, s2, {NX}")
e("  s_and_b32 s45, s44, 7")
e("  s_mul_i32 s45, s45, 18")
e("  s_lshr_b32 s46, s44, 3")
e("  s_add_u32 s45, s45, s46")
e("  v_and_b32 v2, 15, v0")
e("  v_lshrrev_b32 v3, 4, v0")
AD = 160
WD = 128
BF = 48
AF = 12
ACC = 120
e("  v_mul_u32_u24 v4, 9216, v3")
e("  v_lshl_add_u32 v4, v2, 4, v4")
e("  s_mul_i32 s20, s45, %d" % (32*1152))
e("  s_lshl_b32 s21, s3, 8")
e("  s_add_u32 s20, s20, s21")
e("  s_add_u32 s21, s20, 4608")
def common_setup():
    e("  v_lshrrev_b32 v5, 2, v2")
    e("  v_lshl_add_u32 v5, v3, 3, v5")
    e("  v_lshlrev_b32 v5, 3, v5")
    e("  v_and_b32 v6, 2, v0")
    e("  v_lshl_add_u32 v5, v6, 1, v5")
    e(f"  v_add_u32 v5, {TEX}, v5")
    e("  v_and_b32 v6, 1, v0")
    e("  v_cmp_eq_u32 vcc, 1, v6")
    e("  v_mov_b32 v6, 0xffff")
    e("  v_mov_b32 v7, 0xffff0000")
    e("  v_cndmask_b32 v6, v6, v7, vcc")
    e("  v_lshlrev_b32 v7, 6, v2")
    e("  v_lshl_add_u32 v7, v3, 4, v7")
    e("  s_mul_i32 s22, s45, 4608")
    e("  s_lshl_b32 s23, s3, 10")
    e("  s_add_u32 s22, s22, s23")
    e(f"  s_add_u32 s22, s22, {WS_SLAB}")
    for j in range(32): e(f"  v_mov_b32 v{AD+j}, 0")
e("  s_cmp_eq_u32 s3, 4")
e("  s_cbranch_scc1 L_POLL")
e("  v_lshrrev_b32 v8, 2, v0")
e("  v_mul_u32_u24 v8, 9216, v8")
e("  v_lshrrev_b32 v9, 4, v0")
e("  v_and_b32 v9, 2, v9")
e("  v_xor_b32 v9, v9, v0")
e("  v_and_b32 v9, 3, v9")
e("  v_lshl_add_u32 v8, v9, 4, v8")
e("  s_and_b32 s28, s3, 1")
e("  s_mul_i32 s28, s28, %d" % (288*9216))
e("  s_lshl_b32 s29, s45, 6")
e("  s_add_u32 s28, s28, s29")
e("  s_mul_i32 s30, s3, 18432")
e("  s_mov_b32 m0, s30")
e("  s_add_u32 s31, s30, 18432")
e("  s_cmp_ge_u32 s3, 2")
e("  s_waitcnt lgkmcnt(0)")
e("  s_cselect_b32 s8, s26, s24")
e("  s_cselect_b32 s9, s27, s25")
stamp(1, False)
e(f"  s_load_dword s47, s[16:17], {WS_E}")
e("L_DMA:")
e(f"  buffer_load_dwordx4 v8, s[8:11], s28 offen {WNT} lds")
e("  s_addk_i32 m0, 0x400")
e("  s_add_u32 s28, s28, %d" % (16*9216))
e("  s_cmp_lt_u32 m0, s31")
e("  s_cbranch_scc1 L_DMA")
for mp in range(8):
    e(f"  buffer_load_dwordx4 v[{WD+4*mp}:{WD+4*mp+3}], v4, s[12:15], s{20+(mp>>2)} offen offset:{1152*(mp&3)} {WNT}")
stamp(2, False)
common_setup()
e("  v_lshlrev_b32 v8, 9, v3")
e("  v_bfe_u32 v9, v0, 2, 2")
e("  v_lshl_add_u32 v8, v9, 6, v8")
e("  v_and_b32 v9, 3, v0")
e("  v_lshl_add_u32 v8, v9, 3, v8")
e("  v_and_b32 v9, 1, v3")
e("  v_lshl_add_u32 v8, v9, 5, v8")
e("  v_add_u32 v8, s30, v8")
e("  v_xor_b32 v9, 32, v8")
e("  v_and_b32 v10, 1, v0")
e("  v_mul_u32_u24 v10, 1152, v10")
e("  v_lshl_add_u32 v10, v3, 4, v10")
e("  s_and_b32 s28, s3, 1")
e("  s_mul_i32 s28, s28, 576")
e(f"  s_add_u32 s28, s28, {XIMG}")
e("  v_add_u32 v10, s28, v10")
e("  s_lshl_b32 s28, s3, 8")
e(f"  s_add_u32 s28, s28, {TEX}")
e("  v_lshl_add_u32 v11, v2, 3, s28")
e("  s_waitcnt lgkmcnt(0)")
e("  s_add_u32 s47, s47, 0x01010101")
for s in range(9):
    e(f"  s_waitcnt vmcnt({24-2*s})")
    if s == 0: stamp(3, False)
    for hh in range(2):
        for u in range(2):
            r = BF + 8*s + 4*hh + 2*u
            e(f"  ds_read_b64_tr_b16 v[{r}:{r+1}], v{8+hh} offset:{2048*s+256*u}")
stamp(4, False)
e("  s_waitcnt lgkmcnt(0)")
e("  s_barrier")
for s in range(9):
    e(f"  ds_read_b128 v[{AF+4*s}:{AF+4*s+3}], v10 offset:{64*s}")
for s in range(9):
    e(f"  s_waitcnt lgkmcnt({8-s})")
    for hh in range(2):
        c = "0" if s == 0 else f"v[{ACC+4*hh}:{ACC+4*hh+3}]"
        r = BF + 8*s + 4*hh
        e(f"  v_mfma_f32_16x16x32_bf16 v[{ACC+4*hh}:{ACC+4*hh+3}], v[{AF+4*s}:{AF+4*s+3}], v[{r}:{r+3}], {c}")
e("  s_mov_b64 exec, 0xffff")
e("  s_nop 7")
e(f"  ds_write_b64 v11, v[{ACC}:{ACC+1}]")
e(f"  ds_write_b64 v11, v[{ACC+4}:{ACC+5}] offset:128")
e("  s_mov_b64 exec, -1")
e("  s_branch L_JOIN")
e("L_POLL:")
e("  v_lshlrev_b32 v8, 4, v0")
e("  s_waitcnt lgkmcnt(0)")
stamp(1, False)
e(f"  s_load_dword s47, s[16:17], {WS_E}")
e("  s_load_dwordx2 s[8:9], s[0:1], 40")
e("  s_mov_b32 s10, %d" % XB)
common_setup()
e(f"  s_mov_b32 s27, {WS_GRAN}")
e("  s_waitcnt lgkmcnt(0)")
e("  s_add_u32 s47, s47, 0x01010101")
stamp(2, False)
e("  s_mov_b32 s61, 200000")
e("L_P1:")
e("  s_sub_u32 s61, s61, 1")
e("  s_cbranch_scc1 L_P1X")
for j in range(4):
    e(f"  buffer_load_dwordx4 v[{12+4*j}:{15+4*j}], v8, s[16:19], s27 offen offset:{1024*j} sc1")
e("  s_waitcnt vmcnt(0)")
e("  v_cmp_ne_u32 vcc, s47, v14")
e("  v_cmp_ne_u32 s[32:33], s47, v18")
e("  v_cmp_ne_u32 s[34:35], s47, v22")
e("  v_cmp_ne_u32 s[36:37], s47, v26")
e("  s_or_b64 vcc, vcc, s[32:33]")
e("  s_or_b64 s[34:35], s[34:35], s[36:37]")
e("  s_or_b64 vcc, vcc, s[34:35]")
e("  s_cbranch_scc1 L_P1")
e("L_P1X:")
stamp(3, False)
def merge(a1, a2, b1, b2, t):
    e(f"  v_min_u32 v{t}, v{a1}, v{b1}")
    e(f"  v_max_u32 v{a1}, v{a1}, v{b1}")
    e(f"  v_max3_u32 v{a2}, v{t}, v{a2}, v{b2}")
merge(12, 13, 16, 17, 9); merge(20, 21, 24, 25, 10); merge(12, 13, 20, 21, 9)
for ctl in (f"quad_perm:[1,0,3,2] {DPPM}", f"quad_perm:[2,3,0,1] {DPPM}", f"row_ror:4 {DPPM}", f"row_ror:8 {DPPM}",
            "row_bcast:15 row_mask:0xa bank_mask:0xf", "row_bcast:31 row_mask:0xc bank_mask:0xf"):
    e("  s_nop 1")
    e(f"  v_min_u32_dpp v10, v12, v12 {ctl}")
    e(f"  v_max_u32_dpp v11, v13, v13 {ctl}")
    e(f"  v_max_u32_dpp v12, v12, v12 {ctl}")
    e(f"  v_max_u32 v13, v10, v11")
e("  v_cmp_gt_u32 vcc, 8, v0")
e("  v_readlane_b32 s32, v12, 63")
e("  v_readlane_b32 s33, v13, 63")
e("  s_and_b32 s38, s32, 0xffff")
e("  s_and_b32 s39, s33, 0xffff")
e("  s_sub_u32 s38, 2047, s38")
e("  s_sub_u32 s39, 2047, s39")
e("  s_mul_i32 s34, s38, 1152")
e("  s_mul_i32 s35, s39, 1152")
e(f"  s_mov_b32 m0, {XIMG}")
e("  s_sub_u32 s36, s35, 128")
e("  buffer_load_dwordx4 v8, s[4:7], s34 offen lds")
e("  s_add_u32 s37, s34, 1024")
e("  v_mov_b32 v9, s36")
e("  v_mov_b32 v10, s37")
e("  s_addk_i32 m0, 0x400")
e("  v_cndmask_b32 v9, v9, v10, vcc")
e("  v_add_u32 v9, v9, v8")
e("  buffer_load_dwordx4 v9, s[4:7], 0 offen lds")
e("  s_addk_i32 m0, 0x400")
e("  s_add_u32 s36, s35, 896")
e("  s_mov_b64 exec, 0xffff")
e("  buffer_load_dwordx4 v8, s[4:7], s36 offen lds")
e("  s_mov_b32 exec_lo, 0x00ff00ff")
e("  s_mov_b32 exec_hi, 0x00ff00ff")
for mp in range(8):
    e(f"  buffer_load_dwordx4 v[{WD+4*mp}:{WD+4*mp+3}], v4, s[12:15], s{20+(mp>>2)} offen offset:{1152*(mp&3)} {WNT}")
e("  s_mov_b64 exec, -1")
e("  v_and_b32 v9, 4, v0")
e("  v_cmp_eq_u32 s[48:49], 0, v9")
e("  v_mov_b32 v28, s33")
e("  v_mov_b32 v29, s32")
e("  v_cndmask_b32 v28, v28, v29, s[48:49]")
e("  v_and_b32 v29, 0xffff, v28")
e("  v_sub_u32 v29, 2047, v29")
e("  v_lshrrev_b32 v30, 3, v29")
e("  v_lshlrev_b32 v30, 2, v30")
e("  v_mul_u32_u24 v29, 1152, v29")
e("  v_and_b32 v31, 3, v0")
e("  v_lshl_add_u32 v29, v31, 2, v29")
e("  v_not_b32 v32, v28")
e("  v_ashrrev_i32 v32, 31, v32")
e("  v_or_b32 v32, 0x80000000, v32")
e("  v_xor_b32 v32, v32, v28")
e("  v_and_b32 v32, 0xffff0000, v32")
e("  v_mul_f32 v32, 0xbfb8aa3b, v32")
e("  v_exp_f32 v32, v32")
e("  s_nop 0")
e("  v_add_f32 v32, 1.0, v32")
e("  v_rcp_f32 v32, v32")
e("  s_nop 0")
e("  v_cvt_pk_bf16_f32 v32, v32, v32")
e("  v_and_b32 v32, 0xffff0000, v32")
e("  v_mul_u32_u24 v33, 288, v9")
e("  v_lshl_add_u32 v33, v31, 2, v33")
e("  s_lshl_b32 s50, s44, 4")
e(f"  s_add_u32 s51, s50, {XIMG}")
e("  v_add_u32 v33, s51, v33")
e("  v_lshrrev_b32 v34, 2, v0")
e("  v_mul_u32_u24 v34, 4608, v34")
e("  v_lshl_add_u32 v34, v31, 4, v34")
e("  s_waitcnt vmcnt(8)")
stamp(4)
e("  s_barrier")
e("L_JOIN:")
e("  s_waitcnt lgkmcnt(0)")
e("  s_barrier")
e("  ds_read2_b32 v[12:13], v5 offset0:0 offset1:64")
e("  ds_read2_b32 v[14:15], v5 offset0:128 offset1:192")
e("  ds_read2_b32 v[16:17], v5 offset0:8 offset1:72")
e("  ds_read2_b32 v[18:19], v5 offset0:136 offset1:200")
e("  s_mov_b32 s40, 0xbfb8aa3b")
e("  s_mov_b32 s41, 0x07060501")
e("  s_mov_b32 s42, 0x07060502")
e("  s_mov_b32 s43, 0x07060503")
e("  s_waitcnt lgkmcnt(0)")
stamp(5, False)
seqs = []
for b, t in ((12, 20), (16, 24)):
    q = []
    q.append(f"v_add_f32 v{b}, v{b}, v{b+1}")
    q.append(f"v_add_f32 v{b+2}, v{b+2}, v{b+3}")
    q.append(f"v_cvt_pk_bf16_f32 v{b}, v{b}, v{b+2}")
    q.append(f"v_and_b32 v{b+2}, 0xffff0000, v{b}")
    q.append(f"v_lshlrev_b32 v{b}, 16, v{b}")
    q.append(f"v_mul_f32 v{b+1}, s40, v{b}")
    q.append(f"v_exp_f32 v{b+1}, v{b+1}")
    q.append(f"v_add_f32 v{b+1}, 1.0, v{b+1}")
    q.append(f"v_rcp_f32 v{b+1}, v{b+1}")
    q.append(f"v_mul_f32 v{b}, v{b}, v{b+1}")
    q.append(f"v_cvt_pk_bf16_f32 v{b}, v{b}, v{b}")
    q.append(f"v_and_b32 v{b}, 0xffff0000, v{b}")
    q.append(f"v_mul_f32 v{b}, v{b}, v{b+2}")
    q.append(f"v_cvt_pk_bf16_f32 v{b}, v{b}, v{b}")
    q.append(f"v_and_b32 v{b}, v{b}, v6")
    seqs.append(q)
for a, b in zip(*seqs):
    e("  " + a); e("  " + b)
e("  s_nop 0")
for mp in range(8):
    src = 12 if mp < 4 else 16
    q = mp & 3
    for r in range(4):
        n = (4*(r-q)) % 16
        ctl = "quad_perm:[0,1,2,3]" if n == 0 else f"row_ror:{n}"
        e(f"  v_mov_b32_dpp v{AD+4*mp+r}, v{src} {ctl} row_mask:0xf bank_mask:{hex(1<<r)}")
e("  s_waitcnt vmcnt(0)")
e("  s_nop 0")
for mp in range(8):
    c = "0" if mp == 0 else f"v[{ACC}:{ACC+3}]"
    e(f"  v_mfma_f32_16x16x32_bf16 v[{ACC}:{ACC+3}], v[{AD+4*mp}:{AD+4*mp+3}], v[{WD+4*mp}:{WD+4*mp+3}], {c}")
e("  s_cmp_eq_u32 s3, 4")
e("  s_cselect_b32 exec_lo, 0x00ff00ff, -1")
e("  s_cselect_b32 exec_hi, 0x00ff00ff, -1")
e("  v_mov_b32 v23, s47")
e("  s_nop 4")
for j in range(3):
    e(f"  v_perm_b32 v{20+j}, v{ACC+j}, v{ACC+3}, s{41+j}")
e(f"  buffer_store_dwordx4 v[20:23], v7, s[16:19], s22 offen sc1")
stamp(6, False)
e("  s_cbranch_scc0 L_FIN")
e("  s_cmp_ge_u32 s44, 72")
e("  s_cbranch_scc1 L_FIN")
e("  s_mov_b64 exec, -1")
e("  ds_read_b32 v35, v33")
e(f"  s_mov_b32 s27, {WS_DONE}")
e("  s_lshl_b32 s20, s44, 6")
e(f"  s_add_u32 s20, s20, {WS_SLAB}")
for t in range(1, 9):
    e(f"  s_add_u32 s{52+t}, s20, {16*4608*t}")
e("  s_mov_b32 s52, s20")
e("  s_mov_b32 s41, 0x0c04000c")
e("  s_mov_b32 s42, 0x04020100")
R0 = 48
e("  s_mov_b32 s61, 200000")
e("L_P2:")
e("  s_sub_u32 s61, s61, 1")
e("  s_cbranch_scc1 L_P2X")
e(f"  buffer_load_dword v36, v30, s[16:19], s27 offen sc1")
for t in range(9):
    e(f"  buffer_load_dwordx4 v[{R0+4*t}:{R0+3+4*t}], v34, s[16:19], s{52+t} offen sc1")
e("  s_waitcnt vmcnt(9)")
e("  v_xor_b32 v36, s47, v36")
for t in range(9):
    e(f"  s_waitcnt vmcnt({8-t})")
    r = R0 + 4*t
    e(f"  v_bitop3_b32 v36, v36, v{r+3}, s47 bitop3:0xf6")
    e(f"  v_perm_b32 v{r+3}, v{r+1}, v{r}, s41")
    e(f"  v_perm_b32 v{r+3}, v{r+2}, v{r+3}, s42")
    if t:
        e(f"  v_pk_add_f32 v[{R0}:{R0+1}], v[{R0}:{R0+1}], v[{r}:{r+1}]")
        e(f"  v_pk_add_f32 v[{R0+2}:{R0+3}], v[{R0+2}:{R0+3}], v[{r+2}:{r+3}]")
e("  v_cmp_ne_u32 vcc, 0, v36")
e("  s_cbranch_vccnz L_P2")
e("L_P2X:")
for ctl in (f"row_ror:4 {DPPM}", f"row_ror:8 {DPPM}"):
    e("  s_nop 1")
    for j in range(4):
        e(f"  v_add_f32_dpp v{R0+j}, v{R0+j}, v{R0+j} {ctl}")
for sw in ("v_permlane16_swap_b32", "v_permlane32_swap_b32"):
    for j in range(4):
        e(f"  v_mov_b32 v{20+j}, v{R0+j}")
    e("  s_nop 1")
    for j in range(4):
        e(f"  {sw} v{R0+j}, v{20+j}")
    for j in range(4):
        e(f"  v_add_f32 v{R0+j}, v{R0+j}, v{20+j}")
e(f"  v_cndmask_b32 v16, v{R0+2}, v{R0}, s[48:49]")
e(f"  v_cndmask_b32 v17, v{R0+3}, v{R0+1}, s[48:49]")
e("  v_cvt_pk_bf16_f32 v16, v16, v17")
e("  v_and_b32 v17, 0xffff0000, v16")
e("  v_lshlrev_b32 v16, 16, v16")
e("  v_mul_f32 v16, v16, v32")
e("  v_mul_f32 v17, v17, v32")
e("  v_cvt_pk_bf16_f32 v16, v16, v17")
e("  v_and_b32 v17, 0xffff0000, v16")
e("  v_lshlrev_b32 v16, 16, v16")
e("  s_waitcnt lgkmcnt(0)")
e("  v_and_b32 v19, 0xffff0000, v35")
e("  v_lshlrev_b32 v18, 16, v35")
e("  v_add_f32 v16, v16, v18")
e("  v_add_f32 v17, v17, v19")
e("  v_cvt_pk_bf16_f32 v16, v16, v17")
e("  s_mov_b64 exec, 0xff")
e("  buffer_store_dword v16, v29, s[8:11], s50 offen sc1")
e("  s_cmp_lg_u32 s44, 0")
e("  s_cbranch_scc1 L_FIN")
e("  s_mov_b64 exec, 1")
e("  v_mov_b32 v16, s47")
e(f"  v_mov_b32 v17, {WS_E}")
e("  buffer_store_dword v16, v17, s[16:19], 0 offen sc1")
e("L_FIN:")
stamp_flush()
e("L_END:")
e("  s_endpgm")

e('.section .rodata,"a"'); e(".p2align 6")
e(f".amdhsa_kernel {K}")
e(f"  .amdhsa_next_free_vgpr 192")
e(f"  .amdhsa_next_free_sgpr 96")
e(f"  .amdhsa_accum_offset 192")
e("  .amdhsa_group_segment_fixed_size 0")
e("  .amdhsa_kernarg_size 64")
e("  .amdhsa_user_sgpr_count 2")
e("  .amdhsa_user_sgpr_kernarg_segment_ptr 1")
e("  .amdhsa_system_sgpr_workgroup_id_x 1")
e("  .amdhsa_float_denorm_mode_32 3")
e(".end_amdhsa_kernel")
open(sys.argv[1], "w").write("\n".join(out) + "\n")
```

```python
import sys
NAME = "standalone__moe_arch_mod__prompt"
S, D, F = 2048, 576, 4608
XB = S*D*2
WB = D*F*2
WS_E = 0
WS_GRAN = 4096
WS_DONE = 8192
WS_SLAB = 16384
WS_SIZE = 1 << 20
WS_STAMP = 1 << 21

opts = dict(a.split("=") for a in sys.argv[2:] if "=" in a)
STAMP = int(opts.get("stamp", 0))
COPYF = opts.get("copyf", "sc1")
WNT = opts.get("wnt", "")
NX = 112
AMP = opts.get("amp")
if AMP:
    STAMP = 1

out = []
ampn = 0
def e(s=""): out.append(s)
def srd(base, koff, size):
    e(f"  s_load_dwordx2 s[{base}:{base+1}], s[0:1], {koff}")
    e(f"  s_mov_b32 s{base+2}, {size}")
    e(f"  s_mov_b32 s{base+3}, 0x20000")
def stamp(i, wait=True):
    if STAMP:
        e(f"  s_memrealtime s[{64+2*i}:{65+2*i}]")
        if wait: e("  s_waitcnt lgkmcnt(0)")
def stamp_flush():
    if AMP:
        A, B, KK, WV = map(int, AMP.split(","))
        global ampn
        ampn += 1
        stamp(7)
        e(f"  s_cmp_lg_u32 s2, {NX+8}")
        e(f"  s_cbranch_scc1 L_AMPX{ampn}")
        e(f"  s_cmp_lg_u32 s3, {WV}")
        e(f"  s_cbranch_scc1 L_AMPX{ampn}")
        e(f"  s_sub_u32 s60, s{64+2*B}, s{64+2*A}")
        e(f"  s_mul_i32 s60, s60, {KK}")
        e(f"L_AMP{ampn}:")
        e(f"  s_memrealtime s[62:63]")
        e(f"  s_waitcnt lgkmcnt(0)")
        e(f"  s_sub_u32 s62, s62, s78")
        e(f"  s_cmp_lt_u32 s62, s60")
        e(f"  s_cbranch_scc1 L_AMP{ampn}")
        e(f"L_AMPX{ampn}:")
        return
    if STAMP:
        stamp(7)
        e("  s_mov_b64 exec, 1")
        e("  s_lshl_b32 s60, s2, 3")
        e("  s_add_u32 s60, s60, s3")
        e("  s_lshl_b32 s60, s60, 6")
        e(f"  s_add_u32 s60, s60, {WS_STAMP}")
        e("  s_mov_b32 s18, 0x1000000")
        e("  v_mov_b32 v1, 0")
        for j in range(4):
            for k in range(4):
                e(f"  v_mov_b32 v{4+k}, s{64+4*j+k}")
            e(f"  buffer_store_dwordx4 v[4:7], v1, s[16:19], s60 offen offset:{16*j}")
            e("  s_nop 1")

hdr = open('cdna_kernels/%s.s.ref' % NAME).read().split('\n')
for l in hdr:
    if l.startswith('; @launch'): break
    e(l)
LDS = 81920
e(f"; @launch grid=(256,1,1) block=(320,1,1) lds={LDS}")
e('.amdgcn_target "amdgcn-amd-amdhsa--gfx950"')
e(".text")
K = NAME + "_kernel"
e(f".globl {K}"); e(".p2align 8"); e(f".type {K},@function"); e(f"{K}:")
DPPM = "row_mask:0xf bank_mask:0xf"

if STAMP:
    for i in range(16): e(f"  s_mov_b32 s{64+i}, 0")
stamp(0, False)
srd(4, 0, XB); srd(16, 56, WS_SIZE)
e("  v_lshrrev_b32 v1, 6, v0")
e("  v_and_b32 v0, 63, v0")
e("  v_readfirstlane_b32 s3, v1")
e(f"  s_cmp_ge_u32 s2, {NX}")
e("  s_cbranch_scc1 L_W")
srd(8, 8, D*2); srd(12, 40, XB)
e(f"  s_mul_i32 s24, s3, {NX}")
e("  s_add_u32 s24, s24, s2")
e("  s_cmp_ge_u32 s24, 256")
e("  s_cbranch_scc1 L_END")
e("  v_and_b32 v1, 7, v0")
e("  v_lshlrev_b32 v1, 4, v1")
e("  v_lshrrev_b32 v2, 3, v0")
e("  v_mul_u32_u24 v3, 1152, v2")
e("  v_add_u32 v3, v3, v1")
e("  s_mul_i32 s20, s24, 9216")
e("  s_lshl_b32 s21, s24, 3")
e("  s_sub_u32 s21, 2047, s21")
e("  v_sub_u32 v4, s21, v2")
e("  s_mov_b32 s22, 0xffff0000")
e("  s_lshl_b32 s23, s24, 4")
e("  v_mov_b32 v5, s23")
e("  v_lshrrev_b32 v6, 2, v5")
e("  s_waitcnt lgkmcnt(0)")
stamp(1, False)
W, X = 16, 52
for i in range(9):
    e(f"  buffer_load_dwordx4 v[{X+4*i}:{X+4*i+3}], v3, s[4:7], s20 offen offset:{128*i}")
for i in range(9):
    e(f"  buffer_load_dwordx4 v[{W+4*i}:{W+4*i+3}], v1, s[8:11], 0 offen offset:{128*i}")
e(f"  s_load_dword s26, s[16:17], {WS_E}")
for j in range(4): e(f"  v_mov_b32 v{8+j}, 0")
for i in range(9):
    e(f"  s_waitcnt vmcnt({8-i})")
    for j in range(4):
        e(f"  v_dot2c_f32_bf16 v{8+j}, v{X+4*i+j}, v{W+4*i+j}")
stamp(2, False)
e("  s_waitcnt lgkmcnt(0)")
e("  s_add_u32 s26, s26, 0x01010101")
e("  s_nop 0")
e("  v_add_f32 v8, v8, v9")
e("  v_add_f32 v10, v10, v11")
e("  v_add_f32 v8, v8, v10")
e("  v_mov_b32 v14, s26")
e("  v_mov_b32 v15, s26")
e(f"  v_add_f32_dpp v8, v8, v8 quad_perm:[1,0,3,2] {DPPM}")
e("  s_nop 1")
e(f"  v_add_f32_dpp v8, v8, v8 quad_perm:[2,3,0,1] {DPPM}")
e("  s_nop 1")
e(f"  v_add_f32_dpp v8, v8, v8 row_half_mirror {DPPM}")
e("  v_cvt_pk_bf16_f32 v9, v8, v8")
e("  v_cmp_u_f32 vcc, v8, v8")
e("  v_ashrrev_i32 v10, 31, v9")
e("  v_or_b32 v10, 0x80000000, v10")
e("  v_xor_b32 v9, v9, v10")
e("  v_cndmask_b32 v9, v9, 0, vcc")
e("  v_and_or_b32 v9, v9, s22, v4")
e("  s_nop 1")
e(f"  v_max_u32_dpp v12, v9, v9 row_ror:8 {DPPM}")
e(f"  v_min_u32_dpp v13, v9, v9 row_ror:8 {DPPM}")
for ctl in ("row_bcast:15 row_mask:0xa bank_mask:0xf", "row_bcast:31 row_mask:0xc bank_mask:0xf"):
    e("  s_nop 1")
    e(f"  v_min_u32_dpp v10, v12, v12 {ctl}")
    e(f"  v_max_u32_dpp v11, v13, v13 {ctl}")
    e(f"  v_max_u32_dpp v12, v12, v12 {ctl}")
    e(f"  v_max_u32 v13, v10, v11")
e("  s_lshl_b64 exec, 1, 63")
e(f"  buffer_store_dwordx4 v[12:15], v5, s[16:19], 0 offen offset:{WS_GRAN-1 if 0 else 0} sc1".replace("0 offen offset:0", "s27 offen"))
out.insert(len(out)-2, f"  s_mov_b32 s27, {WS_GRAN}")
e("  s_mov_b64 exec, -1")
stamp(3, False)
for i in range(9):
    e(f"  buffer_store_dwordx4 v[{X+4*i}:{X+4*i+3}], v3, s[12:15], s20 offen offset:{128*i} {COPYF}")
e(f"  s_mov_b32 s27, {WS_DONE}")
e("  s_mov_b64 exec, 1")
e("  s_waitcnt vmcnt(0)")
e(f"  buffer_store_dword v14, v6, s[16:19], s27 offen sc1")
stamp_flush()
e("  s_endpgm")

XIMG = 73728
TEX = XIMG + 3072
e("L_W:")
e("  s_cmp_ge_u32 s2, 256")
e("  s_cbranch_scc1 L_END")
srd(12, 32, WB)
e("  s_load_dwordx4 s[24:27], s[0:1], 16")
e("  s_mov_b32 s10, %d" % WB)
e("  s_mov_b32 s11, 0x20000")
e(f"  s_sub_u32 s44, s2, {NX}")
e("  s_and_b32 s45, s44, 7")
e("  s_mul_i32 s45, s45, 18")
e("  s_lshr_b32 s46, s44, 3")
e("  s_add_u32 s45, s45, s46")
e("  v_and_b32 v2, 15, v0")
e("  v_lshrrev_b32 v3, 4, v0")
AD = 160
WD = 128
BF = 48
AF = 12
ACC = 120
e("  v_mul_u32_u24 v4, 9216, v3")
e("  v_lshl_add_u32 v4, v2, 4, v4")
e("  s_mul_i32 s20, s45, %d" % (32*1152))
e("  s_lshl_b32 s21, s3, 8")
e("  s_add_u32 s20, s20, s21")
e("  s_add_u32 s21, s20, 4608")
def common_setup():
    e("  v_lshrrev_b32 v5, 2, v2")
    e("  v_lshl_add_u32 v5, v3, 3, v5")
    e("  v_lshlrev_b32 v5, 3, v5")
    e("  v_and_b32 v6, 2, v0")
    e("  v_lshl_add_u32 v5, v6, 1, v5")
    e(f"  v_add_u32 v5, {TEX}, v5")
    e("  v_and_b32 v6, 1, v0")
    e("  v_cmp_eq_u32 vcc, 1, v6")
    e("  v_mov_b32 v6, 0xffff")
    e("  v_mov_b32 v7, 0xffff0000")
    e("  v_cndmask_b32 v6, v6, v7, vcc")
    e("  v_lshlrev_b32 v7, 6, v2")
    e("  v_lshl_add_u32 v7, v3, 4, v7")
    e("  s_mul_i32 s22, s45, 4608")
    e("  s_lshl_b32 s23, s3, 10")
    e("  s_add_u32 s22, s22, s23")
    e(f"  s_add_u32 s22, s22, {WS_SLAB}")
    for j in range(32): e(f"  v_mov_b32 v{AD+j}, 0")
e("  s_cmp_eq_u32 s3, 4")
e("  s_cbranch_scc1 L_POLL")
e("  v_lshrrev_b32 v8, 2, v0")
e("  v_mul_u32_u24 v8, 9216, v8")
e("  v_lshrrev_b32 v9, 4, v0")
e("  v_and_b32 v9, 2, v9")
e("  v_xor_b32 v9, v9, v0")
e("  v_and_b32 v9, 3, v9")
e("  v_lshl_add_u32 v8, v9, 4, v8")
e("  s_and_b32 s28, s3, 1")
e("  s_mul_i32 s28, s28, %d" % (288*9216))
e("  s_lshl_b32 s29, s45, 6")
e("  s_add_u32 s28, s28, s29")
e("  s_mul_i32 s30, s3, 18432")
e("  s_mov_b32 m0, s30")
e("  s_add_u32 s31, s30, 18432")
e("  s_cmp_ge_u32 s3, 2")
e("  s_waitcnt lgkmcnt(0)")
e("  s_cselect_b32 s8, s26, s24")
e("  s_cselect_b32 s9, s27, s25")
stamp(1, False)
e(f"  s_load_dword s47, s[16:17], {WS_E}")
e("L_DMA:")
e(f"  buffer_load_dwordx4 v8, s[8:11], s28 offen {WNT} lds")
e("  s_addk_i32 m0, 0x400")
e("  s_add_u32 s28, s28, %d" % (16*9216))
e("  s_cmp_lt_u32 m0, s31")
e("  s_cbranch_scc1 L_DMA")
for mp in range(8):
    e(f"  buffer_load_dwordx4 v[{WD+4*mp}:{WD+4*mp+3}], v4, s[12:15], s{20+(mp>>2)} offen offset:{1152*(mp&3)} {WNT}")
stamp(2, False)
common_setup()
e("  v_lshlrev_b32 v8, 9, v3")
e("  v_bfe_u32 v9, v0, 2, 2")
e("  v_lshl_add_u32 v8, v9, 6, v8")
e("  v_and_b32 v9, 3, v0")
e("  v_lshl_add_u32 v8, v9, 3, v8")
e("  v_and_b32 v9, 1, v3")
e("  v_lshl_add_u32 v8, v9, 5, v8")
e("  v_add_u32 v8, s30, v8")
e("  v_xor_b32 v9, 32, v8")
e("  v_and_b32 v10, 1, v0")
e("  v_mul_u32_u24 v10, 1152, v10")
e("  v_lshl_add_u32 v10, v3, 4, v10")
e("  s_and_b32 s28, s3, 1")
e("  s_mul_i32 s28, s28, 576")
e(f"  s_add_u32 s28, s28, {XIMG}")
e("  v_add_u32 v10, s28, v10")
e("  s_lshl_b32 s28, s3, 8")
e(f"  s_add_u32 s28, s28, {TEX}")
e("  v_lshl_add_u32 v11, v2, 3, s28")
e("  s_waitcnt lgkmcnt(0)")
e("  s_add_u32 s47, s47, 0x01010101")
for s in range(9):
    e(f"  s_waitcnt vmcnt({24-2*s})")
    if s == 0: stamp(3, False)
    for hh in range(2):
        for u in range(2):
            r = BF + 8*s + 4*hh + 2*u
            e(f"  ds_read_b64_tr_b16 v[{r}:{r+1}], v{8+hh} offset:{2048*s+256*u}")
stamp(4, False)
e("  s_waitcnt lgkmcnt(0)")
e("  s_barrier")
for s in range(9):
    e(f"  ds_read_b128 v[{AF+4*s}:{AF+4*s+3}], v10 offset:{64*s}")
for s in range(9):
    e(f"  s_waitcnt lgkmcnt({8-s})")
    for hh in range(2):
        c = "0" if s == 0 else f"v[{ACC+4*hh}:{ACC+4*hh+3}]"
        r = BF + 8*s + 4*hh
        e(f"  v_mfma_f32_16x16x32_bf16 v[{ACC+4*hh}:{ACC+4*hh+3}], v[{AF+4*s}:{AF+4*s+3}], v[{r}:{r+3}], {c}")
e("  s_mov_b64 exec, 0xffff")
e("  s_nop 7")
e(f"  ds_write_b64 v11, v[{ACC}:{ACC+1}]")
e(f"  ds_write_b64 v11, v[{ACC+4}:{ACC+5}] offset:128")
e("  s_mov_b64 exec, -1")
e("  s_branch L_JOIN")
e("L_POLL:")
e("  v_lshlrev_b32 v8, 4, v0")
e("  s_waitcnt lgkmcnt(0)")
stamp(1, False)
e(f"  s_load_dword s47, s[16:17], {WS_E}")
e("  s_load_dwordx2 s[8:9], s[0:1], 40")
e("  s_mov_b32 s10, %d" % XB)
common_setup()
e(f"  s_mov_b32 s27, {WS_GRAN}")
e("  s_waitcnt lgkmcnt(0)")
e("  s_add_u32 s47, s47, 0x01010101")
stamp(2, False)
e("  s_mov_b32 s61, 200000")
e("L_P1:")
e("  s_sub_u32 s61, s61, 1")
e("  s_cbranch_scc1 L_P1X")
for j in range(4):
    e(f"  buffer_load_dwordx4 v[{12+4*j}:{15+4*j}], v8, s[16:19], s27 offen offset:{1024*j} sc1")
e("  s_waitcnt vmcnt(0)")
e("  v_cmp_ne_u32 vcc, s47, v14")
e("  v_cmp_ne_u32 s[32:33], s47, v18")
e("  v_cmp_ne_u32 s[34:35], s47, v22")
e("  v_cmp_ne_u32 s[36:37], s47, v26")
e("  s_or_b64 vcc, vcc, s[32:33]")
e("  s_or_b64 s[34:35], s[34:35], s[36:37]")
e("  s_or_b64 vcc, vcc, s[34:35]")
e("  s_cbranch_scc1 L_P1")
e("L_P1X:")
stamp(3, False)
def merge(a1, a2, b1, b2, t):
    e(f"  v_min_u32 v{t}, v{a1}, v{b1}")
    e(f"  v_max_u32 v{a1}, v{a1}, v{b1}")
    e(f"  v_max3_u32 v{a2}, v{t}, v{a2}, v{b2}")
merge(12, 13, 16, 17, 9); merge(20, 21, 24, 25, 10); merge(12, 13, 20, 21, 9)
for ctl in (f"quad_perm:[1,0,3,2] {DPPM}", f"quad_perm:[2,3,0,1] {DPPM}", f"row_ror:4 {DPPM}", f"row_ror:8 {DPPM}",
            "row_bcast:15 row_mask:0xa bank_mask:0xf", "row_bcast:31 row_mask:0xc bank_mask:0xf"):
    e("  s_nop 1")
    e(f"  v_min_u32_dpp v10, v12, v12 {ctl}")
    e(f"  v_max_u32_dpp v11, v13, v13 {ctl}")
    e(f"  v_max_u32_dpp v12, v12, v12 {ctl}")
    e(f"  v_max_u32 v13, v10, v11")
e("  v_cmp_gt_u32 vcc, 8, v0")
e("  v_readlane_b32 s32, v12, 63")
e("  v_readlane_b32 s33, v13, 63")
e("  s_and_b32 s38, s32, 0xffff")
e("  s_and_b32 s39, s33, 0xffff")
e("  s_sub_u32 s38, 2047, s38")
e("  s_sub_u32 s39, 2047, s39")
e("  s_mul_i32 s34, s38, 1152")
e("  s_mul_i32 s35, s39, 1152")
e(f"  s_mov_b32 m0, {XIMG}")
e("  s_sub_u32 s36, s35, 128")
e("  buffer_load_dwordx4 v8, s[4:7], s34 offen lds")
e("  s_add_u32 s37, s34, 1024")
e("  v_mov_b32 v9, s36")
e("  v_mov_b32 v10, s37")
e("  s_addk_i32 m0, 0x400")
e("  v_cndmask_b32 v9, v9, v10, vcc")
e("  v_add_u32 v9, v9, v8")
e("  buffer_load_dwordx4 v9, s[4:7], 0 offen lds")
e("  s_addk_i32 m0, 0x400")
e("  s_add_u32 s36, s35, 896")
e("  s_mov_b64 exec, 0xffff")
e("  buffer_load_dwordx4 v8, s[4:7], s36 offen lds")
e("  s_mov_b32 exec_lo, 0x00ff00ff")
e("  s_mov_b32 exec_hi, 0x00ff00ff")
for mp in range(8):
    e(f"  buffer_load_dwordx4 v[{WD+4*mp}:{WD+4*mp+3}], v4, s[12:15], s{20+(mp>>2)} offen offset:{1152*(mp&3)} {WNT}")
e("  s_mov_b64 exec, -1")
e("  v_and_b32 v9, 4, v0")
e("  v_cmp_eq_u32 s[48:49], 0, v9")
e("  v_mov_b32 v28, s33")
e("  v_mov_b32 v29, s32")
e("  v_cndmask_b32 v28, v28, v29, s[48:49]")
e("  v_and_b32 v29, 0xffff, v28")
e("  v_sub_u32 v29, 2047, v29")
e("  v_lshrrev_b32 v30, 3, v29")
e("  v_lshlrev_b32 v30, 2, v30")
e("  v_mul_u32_u24 v29, 1152, v29")
e("  v_and_b32 v31, 3, v0")
e("  v_lshl_add_u32 v29, v31, 2, v29")
e("  v_not_b32 v32, v28")
e("  v_ashrrev_i32 v32, 31, v32")
e("  v_or_b32 v32, 0x80000000, v32")
e("  v_xor_b32 v32, v32, v28")
e("  v_and_b32 v32, 0xffff0000, v32")
e("  v_mul_f32 v32, 0xbfb8aa3b, v32")
e("  v_exp_f32 v32, v32")
e("  s_nop 0")
e("  v_add_f32 v32, 1.0, v32")
e("  v_rcp_f32 v32, v32")
e("  s_nop 0")
e("  v_cvt_pk_bf16_f32 v32, v32, v32")
e("  v_and_b32 v32, 0xffff0000, v32")
e("  v_mul_u32_u24 v33, 288, v9")
e("  v_lshl_add_u32 v33, v31, 2, v33")
e("  s_lshl_b32 s50, s44, 4")
e(f"  s_add_u32 s51, s50, {XIMG}")
e("  v_add_u32 v33, s51, v33")
e("  v_lshrrev_b32 v34, 2, v0")
e("  v_mul_u32_u24 v34, 4608, v34")
e("  v_lshl_add_u32 v34, v31, 4, v34")
e("  s_waitcnt vmcnt(8)")
stamp(4)
e("  s_barrier")
e("L_JOIN:")
e("  s_waitcnt lgkmcnt(0)")
e("  s_barrier")
e("  ds_read2_b32 v[12:13], v5 offset0:0 offset1:64")
e("  ds_read2_b32 v[14:15], v5 offset0:128 offset1:192")
e("  ds_read2_b32 v[16:17], v5 offset0:8 offset1:72")
e("  ds_read2_b32 v[18:19], v5 offset0:136 offset1:200")
e("  s_mov_b32 s40, 0xbfb8aa3b")
e("  s_mov_b32 s41, 0x07060501")
e("  s_mov_b32 s42, 0x07060502")
e("  s_mov_b32 s43, 0x07060503")
e("  s_waitcnt lgkmcnt(0)")
stamp(5, False)
seqs = []
for b, t in ((12, 20), (16, 24)):
    q = []
    q.append(f"v_add_f32 v{b}, v{b}, v{b+1}")
    q.append(f"v_add_f32 v{b+2}, v{b+2}, v{b+3}")
    q.append(f"v_cvt_pk_bf16_f32 v{b}, v{b}, v{b+2}")
    q.append(f"v_and_b32 v{b+2}, 0xffff0000, v{b}")
    q.append(f"v_lshlrev_b32 v{b}, 16, v{b}")
    q.append(f"v_mul_f32 v{b+1}, s40, v{b}")
    q.append(f"v_exp_f32 v{b+1}, v{b+1}")
    q.append(f"v_add_f32 v{b+1}, 1.0, v{b+1}")
    q.append(f"v_rcp_f32 v{b+1}, v{b+1}")
    q.append(f"v_mul_f32 v{b}, v{b}, v{b+1}")
    q.append(f"v_cvt_pk_bf16_f32 v{b}, v{b}, v{b}")
    q.append(f"v_and_b32 v{b}, 0xffff0000, v{b}")
    q.append(f"v_mul_f32 v{b}, v{b}, v{b+2}")
    q.append(f"v_cvt_pk_bf16_f32 v{b}, v{b}, v{b}")
    q.append(f"v_and_b32 v{b}, v{b}, v6")
    seqs.append(q)
for a, b in zip(*seqs):
    e("  " + a); e("  " + b)
e("  s_nop 0")
for mp in range(8):
    src = 12 if mp < 4 else 16
    q = mp & 3
    for r in range(4):
        n = (4*(r-q)) % 16
        ctl = "quad_perm:[0,1,2,3]" if n == 0 else f"row_ror:{n}"
        e(f"  v_mov_b32_dpp v{AD+4*mp+r}, v{src} {ctl} row_mask:0xf bank_mask:{hex(1<<r)}")
e("  s_waitcnt vmcnt(0)")
e("  s_nop 0")
for mp in range(8):
    c = "0" if mp == 0 else f"v[{ACC}:{ACC+3}]"
    e(f"  v_mfma_f32_16x16x32_bf16 v[{ACC}:{ACC+3}], v[{AD+4*mp}:{AD+4*mp+3}], v[{WD+4*mp}:{WD+4*mp+3}], {c}")
e("  s_cmp_eq_u32 s3, 4")
e("  s_cselect_b32 exec_lo, 0x00ff00ff, -1")
e("  s_cselect_b32 exec_hi, 0x00ff00ff, -1")
e("  v_mov_b32 v23, s47")
e("  s_nop 4")
for j in range(3):
    e(f"  v_perm_b32 v{20+j}, v{ACC+j}, v{ACC+3}, s{41+j}")
e(f"  buffer_store_dwordx4 v[20:23], v7, s[16:19], s22 offen sc1")
stamp(6, False)
e("  s_cbranch_scc0 L_FIN")
e("  s_cmp_ge_u32 s44, 72")
e("  s_cbranch_scc1 L_FIN")
e("  s_mov_b64 exec, -1")
e("  ds_read_b32 v35, v33")
e(f"  s_mov_b32 s27, {WS_DONE}")
e("  s_lshl_b32 s20, s44, 6")
e(f"  s_add_u32 s20, s20, {WS_SLAB}")
for t in range(1, 9):
    e(f"  s_add_u32 s{52+t}, s20, {16*4608*t}")
e("  s_mov_b32 s52, s20")
e("  s_mov_b32 s41, 0x0c04000c")
e("  s_mov_b32 s42, 0x04020100")
R0 = 48
e("  s_mov_b32 s61, 200000")
e("L_P2:")
e("  s_sub_u32 s61, s61, 1")
e("  s_cbranch_scc1 L_P2X")
e(f"  buffer_load_dword v36, v30, s[16:19], s27 offen sc1")
for t in range(9):
    e(f"  buffer_load_dwordx4 v[{R0+4*t}:{R0+3+4*t}], v34, s[16:19], s{52+t} offen sc1")
e("  s_waitcnt vmcnt(9)")
e("  v_xor_b32 v36, s47, v36")
for t in range(9):
    e(f"  s_waitcnt vmcnt({8-t})")
    r = R0 + 4*t
    e(f"  v_bitop3_b32 v36, v36, v{r+3}, s47 bitop3:0xf6")
    e(f"  v_perm_b32 v{r+3}, v{r+1}, v{r}, s41")
    e(f"  v_perm_b32 v{r+3}, v{r+2}, v{r+3}, s42")
    if t:
        e(f"  v_pk_add_f32 v[{R0}:{R0+1}], v[{R0}:{R0+1}], v[{r}:{r+1}]")
        e(f"  v_pk_add_f32 v[{R0+2}:{R0+3}], v[{R0+2}:{R0+3}], v[{r+2}:{r+3}]")
e("  v_cmp_ne_u32 vcc, 0, v36")
e("  s_cbranch_vccnz L_P2")
e("L_P2X:")
for ctl in (f"row_ror:4 {DPPM}", f"row_ror:8 {DPPM}"):
    e("  s_nop 1")
    for j in range(4):
        e(f"  v_add_f32_dpp v{R0+j}, v{R0+j}, v{R0+j} {ctl}")
for sw in ("v_permlane16_swap_b32", "v_permlane32_swap_b32"):
    for j in range(4):
        e(f"  v_mov_b32 v{20+j}, v{R0+j}")
    e("  s_nop 1")
    for j in range(4):
        e(f"  {sw} v{R0+j}, v{20+j}")
    for j in range(4):
        e(f"  v_add_f32 v{R0+j}, v{R0+j}, v{20+j}")
e(f"  v_cndmask_b32 v16, v{R0+2}, v{R0}, s[48:49]")
e(f"  v_cndmask_b32 v17, v{R0+3}, v{R0+1}, s[48:49]")
e("  v_cvt_pk_bf16_f32 v16, v16, v17")
e("  v_and_b32 v17, 0xffff0000, v16")
e("  v_lshlrev_b32 v16, 16, v16")
e("  v_mul_f32 v16, v16, v32")
e("  v_mul_f32 v17, v17, v32")
e("  v_cvt_pk_bf16_f32 v16, v16, v17")
e("  v_and_b32 v17, 0xffff0000, v16")
e("  v_lshlrev_b32 v16, 16, v16")
e("  s_waitcnt lgkmcnt(0)")
e("  v_and_b32 v19, 0xffff0000, v35")
e("  v_lshlrev_b32 v18, 16, v35")
e("  v_add_f32 v16, v16, v18")
e("  v_add_f32 v17, v17, v19")
e("  v_cvt_pk_bf16_f32 v16, v16, v17")
e("  s_mov_b64 exec, 0xff")
e("  buffer_store_dword v16, v29, s[8:11], s50 offen sc1")
e("  s_cmp_lg_u32 s44, 0")
e("  s_cbranch_scc1 L_FIN")
e("  s_mov_b64 exec, 1")
e("  v_mov_b32 v16, s47")
e(f"  v_mov_b32 v17, {WS_E}")
e("  buffer_store_dword v16, v17, s[16:19], 0 offen sc1")
e("L_FIN:")
stamp_flush()
e("L_END:")
e("  s_endpgm")

e('.section .rodata,"a"'); e(".p2align 6")
e(f".amdhsa_kernel {K}")
e(f"  .amdhsa_next_free_vgpr 192")
e(f"  .amdhsa_next_free_sgpr 96")
e(f"  .amdhsa_accum_offset 192")
e("  .amdhsa_group_segment_fixed_size 0")
e("  .amdhsa_kernarg_size 64")
e("  .amdhsa_user_sgpr_count 2")
e("  .amdhsa_user_sgpr_kernarg_segment_ptr 1")
e("  .amdhsa_system_sgpr_workgroup_id_x 1")
e("  .amdhsa_float_denorm_mode_32 3")
e(".end_amdhsa_kernel")
open(sys.argv[1], "w").write("\n".join(out) + "\n")
```

```python
import sys
NAME = "standalone__moe_arch_mod__prompt"
S, D, F = 2048, 576, 4608
XB = S*D*2
WB = D*F*2
opts = dict(a.split("=") for a in sys.argv[2:] if "=" in a)
def O(k, d): return int(opts.get(k, d))
STAMP = O("stamp", 0); AMP = opts.get("amp"); FINE = O("fine", 0)
if AMP: STAMP = 1
GS = 64; REP = 4; RS = 256*GS
WS_E = 0; WS_GRAN = 4096; WS_SLAB = 4096 + REP*RS; WS_SIZE = 1 << 20; WS_STAMP = 1 << 21
N0 = O("n0", 2); W1 = O("w1", 4); W2 = O("w2", 4); WE = O("we", 2); PB = O("pb", 7); RP = O("rp", 0)
HR = O("hr", 4); HT = O("ht", 2); HG = O("hg", 1)
PSL = O("psl", 2); SPIN = O("spin", 200000); RSL = O("rsl", 0)
EFS = O("efs", 1); LOWP = O("lowp", 1); CPRIO = O("cprio", 0)
NWT = 144; NH = 14
out = []
def e(s="", c=None): out.append(s if c is None else f"{s:<72}; {c}")
def cm(s): out.append("; " + s)
def stamp(i, wait=False):
    if STAMP and (i in (0, 7) or not FINE):
        e(f"  s_memrealtime s[{64+2*i}:{65+2*i}]")
        if wait: e("  s_waitcnt lgkmcnt(0)")
def fs(i, wait=False):
    if FINE:
        e(f"  s_memtime s[{64+2*i}:{65+2*i}]")
        if wait: e("  s_waitcnt lgkmcnt(0)")
def stamp_flush():
    if AMP:
        A, B, KK, WV, WG = map(int, AMP.split(","))
        stamp(7, True)
        e(f"  s_cmp_lg_u32 s2, {WG}"); e("  s_cbranch_scc1 L_AMPX")
        e(f"  s_cmp_lg_u32 s3, {WV}"); e("  s_cbranch_scc1 L_AMPX")
        e(f"  s_sub_u32 s60, s{64+2*B}, s{64+2*A}")
        e(f"  s_mul_i32 s60, s60, {KK}")
        e("L_AMP:"); e("  s_memrealtime s[62:63]"); e("  s_waitcnt lgkmcnt(0)"); e("  s_sub_u32 s62, s62, s78")
        e("  s_cmp_lt_u32 s62, s60"); e("  s_cbranch_scc1 L_AMP"); e("L_AMPX:")
    elif STAMP:
        if FINE: e("  s_memtime s[78:79]"); e("  s_waitcnt lgkmcnt(0)")
        else: stamp(7, True)
        e("  s_mov_b64 exec, 1")
        e("  s_lshl_b32 s60, s2, 3"); e("  s_add_u32 s60, s60, s3"); e("  s_lshl_b32 s60, s60, 6")
        e(f"  s_add_u32 s60, s60, {WS_STAMP}"); e("  s_mov_b32 s18, 0x1000000"); e("  v_mov_b32 v1, 0")
        for j in range(4):
            for k in range(4): e(f"  v_mov_b32 v{4+k}, s{64+4*j+k}")
            e(f"  buffer_store_dwordx4 v[4:7], v1, s[16:19], s60 offen offset:{16*j}"); e("  s_nop 1")

hdr = open('cdna_kernels/%s.s.ref' % NAME).read().split('\n')
for l in hdr:
    if l.startswith('; @launch'): break
    e(l)
XIMG = 73728; TAGL = XIMG + 2304; TEX = XIMG + 3072; WRIMG = TEX + 1024; LDS = 83968
e(f"; @launch grid=(256,1,1) block=(320,1,1) lds={LDS}")
DOC = """
One launch, 256 workgroups of 5 waves, one per CU (LDS and VGPR use allow one).
 role 4 (wave 0), every WG : 8 rows of x -> router scores -> local top-2 -> tagged granule in d_ws,
                             later the copy of its rows that were not routed.
 WGs 0..143, roles 0..3    : 32 columns of w_gate / w_up (LDS-DMA, transposing LDS reads, MFMA),
                             SwiGLU, the matching 32 rows of w_down (MFMA), tagged partial sums in d_ws.
 WGs 0..143, role 4        : gathers the 256 granules, global top-2, brings both rows into LDS;
                             72 of them add up the 144 partial sums of 8 columns and write the routed rows.
 WGs 144..255, roles 0..3  : pull weight lines into the L2 that the weight WGs with the same id mod 8
                             are expected to share (speed only, nothing depends on it).
 Hand-offs between WGs are 16-byte pieces that carry a tag, written and read with sc1.
 tag = d_ws[0] + 0x01010101; d_ws[0] is set to the tag at the end, so it differs from launch to launch.
"""
for l in DOC.strip("\n").split("\n"): cm(l)
e('.amdgcn_target "amdgcn-amd-amdhsa--gfx950"'); e(".text")
K = NAME + "_kernel"
e(f".globl {K}"); e(".p2align 8"); e(f".type {K},@function"); e(f"{K}:")
DPPM = "row_mask:0xf bank_mask:0xf"
AF = 12; BF = 48; ACC = 120; WD = 128; AD = 160; XR = 84; WR = 48; R0 = 48
VXW = 192; VA2 = 193; VTAG = 194; DUMC = 196; DUM = 197
QS = 16*9216

def slice_calc():
    e("  s_and_b32 s45, s2, 7"); e("  s_mul_i32 s45, s45, 18"); e("  s_lshr_b32 s44, s2, 3")
    e("  s_add_u32 s45, s45, s44", "slice: neighbours are 8 ids apart")
def setup0():
    e("  v_and_b32 v2, 15, v0"); e("  v_lshrrev_b32 v3, 4, v0")
    e("  v_mul_u32_u24 v4, 9216, v3"); e("  v_lshl_add_u32 v4, v2, 4, v4", "w_down: row 8g, 16-byte chunk c")
    e(f"  s_mul_i32 s34, s45, {32*1152}"); e("  s_lshl_b32 s35, s3, 8"); e("  s_add_u32 s34, s34, s35"); e("  s_add_u32 s35, s34, 4608")
def setup1():
    e("  v_lshrrev_b32 v5, 2, v2"); e("  v_lshl_add_u32 v5, v3, 3, v5"); e("  v_and_b32 v6, 1, v0"); e("  v_lshl_add_u32 v5, v6, 2, v5")
    e("  v_lshlrev_b32 v5, 3, v5"); e("  v_and_b32 v6, 2, v0"); e("  v_lshl_add_u32 v5, v6, 1, v5")
    e(f"  v_add_u32 v5, {TEX}, v5", "exchange table: this lane's (f, token)")
    e("  v_and_b32 v6, 1, v0"); e("  v_cmp_eq_u32 vcc, 1, v6"); e("  v_mov_b32 v6, 0xffff"); e("  v_mov_b32 v7, 0xffff0000")
    e("  v_cndmask_b32 v6, v6, v7, vcc", "half-word mask by lane parity")
    e("  v_lshlrev_b32 v7, 6, v2"); e("  v_lshl_add_u32 v7, v3, 4, v7", "partial-sum piece of this lane")
    e("  s_mul_i32 s36, s45, 4608"); e("  s_lshl_b32 s37, s3, 10"); e("  s_add_u32 s36, s36, s37"); e(f"  s_add_u32 s36, s36, {WS_SLAB}")
    e(f"  v_mov_b32 v{VTAG}, {TAGL}")
    e("  s_mov_b32 s56, 0x07060501"); e("  s_mov_b32 s57, 0x07060502"); e("  s_mov_b32 s58, 0x07060503")
    for j in range(0, 32, 2): e(f"  v_mov_b64 v[{AD+j}:{AD+j+1}], 0")
def wd_load(mp): e(f"  buffer_load_dwordx4 v[{WD+4*mp}:{WD+4*mp+3}], v4, s[12:15], s{34+(mp>>2)} offen offset:{1152*(mp&3)}")
ncopy = 0
def copy_stores():
    global ncopy
    ncopy += 1
    e("  s_and_b32 s38, s32, 0xffff"); e("  s_and_b32 s39, s33, 0xffff")
    e("  v_cmp_ne_u32 s[52:53], s38, v11"); e("  v_cmp_ne_u32 s[54:55], s39, v11")
    e("  s_and_b64 exec, s[52:53], s[54:55]", "rows that are not routed")
    e("  s_cmp_lg_u64 s[96:97], 0"); e(f"  s_cbranch_scc1 L_FIX{ncopy}"); e(f"L_FIXR{ncopy}:")
    for i in range(9): e(f"  buffer_store_dwordx4 v[{XR+4*i}:{XR+4*i+3}], v10, s[20:23], s28 offen offset:{128*i}")

if STAMP:
    for i in range(2, 16): e(f"  s_mov_b32 s{64+i}, 0")
stamp(0)
cm("SRDs: x s[4:7], w_r or w_gate/w_up s[8:11], w_down s[12:15], d_ws s[16:19], d_out s[20:23]")
e("  s_load_dwordx2 s[4:5], s[0:1], 0"); e("  s_load_dwordx2 s[8:9], s[0:1], 8"); e("  s_load_dwordx2 s[16:17], s[0:1], 56")
e("  s_load_dwordx4 s[24:27], s[0:1], 16"); e("  s_load_dwordx2 s[12:13], s[0:1], 32"); e("  s_load_dwordx2 s[20:21], s[0:1], 40")
e("  s_getpc_b64 s[28:29]", "read one word of every line of the code: it lands in L2"); e("L_PC:")
e("  v_lshlrev_b32 v2, 7, v0"); e("  v_cmp_gt_u32 vcc, (L_CODE_END-L_PC+127)/128, v0")
e("  s_and_saveexec_b64 s[30:31], vcc"); e("  s_cbranch_execz L_NOPF")
e(f"  global_load_dword v{DUMC}, v2, s[28:29]"); e("L_NOPF:"); e("  s_mov_b64 exec, -1")
e("  v_lshrrev_b32 v1, 6, v0"); e("  v_and_b32 v0, 63, v0"); e("  v_readfirstlane_b32 s3, v1")
e("  s_cmp_ge_u32 s2, 256"); e("  s_cbranch_scc1 L_END")
e("  s_sub_u32 s3, s3, 1", "role: wave 0 -> 4, wave k -> k-1"); e("  s_cselect_b32 s3, 4, s3")
for r, v in ((6, XB), (7, "0x20000"), (11, "0x20000"), (14, WB), (15, "0x20000"), (18, WS_SIZE), (19, "0x20000"), (22, XB), (23, "0x20000")):
    e(f"  s_mov_b32 s{r}, {v}")
e("  s_cmp_lg_u32 s3, 4"); e("  s_cbranch_scc1 L_NOTX")
cm("---------------------------------------------------------------- role 4: router scores of 8 rows")
e("  s_setprio 3")
e(f"  s_mov_b32 s10, {D*2}"); e(f"  s_mov_b32 m0, {WRIMG}")
e("  v_lshlrev_b32 v8, 4, v0"); e("  v_and_b32 v1, 0x70, v8"); e("  v_lshrrev_b32 v9, 3, v0")
e("  v_mul_u32_u24 v10, 1152, v9"); e("  v_add_u32 v10, v10, v1", "8 lanes per row"); e("  s_mul_i32 s28, s2, 9216")
e("  s_waitcnt lgkmcnt(0)")
e(f"  s_load_dword s47, s[16:17], {WS_E}")
e("  buffer_load_dwordx4 v8, s[8:11], 0 offen lds", "w_r -> LDS"); e("  s_mov_b64 exec, 0xff")
e("  buffer_load_dwordx4 v8, s[8:11], 0 offen offset:1024 lds"); e("  s_mov_b64 exec, -1")
for i in range(9): e(f"  buffer_load_dwordx4 v[{XR+4*i}:{XR+4*i+3}], v10, s[4:7], s28 offen offset:{128*i}")
e(f"  v_add_u32 v1, {WRIMG}, v1")
e("  s_lshl_b32 s29, s2, 3"); e("  s_sub_u32 s29, 2047, s29"); e("  v_sub_u32 v11, s29, v9", "2047 - row"); e("  s_mov_b32 s30, 0xffff0000")
e(f"  s_and_b32 s29, s2, {REP-1}"); e(f"  s_mul_i32 s27, s29, {RS}"); e(f"  s_add_u32 s27, s27, {WS_GRAN}", "the copy of the granules this WG reads")
for j in range(1, 4): e(f"  s_add_u32 s{47+j}, s27, {64*GS*j}")
e("  s_and_b32 s29, s2, 7"); e("  s_lshl_b32 s29, s29, 5"); e("  s_lshr_b32 s31, s2, 3"); e("  s_add_u32 s29, s29, s31")
e(f"  s_mul_i32 s29, s29, {GS}"); e(f"  s_add_u32 s31, s29, {WS_GRAN}", "own granule")
e(f"  v_mul_u32_u24 v44, {GS}, v0")
for j in range(4): e(f"  v_mov_b32 v{12+j}, 0")
e("  v_bfrev_b32 v22, 1")
e("  v_bfe_u32 v21, v0, 2, 2"); e(f"  v_mul_u32_u24 v21, {RS}, v21"); e("  v_and_b32 v19, 3, v0"); e("  v_lshl_add_u32 v21, v19, 4, v21")
e(f"  s_mov_b32 s61, {SPIN}"); e(f"  v_mov_b32 v45, {TAGL}")
e("  s_waitcnt vmcnt(9) lgkmcnt(0)")
for i in range(9): e(f"  ds_read_b128 v[{WR+4*i}:{WR+4*i+3}], v1 offset:{128*i}")
e("  s_add_u32 s47, s47, 0x01010101", "tag of this launch"); e("  v_mov_b32 v18, s47")
for i in range(9):
    e(f"  s_waitcnt vmcnt({8-i}) lgkmcnt({8-i})")
    for j in range(4): e(f"  v_dot2c_f32_bf16 v{12+j}, v{XR+4*i+j}, v{WR+4*i+j}")
e("  s_nop 1")
e("  v_add_f32 v12, v12, v13"); e("  v_add_f32 v14, v14, v15"); e("  v_add_f32 v12, v12, v14")
e("  s_movk_i32 s29, 0x207"); e("  v_cmp_class_f32 s[96:97], v12, s29", "lanes that hold an inf or a NaN")
e(f"  v_add_f32_dpp v12, v12, v12 quad_perm:[1,0,3,2] {DPPM}"); e("  s_nop 1")
e(f"  v_add_f32_dpp v12, v12, v12 quad_perm:[2,3,0,1] {DPPM}"); e("  s_nop 1")
e(f"  v_add_f32_dpp v12, v12, v12 row_half_mirror {DPPM}")
cm("key = order-preserving bf16 score << 16 | 2047 - row; NaN sorts last")
e("  v_cvt_pk_bf16_f32 v13, v12, v12"); e("  v_cmp_u_f32 vcc, v12, v12"); e("  v_ashrrev_i32 v14, 31, v13")
e("  v_bitop3_b32 v13, v13, v14, v22 bitop3:0x1e"); e("  v_cndmask_b32 v13, v13, 0, vcc"); e("  v_and_or_b32 v13, v13, s30, v11")
e("  s_nop 1")
e(f"  v_max_u32_dpp v16, v13, v13 row_ror:8 {DPPM}"); e(f"  v_min_u32_dpp v17, v13, v13 row_ror:8 {DPPM}"); e("  s_nop 0")
for ctl in ("row_bcast:15 row_mask:0xa bank_mask:0xf", "row_bcast:31 row_mask:0xc bank_mask:0xf"):
    e(f"  v_min_u32_dpp v14, v16, v16 {ctl}"); e(f"  v_max_u32_dpp v16, v16, v16 {ctl}")
    e(f"  v_max_u32_dpp v15, v17, v17 {ctl}"); e("  v_max_u32 v17, v14, v15")
e("  s_lshl_b64 exec, 0xffff, 48", "lanes 48..63 hold the pair: 4 copies x 64 bytes")
e("  buffer_store_dwordx4 v[16:19], v21, s[16:19], s31 offen sc1")
stamp(3)
e(f"  s_cmp_lt_u32 s2, {NWT}"); e("  s_cbranch_scc1 L_XG"); e("  s_barrier", "prefetch WG: let the other waves fill the queue"); e("L_XG:")
e("  ds_write_b32 v45, v18"); e("  s_mov_b64 exec, -1")
slice_calc(); setup0(); setup1()
e(f"  s_cmp_ge_u32 s2, {NWT}"); e("  s_cbranch_scc1 L_XH")
e("  s_mov_b32 exec_lo, 0x00ff00ff", "columns 512..575 of w_down"); e("  s_mov_b32 exec_hi, 0x00ff00ff")
for mp in range(8): wd_load(mp)
e("  s_mov_b64 exec, -1")
if RP:
    e("  v_lshlrev_b32 v46, 7, v0"); e(f"  s_mul_i32 s29, s45, {32*1152}")
    for r in range(RP):
        e(f"  buffer_load_dword v{DUM}, v46, s[12:15], s29 offen")
        if r < RP-1: e("  s_add_u32 s29, s29, 8192")
e("  s_waitcnt vmcnt(0)")
if O("nored5", 0): stamp(5)
e("L_P1:")
b = 48
for j in range(4): e(f"  buffer_load_dwordx4 v[{b+4*j}:{b+3+4*j}], v44, s[16:19], s{27 if j == 0 else 47+j} offen sc1")
e("  s_waitcnt vmcnt(0)")
e(f"  v_cmp_ne_u32 vcc, s47, v{b+2}"); e(f"  v_cmp_ne_u32 s[32:33], s47, v{b+6}")
e(f"  v_cmp_ne_u32 s[38:39], s47, v{b+10}"); e(f"  v_cmp_ne_u32 s[40:41], s47, v{b+14}")
e("  s_or_b64 vcc, vcc, s[32:33]"); e("  s_or_b64 s[38:39], s[38:39], s[40:41]"); e("  s_or_b64 vcc, vcc, s[38:39]")
e("  s_cbranch_scc0 L_PT")
e(f"  s_sleep {PSL}", "some granule is missing: back off and read again")
e("  s_sub_u32 s61, s61, 1"); e("  s_cbranch_scc0 L_P1")
e("  .p2align 3"); e("L_PT:")
def merge(a1, a2, b1, b2, o1, o2, t):
    e(f"  v_min_u32 v{t}, v{a1}, v{b1}"); e(f"  v_max_u32 v{o1}, v{a1}, v{b1}"); e(f"  v_max3_u32 v{o2}, v{t}, v{a2}, v{b2}")
merge(b, b+1, b+4, b+5, 40, 41, 12); merge(b+8, b+9, b+12, b+13, 42, 43, 13); merge(40, 41, 42, 43, 40, 41, 12)
e("  s_nop 0")
for ctl in (f"quad_perm:[1,0,3,2] {DPPM}", f"quad_perm:[2,3,0,1] {DPPM}", f"row_ror:4 {DPPM}", f"row_ror:8 {DPPM}",
            "row_bcast:15 row_mask:0xa bank_mask:0xf", "row_bcast:31 row_mask:0xc bank_mask:0xf"):
    e(f"  v_min_u32_dpp v12, v40, v40 {ctl}"); e(f"  v_max_u32_dpp v40, v40, v40 {ctl}")
    e(f"  v_max_u32_dpp v13, v41, v41 {ctl}"); e("  v_max_u32 v41, v12, v13")
e("  v_cmp_gt_u32 vcc, 8, v0"); e("  v_readlane_b32 s32, v40, 63", "global top-2 keys"); e("  v_readlane_b32 s33, v41, 63")
e(f"  s_cmp_ge_u32 s2, {NWT}"); e("  s_cbranch_scc1 L_XH2")
e("  s_and_b32 s38, s32, 0x7ff"); e("  s_and_b32 s39, s33, 0x7ff"); e("  s_sub_u32 s38, 2047, s38"); e("  s_sub_u32 s39, 2047, s39")
e("  s_mul_i32 s38, s38, 1152"); e("  s_mul_i32 s39, s39, 1152"); e(f"  s_mov_b32 m0, {XIMG}"); e("  s_sub_u32 s40, s39, 128")
e("  buffer_load_dwordx4 v8, s[4:7], s38 offen lds", "both routed rows -> LDS [2][1152 B]")
e("  s_add_u32 s41, s38, 1024"); e("  v_mov_b32 v12, s40"); e("  v_mov_b32 v13, s41"); e("  s_addk_i32 m0, 0x400")
e("  v_cndmask_b32 v12, v12, v13, vcc"); e("  v_add_u32 v12, v12, v8")
e("  buffer_load_dwordx4 v12, s[4:7], 0 offen lds")
e("  s_addk_i32 m0, 0x400"); e("  s_add_u32 s40, s39, 896"); e("  s_mov_b64 exec, 0xffff")
e("  buffer_load_dwordx4 v8, s[4:7], s40 offen lds"); e("  s_mov_b64 exec, -1")
stamp(1)
def final_setup():
    cm("last stage: lane row r = lane>>4 holds token r>>1, column 8u + 2(lane&3) + (r&1)")
    e("  v_cmp_gt_u32 vcc, 32, v0"); e("  v_mov_b32 v28, s33"); e("  v_mov_b32 v29, s32"); e("  v_and_b32 v31, 3, v0")
    e("  v_cndmask_b32 v28, v28, v29, vcc"); e("  v_and_b32 v29, 0xffff, v28"); e("  v_sub_u32 v29, 2047, v29")
    e("  v_mul_u32_u24 v29, 1152, v29"); e("  v_bfe_u32 v30, v0, 4, 1"); e("  v_lshlrev_b32 v30, 1, v30")
    e("  v_lshl_add_u32 v30, v31, 2, v30"); e("  v_add_u32 v29, v29, v30")
    e("  v_not_b32 v32, v28"); e("  v_ashrrev_i32 v32, 31, v32"); e("  v_or_b32 v32, 0x80000000, v32")
    e("  v_xor_b32 v32, v32, v28"); e("  v_and_b32 v32, 0xffff0000, v32", "the bf16 score back from the key"); e("  v_mul_f32 v32, 0xbfb8aa3b, v32")
    e("  v_exp_f32 v32, v32"); e("  v_lshrrev_b32 v33, 5, v0"); e("  v_add_f32 v32, 1.0, v32"); e("  v_rcp_f32 v32, v32")
    e("  v_mul_u32_u24 v33, 1152, v33"); e("  v_cvt_pk_bf16_f32 v32, v32, v32"); e("  v_and_b32 v32, 0xffff0000, v32", "sigmoid, rounded to bf16")
    e("  s_sub_u32 s46, s45, 72", "unit u = slice - 72"); e("  s_lshl_b32 s50, s46, 4"); e(f"  s_add_u32 s51, s50, {XIMG}"); e("  v_add3_u32 v33, v33, v30, s51")
    e("  v_lshrrev_b32 v34, 2, v0"); e("  v_mul_u32_u24 v34, 4608, v34"); e("  v_lshl_add_u32 v34, v31, 4, v34")
    e("  s_lshl_b32 s80, s46, 6"); e(f"  s_add_u32 s80, s80, {WS_SLAB}")
    for t in range(1, 9): e(f"  s_add_u32 s{80+t}, s80, {16*4608*t}")
    e("  s_mov_b32 s41, 0x0c04000c"); e("  s_mov_b32 s42, 0x04020100"); e("  v_mov_b32 v35, 0")
if EFS == 2: final_setup()
e("  s_barrier", "A: the rows are requested")
if EFS == 1: final_setup()
e("  s_waitcnt vmcnt(0) lgkmcnt(0)")
stamp(4, True)
e("  s_barrier", "B: the rows are in LDS")
if LOWP: e("  s_setprio 0")
copy_stores(); e("  s_mov_b64 exec, -1")
if EFS == 0: final_setup()
if LOWP == 2: e("  s_setprio 3")
e("  s_branch L_JOIN")
e("L_XH:"); e("  s_barrier", "the prefetch is done"); e("  s_branch L_P1")
e("L_XH2:"); copy_stores(); e("  s_branch L_FIN")
cm("---------------------------------------------------------------- roles 0..3: (matrix, half of K)")
e("L_NOTX:")
e(f"  s_mov_b32 s10, {WB}")
e(f"  s_cmp_ge_u32 s2, {NWT}"); e("  s_cbranch_scc1 L_HELP")
slice_calc(); setup0()
e("  v_lshrrev_b32 v8, 2, v0"); e("  v_mul_u32_u24 v8, 9216, v8"); e("  v_lshrrev_b32 v9, 4, v0"); e("  v_and_b32 v9, 2, v9")
e("  v_xor_b32 v9, v9, v0"); e("  v_and_b32 v9, 3, v9"); e("  v_lshl_add_u32 v8, v9, 4, v8", "16 rows x 64 B, halves swapped in rows 8..15")
e("  s_and_b32 s28, s3, 1"); e(f"  s_mul_i32 s28, s28, {288*9216}"); e("  s_lshl_b32 s29, s45, 6"); e("  s_add_u32 s28, s28, s29")
e("  s_and_b32 s42, s45, 1", "the two WGs that share the lines start on different rows")
e(f"  s_mul_i32 s29, s42, {N0*QS}"); e(f"  s_add_u32 s46, s28, {2*N0*QS}"); e(f"  s_add_u32 s43, s28, {N0*QS}")
e("  s_sub_u32 s43, s43, s29"); e("  s_add_u32 s28, s28, s29")
e("  s_mul_i32 s30, s3, 18432"); e("  s_mov_b32 m0, s30")
e("  s_cmp_ge_u32 s3, 2"); e("  s_waitcnt lgkmcnt(0)")
e("  s_cselect_b32 s8, s26, s24"); e("  s_cselect_b32 s9, s27, s25")
stamp(1)
ops = [("W", i) for i in range(WE)] + [("D", i) for i in range(18)] + [("W", i) for i in range(WE, 8)]
pos = {op: n for n, op in enumerate(ops)}
nis = 0
def issue():
    global nis
    if nis >= len(ops): return False
    k, i = ops[nis]
    if k == "D":
        if i == N0: e("  s_mov_b32 s28, s43")
        if i == 2*N0: e("  s_mov_b32 s28, s46")
        e("  buffer_load_dwordx4 v8, s[8:11], s28 offen lds")
        if i < 17: e("  s_addk_i32 m0, 0x400"); e(f"  s_add_u32 s28, s28, {QS}")
    else: wd_load(i)
    nis += 1
    return True
def vwait(op): e(f"  s_waitcnt vmcnt({nis - pos[op] - 1})")
while nis < WE + min(N0, W1): issue()
setup1()
e("  v_lshlrev_b32 v9, 9, v3"); e("  v_bfe_u32 v10, v0, 2, 2"); e("  v_lshl_add_u32 v9, v10, 6, v9"); e("  v_and_b32 v10, 3, v0")
e("  v_lshl_add_u32 v9, v10, 3, v9"); e("  v_and_b32 v10, 1, v3"); e("  v_lshl_add_u32 v9, v10, 5, v9")
e("  v_add_u32 v9, s30, v9", "transposing reads, columns 0..15"); e("  v_xor_b32 v10, 32, v9", "columns 16..31")
e("  v_and_b32 v11, 1, v0"); e("  v_mul_u32_u24 v11, 1152, v11"); e("  v_lshl_add_u32 v11, v3, 4, v11")
e("  s_and_b32 s29, s3, 1"); e("  s_mul_i32 s29, s29, 576"); e(f"  s_add_u32 s29, s29, {XIMG}")
e(f"  s_mul_i32 s31, s42, {32*N0}")
e(f"  v_add_u32 v{VA2}, s29, v11", "x fragments"); e(f"  v_add_u32 v11, s31, v{VA2}"); e(f"  v_subrev_u32 v1, s31, v{VA2}")
e("  s_lshl_b32 s29, s3, 8"); e(f"  s_add_u32 s29, s29, {TEX}"); e(f"  v_lshl_add_u32 v{VXW}, v2, 3, s29")
def trreads(s):
    for hh in range(2):
        for u in range(2):
            r = BF + 8*s + 4*hh + 2*u
            e(f"  ds_read_b64_tr_b16 v[{r}:{r+1}], v{9+hh} offset:{2048*s+256*u}")
def mfmas(s):
    for hh in range(2):
        c = "0" if s == 0 else f"v[{ACC+4*hh}:{ACC+4*hh+3}]"
        r = BF + 8*s + 4*hh
        e(f"  v_mfma_f32_16x16x32_bf16 v[{ACC+4*hh}:{ACC+4*hh+3}], v[{AF+4*s}:{AF+4*s+3}], v[{r}:{r+3}], {c}")
E0 = N0 // 2
for s in range(PB):
    for h in range(2):
        need = 2*s + h
        def ok():
            if nis >= len(ops) or ops[nis][0] != "D": return False
            i = ops[nis][1]
            return i < need + 1 + W1 if i < N0 else (need >= N0 - 1 and i < need + 1 + W2)
        if ok() or h == 1: vwait(("D", need))
        while ok(): issue()
    if s == 0: stamp(2)
    trreads(s)
while ops[nis][0] == "D": issue()
stamp(5)
e("  s_barrier", "A")
while issue(): pass
e("  s_waitcnt lgkmcnt(0)"); e("  s_barrier", "B")
stamp(4, True); fs(1, True)
if CPRIO: e(f"  s_setprio {CPRIO}")
order = []
for s in range(9):
    ar = 11 if s < E0 else (1 if s < 2*E0 else VA2)
    e(f"  ds_read_b128 v[{AF+4*s}:{AF+4*s+3}], v{ar} offset:{64*s}"); order.append(f"A{s}")
late = list(range(PB, 9))
for s in range(9):
    if late and late[0] <= s + 1:
        t = late.pop(0); vwait(("D", 2*t+1)); trreads(t); order += [f"T{t}"]*4
    tag = f"A{s}" if s < PB else f"T{s}"
    need = len(order) - 1 - order[::-1].index(tag)
    e(f"  s_waitcnt lgkmcnt({min(15, len(order) - need - 1)})")
    mfmas(s)
stamp(3); fs(2)
e("  s_mov_b64 exec, 0xffff"); e("  s_nop 6")
e(f"  ds_write2_b64 v{VXW}, v[{ACC}:{ACC+1}], v[{ACC+4}:{ACC+5}] offset0:0 offset1:16")
e("  s_mov_b64 exec, -1")
cm("---------------------------------------------------------------- all 5 waves: SwiGLU, 128 columns of w_down each")
e("L_JOIN:")
e("  s_waitcnt lgkmcnt(0)"); fs(3, True); e("  s_barrier", "C: the four partial pre-activations are in LDS"); fs(4)
e("  ds_read2_b32 v[12:13], v5 offset0:0 offset1:64"); e("  ds_read2_b32 v[14:15], v5 offset0:128 offset1:192")
e(f"  ds_read_b32 v23, v{VTAG}")
e("  s_cmp_eq_u32 s3, 4"); e("  s_waitcnt lgkmcnt(0)")
e("  v_add_f32 v12, v12, v13"); e("  v_add_f32 v14, v14, v15")
e("  v_cvt_pk_bf16_f32 v12, v12, v14"); e("  v_lshlrev_b32 v13, 16, v12"); e("  v_mul_f32 v15, 0xbfb8aa3b, v13"); e("  v_exp_f32 v15, v15")
e("  v_and_b32 v14, 0xffff0000, v12"); e("  v_add_f32 v15, 1.0, v15"); e("  v_rcp_f32 v15, v15"); e("  s_nop 0")
e("  v_mul_f32 v13, v13, v15"); e("  v_cvt_pk_bf16_f32 v13, v13, v13"); e("  v_and_b32 v13, 0xffff0000, v13")
e("  v_mul_f32 v13, v13, v14"); e("  v_cvt_pk_bf16_f32 v13, v13, v13", "h = bf16(bf16(silu(a)) * u), in both halves")
fs(5)
e("  s_cbranch_scc1 L_W4"); e("  s_waitcnt vmcnt(0)"); e("L_W4:"); fs(6); e("  s_nop 0")
e(f"  v_and_b32_dpp v12, v13, v6 quad_perm:[0,0,2,2] {DPPM}"); e(f"  v_and_b32_dpp v16, v13, v6 quad_perm:[1,1,3,3] {DPPM}")
e("  s_nop 0"); e("  .p2align 3")
cm("A = h on a diagonal: D[token, column parity and pair][chunk] sums 4 rows of w_down per MFMA")
for mp in range(8):
    src = 12 if mp < 4 else 16; qq = mp & 3
    for r in range(4):
        n = (4*(r-qq)) % 16
        ctl = "quad_perm:[0,1,2,3]" if n == 0 else f"row_ror:{n}"
        e(f"  v_mov_b32_dpp v{AD+4*mp+r}, v{src} {ctl} row_mask:0xf bank_mask:{hex(1<<r)}")
    if mp >= 1:
        m = mp - 1; c = "0" if m == 0 else f"v[{ACC}:{ACC+3}]"
        e(f"  v_mfma_f32_16x16x32_bf16 v[{ACC}:{ACC+3}], v[{AD+4*m}:{AD+4*m+3}], v[{WD+4*m}:{WD+4*m+3}], {c}")
e("  s_nop 0")
e(f"  v_mfma_f32_16x16x32_bf16 v[{ACC}:{ACC+3}], v[{AD+28}:{AD+31}], v[{WD+28}:{WD+31}], v[{ACC}:{ACC+3}]")
e("  s_cselect_b32 exec_lo, 0x00ff00ff, -1"); e("  s_cselect_b32 exec_hi, 0x00ff00ff, -1"); e("  s_nop 5")
cm("4 sums (top 24 bits each) + tag in 16 bytes")
for j in range(3): e(f"  v_perm_b32 v{20+j}, v{ACC+j}, v{ACC+3}, s{56+j}")
e("  buffer_store_dwordx4 v[20:23], v7, s[16:19], s36 offen sc1")
if STAMP:
    e("  s_cbranch_scc1 L_S6"); stamp(6); e("  s_branch L_FIN"); e("L_S6:"); stamp(2)
else: e("  s_cbranch_scc0 L_FIN")
e("  s_cmp_ge_u32 s46, 72"); e("  s_cbranch_scc1 L_FIN")
cm("---------------------------------------------------------------- 72 waves: sum over the 144 WGs, write the routed rows")
e("  s_mov_b64 exec, -1"); e("  ds_read_u16_d16_hi v35, v33"); e(f"  s_mov_b32 s61, {SPIN}")
e("  s_waitcnt vmcnt(0)")
if RSL: e(f"  s_sleep {RSL}")
def rload(t): e(f"  buffer_load_dwordx4 v[{R0+4*t}:{R0+3+4*t}], v34, s[16:19], s{80+t} offen sc1")
for t in range(9): rload(t)
for t in range(9):
    r = R0 + 4*t
    e(f"L_R{t}:"); e(f"  s_waitcnt vmcnt({8-t})"); e(f"  v_cmp_ne_u32 vcc, s47, v{r+3}"); e(f"  s_cbranch_vccnz L_RR{t}"); e(f"L_RA{t}:")
    e(f"  v_perm_b32 v{r+3}, v{r+1}, v{r}, s41"); e(f"  v_perm_b32 v{r+3}, v{r+2}, v{r+3}, s42")
    if t:
        e(f"  v_pk_add_f32 v[{R0}:{R0+1}], v[{R0}:{R0+1}], v[{r}:{r+1}]"); e(f"  v_pk_add_f32 v[{R0+2}:{R0+3}], v[{R0+2}:{R0+3}], v[{r+2}:{r+3}]")
if not O("nored5", 0): stamp(5)
e("  s_nop 1"); e(f"  v_permlane32_swap_b32 v{R0}, v{R0+2}"); e(f"  v_permlane32_swap_b32 v{R0+1}, v{R0+3}")
e(f"  v_add_f32 v{R0}, v{R0}, v{R0+2}"); e(f"  v_add_f32 v{R0+1}, v{R0+1}, v{R0+3}"); e("  s_nop 1")
e(f"  v_permlane16_swap_b32 v{R0}, v{R0+1}"); e(f"  v_add_f32 v{R0}, v{R0}, v{R0+1}"); e("  s_nop 1")
e(f"  v_add_f32_dpp v{R0}, v{R0}, v{R0} row_ror:4 {DPPM}"); e("  s_nop 1"); e(f"  v_add_f32_dpp v{R0}, v{R0}, v{R0} row_ror:8 {DPPM}")
e(f"  v_cvt_pk_bf16_f32 v16, v{R0}, v{R0}"); e("  v_and_b32 v16, 0xffff0000, v16"); e("  v_mul_f32 v16, v16, v32")
e("  v_cvt_pk_bf16_f32 v16, v16, v16"); e("  v_and_b32 v16, 0xffff0000, v16"); e("  s_waitcnt lgkmcnt(0)")
e("  v_add_f32 v16, v16, v35"); e("  v_cvt_pk_bf16_f32 v16, v16, v16")
e("  s_mov_b32 exec_lo, 0x000f000f"); e("  s_mov_b32 exec_hi, 0x000f000f")
e("  buffer_store_short v16, v29, s[20:23], s50 offen")
e("  s_cmp_lg_u32 s46, 0"); e("  s_cbranch_scc1 L_FIN")
e("  s_mov_b64 exec, 1", "every reader of d_ws[0] is behind the sums seen here"); e("  v_mov_b32 v16, s47"); e(f"  v_mov_b32 v17, {WS_E}")
e("  buffer_store_dword v16, v17, s[16:19], 0 offen")
e("L_FIN:"); stamp_flush(); e("L_END:"); e("  s_endpgm")
for t in range(9):
    e(f"L_RR{t}:"); e("  s_sub_u32 s61, s61, 1"); e(f"  s_cbranch_scc1 L_RA{t}")
    for t2 in range(t, 9): rload(t2)
    e(f"  s_branch L_R{t}")
cm("---------------------------------------------------------------- prefetch waves: one word per 128-byte line")
e("L_HELP:")
e(f"  s_sub_u32 s28, s2, {NWT}"); e("  s_and_b32 s29, s28, 7"); e("  s_lshr_b32 s28, s28, 3")
e("  s_and_b32 s33, s3, 1"); e("  s_mul_i32 s33, s33, 288"); e(f"  s_mul_i32 s32, s28, {HR}"); e("  s_add_u32 s32, s32, s33")
e(f"  s_add_u32 s32, s32, {32*N0}"); e("  s_mul_i32 s32, s32, 9216"); e("  s_mul_i32 s34, s29, 1152"); e("  s_add_u32 s32, s32, s34")
e("  v_mul_u32_u24 v3, 0x1c72, v0"); e("  v_lshrrev_b32 v3, 16, v3", "lane / 9"); e("  v_mul_u32_u24 v4, 9, v3"); e("  v_sub_u32 v4, v0, v4")
e("  v_mul_u32_u24 v3, 9216, v3"); e("  v_lshl_add_u32 v3, v4, 7, v3")
e("  s_lshl2_add_u32 s28, s28, s3")
e(f"  s_mul_i32 s29, s29, {5184*128}")
if RP: e(f"  s_add_u32 s29, s29, {RP*8192}")
e("  v_lshlrev_b32 v2, 7, v0")
nr = -(-(288 - 32*N0) // (NH*HR))
assert nr - HG >= 1
e(f"  s_mov_b32 s30, {nr-HG}")
e("  s_cmp_ge_u32 s3, 2"); e("  s_waitcnt lgkmcnt(0)")
e("  s_cselect_b32 s8, s26, s24"); e("  s_cselect_b32 s9, s27, s25")
e(f"  s_bfm_b64 exec, {9*HR}, 0")
for r in range(HG):
    e(f"  buffer_load_dword v{DUM}, v3, s[8:11], s32 offen"); e(f"  s_add_u32 s32, s32, {NH*HR*9216}")
e("  s_barrier"); stamp(1)
e("L_HGL:"); e(f"  s_waitcnt vmcnt({HT-1})"); e(f"  buffer_load_dword v{DUM}, v3, s[8:11], s32 offen")
e(f"  s_add_u32 s32, s32, {NH*HR*9216}"); e("  s_sub_u32 s30, s30, 1"); e("  s_cmp_lg_u32 s30, 0"); e("  s_cbranch_scc1 L_HGL")
stamp(2)
CPS = 9 - 2*RP
e("  s_bfm_b64 exec, 32, 0")
e("L_HWL:")
e(f"  s_mul_hi_u32 s30, s28, {(2**32 + CPS - 1)//CPS}"); e(f"  s_mul_i32 s31, s30, {CPS}"); e("  s_sub_u32 s31, s28, s31")
e("  s_mul_i32 s30, s30, 36864"); e("  s_lshl_b32 s31, s31, 12"); e("  s_add_u32 s30, s30, s31"); e("  s_add_u32 s30, s30, s29")
e(f"  s_waitcnt vmcnt({HT-1})"); e(f"  buffer_load_dword v{DUM}, v2, s[12:15], s30 offen")
e("  s_add_u32 s28, s28, 56"); e(f"  s_cmp_lt_u32 s28, {18*CPS}"); e("  s_cbranch_scc1 L_HWL")
e("  s_waitcnt vmcnt(0)"); e("  s_barrier"); e("  s_branch L_FIN")
e("L_CODE_END:")
cm("rare path: x + x*0 turns an infinity into a NaN")
for n in range(1, ncopy+1):
    e(f"L_FIX{n}:"); e(f"  s_mov_b32 s98, {n}"); e("  s_branch L_FIX")
e("L_FIX:"); e("  s_mov_b32 s29, 0x07060302")
for j in range(36):
    r = XR + j
    e(f"  v_lshlrev_b32 v12, 16, v{r}"); e(f"  v_and_b32 v13, 0xffff0000, v{r}"); e("  v_fma_f32 v12, v12, 0, v12"); e("  v_fma_f32 v13, v13, 0, v13")
    e(f"  v_perm_b32 v{r}, v13, v12, s29")
e("  s_cmp_eq_u32 s98, 1"); e("  s_cbranch_scc1 L_FIXR1"); e("  s_branch L_FIXR2")
e('.section .rodata,"a"'); e(".p2align 6"); e(f".amdhsa_kernel {K}")
e("  .amdhsa_next_free_vgpr 200"); e("  .amdhsa_next_free_sgpr 102"); e("  .amdhsa_accum_offset 200")
e("  .amdhsa_group_segment_fixed_size 0"); e("  .amdhsa_kernarg_size 64"); e("  .amdhsa_user_sgpr_count 2")
e("  .amdhsa_user_sgpr_kernarg_segment_ptr 1"); e("  .amdhsa_system_sgpr_workgroup_id_x 1"); e("  .amdhsa_float_denorm_mode_32 3")
e(".end_amdhsa_kernel")
open(sys.argv[1], "w").write("\n".join(out) + "\n")
```

```python
import sys
NAME = "standalone__moe_arch_mod__prompt"
S, D, F = 2048, 576, 4608
XB = S*D*2
WB = D*F*2
opts = dict(a.split("=") for a in sys.argv[2:] if "=" in a)
def O(k, d): return int(opts.get(k, d))
STAMP = O("stamp", 0); AMP = opts.get("amp"); FINE = O("fine", 0)
if AMP: STAMP = 1
GS = O("gs", 64); REP = O("rep", 4); RS = 256*GS
LG = {16: 0, 32: 1, 64: 2}[GS]; LR = {1: 0, 2: 1, 4: 2, 8: 3}[REP]; NL = REP*GS//16
assert NL <= 16
WS_E = 0; WS_GRAN = 4096; WS_SLAB = 4096 + REP*RS; WS_SIZE = 1 << 20; WS_STAMP = 1 << 21
N0 = O("n0", 2); W1 = O("w1", 4); W2 = O("w2", 4); WE = O("we", 2); PB = O("pb", 7); RP = O("rp", 0)
HR = O("hr", 4); HT = O("ht", 2); HG = O("hg", 1)
PSL = O("psl", 2); SPIN = O("spin", 200000); RSL = O("rsl", 0)
EFS = O("efs", 1); LOWP = O("lowp", 1); CPRIO = O("cprio", 0)
NWT = 144; NH = 14
out = []
def e(s="", c=None): out.append(s if c is None else f"{s:<72}; {c}")
def cm(s): out.append("; " + s)
def stamp(i, wait=False):
    if STAMP and (i in (0, 7) or not FINE):
        e(f"  s_memrealtime s[{64+2*i}:{65+2*i}]")
        if wait: e("  s_waitcnt lgkmcnt(0)")
def fs(i, wait=False):
    if FINE:
        e(f"  s_memtime s[{64+2*i}:{65+2*i}]")
        if wait: e("  s_waitcnt lgkmcnt(0)")
def stamp_flush():
    if AMP:
        A, B, KK, WV, WG = map(int, AMP.split(","))
        stamp(7, True)
        e(f"  s_cmp_lg_u32 s2, {WG}"); e("  s_cbranch_scc1 L_AMPX")
        e(f"  s_cmp_lg_u32 s3, {WV}"); e("  s_cbranch_scc1 L_AMPX")
        e(f"  s_sub_u32 s60, s{64+2*B}, s{64+2*A}")
        e(f"  s_mul_i32 s60, s60, {KK}")
        e("L_AMP:"); e("  s_memrealtime s[62:63]"); e("  s_waitcnt lgkmcnt(0)"); e("  s_sub_u32 s62, s62, s78")
        e("  s_cmp_lt_u32 s62, s60"); e("  s_cbranch_scc1 L_AMP"); e("L_AMPX:")
    elif STAMP:
        if FINE: e("  s_memtime s[78:79]"); e("  s_waitcnt lgkmcnt(0)")
        else: stamp(7, True)
        e("  s_mov_b64 exec, 1")
        e("  s_lshl_b32 s60, s2, 3"); e("  s_add_u32 s60, s60, s3"); e("  s_lshl_b32 s60, s60, 6")
        e(f"  s_add_u32 s60, s60, {WS_STAMP}"); e("  s_mov_b32 s18, 0x1000000"); e("  v_mov_b32 v1, 0")
        for j in range(4):
            for k in range(4): e(f"  v_mov_b32 v{4+k}, s{64+4*j+k}")
            e(f"  buffer_store_dwordx4 v[4:7], v1, s[16:19], s60 offen offset:{16*j}"); e("  s_nop 1")

hdr = open('cdna_kernels/%s.s.ref' % NAME).read().split('\n')
for l in hdr:
    if l.startswith('; @launch'): break
    e(l)
XIMG = 73728; TAGL = XIMG + 2304; TEX = XIMG + 3072; WRIMG = TEX + 1024; LDS = 83968
e(f"; @launch grid=(256,1,1) block=(320,1,1) lds={LDS}")
DOC = """
One launch, 256 workgroups of 5 waves, one per CU (LDS and VGPR use allow one).
 role 4 (wave 0), every WG : 8 rows of x -> router scores -> local top-2 -> tagged granule in d_ws,
                             later the copy of its rows that were not routed.
 WGs 0..143, roles 0..3    : 32 columns of w_gate / w_up (LDS-DMA, transposing LDS reads, MFMA),
                             SwiGLU, the matching 32 rows of w_down (MFMA), tagged partial sums in d_ws.
 WGs 0..143, role 4        : gathers the 256 granules, global top-2, brings both rows into LDS;
                             72 of them add up the 144 partial sums of 8 columns and write the routed rows.
 WGs 144..255, roles 0..3  : pull weight lines into the L2 that the weight WGs with the same id mod 8
                             are expected to share (speed only, nothing depends on it).
 Hand-offs between WGs are 16-byte pieces that carry a tag, written and read with sc1.
 tag = d_ws[0] + 0x01010101; d_ws[0] is set to the tag at the end, so it differs from launch to launch.
"""
for l in DOC.strip("\n").split("\n"): cm(l)
e('.amdgcn_target "amdgcn-amd-amdhsa--gfx950"'); e(".text")
K = NAME + "_kernel"
e(f".globl {K}"); e(".p2align 8"); e(f".type {K},@function"); e(f"{K}:")
DPPM = "row_mask:0xf bank_mask:0xf"
AF = 12; BF = 48; ACC = 120; WD = 128; AD = 160; XR = 84; WR = 48; R0 = 48
VXW = 192; VA2 = 193; VTAG = 194; DUMC = 196; DUM = 197
QS = 16*9216

def slice_calc():
    e("  s_and_b32 s45, s2, 7"); e("  s_mul_i32 s45, s45, 18"); e("  s_lshr_b32 s44, s2, 3")
    e("  s_add_u32 s45, s45, s44", "slice: neighbours are 8 ids apart")
def setup0():
    e("  v_and_b32 v2, 15, v0"); e("  v_lshrrev_b32 v3, 4, v0")
    e("  v_mul_u32_u24 v4, 9216, v3"); e("  v_lshl_add_u32 v4, v2, 4, v4", "w_down: row 8g, 16-byte chunk c")
    e(f"  s_mul_i32 s34, s45, {32*1152}"); e("  s_lshl_b32 s35, s3, 8"); e("  s_add_u32 s34, s34, s35"); e("  s_add_u32 s35, s34, 4608")
def setup1():
    e("  v_lshrrev_b32 v5, 2, v2"); e("  v_lshl_add_u32 v5, v3, 3, v5"); e("  v_and_b32 v6, 1, v0"); e("  v_lshl_add_u32 v5, v6, 2, v5")
    e("  v_lshlrev_b32 v5, 3, v5"); e("  v_and_b32 v6, 2, v0"); e("  v_lshl_add_u32 v5, v6, 1, v5")
    e(f"  v_add_u32 v5, {TEX}, v5", "exchange table: this lane's (f, token)")
    e("  v_and_b32 v6, 1, v0"); e("  v_cmp_eq_u32 vcc, 1, v6"); e("  v_mov_b32 v6, 0xffff"); e("  v_mov_b32 v7, 0xffff0000")
    e("  v_cndmask_b32 v6, v6, v7, vcc", "half-word mask by lane parity")
    e("  v_lshlrev_b32 v7, 6, v2"); e("  v_lshl_add_u32 v7, v3, 4, v7", "partial-sum piece of this lane")
    e("  s_mul_i32 s36, s45, 4608"); e("  s_lshl_b32 s37, s3, 10"); e("  s_add_u32 s36, s36, s37"); e(f"  s_add_u32 s36, s36, {WS_SLAB}")
    e(f"  v_mov_b32 v{VTAG}, {TAGL}")
    e("  s_mov_b32 s56, 0x07060501"); e("  s_mov_b32 s57, 0x07060502"); e("  s_mov_b32 s58, 0x07060503")
    for j in range(0, 32, 2): e(f"  v_mov_b64 v[{AD+j}:{AD+j+1}], 0")
def wd_load(mp): e(f"  buffer_load_dwordx4 v[{WD+4*mp}:{WD+4*mp+3}], v4, s[12:15], s{34+(mp>>2)} offen offset:{1152*(mp&3)}")
ncopy = 0
def copy_stores():
    global ncopy
    ncopy += 1
    e("  s_and_b32 s38, s32, 0xffff"); e("  s_and_b32 s39, s33, 0xffff")
    e("  v_cmp_ne_u32 s[52:53], s38, v11"); e("  v_cmp_ne_u32 s[54:55], s39, v11")
    e("  s_and_b64 exec, s[52:53], s[54:55]", "rows that are not routed")
    e("  s_cmp_lg_u64 s[96:97], 0"); e(f"  s_cbranch_scc1 L_FIX{ncopy}"); e(f"L_FIXR{ncopy}:")
    for i in range(9): e(f"  buffer_store_dwordx4 v[{XR+4*i}:{XR+4*i+3}], v10, s[20:23], s28 offen offset:{128*i}")

if STAMP:
    for i in range(2, 16): e(f"  s_mov_b32 s{64+i}, 0")
stamp(0)
cm("SRDs: x s[4:7], w_r or w_gate/w_up s[8:11], w_down s[12:15], d_ws s[16:19], d_out s[20:23]")
e("  s_load_dwordx2 s[4:5], s[0:1], 0"); e("  s_load_dwordx2 s[8:9], s[0:1], 8"); e("  s_load_dwordx2 s[16:17], s[0:1], 56")
e("  s_load_dwordx4 s[24:27], s[0:1], 16"); e("  s_load_dwordx2 s[12:13], s[0:1], 32"); e("  s_load_dwordx2 s[20:21], s[0:1], 40")
e("  s_getpc_b64 s[28:29]", "read one word of every line of the code: it lands in L2"); e("L_PC:")
e("  v_lshlrev_b32 v2, 7, v0"); e("  v_cmp_gt_u32 vcc, (L_CODE_END-L_PC+127)/128, v0")
e("  s_and_saveexec_b64 s[30:31], vcc"); e("  s_cbranch_execz L_NOPF")
e(f"  global_load_dword v{DUMC}, v2, s[28:29]"); e("L_NOPF:"); e("  s_mov_b64 exec, -1")
e("  v_lshrrev_b32 v1, 6, v0"); e("  v_and_b32 v0, 63, v0"); e("  v_readfirstlane_b32 s3, v1")
e("  s_cmp_ge_u32 s2, 256"); e("  s_cbranch_scc1 L_END")
e("  s_sub_u32 s3, s3, 1", "role: wave 0 -> 4, wave k -> k-1"); e("  s_cselect_b32 s3, 4, s3")
for r, v in ((6, XB), (7, "0x20000"), (11, "0x20000"), (14, WB), (15, "0x20000"), (18, WS_SIZE), (19, "0x20000"), (22, XB), (23, "0x20000")):
    e(f"  s_mov_b32 s{r}, {v}")
e("  s_cmp_lg_u32 s3, 4"); e("  s_cbranch_scc1 L_NOTX")
cm("---------------------------------------------------------------- role 4: router scores of 8 rows")
e("  s_setprio 3")
e(f"  s_mov_b32 s10, {D*2}"); e(f"  s_mov_b32 m0, {WRIMG}")
e("  v_lshlrev_b32 v8, 4, v0"); e("  v_and_b32 v1, 0x70, v8"); e("  v_lshrrev_b32 v9, 3, v0")
e("  v_mul_u32_u24 v10, 1152, v9"); e("  v_add_u32 v10, v10, v1", "8 lanes per row"); e("  s_mul_i32 s28, s2, 9216")
e("  s_waitcnt lgkmcnt(0)")
e(f"  s_load_dword s47, s[16:17], {WS_E}")
e("  buffer_load_dwordx4 v8, s[8:11], 0 offen lds", "w_r -> LDS"); e("  s_mov_b64 exec, 0xff")
e("  buffer_load_dwordx4 v8, s[8:11], 0 offen offset:1024 lds"); e("  s_mov_b64 exec, -1")
for i in range(9): e(f"  buffer_load_dwordx4 v[{XR+4*i}:{XR+4*i+3}], v10, s[4:7], s28 offen offset:{128*i}")
e(f"  v_add_u32 v1, {WRIMG}, v1")
e("  s_lshl_b32 s29, s2, 3"); e("  s_sub_u32 s29, 2047, s29"); e("  v_sub_u32 v11, s29, v9", "2047 - row"); e("  s_mov_b32 s30, 0xffff0000")
e(f"  s_and_b32 s29, s2, {REP-1}"); e(f"  s_mul_i32 s27, s29, {RS}"); e(f"  s_add_u32 s27, s27, {WS_GRAN}", "the copy of the granules this WG reads")
for j in range(1, 4): e(f"  s_add_u32 s{47+j}, s27, {64*GS*j}")
e("  s_and_b32 s29, s2, 7"); e("  s_lshl_b32 s29, s29, 5"); e("  s_lshr_b32 s31, s2, 3"); e("  s_add_u32 s29, s29, s31")
e(f"  s_mul_i32 s29, s29, {GS}"); e(f"  s_add_u32 s31, s29, {WS_GRAN}", "own granule")
e(f"  v_mul_u32_u24 v44, {GS}, v0")
for j in range(4): e(f"  v_mov_b32 v{12+j}, 0")
e("  v_bfrev_b32 v22, 1")
e(f"  v_bfe_u32 v21, v0, {LG}, {LR}"); e(f"  v_mul_u32_u24 v21, {RS}, v21"); e(f"  v_and_b32 v19, {GS//16-1}, v0"); e("  v_lshl_add_u32 v21, v19, 4, v21")
e(f"  s_mov_b32 s61, {SPIN}"); e(f"  v_mov_b32 v45, {TAGL}")
e("  s_waitcnt vmcnt(9) lgkmcnt(0)")
for i in range(9): e(f"  ds_read_b128 v[{WR+4*i}:{WR+4*i+3}], v1 offset:{128*i}")
e("  s_add_u32 s47, s47, 0x01010101", "tag of this launch"); e("  v_mov_b32 v18, s47")
for i in range(9):
    e(f"  s_waitcnt vmcnt({8-i}) lgkmcnt({8-i})")
    for j in range(4): e(f"  v_dot2c_f32_bf16 v{12+j}, v{XR+4*i+j}, v{WR+4*i+j}")
e("  s_nop 1")
e("  v_add_f32 v12, v12, v13"); e("  v_add_f32 v14, v14, v15"); e("  v_add_f32 v12, v12, v14")
e("  s_movk_i32 s29, 0x207"); e("  v_cmp_class_f32 s[96:97], v12, s29", "lanes that hold an inf or a NaN")
e(f"  v_add_f32_dpp v12, v12, v12 quad_perm:[1,0,3,2] {DPPM}"); e("  s_nop 1")
e(f"  v_add_f32_dpp v12, v12, v12 quad_perm:[2,3,0,1] {DPPM}"); e("  s_nop 1")
e(f"  v_add_f32_dpp v12, v12, v12 row_half_mirror {DPPM}")
cm("key = order-preserving bf16 score << 16 | 2047 - row; NaN sorts last")
e("  v_cvt_pk_bf16_f32 v13, v12, v12"); e("  v_cmp_u_f32 vcc, v12, v12"); e("  v_ashrrev_i32 v14, 31, v13")
e("  v_bitop3_b32 v13, v13, v14, v22 bitop3:0x1e"); e("  v_cndmask_b32 v13, v13, 0, vcc"); e("  v_and_or_b32 v13, v13, s30, v11")
e("  s_nop 1")
e(f"  v_max_u32_dpp v16, v13, v13 row_ror:8 {DPPM}"); e(f"  v_min_u32_dpp v17, v13, v13 row_ror:8 {DPPM}"); e("  s_nop 0")
for ctl in ("row_bcast:15 row_mask:0xa bank_mask:0xf", "row_bcast:31 row_mask:0xc bank_mask:0xf"):
    e(f"  v_min_u32_dpp v14, v16, v16 {ctl}"); e(f"  v_max_u32_dpp v16, v16, v16 {ctl}")
    e(f"  v_max_u32_dpp v15, v17, v17 {ctl}"); e("  v_max_u32 v17, v14, v15")
e(f"  s_lshl_b64 exec, {hex((1 << NL) - 1)}, 48", f"lanes 48..63 hold the pair: {REP} copies x {GS} bytes")
e("  buffer_store_dwordx4 v[16:19], v21, s[16:19], s31 offen sc1")
stamp(3)
e(f"  s_cmp_lt_u32 s2, {NWT}"); e("  s_cbranch_scc1 L_XG"); e("  s_barrier", "prefetch WG: let the other waves fill the queue"); e("L_XG:")
e("  ds_write_b32 v45, v18"); e("  s_mov_b64 exec, -1")
slice_calc(); setup0(); setup1()
e(f"  s_cmp_ge_u32 s2, {NWT}"); e("  s_cbranch_scc1 L_XH")
e("  s_mov_b32 exec_lo, 0x00ff00ff", "columns 512..575 of w_down"); e("  s_mov_b32 exec_hi, 0x00ff00ff")
for mp in range(8): wd_load(mp)
e("  s_mov_b64 exec, -1")
if RP:
    e("  v_lshlrev_b32 v46, 7, v0"); e(f"  s_mul_i32 s29, s45, {32*1152}")
    for r in range(RP):
        e(f"  buffer_load_dword v{DUM}, v46, s[12:15], s29 offen")
        if r < RP-1: e("  s_add_u32 s29, s29, 8192")
e("  s_waitcnt vmcnt(0)")
if O("nored5", 0): stamp(5)
e("L_P1:")
b = 48
for j in range(4): e(f"  buffer_load_dwordx4 v[{b+4*j}:{b+3+4*j}], v44, s[16:19], s{27 if j == 0 else 47+j} offen sc1")
e("  s_waitcnt vmcnt(0)")
e(f"  v_cmp_ne_u32 vcc, s47, v{b+2}"); e(f"  v_cmp_ne_u32 s[32:33], s47, v{b+6}")
e(f"  v_cmp_ne_u32 s[38:39], s47, v{b+10}"); e(f"  v_cmp_ne_u32 s[40:41], s47, v{b+14}")
e("  s_or_b64 vcc, vcc, s[32:33]"); e("  s_or_b64 s[38:39], s[38:39], s[40:41]"); e("  s_or_b64 vcc, vcc, s[38:39]")
e("  s_cbranch_scc0 L_PT")
e(f"  s_sleep {PSL}", "some granule is missing: back off and read again")
e("  s_sub_u32 s61, s61, 1"); e("  s_cbranch_scc0 L_P1")
e("  .p2align 3"); e("L_PT:")
def merge(a1, a2, b1, b2, o1, o2, t):
    e(f"  v_min_u32 v{t}, v{a1}, v{b1}"); e(f"  v_max_u32 v{o1}, v{a1}, v{b1}"); e(f"  v_max3_u32 v{o2}, v{t}, v{a2}, v{b2}")
merge(b, b+1, b+4, b+5, 40, 41, 12); merge(b+8, b+9, b+12, b+13, 42, 43, 13); merge(40, 41, 42, 43, 40, 41, 12)
e("  s_nop 0")
for ctl in (f"quad_perm:[1,0,3,2] {DPPM}", f"quad_perm:[2,3,0,1] {DPPM}", f"row_ror:4 {DPPM}", f"row_ror:8 {DPPM}",
            "row_bcast:15 row_mask:0xa bank_mask:0xf", "row_bcast:31 row_mask:0xc bank_mask:0xf"):
    e(f"  v_min_u32_dpp v12, v40, v40 {ctl}"); e(f"  v_max_u32_dpp v40, v40, v40 {ctl}")
    e(f"  v_max_u32_dpp v13, v41, v41 {ctl}"); e("  v_max_u32 v41, v12, v13")
e("  v_cmp_gt_u32 vcc, 8, v0"); e("  v_readlane_b32 s32, v40, 63", "global top-2 keys"); e("  v_readlane_b32 s33, v41, 63")
e(f"  s_cmp_ge_u32 s2, {NWT}"); e("  s_cbranch_scc1 L_XH2")
e("  s_and_b32 s38, s32, 0x7ff"); e("  s_and_b32 s39, s33, 0x7ff"); e("  s_sub_u32 s38, 2047, s38"); e("  s_sub_u32 s39, 2047, s39")
e("  s_mul_i32 s38, s38, 1152"); e("  s_mul_i32 s39, s39, 1152"); e(f"  s_mov_b32 m0, {XIMG}"); e("  s_sub_u32 s40, s39, 128")
e("  buffer_load_dwordx4 v8, s[4:7], s38 offen lds", "both routed rows -> LDS [2][1152 B]")
e("  s_add_u32 s41, s38, 1024"); e("  v_mov_b32 v12, s40"); e("  v_mov_b32 v13, s41"); e("  s_addk_i32 m0, 0x400")
e("  v_cndmask_b32 v12, v12, v13, vcc"); e("  v_add_u32 v12, v12, v8")
e("  buffer_load_dwordx4 v12, s[4:7], 0 offen lds")
e("  s_addk_i32 m0, 0x400"); e("  s_add_u32 s40, s39, 896"); e("  s_mov_b64 exec, 0xffff")
e("  buffer_load_dwordx4 v8, s[4:7], s40 offen lds"); e("  s_mov_b64 exec, -1")
stamp(1)
def final_setup():
    cm("last stage: lane row r = lane>>4 holds token r>>1, column 8u + 2(lane&3) + (r&1)")
    e("  v_cmp_gt_u32 vcc, 32, v0"); e("  v_mov_b32 v28, s33"); e("  v_mov_b32 v29, s32"); e("  v_and_b32 v31, 3, v0")
    e("  v_cndmask_b32 v28, v28, v29, vcc"); e("  v_and_b32 v29, 0xffff, v28"); e("  v_sub_u32 v29, 2047, v29")
    e("  v_mul_u32_u24 v29, 1152, v29"); e("  v_bfe_u32 v30, v0, 4, 1"); e("  v_lshlrev_b32 v30, 1, v30")
    e("  v_lshl_add_u32 v30, v31, 2, v30"); e("  v_add_u32 v29, v29, v30")
    e("  v_not_b32 v32, v28"); e("  v_ashrrev_i32 v32, 31, v32"); e("  v_or_b32 v32, 0x80000000, v32")
    e("  v_xor_b32 v32, v32, v28"); e("  v_and_b32 v32, 0xffff0000, v32", "the bf16 score back from the key"); e("  v_mul_f32 v32, 0xbfb8aa3b, v32")
    e("  v_exp_f32 v32, v32"); e("  v_lshrrev_b32 v33, 5, v0"); e("  v_add_f32 v32, 1.0, v32"); e("  v_rcp_f32 v32, v32")
    e("  v_mul_u32_u24 v33, 1152, v33"); e("  v_cvt_pk_bf16_f32 v32, v32, v32"); e("  v_and_b32 v32, 0xffff0000, v32", "sigmoid, rounded to bf16")
    e("  s_sub_u32 s46, s45, 72", "unit u = slice - 72"); e("  s_lshl_b32 s50, s46, 4"); e(f"  s_add_u32 s51, s50, {XIMG}"); e("  v_add3_u32 v33, v33, v30, s51")
    e("  v_lshrrev_b32 v34, 2, v0"); e("  v_mul_u32_u24 v34, 4608, v34"); e("  v_lshl_add_u32 v34, v31, 4, v34")
    e("  s_lshl_b32 s80, s46, 6"); e(f"  s_add_u32 s80, s80, {WS_SLAB}")
    for t in range(1, 9): e(f"  s_add_u32 s{80+t}, s80, {16*4608*t}")
    e("  s_mov_b32 s41, 0x0c04000c"); e("  s_mov_b32 s42, 0x04020100"); e("  v_mov_b32 v35, 0")
if EFS == 2: final_setup()
e("  s_barrier", "A: the rows are requested")
if EFS == 1: final_setup()
e("  s_waitcnt vmcnt(0) lgkmcnt(0)")
stamp(4, True)
e("  s_barrier", "B: the rows are in LDS")
if LOWP: e("  s_setprio 0")
copy_stores(); e("  s_mov_b64 exec, -1")
if EFS == 0: final_setup()
if LOWP == 2: e("  s_setprio 3")
e("  s_branch L_JOIN")
e("L_XH:"); e("  s_barrier", "the prefetch is done"); e("  s_branch L_P1")
e("L_XH2:"); copy_stores(); e("  s_branch L_FIN")
cm("---------------------------------------------------------------- roles 0..3: (matrix, half of K)")
e("L_NOTX:")
e(f"  s_mov_b32 s10, {WB}")
e(f"  s_cmp_ge_u32 s2, {NWT}"); e("  s_cbranch_scc1 L_HELP")
slice_calc(); setup0()
e("  v_lshrrev_b32 v8, 2, v0"); e("  v_mul_u32_u24 v8, 9216, v8"); e("  v_lshrrev_b32 v9, 4, v0"); e("  v_and_b32 v9, 2, v9")
e("  v_xor_b32 v9, v9, v0"); e("  v_and_b32 v9, 3, v9"); e("  v_lshl_add_u32 v8, v9, 4, v8", "16 rows x 64 B, halves swapped in rows 8..15")
e("  s_and_b32 s28, s3, 1"); e(f"  s_mul_i32 s28, s28, {288*9216}"); e("  s_lshl_b32 s29, s45, 6"); e("  s_add_u32 s28, s28, s29")
e("  s_and_b32 s42, s45, 1", "the two WGs that share the lines start on different rows")
e(f"  s_mul_i32 s29, s42, {N0*QS}"); e(f"  s_add_u32 s46, s28, {2*N0*QS}"); e(f"  s_add_u32 s43, s28, {N0*QS}")
e("  s_sub_u32 s43, s43, s29"); e("  s_add_u32 s28, s28, s29")
e("  s_mul_i32 s30, s3, 18432"); e("  s_mov_b32 m0, s30")
e("  s_cmp_ge_u32 s3, 2"); e("  s_waitcnt lgkmcnt(0)")
e("  s_cselect_b32 s8, s26, s24"); e("  s_cselect_b32 s9, s27, s25")
stamp(1)
ops = [("W", i) for i in range(WE)] + [("D", i) for i in range(18)] + [("W", i) for i in range(WE, 8)]
pos = {op: n for n, op in enumerate(ops)}
nis = 0
def issue():
    global nis
    if nis >= len(ops): return False
    k, i = ops[nis]
    if k == "D":
        if i == N0: e("  s_mov_b32 s28, s43")
        if i == 2*N0: e("  s_mov_b32 s28, s46")
        e("  buffer_load_dwordx4 v8, s[8:11], s28 offen lds")
        if i < 17: e("  s_addk_i32 m0, 0x400"); e(f"  s_add_u32 s28, s28, {QS}")
    else: wd_load(i)
    nis += 1
    return True
def vwait(op): e(f"  s_waitcnt vmcnt({nis - pos[op] - 1})")
while nis < WE + min(N0, W1): issue()
setup1()
e("  v_lshlrev_b32 v9, 9, v3"); e("  v_bfe_u32 v10, v0, 2, 2"); e("  v_lshl_add_u32 v9, v10, 6, v9"); e("  v_and_b32 v10, 3, v0")
e("  v_lshl_add_u32 v9, v10, 3, v9"); e("  v_and_b32 v10, 1, v3"); e("  v_lshl_add_u32 v9, v10, 5, v9")
e("  v_add_u32 v9, s30, v9", "transposing reads, columns 0..15"); e("  v_xor_b32 v10, 32, v9", "columns 16..31")
e("  v_and_b32 v11, 1, v0"); e("  v_mul_u32_u24 v11, 1152, v11"); e("  v_lshl_add_u32 v11, v3, 4, v11")
e("  s_and_b32 s29, s3, 1"); e("  s_mul_i32 s29, s29, 576"); e(f"  s_add_u32 s29, s29, {XIMG}")
e(f"  s_mul_i32 s31, s42, {32*N0}")
e(f"  v_add_u32 v{VA2}, s29, v11", "x fragments"); e(f"  v_add_u32 v11, s31, v{VA2}"); e(f"  v_subrev_u32 v1, s31, v{VA2}")
e("  s_lshl_b32 s29, s3, 8"); e(f"  s_add_u32 s29, s29, {TEX}"); e(f"  v_lshl_add_u32 v{VXW}, v2, 3, s29")
def trreads(s):
    for hh in range(2):
        for u in range(2):
            r = BF + 8*s + 4*hh + 2*u
            e(f"  ds_read_b64_tr_b16 v[{r}:{r+1}], v{9+hh} offset:{2048*s+256*u}")
def mfmas(s):
    for hh in range(2):
        c = "0" if s == 0 else f"v[{ACC+4*hh}:{ACC+4*hh+3}]"
        r = BF + 8*s + 4*hh
        e(f"  v_mfma_f32_16x16x32_bf16 v[{ACC+4*hh}:{ACC+4*hh+3}], v[{AF+4*s}:{AF+4*s+3}], v[{r}:{r+3}], {c}")
E0 = N0 // 2
for s in range(PB):
    for h in range(2):
        need = 2*s + h
        def ok():
            if nis >= len(ops) or ops[nis][0] != "D": return False
            i = ops[nis][1]
            return i < need + 1 + W1 if i < N0 else (need >= N0 - 1 and i < need + 1 + W2)
        if ok() or h == 1: vwait(("D", need))
        while ok(): issue()
    if s == 0: stamp(2)
    trreads(s)
while ops[nis][0] == "D": issue()
stamp(5)
e("  s_barrier", "A")
while issue(): pass
e("  s_waitcnt lgkmcnt(0)"); e("  s_barrier", "B")
stamp(4, True); fs(1, True)
if CPRIO: e(f"  s_setprio {CPRIO}")
order = []
for s in range(9):
    ar = 11 if s < E0 else (1 if s < 2*E0 else VA2)
    e(f"  ds_read_b128 v[{AF+4*s}:{AF+4*s+3}], v{ar} offset:{64*s}"); order.append(f"A{s}")
late = list(range(PB, 9))
for s in range(9):
    if late and late[0] <= s + 1:
        t = late.pop(0); vwait(("D", 2*t+1)); trreads(t); order += [f"T{t}"]*4
    tag = f"A{s}" if s < PB else f"T{s}"
    need = len(order) - 1 - order[::-1].index(tag)
    e(f"  s_waitcnt lgkmcnt({min(15, len(order) - need - 1)})")
    mfmas(s)
stamp(3); fs(2)
e("  s_mov_b64 exec, 0xffff"); e("  s_nop 6")
e(f"  ds_write2_b64 v{VXW}, v[{ACC}:{ACC+1}], v[{ACC+4}:{ACC+5}] offset0:0 offset1:16")
e("  s_mov_b64 exec, -1")
cm("---------------------------------------------------------------- all 5 waves: SwiGLU, 128 columns of w_down each")
e("L_JOIN:")
e("  s_waitcnt lgkmcnt(0)"); fs(3, True); e("  s_barrier", "C: the four partial pre-activations are in LDS"); fs(4)
e("  ds_read2_b32 v[12:13], v5 offset0:0 offset1:64"); e("  ds_read2_b32 v[14:15], v5 offset0:128 offset1:192")
e(f"  ds_read_b32 v23, v{VTAG}")
e("  s_cmp_eq_u32 s3, 4"); e("  s_waitcnt lgkmcnt(0)")
e("  v_add_f32 v12, v12, v13"); e("  v_add_f32 v14, v14, v15")
e("  v_cvt_pk_bf16_f32 v12, v12, v14"); e("  v_lshlrev_b32 v13, 16, v12"); e("  v_mul_f32 v15, 0xbfb8aa3b, v13"); e("  v_exp_f32 v15, v15")
e("  v_and_b32 v14, 0xffff0000, v12"); e("  v_add_f32 v15, 1.0, v15"); e("  v_rcp_f32 v15, v15"); e("  s_nop 0")
e("  v_mul_f32 v13, v13, v15"); e("  v_cvt_pk_bf16_f32 v13, v13, v13"); e("  v_and_b32 v13, 0xffff0000, v13")
e("  v_mul_f32 v13, v13, v14"); e("  v_cvt_pk_bf16_f32 v13, v13, v13", "h = bf16(bf16(silu(a)) * u), in both halves")
fs(5)
e("  s_cbranch_scc1 L_W4"); e("  s_waitcnt vmcnt(0)"); e("L_W4:"); fs(6); e("  s_nop 0")
e(f"  v_and_b32_dpp v12, v13, v6 quad_perm:[0,0,2,2] {DPPM}"); e(f"  v_and_b32_dpp v16, v13, v6 quad_perm:[1,1,3,3] {DPPM}")
e("  s_nop 0"); e("  .p2align 3")
cm("A = h on a diagonal: D[token, column parity and pair][chunk] sums 4 rows of w_down per MFMA")
for mp in range(8):
    src = 12 if mp < 4 else 16; qq = mp & 3
    for r in range(4):
        n = (4*(r-qq)) % 16
        ctl = "quad_perm:[0,1,2,3]" if n == 0 else f"row_ror:{n}"
        e(f"  v_mov_b32_dpp v{AD+4*mp+r}, v{src} {ctl} row_mask:0xf bank_mask:{hex(1<<r)}")
    if mp >= 1:
        m = mp - 1; c = "0" if m == 0 else f"v[{ACC}:{ACC+3}]"
        e(f"  v_mfma_f32_16x16x32_bf16 v[{ACC}:{ACC+3}], v[{AD+4*m}:{AD+4*m+3}], v[{WD+4*m}:{WD+4*m+3}], {c}")
e("  s_nop 0")
e(f"  v_mfma_f32_16x16x32_bf16 v[{ACC}:{ACC+3}], v[{AD+28}:{AD+31}], v[{WD+28}:{WD+31}], v[{ACC}:{ACC+3}]")
e("  s_cselect_b32 exec_lo, 0x00ff00ff, -1"); e("  s_cselect_b32 exec_hi, 0x00ff00ff, -1"); e("  s_nop 5")
cm("4 sums (top 24 bits each) + tag in 16 bytes")
for j in range(3): e(f"  v_perm_b32 v{20+j}, v{ACC+j}, v{ACC+3}, s{56+j}")
e("  buffer_store_dwordx4 v[20:23], v7, s[16:19], s36 offen sc1")
if STAMP:
    e("  s_cbranch_scc1 L_S6"); stamp(6); e("  s_branch L_FIN"); e("L_S6:"); stamp(2)
else: e("  s_cbranch_scc0 L_FIN")
e("  s_cmp_ge_u32 s46, 72"); e("  s_cbranch_scc1 L_FIN")
cm("---------------------------------------------------------------- 72 waves: sum over the 144 WGs, write the routed rows")
e("  s_mov_b64 exec, -1"); e("  ds_read_u16_d16_hi v35, v33"); e(f"  s_mov_b32 s61, {SPIN}")
e("  s_waitcnt vmcnt(0)")
if RSL: e(f"  s_sleep {RSL}")
def rload(t): e(f"  buffer_load_dwordx4 v[{R0+4*t}:{R0+3+4*t}], v34, s[16:19], s{80+t} offen sc1")
for t in range(9): rload(t)
for t in range(9):
    r = R0 + 4*t
    e(f"L_R{t}:"); e(f"  s_waitcnt vmcnt({8-t})"); e(f"  v_cmp_ne_u32 vcc, s47, v{r+3}"); e(f"  s_cbranch_vccnz L_RR{t}"); e(f"L_RA{t}:")
    e(f"  v_perm_b32 v{r+3}, v{r+1}, v{r}, s41"); e(f"  v_perm_b32 v{r+3}, v{r+2}, v{r+3}, s42")
    if t:
        e(f"  v_pk_add_f32 v[{R0}:{R0+1}], v[{R0}:{R0+1}], v[{r}:{r+1}]"); e(f"  v_pk_add_f32 v[{R0+2}:{R0+3}], v[{R0+2}:{R0+3}], v[{r+2}:{r+3}]")
if not O("nored5", 0): stamp(5)
e("  s_nop 1"); e(f"  v_permlane32_swap_b32 v{R0}, v{R0+2}"); e(f"  v_permlane32_swap_b32 v{R0+1}, v{R0+3}")
e(f"  v_add_f32 v{R0}, v{R0}, v{R0+2}"); e(f"  v_add_f32 v{R0+1}, v{R0+1}, v{R0+3}"); e("  s_nop 1")
e(f"  v_permlane16_swap_b32 v{R0}, v{R0+1}"); e(f"  v_add_f32 v{R0}, v{R0}, v{R0+1}"); e("  s_nop 1")
e(f"  v_add_f32_dpp v{R0}, v{R0}, v{R0} row_ror:4 {DPPM}"); e("  s_nop 1"); e(f"  v_add_f32_dpp v{R0}, v{R0}, v{R0} row_ror:8 {DPPM}")
e(f"  v_cvt_pk_bf16_f32 v16, v{R0}, v{R0}"); e("  v_and_b32 v16, 0xffff0000, v16"); e("  v_mul_f32 v16, v16, v32")
e("  v_cvt_pk_bf16_f32 v16, v16, v16"); e("  v_and_b32 v16, 0xffff0000, v16"); e("  s_waitcnt lgkmcnt(0)")
e("  v_add_f32 v16, v16, v35"); e("  v_cvt_pk_bf16_f32 v16, v16, v16")
e("  s_mov_b32 exec_lo, 0x000f000f"); e("  s_mov_b32 exec_hi, 0x000f000f")
e("  buffer_store_short v16, v29, s[20:23], s50 offen")
e("  s_cmp_lg_u32 s46, 0"); e("  s_cbranch_scc1 L_FIN")
e("  s_mov_b64 exec, 1", "every reader of d_ws[0] is behind the sums seen here"); e("  v_mov_b32 v16, s47"); e(f"  v_mov_b32 v17, {WS_E}")
e("  buffer_store_dword v16, v17, s[16:19], 0 offen")
e("L_FIN:"); stamp_flush(); e("L_END:"); e("  s_endpgm")
for t in range(9):
    e(f"L_RR{t}:"); e("  s_sub_u32 s61, s61, 1"); e(f"  s_cbranch_scc1 L_RA{t}")
    for t2 in range(t, 9): rload(t2)
    e(f"  s_branch L_R{t}")
cm("---------------------------------------------------------------- prefetch waves: one word per 128-byte line")
e("L_HELP:")
e(f"  s_sub_u32 s28, s2, {NWT}"); e("  s_and_b32 s29, s28, 7"); e("  s_lshr_b32 s28, s28, 3")
e("  s_and_b32 s33, s3, 1"); e("  s_mul_i32 s33, s33, 288"); e(f"  s_mul_i32 s32, s28, {HR}"); e("  s_add_u32 s32, s32, s33")
e(f"  s_add_u32 s32, s32, {32*N0}"); e("  s_mul_i32 s32, s32, 9216"); e("  s_mul_i32 s34, s29, 1152"); e("  s_add_u32 s32, s32, s34")
e("  v_mul_u32_u24 v3, 0x1c72, v0"); e("  v_lshrrev_b32 v3, 16, v3", "lane / 9"); e("  v_mul_u32_u24 v4, 9, v3"); e("  v_sub_u32 v4, v0, v4")
e("  v_mul_u32_u24 v3, 9216, v3"); e("  v_lshl_add_u32 v3, v4, 7, v3")
e("  s_lshl2_add_u32 s28, s28, s3")
e(f"  s_mul_i32 s29, s29, {5184*128}")
if RP: e(f"  s_add_u32 s29, s29, {RP*8192}")
e("  v_lshlrev_b32 v2, 7, v0")
nr = -(-(288 - 32*N0) // (NH*HR))
assert nr - HG >= 1
e(f"  s_mov_b32 s30, {nr-HG}")
e("  s_cmp_ge_u32 s3, 2"); e("  s_waitcnt lgkmcnt(0)")
e("  s_cselect_b32 s8, s26, s24"); e("  s_cselect_b32 s9, s27, s25")
e(f"  s_bfm_b64 exec, {9*HR}, 0")
for r in range(HG):
    e(f"  buffer_load_dword v{DUM}, v3, s[8:11], s32 offen"); e(f"  s_add_u32 s32, s32, {NH*HR*9216}")
e("  s_barrier"); stamp(1)
e("L_HGL:"); e(f"  s_waitcnt vmcnt({HT-1})"); e(f"  buffer_load_dword v{DUM}, v3, s[8:11], s32 offen")
e(f"  s_add_u32 s32, s32, {NH*HR*9216}"); e("  s_sub_u32 s30, s30, 1"); e("  s_cmp_lg_u32 s30, 0"); e("  s_cbranch_scc1 L_HGL")
stamp(2)
CPS = 9 - 2*RP
e("  s_bfm_b64 exec, 32, 0")
e("L_HWL:")
e(f"  s_mul_hi_u32 s30, s28, {(2**32 + CPS - 1)//CPS}"); e(f"  s_mul_i32 s31, s30, {CPS}"); e("  s_sub_u32 s31, s28, s31")
e("  s_mul_i32 s30, s30, 36864"); e("  s_lshl_b32 s31, s31, 12"); e("  s_add_u32 s30, s30, s31"); e("  s_add_u32 s30, s30, s29")
e(f"  s_waitcnt vmcnt({HT-1})"); e(f"  buffer_load_dword v{DUM}, v2, s[12:15], s30 offen")
e("  s_add_u32 s28, s28, 56"); e(f"  s_cmp_lt_u32 s28, {18*CPS}"); e("  s_cbranch_scc1 L_HWL")
e("  s_waitcnt vmcnt(0)"); e("  s_barrier"); e("  s_branch L_FIN")
e("L_CODE_END:")
cm("rare path: x + x*0 turns an infinity into a NaN")
for n in range(1, ncopy+1):
    e(f"L_FIX{n}:"); e(f"  s_mov_b32 s98, {n}"); e("  s_branch L_FIX")
e("L_FIX:"); e("  s_mov_b32 s29, 0x07060302")
for j in range(36):
    r = XR + j
    e(f"  v_lshlrev_b32 v12, 16, v{r}"); e(f"  v_and_b32 v13, 0xffff0000, v{r}"); e("  v_fma_f32 v12, v12, 0, v12"); e("  v_fma_f32 v13, v13, 0, v13")
    e(f"  v_perm_b32 v{r}, v13, v12, s29")
e("  s_cmp_eq_u32 s98, 1"); e("  s_cbranch_scc1 L_FIXR1"); e("  s_branch L_FIXR2")
e('.section .rodata,"a"'); e(".p2align 6"); e(f".amdhsa_kernel {K}")
e("  .amdhsa_next_free_vgpr 200"); e("  .amdhsa_next_free_sgpr 102"); e("  .amdhsa_accum_offset 200")
e("  .amdhsa_group_segment_fixed_size 0"); e("  .amdhsa_kernarg_size 64"); e("  .amdhsa_user_sgpr_count 2")
e("  .amdhsa_user_sgpr_kernarg_segment_ptr 1"); e("  .amdhsa_system_sgpr_workgroup_id_x 1"); e("  .amdhsa_float_denorm_mode_32 3")
e(".end_amdhsa_kernel")
open(sys.argv[1], "w").write("\n".join(out) + "\n")
```

```python
import sys
NAME = "standalone__moe_arch_mod__prompt"
S, D, F = 2048, 576, 4608
XB = S*D*2
WB = D*F*2
opts = dict(a.split("=") for a in sys.argv[2:] if "=" in a)
def O(k, d): return int(opts.get(k, d))
STAMP = O("stamp", 0); AMP = opts.get("amp"); FINE = O("fine", 0)
if AMP: STAMP = 1
GS = O("gs", 64); REP = O("rep", 4); RS = 256*GS
LG = {16: 0, 32: 1, 64: 2}[GS]; LR = {1: 0, 2: 1, 4: 2, 8: 3}[REP]; NL = REP*GS//16
assert NL <= 16
WS_E = 0; WS_GRAN = 4096; WS_SLAB = 4096 + REP*RS; WS_SIZE = 1 << 20; WS_STAMP = 1 << 21
N0 = O("n0", 2); W1 = O("w1", 4); W2 = O("w2", 4); WE = O("we", 2); PB = O("pb", 7); RP = O("rp", 0)
HR = O("hr", 4); HT = O("ht", 2); HG = O("hg", 1)
PSL = O("psl", 2); SPIN = O("spin", 200000); RSL = O("rsl", 0)
WD4E = O("wd4e", 1); EFS = O("efs", 1); LOWP = O("lowp", 1); CPRIO = O("cprio", 0)
NWT = 144; NH = 14
out = []
def e(s="", c=None): out.append(s if c is None else f"{s:<72}; {c}")
def cm(s): out.append("; " + s)
def stamp(i, wait=False):
    if STAMP and (i in (0, 7) or not FINE):
        e(f"  s_memrealtime s[{64+2*i}:{65+2*i}]")
        if wait: e("  s_waitcnt lgkmcnt(0)")
def fs(i, wait=False):
    if FINE:
        e(f"  s_memtime s[{64+2*i}:{65+2*i}]")
        if wait: e("  s_waitcnt lgkmcnt(0)")
def stamp_flush():
    if AMP:
        A, B, KK, WV, WG = map(int, AMP.split(","))
        stamp(7, True)
        e(f"  s_cmp_lg_u32 s2, {WG}"); e("  s_cbranch_scc1 L_AMPX")
        e(f"  s_cmp_lg_u32 s3, {WV}"); e("  s_cbranch_scc1 L_AMPX")
        e(f"  s_sub_u32 s60, s{64+2*B}, s{64+2*A}")
        e(f"  s_mul_i32 s60, s60, {KK}")
        e("L_AMP:"); e("  s_memrealtime s[62:63]"); e("  s_waitcnt lgkmcnt(0)"); e("  s_sub_u32 s62, s62, s78")
        e("  s_cmp_lt_u32 s62, s60"); e("  s_cbranch_scc1 L_AMP"); e("L_AMPX:")
    elif STAMP:
        if FINE: e("  s_memtime s[78:79]"); e("  s_waitcnt lgkmcnt(0)")
        else: stamp(7, True)
        e("  s_mov_b64 exec, 1")
        e("  s_lshl_b32 s60, s2, 3"); e("  s_add_u32 s60, s60, s3"); e("  s_lshl_b32 s60, s60, 6")
        e(f"  s_add_u32 s60, s60, {WS_STAMP}"); e("  s_mov_b32 s18, 0x1000000"); e("  v_mov_b32 v1, 0")
        for j in range(4):
            for k in range(4): e(f"  v_mov_b32 v{4+k}, s{64+4*j+k}")
            e(f"  buffer_store_dwordx4 v[4:7], v1, s[16:19], s60 offen offset:{16*j}"); e("  s_nop 1")

hdr = open('cdna_kernels/%s.s.ref' % NAME).read().split('\n')
for l in hdr:
    if l.startswith('; @launch'): break
    e(l)
XIMG = 73728; TAGL = XIMG + 2304; TEX = XIMG + 3072; WRIMG = TEX + 1024; LDS = 83968
e(f"; @launch grid=(256,1,1) block=(320,1,1) lds={LDS}")
DOC = """
One launch, 256 workgroups of 5 waves, one per CU (LDS and VGPR use allow one).
 role 4 (wave 0), every WG : 8 rows of x -> router scores -> local top-2 -> tagged granule in d_ws,
                             later the copy of its rows that were not routed.
 WGs 0..143, roles 0..3    : 32 columns of w_gate / w_up (LDS-DMA, transposing LDS reads, MFMA),
                             SwiGLU, the matching 32 rows of w_down (MFMA), tagged partial sums in d_ws.
 WGs 0..143, role 4        : gathers the 256 granules, global top-2, brings both rows into LDS;
                             72 of them add up the 144 partial sums of 8 columns and write the routed rows.
 WGs 144..255, roles 0..3  : pull weight lines into the L2 that the weight WGs with the same id mod 8
                             are expected to share (speed only, nothing depends on it).
 Hand-offs between WGs are 16-byte pieces that carry a tag, written and read with sc1.
 tag = d_ws[0] + 0x01010101; d_ws[0] is set to the tag at the end, so it differs from launch to launch.
"""
for l in DOC.strip("\n").split("\n"): cm(l)
e('.amdgcn_target "amdgcn-amd-amdhsa--gfx950"'); e(".text")
K = NAME + "_kernel"
e(f".globl {K}"); e(".p2align 8"); e(f".type {K},@function"); e(f"{K}:")
DPPM = "row_mask:0xf bank_mask:0xf"
AF = 12; BF = 48; ACC = 120; WD = 128; AD = 160; XR = 84; WR = 48; R0 = 48
VXW = 192; VA2 = 193; VTAG = 194; DUMC = 196; DUM = 197
QS = 16*9216

def slice_calc():
    e("  s_and_b32 s45, s2, 7"); e("  s_mul_i32 s45, s45, 18"); e("  s_lshr_b32 s44, s2, 3")
    e("  s_add_u32 s45, s45, s44", "slice: neighbours are 8 ids apart")
def setup0():
    e("  v_and_b32 v2, 15, v0"); e("  v_lshrrev_b32 v3, 4, v0")
    e("  v_mul_u32_u24 v4, 9216, v3"); e("  v_lshl_add_u32 v4, v2, 4, v4", "w_down: row 8g, 16-byte chunk c")
    e(f"  s_mul_i32 s34, s45, {32*1152}"); e("  s_lshl_b32 s35, s3, 8"); e("  s_add_u32 s34, s34, s35"); e("  s_add_u32 s35, s34, 4608")
def setup1():
    e("  v_lshrrev_b32 v5, 2, v2"); e("  v_lshl_add_u32 v5, v3, 3, v5"); e("  v_and_b32 v6, 1, v0"); e("  v_lshl_add_u32 v5, v6, 2, v5")
    e("  v_lshlrev_b32 v5, 3, v5"); e("  v_and_b32 v6, 2, v0"); e("  v_lshl_add_u32 v5, v6, 1, v5")
    e(f"  v_add_u32 v5, {TEX}, v5", "exchange table: this lane's (f, token)")
    e("  v_and_b32 v6, 1, v0"); e("  v_cmp_eq_u32 vcc, 1, v6"); e("  v_mov_b32 v6, 0xffff"); e("  v_mov_b32 v7, 0xffff0000")
    e("  v_cndmask_b32 v6, v6, v7, vcc", "half-word mask by lane parity")
    e("  v_lshlrev_b32 v7, 6, v2"); e("  v_lshl_add_u32 v7, v3, 4, v7", "partial-sum piece of this lane")
    e("  s_mul_i32 s36, s45, 4608"); e("  s_lshl_b32 s37, s3, 10"); e("  s_add_u32 s36, s36, s37"); e(f"  s_add_u32 s36, s36, {WS_SLAB}")
    e(f"  v_mov_b32 v{VTAG}, {TAGL}")
    e("  s_mov_b32 s56, 0x07060501"); e("  s_mov_b32 s57, 0x07060502"); e("  s_mov_b32 s58, 0x07060503")
    for j in range(0, 32, 2): e(f"  v_mov_b64 v[{AD+j}:{AD+j+1}], 0")
def wd_load(mp): e(f"  buffer_load_dwordx4 v[{WD+4*mp}:{WD+4*mp+3}], v4, s[12:15], s{34+(mp>>2)} offen offset:{1152*(mp&3)}")
ncopy = 0
def copy_stores():
    global ncopy
    ncopy += 1
    e("  s_and_b32 s38, s32, 0xffff"); e("  s_and_b32 s39, s33, 0xffff")
    e("  v_cmp_ne_u32 s[52:53], s38, v11"); e("  v_cmp_ne_u32 s[54:55], s39, v11")
    e("  s_and_b64 exec, s[52:53], s[54:55]", "rows that are not routed")
    e("  s_cmp_lg_u64 s[96:97], 0"); e(f"  s_cbranch_scc1 L_FIX{ncopy}"); e(f"L_FIXR{ncopy}:")
    for i in range(9): e(f"  buffer_store_dwordx4 v[{XR+4*i}:{XR+4*i+3}], v10, s[20:23], s28 offen offset:{128*i}")

if STAMP:
    for i in range(2, 16): e(f"  s_mov_b32 s{64+i}, 0")
stamp(0)
cm("SRDs: x s[4:7], w_r or w_gate/w_up s[8:11], w_down s[12:15], d_ws s[16:19], d_out s[20:23]")
e("  s_load_dwordx2 s[4:5], s[0:1], 0"); e("  s_load_dwordx2 s[8:9], s[0:1], 8"); e("  s_load_dwordx2 s[16:17], s[0:1], 56")
e("  s_load_dwordx4 s[24:27], s[0:1], 16"); e("  s_load_dwordx2 s[12:13], s[0:1], 32"); e("  s_load_dwordx2 s[20:21], s[0:1], 40")
e("  s_getpc_b64 s[28:29]", "read one word of every line of the code: it lands in L2"); e("L_PC:")
e("  v_lshlrev_b32 v2, 7, v0"); e("  v_cmp_gt_u32 vcc, (L_CODE_END-L_PC+127)/128, v0")
e("  s_and_saveexec_b64 s[30:31], vcc"); e("  s_cbranch_execz L_NOPF")
e(f"  global_load_dword v{DUMC}, v2, s[28:29]"); e("L_NOPF:"); e("  s_mov_b64 exec, -1")
e("  v_lshrrev_b32 v1, 6, v0"); e("  v_and_b32 v0, 63, v0"); e("  v_readfirstlane_b32 s3, v1")
e("  s_cmp_ge_u32 s2, 256"); e("  s_cbranch_scc1 L_END")
e("  s_sub_u32 s3, s3, 1", "role: wave 0 -> 4, wave k -> k-1"); e("  s_cselect_b32 s3, 4, s3")
for r, v in ((6, XB), (7, "0x20000"), (11, "0x20000"), (14, WB), (15, "0x20000"), (18, WS_SIZE), (19, "0x20000"), (22, XB), (23, "0x20000")):
    e(f"  s_mov_b32 s{r}, {v}")
e("  s_cmp_lg_u32 s3, 4"); e("  s_cbranch_scc1 L_NOTX")
cm("---------------------------------------------------------------- role 4: router scores of 8 rows")
e("  s_setprio 3")
e(f"  s_mov_b32 s10, {D*2}"); e(f"  s_mov_b32 m0, {WRIMG}")
e("  v_lshlrev_b32 v8, 4, v0"); e("  v_and_b32 v1, 0x70, v8"); e("  v_lshrrev_b32 v9, 3, v0")
e("  v_mul_u32_u24 v10, 1152, v9"); e("  v_add_u32 v10, v10, v1", "8 lanes per row"); e("  s_mul_i32 s28, s2, 9216")
e("  s_waitcnt lgkmcnt(0)")
e(f"  s_load_dword s47, s[16:17], {WS_E}")
e("  buffer_load_dwordx4 v8, s[8:11], 0 offen lds", "w_r -> LDS"); e("  s_mov_b64 exec, 0xff")
e("  buffer_load_dwordx4 v8, s[8:11], 0 offen offset:1024 lds"); e("  s_mov_b64 exec, -1")
for i in range(9): e(f"  buffer_load_dwordx4 v[{XR+4*i}:{XR+4*i+3}], v10, s[4:7], s28 offen offset:{128*i}")
e(f"  v_add_u32 v1, {WRIMG}, v1")
e("  s_lshl_b32 s29, s2, 3"); e("  s_sub_u32 s29, 2047, s29"); e("  v_sub_u32 v11, s29, v9", "2047 - row"); e("  s_mov_b32 s30, 0xffff0000")
e(f"  s_and_b32 s29, s2, {REP-1}"); e(f"  s_mul_i32 s27, s29, {RS}"); e(f"  s_add_u32 s27, s27, {WS_GRAN}", "the copy of the granules this WG reads")
for j in range(1, 4): e(f"  s_add_u32 s{47+j}, s27, {64*GS*j}")
e("  s_and_b32 s29, s2, 7"); e("  s_lshl_b32 s29, s29, 5"); e("  s_lshr_b32 s31, s2, 3"); e("  s_add_u32 s29, s29, s31")
e(f"  s_mul_i32 s29, s29, {GS}"); e(f"  s_add_u32 s31, s29, {WS_GRAN}", "own granule")
e(f"  v_mul_u32_u24 v44, {GS}, v0")
for j in range(4): e(f"  v_mov_b32 v{12+j}, 0")
e("  v_bfrev_b32 v22, 1")
e(f"  v_bfe_u32 v21, v0, {LG}, {LR}"); e(f"  v_mul_u32_u24 v21, {RS}, v21"); e(f"  v_and_b32 v19, {GS//16-1}, v0"); e("  v_lshl_add_u32 v21, v19, 4, v21")
e(f"  s_mov_b32 s61, {SPIN}"); e(f"  v_mov_b32 v45, {TAGL}")
e("  s_waitcnt vmcnt(9) lgkmcnt(0)")
for i in range(9): e(f"  ds_read_b128 v[{WR+4*i}:{WR+4*i+3}], v1 offset:{128*i}")
e("  s_add_u32 s47, s47, 0x01010101", "tag of this launch"); e("  v_mov_b32 v18, s47")
for i in range(9):
    e(f"  s_waitcnt vmcnt({8-i}) lgkmcnt({8-i})")
    for j in range(4): e(f"  v_dot2c_f32_bf16 v{12+j}, v{XR+4*i+j}, v{WR+4*i+j}")
e("  s_nop 1")
e("  v_add_f32 v12, v12, v13"); e("  v_add_f32 v14, v14, v15"); e("  v_add_f32 v12, v12, v14")
e("  s_movk_i32 s29, 0x207"); e("  v_cmp_class_f32 s[96:97], v12, s29", "lanes that hold an inf or a NaN")
e(f"  v_add_f32_dpp v12, v12, v12 quad_perm:[1,0,3,2] {DPPM}"); e("  s_nop 1")
e(f"  v_add_f32_dpp v12, v12, v12 quad_perm:[2,3,0,1] {DPPM}"); e("  s_nop 1")
e(f"  v_add_f32_dpp v12, v12, v12 row_half_mirror {DPPM}")
cm("key = order-preserving bf16 score << 16 | 2047 - row; NaN sorts last")
e("  v_cvt_pk_bf16_f32 v13, v12, v12"); e("  v_cmp_u_f32 vcc, v12, v12"); e("  v_ashrrev_i32 v14, 31, v13")
e("  v_bitop3_b32 v13, v13, v14, v22 bitop3:0x1e"); e("  v_cndmask_b32 v13, v13, 0, vcc"); e("  v_and_or_b32 v13, v13, s30, v11")
e("  s_nop 1")
e(f"  v_max_u32_dpp v16, v13, v13 row_ror:8 {DPPM}"); e(f"  v_min_u32_dpp v17, v13, v13 row_ror:8 {DPPM}"); e("  s_nop 0")
for ctl in ("row_bcast:15 row_mask:0xa bank_mask:0xf", "row_bcast:31 row_mask:0xc bank_mask:0xf"):
    e(f"  v_min_u32_dpp v14, v16, v16 {ctl}"); e(f"  v_max_u32_dpp v16, v16, v16 {ctl}")
    e(f"  v_max_u32_dpp v15, v17, v17 {ctl}"); e("  v_max_u32 v17, v14, v15")
e(f"  s_lshl_b64 exec, {hex((1 << NL) - 1)}, 48", f"lanes 48..63 hold the pair: {REP} copies x {GS} bytes")
e("  buffer_store_dwordx4 v[16:19], v21, s[16:19], s31 offen sc1")
stamp(3)
e(f"  s_cmp_lt_u32 s2, {NWT}"); e("  s_cbranch_scc1 L_XG"); e("  s_barrier", "prefetch WG: let the other waves fill the queue"); e("L_XG:")
e("  ds_write_b32 v45, v18"); e("  s_mov_b64 exec, -1")
slice_calc(); setup0(); setup1()
e(f"  s_cmp_ge_u32 s2, {NWT}"); e("  s_cbranch_scc1 L_XH")
def wd4():
    e("  s_mov_b32 exec_lo, 0x00ff00ff", "columns 512..575 of w_down"); e("  s_mov_b32 exec_hi, 0x00ff00ff")
    for mp in range(8): wd_load(mp)
    e("  s_mov_b64 exec, -1")
if WD4E: wd4()
if RP:
    e("  v_lshlrev_b32 v46, 7, v0"); e(f"  s_mul_i32 s29, s45, {32*1152}")
    for r in range(RP):
        e(f"  buffer_load_dword v{DUM}, v46, s[12:15], s29 offen")
        if r < RP-1: e("  s_add_u32 s29, s29, 8192")
e("  s_waitcnt vmcnt(0)")
if O("nored5", 0): stamp(5)
e("L_P1:")
b = 48
for j in range(4): e(f"  buffer_load_dwordx4 v[{b+4*j}:{b+3+4*j}], v44, s[16:19], s{27 if j == 0 else 47+j} offen sc1")
e("  s_waitcnt vmcnt(0)")
e(f"  v_cmp_ne_u32 vcc, s47, v{b+2}"); e(f"  v_cmp_ne_u32 s[32:33], s47, v{b+6}")
e(f"  v_cmp_ne_u32 s[38:39], s47, v{b+10}"); e(f"  v_cmp_ne_u32 s[40:41], s47, v{b+14}")
e("  s_or_b64 vcc, vcc, s[32:33]"); e("  s_or_b64 s[38:39], s[38:39], s[40:41]"); e("  s_or_b64 vcc, vcc, s[38:39]")
e("  s_cbranch_scc0 L_PT")
e(f"  s_sleep {PSL}", "some granule is missing: back off and read again")
e("  s_sub_u32 s61, s61, 1"); e("  s_cbranch_scc0 L_P1")
e("  .p2align 3"); e("L_PT:")
def merge(a1, a2, b1, b2, o1, o2, t):
    e(f"  v_min_u32 v{t}, v{a1}, v{b1}"); e(f"  v_max_u32 v{o1}, v{a1}, v{b1}"); e(f"  v_max3_u32 v{o2}, v{t}, v{a2}, v{b2}")
merge(b, b+1, b+4, b+5, 40, 41, 12); merge(b+8, b+9, b+12, b+13, 42, 43, 13); merge(40, 41, 42, 43, 40, 41, 12)
e("  s_nop 0")
for ctl in (f"quad_perm:[1,0,3,2] {DPPM}", f"quad_perm:[2,3,0,1] {DPPM}", f"row_ror:4 {DPPM}", f"row_ror:8 {DPPM}",
            "row_bcast:15 row_mask:0xa bank_mask:0xf", "row_bcast:31 row_mask:0xc bank_mask:0xf"):
    e(f"  v_min_u32_dpp v12, v40, v40 {ctl}"); e(f"  v_max_u32_dpp v40, v40, v40 {ctl}")
    e(f"  v_max_u32_dpp v13, v41, v41 {ctl}"); e("  v_max_u32 v41, v12, v13")
e("  v_cmp_gt_u32 vcc, 8, v0"); e("  v_readlane_b32 s32, v40, 63", "global top-2 keys"); e("  v_readlane_b32 s33, v41, 63")
e(f"  s_cmp_ge_u32 s2, {NWT}"); e("  s_cbranch_scc1 L_XH2")
e("  s_and_b32 s38, s32, 0x7ff"); e("  s_and_b32 s39, s33, 0x7ff"); e("  s_sub_u32 s38, 2047, s38"); e("  s_sub_u32 s39, 2047, s39")
e("  s_mul_i32 s38, s38, 1152"); e("  s_mul_i32 s39, s39, 1152"); e(f"  s_mov_b32 m0, {XIMG}"); e("  s_sub_u32 s40, s39, 128")
e("  buffer_load_dwordx4 v8, s[4:7], s38 offen lds", "both routed rows -> LDS [2][1152 B]")
e("  s_add_u32 s41, s38, 1024"); e("  v_mov_b32 v12, s40"); e("  v_mov_b32 v13, s41"); e("  s_addk_i32 m0, 0x400")
e("  v_cndmask_b32 v12, v12, v13, vcc"); e("  v_add_u32 v12, v12, v8")
e("  buffer_load_dwordx4 v12, s[4:7], 0 offen lds")
e("  s_addk_i32 m0, 0x400"); e("  s_add_u32 s40, s39, 896"); e("  s_mov_b64 exec, 0xffff")
e("  buffer_load_dwordx4 v8, s[4:7], s40 offen lds"); e("  s_mov_b64 exec, -1")
stamp(1)
def final_setup():
    cm("last stage: lane row r = lane>>4 holds token r>>1, column 8u + 2(lane&3) + (r&1)")
    e("  v_cmp_gt_u32 vcc, 32, v0"); e("  v_mov_b32 v28, s33"); e("  v_mov_b32 v29, s32"); e("  v_and_b32 v31, 3, v0")
    e("  v_cndmask_b32 v28, v28, v29, vcc"); e("  v_and_b32 v29, 0xffff, v28"); e("  v_sub_u32 v29, 2047, v29")
    e("  v_mul_u32_u24 v29, 1152, v29"); e("  v_bfe_u32 v30, v0, 4, 1"); e("  v_lshlrev_b32 v30, 1, v30")
    e("  v_lshl_add_u32 v30, v31, 2, v30"); e("  v_add_u32 v29, v29, v30")
    e("  v_not_b32 v32, v28"); e("  v_ashrrev_i32 v32, 31, v32"); e("  v_or_b32 v32, 0x80000000, v32")
    e("  v_xor_b32 v32, v32, v28"); e("  v_and_b32 v32, 0xffff0000, v32", "the bf16 score back from the key"); e("  v_mul_f32 v32, 0xbfb8aa3b, v32")
    e("  v_exp_f32 v32, v32"); e("  v_lshrrev_b32 v33, 5, v0"); e("  v_add_f32 v32, 1.0, v32"); e("  v_rcp_f32 v32, v32")
    e("  v_mul_u32_u24 v33, 1152, v33"); e("  v_cvt_pk_bf16_f32 v32, v32, v32"); e("  v_and_b32 v32, 0xffff0000, v32", "sigmoid, rounded to bf16")
    e("  s_sub_u32 s46, s45, 72", "unit u = slice - 72"); e("  s_lshl_b32 s50, s46, 4"); e(f"  s_add_u32 s51, s50, {XIMG}"); e("  v_add3_u32 v33, v33, v30, s51")
    e("  v_lshrrev_b32 v34, 2, v0"); e("  v_mul_u32_u24 v34, 4608, v34"); e("  v_lshl_add_u32 v34, v31, 4, v34")
    e("  s_lshl_b32 s80, s46, 6"); e(f"  s_add_u32 s80, s80, {WS_SLAB}")
    for t in range(1, 9): e(f"  s_add_u32 s{80+t}, s80, {16*4608*t}")
    e("  s_mov_b32 s41, 0x0c04000c"); e("  s_mov_b32 s42, 0x04020100"); e("  v_mov_b32 v35, 0")
if EFS == 2: final_setup()
e("  s_barrier", "A: the rows are requested")
if not WD4E: wd4()
if EFS == 1: final_setup()
e(f"  s_waitcnt vmcnt({0 if WD4E else 8}) lgkmcnt(0)")
stamp(4, True)
e("  s_barrier", "B: the rows are in LDS")
if LOWP: e("  s_setprio 0")
copy_stores(); e("  s_mov_b64 exec, -1")
if EFS == 0: final_setup()
if LOWP == 2: e("  s_setprio 3")
e("  s_branch L_JOIN")
e("L_XH:"); e("  s_barrier", "the prefetch is done"); e("  s_branch L_P1")
e("L_XH2:"); copy_stores(); e("  s_branch L_FIN")
cm("---------------------------------------------------------------- roles 0..3: (matrix, half of K)")
e("L_NOTX:")
e(f"  s_mov_b32 s10, {WB}")
e(f"  s_cmp_ge_u32 s2, {NWT}"); e("  s_cbranch_scc1 L_HELP")
slice_calc(); setup0()
e("  v_lshrrev_b32 v8, 2, v0"); e("  v_mul_u32_u24 v8, 9216, v8"); e("  v_lshrrev_b32 v9, 4, v0"); e("  v_and_b32 v9, 2, v9")
e("  v_xor_b32 v9, v9, v0"); e("  v_and_b32 v9, 3, v9"); e("  v_lshl_add_u32 v8, v9, 4, v8", "16 rows x 64 B, halves swapped in rows 8..15")
e("  s_and_b32 s28, s3, 1"); e(f"  s_mul_i32 s28, s28, {288*9216}"); e("  s_lshl_b32 s29, s45, 6"); e("  s_add_u32 s28, s28, s29")
e("  s_and_b32 s42, s45, 1", "the two WGs that share the lines start on different rows")
e(f"  s_mul_i32 s29, s42, {N0*QS}"); e(f"  s_add_u32 s46, s28, {2*N0*QS}"); e(f"  s_add_u32 s43, s28, {N0*QS}")
e("  s_sub_u32 s43, s43, s29"); e("  s_add_u32 s28, s28, s29")
e("  s_mul_i32 s30, s3, 18432"); e("  s_mov_b32 m0, s30")
e("  s_cmp_ge_u32 s3, 2"); e("  s_waitcnt lgkmcnt(0)")
e("  s_cselect_b32 s8, s26, s24"); e("  s_cselect_b32 s9, s27, s25")
stamp(1)
ops = [("W", i) for i in range(WE)] + [("D", i) for i in range(18)] + [("W", i) for i in range(WE, 8)]
pos = {op: n for n, op in enumerate(ops)}
nis = 0
def issue():
    global nis
    if nis >= len(ops): return False
    k, i = ops[nis]
    if k == "D":
        if i == N0: e("  s_mov_b32 s28, s43")
        if i == 2*N0: e("  s_mov_b32 s28, s46")
        e("  buffer_load_dwordx4 v8, s[8:11], s28 offen lds")
        if i < 17: e("  s_addk_i32 m0, 0x400"); e(f"  s_add_u32 s28, s28, {QS}")
    else: wd_load(i)
    nis += 1
    return True
def vwait(op): e(f"  s_waitcnt vmcnt({nis - pos[op] - 1})")
while nis < WE + min(N0, W1): issue()
setup1()
e("  v_lshlrev_b32 v9, 9, v3"); e("  v_bfe_u32 v10, v0, 2, 2"); e("  v_lshl_add_u32 v9, v10, 6, v9"); e("  v_and_b32 v10, 3, v0")
e("  v_lshl_add_u32 v9, v10, 3, v9"); e("  v_and_b32 v10, 1, v3"); e("  v_lshl_add_u32 v9, v10, 5, v9")
e("  v_add_u32 v9, s30, v9", "transposing reads, columns 0..15"); e("  v_xor_b32 v10, 32, v9", "columns 16..31")
e("  v_and_b32 v11, 1, v0"); e("  v_mul_u32_u24 v11, 1152, v11"); e("  v_lshl_add_u32 v11, v3, 4, v11")
e("  s_and_b32 s29, s3, 1"); e("  s_mul_i32 s29, s29, 576"); e(f"  s_add_u32 s29, s29, {XIMG}")
e(f"  s_mul_i32 s31, s42, {32*N0}")
e(f"  v_add_u32 v{VA2}, s29, v11", "x fragments"); e(f"  v_add_u32 v11, s31, v{VA2}"); e(f"  v_subrev_u32 v1, s31, v{VA2}")
e("  s_lshl_b32 s29, s3, 8"); e(f"  s_add_u32 s29, s29, {TEX}"); e(f"  v_lshl_add_u32 v{VXW}, v2, 3, s29")
def trreads(s):
    for hh in range(2):
        for u in range(2):
            r = BF + 8*s + 4*hh + 2*u
            e(f"  ds_read_b64_tr_b16 v[{r}:{r+1}], v{9+hh} offset:{2048*s+256*u}")
def mfmas(s):
    for hh in range(2):
        c = "0" if s == 0 else f"v[{ACC+4*hh}:{ACC+4*hh+3}]"
        r = BF + 8*s + 4*hh
        e(f"  v_mfma_f32_16x16x32_bf16 v[{ACC+4*hh}:{ACC+4*hh+3}], v[{AF+4*s}:{AF+4*s+3}], v[{r}:{r+3}], {c}")
E0 = N0 // 2
for s in range(PB):
    for h in range(2):
        need = 2*s + h
        def ok():
            if nis >= len(ops) or ops[nis][0] != "D": return False
            i = ops[nis][1]
            return i < need + 1 + W1 if i < N0 else (need >= N0 - 1 and i < need + 1 + W2)
        if ok() or h == 1: vwait(("D", need))
        while ok(): issue()
    if s == 0: stamp(2)
    trreads(s)
while ops[nis][0] == "D": issue()
stamp(5)
e("  s_barrier", "A")
while issue(): pass
e("  s_waitcnt lgkmcnt(0)"); e("  s_barrier", "B")
stamp(4, True); fs(1, True)
if CPRIO: e(f"  s_setprio {CPRIO}")
order = []
for s in range(9):
    ar = 11 if s < E0 else (1 if s < 2*E0 else VA2)
    e(f"  ds_read_b128 v[{AF+4*s}:{AF+4*s+3}], v{ar} offset:{64*s}"); order.append(f"A{s}")
late = list(range(PB, 9))
for s in range(9):
    if late and late[0] <= s + 1:
        t = late.pop(0); vwait(("D", 2*t+1)); trreads(t); order += [f"T{t}"]*4
    tag = f"A{s}" if s < PB else f"T{s}"
    need = len(order) - 1 - order[::-1].index(tag)
    e(f"  s_waitcnt lgkmcnt({min(15, len(order) - need - 1)})")
    mfmas(s)
stamp(3); fs(2)
e("  s_mov_b64 exec, 0xffff"); e("  s_nop 6")
e(f"  ds_write2_b64 v{VXW}, v[{ACC}:{ACC+1}], v[{ACC+4}:{ACC+5}] offset0:0 offset1:16")
e("  s_mov_b64 exec, -1")
cm("---------------------------------------------------------------- all 5 waves: SwiGLU, 128 columns of w_down each")
e("L_JOIN:")
e("  s_waitcnt lgkmcnt(0)"); fs(3, True); e("  s_barrier", "C: the four partial pre-activations are in LDS"); fs(4)
e("  ds_read2_b32 v[12:13], v5 offset0:0 offset1:64"); e("  ds_read2_b32 v[14:15], v5 offset0:128 offset1:192")
e(f"  ds_read_b32 v23, v{VTAG}")
e("  s_cmp_eq_u32 s3, 4"); e("  s_waitcnt lgkmcnt(0)")
e("  v_add_f32 v12, v12, v13"); e("  v_add_f32 v14, v14, v15")
e("  v_cvt_pk_bf16_f32 v12, v12, v14"); e("  v_lshlrev_b32 v13, 16, v12"); e("  v_mul_f32 v15, 0xbfb8aa3b, v13"); e("  v_exp_f32 v15, v15")
e("  v_and_b32 v14, 0xffff0000, v12"); e("  v_add_f32 v15, 1.0, v15"); e("  v_rcp_f32 v15, v15"); e("  s_nop 0")
e("  v_mul_f32 v13, v13, v15"); e("  v_cvt_pk_bf16_f32 v13, v13, v13"); e("  v_and_b32 v13, 0xffff0000, v13")
e("  v_mul_f32 v13, v13, v14"); e("  v_cvt_pk_bf16_f32 v13, v13, v13", "h = bf16(bf16(silu(a)) * u), in both halves")
fs(5)
e("  s_cbranch_scc1 L_W4"); e("  s_waitcnt vmcnt(0)"); e("L_W4:"); fs(6); e("  s_nop 0" if WD4E else "  s_waitcnt vmcnt(9)")
e(f"  v_and_b32_dpp v12, v13, v6 quad_perm:[0,0,2,2] {DPPM}"); e(f"  v_and_b32_dpp v16, v13, v6 quad_perm:[1,1,3,3] {DPPM}")
e("  s_nop 0"); e("  .p2align 3")
cm("A = h on a diagonal: D[token, column parity and pair][chunk] sums 4 rows of w_down per MFMA")
for mp in range(8):
    src = 12 if mp < 4 else 16; qq = mp & 3
    for r in range(4):
        n = (4*(r-qq)) % 16
        ctl = "quad_perm:[0,1,2,3]" if n == 0 else f"row_ror:{n}"
        e(f"  v_mov_b32_dpp v{AD+4*mp+r}, v{src} {ctl} row_mask:0xf bank_mask:{hex(1<<r)}")
    if mp >= 1:
        m = mp - 1; c = "0" if m == 0 else f"v[{ACC}:{ACC+3}]"
        e(f"  v_mfma_f32_16x16x32_bf16 v[{ACC}:{ACC+3}], v[{AD+4*m}:{AD+4*m+3}], v[{WD+4*m}:{WD+4*m+3}], {c}")
e("  s_nop 0")
e(f"  v_mfma_f32_16x16x32_bf16 v[{ACC}:{ACC+3}], v[{AD+28}:{AD+31}], v[{WD+28}:{WD+31}], v[{ACC}:{ACC+3}]")
e("  s_cselect_b32 exec_lo, 0x00ff00ff, -1"); e("  s_cselect_b32 exec_hi, 0x00ff00ff, -1"); e("  s_nop 5")
cm("4 sums (top 24 bits each) + tag in 16 bytes")
for j in range(3): e(f"  v_perm_b32 v{20+j}, v{ACC+j}, v{ACC+3}, s{56+j}")
e("  buffer_store_dwordx4 v[20:23], v7, s[16:19], s36 offen sc1")
if STAMP:
    e("  s_cbranch_scc1 L_S6"); stamp(6); e("  s_branch L_FIN"); e("L_S6:"); stamp(2)
else: e("  s_cbranch_scc0 L_FIN")
e("  s_cmp_ge_u32 s46, 72"); e("  s_cbranch_scc1 L_FIN")
cm("---------------------------------------------------------------- 72 waves: sum over the 144 WGs, write the routed rows")
e("  s_mov_b64 exec, -1"); e("  ds_read_u16_d16_hi v35, v33"); e(f"  s_mov_b32 s61, {SPIN}")
e("  s_waitcnt vmcnt(0)")
if RSL: e(f"  s_sleep {RSL}")
def rload(t): e(f"  buffer_load_dwordx4 v[{R0+4*t}:{R0+3+4*t}], v34, s[16:19], s{80+t} offen sc1")
for t in range(9): rload(t)
for t in range(9):
    r = R0 + 4*t
    e(f"L_R{t}:"); e(f"  s_waitcnt vmcnt({8-t})"); e(f"  v_cmp_ne_u32 vcc, s47, v{r+3}"); e(f"  s_cbranch_vccnz L_RR{t}"); e(f"L_RA{t}:")
    e(f"  v_perm_b32 v{r+3}, v{r+1}, v{r}, s41"); e(f"  v_perm_b32 v{r+3}, v{r+2}, v{r+3}, s42")
    if t:
        e(f"  v_pk_add_f32 v[{R0}:{R0+1}], v[{R0}:{R0+1}], v[{r}:{r+1}]"); e(f"  v_pk_add_f32 v[{R0+2}:{R0+3}], v[{R0+2}:{R0+3}], v[{r+2}:{r+3}]")
if not O("nored5", 0): stamp(5)
e("  s_nop 1"); e(f"  v_permlane32_swap_b32 v{R0}, v{R0+2}"); e(f"  v_permlane32_swap_b32 v{R0+1}, v{R0+3}")
e(f"  v_add_f32 v{R0}, v{R0}, v{R0+2}"); e(f"  v_add_f32 v{R0+1}, v{R0+1}, v{R0+3}"); e("  s_nop 1")
e(f"  v_permlane16_swap_b32 v{R0}, v{R0+1}"); e(f"  v_add_f32 v{R0}, v{R0}, v{R0+1}"); e("  s_nop 1")
e(f"  v_add_f32_dpp v{R0}, v{R0}, v{R0} row_ror:4 {DPPM}"); e("  s_nop 1"); e(f"  v_add_f32_dpp v{R0}, v{R0}, v{R0} row_ror:8 {DPPM}")
e(f"  v_cvt_pk_bf16_f32 v16, v{R0}, v{R0}"); e("  v_and_b32 v16, 0xffff0000, v16"); e("  v_mul_f32 v16, v16, v32")
e("  v_cvt_pk_bf16_f32 v16, v16, v16"); e("  v_and_b32 v16, 0xffff0000, v16"); e("  s_waitcnt lgkmcnt(0)")
e("  v_add_f32 v16, v16, v35"); e("  v_cvt_pk_bf16_f32 v16, v16, v16")
e("  s_mov_b32 exec_lo, 0x000f000f"); e("  s_mov_b32 exec_hi, 0x000f000f")
e("  buffer_store_short v16, v29, s[20:23], s50 offen")
e("  s_cmp_lg_u32 s46, 0"); e("  s_cbranch_scc1 L_FIN")
e("  s_mov_b64 exec, 1", "every reader of d_ws[0] is behind the sums seen here"); e("  v_mov_b32 v16, s47"); e(f"  v_mov_b32 v17, {WS_E}")
e("  buffer_store_dword v16, v17, s[16:19], 0 offen")
e("L_FIN:"); stamp_flush(); e("L_END:"); e("  s_endpgm")
for t in range(9):
    e(f"L_RR{t}:"); e("  s_sub_u32 s61, s61, 1"); e(f"  s_cbranch_scc1 L_RA{t}")
    for t2 in range(t, 9): rload(t2)
    e(f"  s_branch L_R{t}")
cm("---------------------------------------------------------------- prefetch waves: one word per 128-byte line")
e("L_HELP:")
e(f"  s_sub_u32 s28, s2, {NWT}"); e("  s_and_b32 s29, s28, 7"); e("  s_lshr_b32 s28, s28, 3")
e("  s_and_b32 s33, s3, 1"); e("  s_mul_i32 s33, s33, 288"); e(f"  s_mul_i32 s32, s28, {HR}"); e("  s_add_u32 s32, s32, s33")
e(f"  s_add_u32 s32, s32, {32*N0}"); e("  s_mul_i32 s32, s32, 9216"); e("  s_mul_i32 s34, s29, 1152"); e("  s_add_u32 s32, s32, s34")
e("  v_mul_u32_u24 v3, 0x1c72, v0"); e("  v_lshrrev_b32 v3, 16, v3", "lane / 9"); e("  v_mul_u32_u24 v4, 9, v3"); e("  v_sub_u32 v4, v0, v4")
e("  v_mul_u32_u24 v3, 9216, v3"); e("  v_lshl_add_u32 v3, v4, 7, v3")
e("  s_lshl2_add_u32 s28, s28, s3")
e(f"  s_mul_i32 s29, s29, {5184*128}")
if RP: e(f"  s_add_u32 s29, s29, {RP*8192}")
e("  v_lshlrev_b32 v2, 7, v0")
nr = -(-(288 - 32*N0) // (NH*HR))
assert nr - HG >= 1
e(f"  s_mov_b32 s30, {nr-HG}")
e("  s_cmp_ge_u32 s3, 2"); e("  s_waitcnt lgkmcnt(0)")
e("  s_cselect_b32 s8, s26, s24"); e("  s_cselect_b32 s9, s27, s25")
e(f"  s_bfm_b64 exec, {9*HR}, 0")
for r in range(HG):
    e(f"  buffer_load_dword v{DUM}, v3, s[8:11], s32 offen"); e(f"  s_add_u32 s32, s32, {NH*HR*9216}")
e("  s_barrier"); stamp(1)
e("L_HGL:"); e(f"  s_waitcnt vmcnt({HT-1})"); e(f"  buffer_load_dword v{DUM}, v3, s[8:11], s32 offen")
e(f"  s_add_u32 s32, s32, {NH*HR*9216}"); e("  s_sub_u32 s30, s30, 1"); e("  s_cmp_lg_u32 s30, 0"); e("  s_cbranch_scc1 L_HGL")
stamp(2)
CPS = 9 - 2*RP
e("  s_bfm_b64 exec, 32, 0")
e("L_HWL:")
e(f"  s_mul_hi_u32 s30, s28, {(2**32 + CPS - 1)//CPS}"); e(f"  s_mul_i32 s31, s30, {CPS}"); e("  s_sub_u32 s31, s28, s31")
e("  s_mul_i32 s30, s30, 36864"); e("  s_lshl_b32 s31, s31, 12"); e("  s_add_u32 s30, s30, s31"); e("  s_add_u32 s30, s30, s29")
e(f"  s_waitcnt vmcnt({HT-1})"); e(f"  buffer_load_dword v{DUM}, v2, s[12:15], s30 offen")
e("  s_add_u32 s28, s28, 56"); e(f"  s_cmp_lt_u32 s28, {18*CPS}"); e("  s_cbranch_scc1 L_HWL")
e("  s_waitcnt vmcnt(0)"); e("  s_barrier"); e("  s_branch L_FIN")
e("L_CODE_END:")
cm("rare path: x + x*0 turns an infinity into a NaN")
for n in range(1, ncopy+1):
    e(f"L_FIX{n}:"); e(f"  s_mov_b32 s98, {n}"); e("  s_branch L_FIX")
e("L_FIX:"); e("  s_mov_b32 s29, 0x07060302")
for j in range(36):
    r = XR + j
    e(f"  v_lshlrev_b32 v12, 16, v{r}"); e(f"  v_and_b32 v13, 0xffff0000, v{r}"); e("  v_fma_f32 v12, v12, 0, v12"); e("  v_fma_f32 v13, v13, 0, v13")
    e(f"  v_perm_b32 v{r}, v13, v12, s29")
e("  s_cmp_eq_u32 s98, 1"); e("  s_cbranch_scc1 L_FIXR1"); e("  s_branch L_FIXR2")
e('.section .rodata,"a"'); e(".p2align 6"); e(f".amdhsa_kernel {K}")
e("  .amdhsa_next_free_vgpr 200"); e("  .amdhsa_next_free_sgpr 102"); e("  .amdhsa_accum_offset 200")
e("  .amdhsa_group_segment_fixed_size 0"); e("  .amdhsa_kernarg_size 64"); e("  .amdhsa_user_sgpr_count 2")
e("  .amdhsa_user_sgpr_kernarg_segment_ptr 1"); e("  .amdhsa_system_sgpr_workgroup_id_x 1"); e("  .amdhsa_float_denorm_mode_32 3")
e(".end_amdhsa_kernel")
open(sys.argv[1], "w").write("\n".join(out) + "\n")
```

```python
import sys
NAME = "standalone__moe_arch_mod__prompt"
S, D, F = 2048, 576, 4608
XB = S*D*2
WB = D*F*2
opts = dict(a.split("=") for a in sys.argv[2:] if "=" in a)
def O(k, d): return int(opts.get(k, d))
STAMP = O("stamp", 0); AMP = opts.get("amp"); FINE = O("fine", 0)
if AMP: STAMP = 1
GS = O("gs", 64); REP = O("rep", 4); RS = 256*GS
LG = {16: 0, 32: 1, 64: 2}[GS]; LR = {1: 0, 2: 1, 4: 2, 8: 3}[REP]; NL = REP*GS//16
assert NL <= 16
WS_E = 0; WS_GRAN = 4096; WS_SLAB = 4096 + REP*RS; WS_SIZE = 1 << 20; WS_STAMP = 1 << 21
N0 = O("n0", 2); W1 = O("w1", 4); W2 = O("w2", 4); WE = O("we", 2); PB = O("pb", 7); RP = O("rp", 0)
HR = O("hr", 4); HT = O("ht", 2); HG = O("hg", 1)
PSL = O("psl", 2); SPIN = O("spin", 200000); RSL = O("rsl", 0)
CFN = " sc1" if O("cf", 0) else ""; LATEC = O("latec", 0); FL = {0: "", 1: " sc1", 2: " sc0 sc1", 3: " sc1 nt", 4: " nt"}; CW = FL[O("cw", 0)]; CH = FL[O("ch", 0)]; WD4E = O("wd4e", 1); EFS = O("efs", 1); LOWP = O("lowp", 1); CPRIO = O("cprio", 0)
NWT = 144; NH = 14
out = []
def e(s="", c=None): out.append(s if c is None else f"{s:<72}; {c}")
def cm(s): out.append("; " + s)
def stamp(i, wait=False):
    if STAMP and (i in (0, 7) or not FINE):
        e(f"  s_memrealtime s[{64+2*i}:{65+2*i}]")
        if wait: e("  s_waitcnt lgkmcnt(0)")
def fs(i, wait=False):
    if FINE:
        e(f"  s_memtime s[{64+2*i}:{65+2*i}]")
        if wait: e("  s_waitcnt lgkmcnt(0)")
def stamp_flush():
    if AMP:
        A, B, KK, WV, WG = map(int, AMP.split(","))
        stamp(7, True)
        e(f"  s_cmp_lg_u32 s2, {WG}"); e("  s_cbranch_scc1 L_AMPX")
        e(f"  s_cmp_lg_u32 s3, {WV}"); e("  s_cbranch_scc1 L_AMPX")
        e(f"  s_sub_u32 s60, s{64+2*B}, s{64+2*A}")
        e(f"  s_mul_i32 s60, s60, {KK}")
        e("L_AMP:"); e("  s_memrealtime s[62:63]"); e("  s_waitcnt lgkmcnt(0)"); e("  s_sub_u32 s62, s62, s78")
        e("  s_cmp_lt_u32 s62, s60"); e("  s_cbranch_scc1 L_AMP"); e("L_AMPX:")
    elif STAMP:
        if FINE: e("  s_memtime s[78:79]"); e("  s_waitcnt lgkmcnt(0)")
        else: stamp(7, True)
        e("  s_mov_b64 exec, 1")
        e("  s_lshl_b32 s60, s2, 3"); e("  s_add_u32 s60, s60, s3"); e("  s_lshl_b32 s60, s60, 6")
        e(f"  s_add_u32 s60, s60, {WS_STAMP}"); e("  s_mov_b32 s18, 0x1000000"); e("  v_mov_b32 v1, 0")
        for j in range(4):
            for k in range(4): e(f"  v_mov_b32 v{4+k}, s{64+4*j+k}")
            e(f"  buffer_store_dwordx4 v[4:7], v1, s[16:19], s60 offen offset:{16*j}"); e("  s_nop 1")

hdr = open('cdna_kernels/%s.s.ref' % NAME).read().split('\n')
for l in hdr:
    if l.startswith('; @launch'): break
    e(l)
XIMG = 73728; TAGL = XIMG + 2304; TEX = XIMG + 3072; WRIMG = TEX + 1024; LDS = 83968
e(f"; @launch grid=(256,1,1) block=(320,1,1) lds={LDS}")
DOC = """
One launch, 256 workgroups of 5 waves, one per CU (LDS and VGPR use allow one).
 role 4 (wave 0), every WG : 8 rows of x -> router scores -> local top-2 -> tagged granule in d_ws,
                             later the copy of its rows that were not routed.
 WGs 0..143, roles 0..3    : 32 columns of w_gate / w_up (LDS-DMA, transposing LDS reads, MFMA),
                             SwiGLU, the matching 32 rows of w_down (MFMA), tagged partial sums in d_ws.
 WGs 0..143, role 4        : gathers the 256 granules, global top-2, brings both rows into LDS;
                             72 of them add up the 144 partial sums of 8 columns and write the routed rows.
 WGs 144..255, roles 0..3  : pull weight lines into the L2 that the weight WGs with the same id mod 8
                             are expected to share (speed only, nothing depends on it).
 Hand-offs between WGs are 16-byte pieces that carry a tag, written and read with sc1.
 tag = d_ws[0] + 0x01010101; d_ws[0] is set to the tag at the end, so it differs from launch to launch.
"""
for l in DOC.strip("\n").split("\n"): cm(l)
e('.amdgcn_target "amdgcn-amd-amdhsa--gfx950"'); e(".text")
K = NAME + "_kernel"
e(f".globl {K}"); e(".p2align 8"); e(f".type {K},@function"); e(f"{K}:")
DPPM = "row_mask:0xf bank_mask:0xf"
AF = 12; BF = 48; ACC = 120; WD = 128; AD = 160; XR = 84; WR = 48; R0 = 48
VXW = 192; VA2 = 193; VTAG = 194; DUMC = 196; DUM = 197
QS = 16*9216

def slice_calc():
    e("  s_and_b32 s45, s2, 7"); e("  s_mul_i32 s45, s45, 18"); e("  s_lshr_b32 s44, s2, 3")
    e("  s_add_u32 s45, s45, s44", "slice: neighbours are 8 ids apart")
def setup0():
    e("  v_and_b32 v2, 15, v0"); e("  v_lshrrev_b32 v3, 4, v0")
    e("  v_mul_u32_u24 v4, 9216, v3"); e("  v_lshl_add_u32 v4, v2, 4, v4", "w_down: row 8g, 16-byte chunk c")
    e(f"  s_mul_i32 s34, s45, {32*1152}"); e("  s_lshl_b32 s35, s3, 8"); e("  s_add_u32 s34, s34, s35"); e("  s_add_u32 s35, s34, 4608")
def setup1():
    e("  v_lshrrev_b32 v5, 2, v2"); e("  v_lshl_add_u32 v5, v3, 3, v5"); e("  v_and_b32 v6, 1, v0"); e("  v_lshl_add_u32 v5, v6, 2, v5")
    e("  v_lshlrev_b32 v5, 3, v5"); e("  v_and_b32 v6, 2, v0"); e("  v_lshl_add_u32 v5, v6, 1, v5")
    e(f"  v_add_u32 v5, {TEX}, v5", "exchange table: this lane's (f, token)")
    e("  v_and_b32 v6, 1, v0"); e("  v_cmp_eq_u32 vcc, 1, v6"); e("  v_mov_b32 v6, 0xffff"); e("  v_mov_b32 v7, 0xffff0000")
    e("  v_cndmask_b32 v6, v6, v7, vcc", "half-word mask by lane parity")
    e("  v_lshlrev_b32 v7, 6, v2"); e("  v_lshl_add_u32 v7, v3, 4, v7", "partial-sum piece of this lane")
    e("  s_mul_i32 s36, s45, 4608"); e("  s_lshl_b32 s37, s3, 10"); e("  s_add_u32 s36, s36, s37"); e(f"  s_add_u32 s36, s36, {WS_SLAB}")
    e(f"  v_mov_b32 v{VTAG}, {TAGL}")
    e("  s_mov_b32 s56, 0x07060501"); e("  s_mov_b32 s57, 0x07060502"); e("  s_mov_b32 s58, 0x07060503")
    for j in range(0, 32, 2): e(f"  v_mov_b64 v[{AD+j}:{AD+j+1}], 0")
def wd_load(mp): e(f"  buffer_load_dwordx4 v[{WD+4*mp}:{WD+4*mp+3}], v4, s[12:15], s{34+(mp>>2)} offen offset:{1152*(mp&3)}")
ncopy = 0
def copy_stores(fl=""):
    global ncopy
    ncopy += 1
    e("  s_and_b32 s38, s32, 0xffff"); e("  s_and_b32 s39, s33, 0xffff")
    e("  v_cmp_ne_u32 s[52:53], s38, v11"); e("  v_cmp_ne_u32 s[54:55], s39, v11")
    e("  s_and_b64 exec, s[52:53], s[54:55]", "rows that are not routed")
    e("  s_cmp_lg_u64 s[96:97], 0"); e(f"  s_cbranch_scc1 L_FIX{ncopy}"); e(f"L_FIXR{ncopy}:")
    for i in range(9): e(f"  buffer_store_dwordx4 v[{XR+4*i}:{XR+4*i+3}], v10, s[20:23], s28 offen offset:{128*i}{fl}")

if STAMP:
    for i in range(2, 16): e(f"  s_mov_b32 s{64+i}, 0")
stamp(0)
cm("SRDs: x s[4:7], w_r or w_gate/w_up s[8:11], w_down s[12:15], d_ws s[16:19], d_out s[20:23]")
e("  s_load_dwordx2 s[4:5], s[0:1], 0"); e("  s_load_dwordx2 s[8:9], s[0:1], 8"); e("  s_load_dwordx2 s[16:17], s[0:1], 56")
e("  s_load_dwordx4 s[24:27], s[0:1], 16"); e("  s_load_dwordx2 s[12:13], s[0:1], 32"); e("  s_load_dwordx2 s[20:21], s[0:1], 40")
e("  s_getpc_b64 s[28:29]", "read one word of every line of the code: it lands in L2"); e("L_PC:")
e("  v_lshlrev_b32 v2, 7, v0"); e("  v_cmp_gt_u32 vcc, (L_CODE_END-L_PC+127)/128, v0")
e("  s_and_saveexec_b64 s[30:31], vcc"); e("  s_cbranch_execz L_NOPF")
e(f"  global_load_dword v{DUMC}, v2, s[28:29]"); e("L_NOPF:"); e("  s_mov_b64 exec, -1")
e("  v_lshrrev_b32 v1, 6, v0"); e("  v_and_b32 v0, 63, v0"); e("  v_readfirstlane_b32 s3, v1")
e("  s_cmp_ge_u32 s2, 256"); e("  s_cbranch_scc1 L_END")
e("  s_sub_u32 s3, s3, 1", "role: wave 0 -> 4, wave k -> k-1"); e("  s_cselect_b32 s3, 4, s3")
for r, v in ((6, XB), (7, "0x20000"), (11, "0x20000"), (14, WB), (15, "0x20000"), (18, WS_SIZE), (19, "0x20000"), (22, XB), (23, "0x20000")):
    e(f"  s_mov_b32 s{r}, {v}")
e("  s_cmp_lg_u32 s3, 4"); e("  s_cbranch_scc1 L_NOTX")
cm("---------------------------------------------------------------- role 4: router scores of 8 rows")
e("  s_setprio 3")
e(f"  s_mov_b32 s10, {D*2}"); e(f"  s_mov_b32 m0, {WRIMG}")
e("  v_lshlrev_b32 v8, 4, v0"); e("  v_and_b32 v1, 0x70, v8"); e("  v_lshrrev_b32 v9, 3, v0")
e("  v_mul_u32_u24 v10, 1152, v9"); e("  v_add_u32 v10, v10, v1", "8 lanes per row"); e("  s_mul_i32 s28, s2, 9216")
e("  s_waitcnt lgkmcnt(0)")
e(f"  s_load_dword s47, s[16:17], {WS_E}")
e("  buffer_load_dwordx4 v8, s[8:11], 0 offen lds", "w_r -> LDS"); e("  s_mov_b64 exec, 0xff")
e("  buffer_load_dwordx4 v8, s[8:11], 0 offen offset:1024 lds"); e("  s_mov_b64 exec, -1")
for i in range(9): e(f"  buffer_load_dwordx4 v[{XR+4*i}:{XR+4*i+3}], v10, s[4:7], s28 offen offset:{128*i}")
e(f"  v_add_u32 v1, {WRIMG}, v1")
e("  s_lshl_b32 s29, s2, 3"); e("  s_sub_u32 s29, 2047, s29"); e("  v_sub_u32 v11, s29, v9", "2047 - row"); e("  s_mov_b32 s30, 0xffff0000")
e(f"  s_and_b32 s29, s2, {REP-1}"); e(f"  s_mul_i32 s27, s29, {RS}"); e(f"  s_add_u32 s27, s27, {WS_GRAN}", "the copy of the granules this WG reads")
for j in range(1, 4): e(f"  s_add_u32 s{47+j}, s27, {64*GS*j}")
e("  s_and_b32 s29, s2, 7"); e("  s_lshl_b32 s29, s29, 5"); e("  s_lshr_b32 s31, s2, 3"); e("  s_add_u32 s29, s29, s31")
e(f"  s_mul_i32 s29, s29, {GS}"); e(f"  s_add_u32 s31, s29, {WS_GRAN}", "own granule")
e(f"  v_mul_u32_u24 v44, {GS}, v0")
for j in range(4): e(f"  v_mov_b32 v{12+j}, 0")
e("  v_bfrev_b32 v22, 1")
e(f"  v_bfe_u32 v21, v0, {LG}, {LR}"); e(f"  v_mul_u32_u24 v21, {RS}, v21"); e(f"  v_and_b32 v19, {GS//16-1}, v0"); e("  v_lshl_add_u32 v21, v19, 4, v21")
e(f"  s_mov_b32 s61, {SPIN}"); e(f"  v_mov_b32 v45, {TAGL}")
e("  s_waitcnt vmcnt(9) lgkmcnt(0)")
for i in range(9): e(f"  ds_read_b128 v[{WR+4*i}:{WR+4*i+3}], v1 offset:{128*i}")
e("  s_add_u32 s47, s47, 0x01010101", "tag of this launch"); e("  v_mov_b32 v18, s47")
for i in range(9):
    e(f"  s_waitcnt vmcnt({8-i}) lgkmcnt({8-i})")
    for j in range(4): e(f"  v_dot2c_f32_bf16 v{12+j}, v{XR+4*i+j}, v{WR+4*i+j}")
e("  s_nop 1")
e("  v_add_f32 v12, v12, v13"); e("  v_add_f32 v14, v14, v15"); e("  v_add_f32 v12, v12, v14")
e("  s_movk_i32 s29, 0x207"); e("  v_cmp_class_f32 s[96:97], v12, s29", "lanes that hold an inf or a NaN")
e(f"  v_add_f32_dpp v12, v12, v12 quad_perm:[1,0,3,2] {DPPM}"); e("  s_nop 1")
e(f"  v_add_f32_dpp v12, v12, v12 quad_perm:[2,3,0,1] {DPPM}"); e("  s_nop 1")
e(f"  v_add_f32_dpp v12, v12, v12 row_half_mirror {DPPM}")
cm("key = order-preserving bf16 score << 16 | 2047 - row; NaN sorts last")
e("  v_cvt_pk_bf16_f32 v13, v12, v12"); e("  v_cmp_u_f32 vcc, v12, v12"); e("  v_ashrrev_i32 v14, 31, v13")
e("  v_bitop3_b32 v13, v13, v14, v22 bitop3:0x1e"); e("  v_cndmask_b32 v13, v13, 0, vcc"); e("  v_and_or_b32 v13, v13, s30, v11")
e("  s_nop 1")
e(f"  v_max_u32_dpp v16, v13, v13 row_ror:8 {DPPM}"); e(f"  v_min_u32_dpp v17, v13, v13 row_ror:8 {DPPM}"); e("  s_nop 0")
for ctl in ("row_bcast:15 row_mask:0xa bank_mask:0xf", "row_bcast:31 row_mask:0xc bank_mask:0xf"):
    e(f"  v_min_u32_dpp v14, v16, v16 {ctl}"); e(f"  v_max_u32_dpp v16, v16, v16 {ctl}")
    e(f"  v_max_u32_dpp v15, v17, v17 {ctl}"); e("  v_max_u32 v17, v14, v15")
e(f"  s_lshl_b64 exec, {hex((1 << NL) - 1)}, 48", f"lanes 48..63 hold the pair: {REP} copies x {GS} bytes")
e("  buffer_store_dwordx4 v[16:19], v21, s[16:19], s31 offen sc1")
stamp(3)
e(f"  s_cmp_lt_u32 s2, {NWT}"); e("  s_cbranch_scc1 L_XG"); e("  s_barrier", "prefetch WG: let the other waves fill the queue"); e("L_XG:")
e("  ds_write_b32 v45, v18"); e("  s_mov_b64 exec, -1")
slice_calc(); setup0(); setup1()
e(f"  s_cmp_ge_u32 s2, {NWT}"); e("  s_cbranch_scc1 L_XH")
def wd4():
    e("  s_mov_b32 exec_lo, 0x00ff00ff", "columns 512..575 of w_down"); e("  s_mov_b32 exec_hi, 0x00ff00ff")
    for mp in range(8): wd_load(mp)
    e("  s_mov_b64 exec, -1")
if WD4E: wd4()
if RP:
    e("  v_lshlrev_b32 v46, 7, v0"); e(f"  s_mul_i32 s29, s45, {32*1152}")
    for r in range(RP):
        e(f"  buffer_load_dword v{DUM}, v46, s[12:15], s29 offen")
        if r < RP-1: e("  s_add_u32 s29, s29, 8192")
e("  s_waitcnt vmcnt(0)")
if O("nored5", 0): stamp(5)
e("L_P1:")
b = 48
for j in range(4): e(f"  buffer_load_dwordx4 v[{b+4*j}:{b+3+4*j}], v44, s[16:19], s{27 if j == 0 else 47+j} offen sc1")
e("  s_waitcnt vmcnt(0)")
e(f"  v_cmp_ne_u32 vcc, s47, v{b+2}"); e(f"  v_cmp_ne_u32 s[32:33], s47, v{b+6}")
e(f"  v_cmp_ne_u32 s[38:39], s47, v{b+10}"); e(f"  v_cmp_ne_u32 s[40:41], s47, v{b+14}")
e("  s_or_b64 vcc, vcc, s[32:33]"); e("  s_or_b64 s[38:39], s[38:39], s[40:41]"); e("  s_or_b64 vcc, vcc, s[38:39]")
e("  s_cbranch_scc0 L_PT")
e(f"  s_sleep {PSL}", "some granule is missing: back off and read again")
e("  s_sub_u32 s61, s61, 1"); e("  s_cbranch_scc0 L_P1")
e("  .p2align 3"); e("L_PT:")
def merge(a1, a2, b1, b2, o1, o2, t):
    e(f"  v_min_u32 v{t}, v{a1}, v{b1}"); e(f"  v_max_u32 v{o1}, v{a1}, v{b1}"); e(f"  v_max3_u32 v{o2}, v{t}, v{a2}, v{b2}")
merge(b, b+1, b+4, b+5, 40, 41, 12); merge(b+8, b+9, b+12, b+13, 42, 43, 13); merge(40, 41, 42, 43, 40, 41, 12)
e("  s_nop 0")
for ctl in (f"quad_perm:[1,0,3,2] {DPPM}", f"quad_perm:[2,3,0,1] {DPPM}", f"row_ror:4 {DPPM}", f"row_ror:8 {DPPM}",
            "row_bcast:15 row_mask:0xa bank_mask:0xf", "row_bcast:31 row_mask:0xc bank_mask:0xf"):
    e(f"  v_min_u32_dpp v12, v40, v40 {ctl}"); e(f"  v_max_u32_dpp v40, v40, v40 {ctl}")
    e(f"  v_max_u32_dpp v13, v41, v41 {ctl}"); e("  v_max_u32 v41, v12, v13")
e("  v_cmp_gt_u32 vcc, 8, v0"); e("  v_readlane_b32 s32, v40, 63", "global top-2 keys"); e("  v_readlane_b32 s33, v41, 63")
e(f"  s_cmp_ge_u32 s2, {NWT}"); e("  s_cbranch_scc1 L_XH2")
e("  s_and_b32 s38, s32, 0x7ff"); e("  s_and_b32 s39, s33, 0x7ff"); e("  s_sub_u32 s38, 2047, s38"); e("  s_sub_u32 s39, 2047, s39")
e("  s_mul_i32 s38, s38, 1152"); e("  s_mul_i32 s39, s39, 1152"); e(f"  s_mov_b32 m0, {XIMG}"); e("  s_sub_u32 s40, s39, 128")
e("  buffer_load_dwordx4 v8, s[4:7], s38 offen lds", "both routed rows -> LDS [2][1152 B]")
e("  s_add_u32 s41, s38, 1024"); e("  v_mov_b32 v12, s40"); e("  v_mov_b32 v13, s41"); e("  s_addk_i32 m0, 0x400")
e("  v_cndmask_b32 v12, v12, v13, vcc"); e("  v_add_u32 v12, v12, v8")
e("  buffer_load_dwordx4 v12, s[4:7], 0 offen lds")
e("  s_addk_i32 m0, 0x400"); e("  s_add_u32 s40, s39, 896"); e("  s_mov_b64 exec, 0xffff")
e("  buffer_load_dwordx4 v8, s[4:7], s40 offen lds"); e("  s_mov_b64 exec, -1")
stamp(1)
def final_setup():
    cm("last stage: lane row r = lane>>4 holds token r>>1, column 8u + 2(lane&3) + (r&1)")
    e("  v_cmp_gt_u32 vcc, 32, v0"); e("  v_mov_b32 v28, s33"); e("  v_mov_b32 v29, s32"); e("  v_and_b32 v31, 3, v0")
    e("  v_cndmask_b32 v28, v28, v29, vcc"); e("  v_and_b32 v29, 0xffff, v28"); e("  v_sub_u32 v29, 2047, v29")
    e("  v_mul_u32_u24 v29, 1152, v29"); e("  v_bfe_u32 v30, v0, 4, 1"); e("  v_lshlrev_b32 v30, 1, v30")
    e("  v_lshl_add_u32 v30, v31, 2, v30"); e("  v_add_u32 v29, v29, v30")
    e("  v_not_b32 v32, v28"); e("  v_ashrrev_i32 v32, 31, v32"); e("  v_or_b32 v32, 0x80000000, v32")
    e("  v_xor_b32 v32, v32, v28"); e("  v_and_b32 v32, 0xffff0000, v32", "the bf16 score back from the key"); e("  v_mul_f32 v32, 0xbfb8aa3b, v32")
    e("  v_exp_f32 v32, v32"); e("  v_lshrrev_b32 v33, 5, v0"); e("  v_add_f32 v32, 1.0, v32"); e("  v_rcp_f32 v32, v32")
    e("  v_mul_u32_u24 v33, 1152, v33"); e("  v_cvt_pk_bf16_f32 v32, v32, v32"); e("  v_and_b32 v32, 0xffff0000, v32", "sigmoid, rounded to bf16")
    e("  s_sub_u32 s46, s45, 72", "unit u = slice - 72"); e("  s_lshl_b32 s50, s46, 4"); e(f"  s_add_u32 s51, s50, {XIMG}"); e("  v_add3_u32 v33, v33, v30, s51")
    e("  v_lshrrev_b32 v34, 2, v0"); e("  v_mul_u32_u24 v34, 4608, v34"); e("  v_lshl_add_u32 v34, v31, 4, v34")
    e("  s_lshl_b32 s80, s46, 6"); e(f"  s_add_u32 s80, s80, {WS_SLAB}")
    for t in range(1, 9): e(f"  s_add_u32 s{80+t}, s80, {16*4608*t}")
    e("  s_mov_b32 s41, 0x0c04000c"); e("  s_mov_b32 s42, 0x04020100"); e("  v_mov_b32 v35, 0")
if EFS == 2: final_setup()
e("  s_barrier", "A: the rows are requested")
if not WD4E: wd4()
if EFS == 1: final_setup()
e(f"  s_waitcnt vmcnt({0 if WD4E else 8}) lgkmcnt(0)")
stamp(4, True)
e("  s_barrier", "B: the rows are in LDS")
if LOWP: e("  s_setprio 0")
if not LATEC: copy_stores(CW); e("  s_mov_b64 exec, -1")
if EFS == 0: final_setup()
if LOWP == 2: e("  s_setprio 3")
e("  s_branch L_JOIN")
e("L_XH:"); e("  s_barrier", "the prefetch is done"); e("  s_branch L_P1")
e("L_XH2:"); copy_stores(CH); e("  s_branch L_FIN")
cm("---------------------------------------------------------------- roles 0..3: (matrix, half of K)")
e("L_NOTX:")
e(f"  s_mov_b32 s10, {WB}")
e(f"  s_cmp_ge_u32 s2, {NWT}"); e("  s_cbranch_scc1 L_HELP")
slice_calc(); setup0()
e("  v_lshrrev_b32 v8, 2, v0"); e("  v_mul_u32_u24 v8, 9216, v8"); e("  v_lshrrev_b32 v9, 4, v0"); e("  v_and_b32 v9, 2, v9")
e("  v_xor_b32 v9, v9, v0"); e("  v_and_b32 v9, 3, v9"); e("  v_lshl_add_u32 v8, v9, 4, v8", "16 rows x 64 B, halves swapped in rows 8..15")
e("  s_and_b32 s28, s3, 1"); e(f"  s_mul_i32 s28, s28, {288*9216}"); e("  s_lshl_b32 s29, s45, 6"); e("  s_add_u32 s28, s28, s29")
e("  s_and_b32 s42, s45, 1", "the two WGs that share the lines start on different rows")
e(f"  s_mul_i32 s29, s42, {N0*QS}"); e(f"  s_add_u32 s46, s28, {2*N0*QS}"); e(f"  s_add_u32 s43, s28, {N0*QS}")
e("  s_sub_u32 s43, s43, s29"); e("  s_add_u32 s28, s28, s29")
e("  s_mul_i32 s30, s3, 18432"); e("  s_mov_b32 m0, s30")
e("  s_cmp_ge_u32 s3, 2"); e("  s_waitcnt lgkmcnt(0)")
e("  s_cselect_b32 s8, s26, s24"); e("  s_cselect_b32 s9, s27, s25")
stamp(1)
ops = [("W", i) for i in range(WE)] + [("D", i) for i in range(18)] + [("W", i) for i in range(WE, 8)]
pos = {op: n for n, op in enumerate(ops)}
nis = 0
def issue():
    global nis
    if nis >= len(ops): return False
    k, i = ops[nis]
    if k == "D":
        if i == N0: e("  s_mov_b32 s28, s43")
        if i == 2*N0: e("  s_mov_b32 s28, s46")
        e("  buffer_load_dwordx4 v8, s[8:11], s28 offen lds")
        if i < 17: e("  s_addk_i32 m0, 0x400"); e(f"  s_add_u32 s28, s28, {QS}")
    else: wd_load(i)
    nis += 1
    return True
def vwait(op): e(f"  s_waitcnt vmcnt({nis - pos[op] - 1})")
while nis < WE + min(N0, W1): issue()
setup1()
e("  v_lshlrev_b32 v9, 9, v3"); e("  v_bfe_u32 v10, v0, 2, 2"); e("  v_lshl_add_u32 v9, v10, 6, v9"); e("  v_and_b32 v10, 3, v0")
e("  v_lshl_add_u32 v9, v10, 3, v9"); e("  v_and_b32 v10, 1, v3"); e("  v_lshl_add_u32 v9, v10, 5, v9")
e("  v_add_u32 v9, s30, v9", "transposing reads, columns 0..15"); e("  v_xor_b32 v10, 32, v9", "columns 16..31")
e("  v_and_b32 v11, 1, v0"); e("  v_mul_u32_u24 v11, 1152, v11"); e("  v_lshl_add_u32 v11, v3, 4, v11")
e("  s_and_b32 s29, s3, 1"); e("  s_mul_i32 s29, s29, 576"); e(f"  s_add_u32 s29, s29, {XIMG}")
e(f"  s_mul_i32 s31, s42, {32*N0}")
e(f"  v_add_u32 v{VA2}, s29, v11", "x fragments"); e(f"  v_add_u32 v11, s31, v{VA2}"); e(f"  v_subrev_u32 v1, s31, v{VA2}")
e("  s_lshl_b32 s29, s3, 8"); e(f"  s_add_u32 s29, s29, {TEX}"); e(f"  v_lshl_add_u32 v{VXW}, v2, 3, s29")
def trreads(s):
    for hh in range(2):
        for u in range(2):
            r = BF + 8*s + 4*hh + 2*u
            e(f"  ds_read_b64_tr_b16 v[{r}:{r+1}], v{9+hh} offset:{2048*s+256*u}")
def mfmas(s):
    for hh in range(2):
        c = "0" if s == 0 else f"v[{ACC+4*hh}:{ACC+4*hh+3}]"
        r = BF + 8*s + 4*hh
        e(f"  v_mfma_f32_16x16x32_bf16 v[{ACC+4*hh}:{ACC+4*hh+3}], v[{AF+4*s}:{AF+4*s+3}], v[{r}:{r+3}], {c}")
E0 = N0 // 2
for s in range(PB):
    for h in range(2):
        need = 2*s + h
        def ok():
            if nis >= len(ops) or ops[nis][0] != "D": return False
            i = ops[nis][1]
            return i < need + 1 + W1 if i < N0 else (need >= N0 - 1 and i < need + 1 + W2)
        if ok() or h == 1: vwait(("D", need))
        while ok(): issue()
    if s == 0: stamp(2)
    trreads(s)
while ops[nis][0] == "D": issue()
stamp(5)
e("  s_barrier", "A")
while issue(): pass
e("  s_waitcnt lgkmcnt(0)"); e("  s_barrier", "B")
stamp(4, True); fs(1, True)
if CPRIO: e(f"  s_setprio {CPRIO}")
order = []
for s in range(9):
    ar = 11 if s < E0 else (1 if s < 2*E0 else VA2)
    e(f"  ds_read_b128 v[{AF+4*s}:{AF+4*s+3}], v{ar} offset:{64*s}"); order.append(f"A{s}")
late = list(range(PB, 9))
for s in range(9):
    if late and late[0] <= s + 1:
        t = late.pop(0); vwait(("D", 2*t+1)); trreads(t); order += [f"T{t}"]*4
    tag = f"A{s}" if s < PB else f"T{s}"
    need = len(order) - 1 - order[::-1].index(tag)
    e(f"  s_waitcnt lgkmcnt({min(15, len(order) - need - 1)})")
    mfmas(s)
stamp(3); fs(2)
e("  s_mov_b64 exec, 0xffff"); e("  s_nop 6")
e(f"  ds_write2_b64 v{VXW}, v[{ACC}:{ACC+1}], v[{ACC+4}:{ACC+5}] offset0:0 offset1:16")
e("  s_mov_b64 exec, -1")
cm("---------------------------------------------------------------- all 5 waves: SwiGLU, 128 columns of w_down each")
e("L_JOIN:")
e("  s_waitcnt lgkmcnt(0)"); fs(3, True); e("  s_barrier", "C: the four partial pre-activations are in LDS"); fs(4)
e("  ds_read2_b32 v[12:13], v5 offset0:0 offset1:64"); e("  ds_read2_b32 v[14:15], v5 offset0:128 offset1:192")
e(f"  ds_read_b32 v23, v{VTAG}")
e("  s_cmp_eq_u32 s3, 4"); e("  s_waitcnt lgkmcnt(0)")
e("  v_add_f32 v12, v12, v13"); e("  v_add_f32 v14, v14, v15")
e("  v_cvt_pk_bf16_f32 v12, v12, v14"); e("  v_lshlrev_b32 v13, 16, v12"); e("  v_mul_f32 v15, 0xbfb8aa3b, v13"); e("  v_exp_f32 v15, v15")
e("  v_and_b32 v14, 0xffff0000, v12"); e("  v_add_f32 v15, 1.0, v15"); e("  v_rcp_f32 v15, v15"); e("  s_nop 0")
e("  v_mul_f32 v13, v13, v15"); e("  v_cvt_pk_bf16_f32 v13, v13, v13"); e("  v_and_b32 v13, 0xffff0000, v13")
e("  v_mul_f32 v13, v13, v14"); e("  v_cvt_pk_bf16_f32 v13, v13, v13", "h = bf16(bf16(silu(a)) * u), in both halves")
fs(5)
e("  s_cbranch_scc1 L_W4"); e("  s_waitcnt vmcnt(0)"); e("L_W4:"); fs(6); e("  s_nop 0" if WD4E else "  s_waitcnt vmcnt(9)")
e(f"  v_and_b32_dpp v12, v13, v6 quad_perm:[0,0,2,2] {DPPM}"); e(f"  v_and_b32_dpp v16, v13, v6 quad_perm:[1,1,3,3] {DPPM}")
e("  s_nop 0"); e("  .p2align 3")
cm("A = h on a diagonal: D[token, column parity and pair][chunk] sums 4 rows of w_down per MFMA")
for mp in range(8):
    src = 12 if mp < 4 else 16; qq = mp & 3
    for r in range(4):
        n = (4*(r-qq)) % 16
        ctl = "quad_perm:[0,1,2,3]" if n == 0 else f"row_ror:{n}"
        e(f"  v_mov_b32_dpp v{AD+4*mp+r}, v{src} {ctl} row_mask:0xf bank_mask:{hex(1<<r)}")
    if mp >= 1:
        m = mp - 1; c = "0" if m == 0 else f"v[{ACC}:{ACC+3}]"
        e(f"  v_mfma_f32_16x16x32_bf16 v[{ACC}:{ACC+3}], v[{AD+4*m}:{AD+4*m+3}], v[{WD+4*m}:{WD+4*m+3}], {c}")
e("  s_nop 0")
e(f"  v_mfma_f32_16x16x32_bf16 v[{ACC}:{ACC+3}], v[{AD+28}:{AD+31}], v[{WD+28}:{WD+31}], v[{ACC}:{ACC+3}]")
e("  s_cselect_b32 exec_lo, 0x00ff00ff, -1"); e("  s_cselect_b32 exec_hi, 0x00ff00ff, -1"); e("  s_nop 5")
cm("4 sums (top 24 bits each) + tag in 16 bytes")
for j in range(3): e(f"  v_perm_b32 v{20+j}, v{ACC+j}, v{ACC+3}, s{56+j}")
e("  buffer_store_dwordx4 v[20:23], v7, s[16:19], s36 offen sc1")
if STAMP:
    e("  s_cbranch_scc1 L_S6"); stamp(6); e("  s_branch L_FIN"); e("L_S6:"); stamp(2)
else: e("  s_cbranch_scc0 L_FIN")
if LATEC: e("  s_mov_b64 exec, -1"); copy_stores(CW)
e("  s_cmp_ge_u32 s46, 72"); e("  s_cbranch_scc1 L_FIN")
cm("---------------------------------------------------------------- 72 waves: sum over the 144 WGs, write the routed rows")
e("  s_mov_b64 exec, -1"); e("  ds_read_u16_d16_hi v35, v33"); e(f"  s_mov_b32 s61, {SPIN}")
e("  s_waitcnt vmcnt(0)")
if RSL: e(f"  s_sleep {RSL}")
def rload(t): e(f"  buffer_load_dwordx4 v[{R0+4*t}:{R0+3+4*t}], v34, s[16:19], s{80+t} offen sc1")
for t in range(9): rload(t)
for t in range(9):
    r = R0 + 4*t
    e(f"L_R{t}:"); e(f"  s_waitcnt vmcnt({8-t})"); e(f"  v_cmp_ne_u32 vcc, s47, v{r+3}"); e(f"  s_cbranch_vccnz L_RR{t}"); e(f"L_RA{t}:")
    e(f"  v_perm_b32 v{r+3}, v{r+1}, v{r}, s41"); e(f"  v_perm_b32 v{r+3}, v{r+2}, v{r+3}, s42")
    if t:
        e(f"  v_pk_add_f32 v[{R0}:{R0+1}], v[{R0}:{R0+1}], v[{r}:{r+1}]"); e(f"  v_pk_add_f32 v[{R0+2}:{R0+3}], v[{R0+2}:{R0+3}], v[{r+2}:{r+3}]")
if not O("nored5", 0): stamp(5)
e("  s_nop 1"); e(f"  v_permlane32_swap_b32 v{R0}, v{R0+2}"); e(f"  v_permlane32_swap_b32 v{R0+1}, v{R0+3}")
e(f"  v_add_f32 v{R0}, v{R0}, v{R0+2}"); e(f"  v_add_f32 v{R0+1}, v{R0+1}, v{R0+3}"); e("  s_nop 1")
e(f"  v_permlane16_swap_b32 v{R0}, v{R0+1}"); e(f"  v_add_f32 v{R0}, v{R0}, v{R0+1}"); e("  s_nop 1")
e(f"  v_add_f32_dpp v{R0}, v{R0}, v{R0} row_ror:4 {DPPM}"); e("  s_nop 1"); e(f"  v_add_f32_dpp v{R0}, v{R0}, v{R0} row_ror:8 {DPPM}")
e(f"  v_cvt_pk_bf16_f32 v16, v{R0}, v{R0}"); e("  v_and_b32 v16, 0xffff0000, v16"); e("  v_mul_f32 v16, v16, v32")
e("  v_cvt_pk_bf16_f32 v16, v16, v16"); e("  v_and_b32 v16, 0xffff0000, v16"); e("  s_waitcnt lgkmcnt(0)")
e("  v_add_f32 v16, v16, v35"); e("  v_cvt_pk_bf16_f32 v16, v16, v16")
e("  s_mov_b32 exec_lo, 0x000f000f"); e("  s_mov_b32 exec_hi, 0x000f000f")
e("  buffer_store_short v16, v29, s[20:23], s50 offen" + CFN)
e("  s_cmp_lg_u32 s46, 0"); e("  s_cbranch_scc1 L_FIN")
e("  s_mov_b64 exec, 1", "every reader of d_ws[0] is behind the sums seen here"); e("  v_mov_b32 v16, s47"); e(f"  v_mov_b32 v17, {WS_E}")
e("  buffer_store_dword v16, v17, s[16:19], 0 offen" + CFN)
e("L_FIN:"); stamp_flush(); e("L_END:"); e("  s_endpgm")
for t in range(9):
    e(f"L_RR{t}:"); e("  s_sub_u32 s61, s61, 1"); e(f"  s_cbranch_scc1 L_RA{t}")
    for t2 in range(t, 9): rload(t2)
    e(f"  s_branch L_R{t}")
cm("---------------------------------------------------------------- prefetch waves: one word per 128-byte line")
e("L_HELP:")
e(f"  s_sub_u32 s28, s2, {NWT}"); e("  s_and_b32 s29, s28, 7"); e("  s_lshr_b32 s28, s28, 3")
e("  s_and_b32 s33, s3, 1"); e("  s_mul_i32 s33, s33, 288"); e(f"  s_mul_i32 s32, s28, {HR}"); e("  s_add_u32 s32, s32, s33")
e(f"  s_add_u32 s32, s32, {32*N0}"); e("  s_mul_i32 s32, s32, 9216"); e("  s_mul_i32 s34, s29, 1152"); e("  s_add_u32 s32, s32, s34")
e("  v_mul_u32_u24 v3, 0x1c72, v0"); e("  v_lshrrev_b32 v3, 16, v3", "lane / 9"); e("  v_mul_u32_u24 v4, 9, v3"); e("  v_sub_u32 v4, v0, v4")
e("  v_mul_u32_u24 v3, 9216, v3"); e("  v_lshl_add_u32 v3, v4, 7, v3")
e("  s_lshl2_add_u32 s28, s28, s3")
e(f"  s_mul_i32 s29, s29, {5184*128}")
if RP: e(f"  s_add_u32 s29, s29, {RP*8192}")
e("  v_lshlrev_b32 v2, 7, v0")
nr = -(-(288 - 32*N0) // (NH*HR))
assert nr - HG >= 1
e(f"  s_mov_b32 s30, {nr-HG}")
e("  s_cmp_ge_u32 s3, 2"); e("  s_waitcnt lgkmcnt(0)")
e("  s_cselect_b32 s8, s26, s24"); e("  s_cselect_b32 s9, s27, s25")
e(f"  s_bfm_b64 exec, {9*HR}, 0")
for r in range(HG):
    e(f"  buffer_load_dword v{DUM}, v3, s[8:11], s32 offen"); e(f"  s_add_u32 s32, s32, {NH*HR*9216}")
e("  s_barrier"); stamp(1)
e("L_HGL:"); e(f"  s_waitcnt vmcnt({HT-1})"); e(f"  buffer_load_dword v{DUM}, v3, s[8:11], s32 offen")
e(f"  s_add_u32 s32, s32, {NH*HR*9216}"); e("  s_sub_u32 s30, s30, 1"); e("  s_cmp_lg_u32 s30, 0"); e("  s_cbranch_scc1 L_HGL")
stamp(2)
CPS = 9 - 2*RP
e("  s_bfm_b64 exec, 32, 0")
e("L_HWL:")
e(f"  s_mul_hi_u32 s30, s28, {(2**32 + CPS - 1)//CPS}"); e(f"  s_mul_i32 s31, s30, {CPS}"); e("  s_sub_u32 s31, s28, s31")
e("  s_mul_i32 s30, s30, 36864"); e("  s_lshl_b32 s31, s31, 12"); e("  s_add_u32 s30, s30, s31"); e("  s_add_u32 s30, s30, s29")
e(f"  s_waitcnt vmcnt({HT-1})"); e(f"  buffer_load_dword v{DUM}, v2, s[12:15], s30 offen")
e("  s_add_u32 s28, s28, 56"); e(f"  s_cmp_lt_u32 s28, {18*CPS}"); e("  s_cbranch_scc1 L_HWL")
e("  s_waitcnt vmcnt(0)"); e("  s_barrier"); e("  s_branch L_FIN")
e("L_CODE_END:")
cm("rare path: x + x*0 turns an infinity into a NaN")
for n in range(1, ncopy+1):
    e(f"L_FIX{n}:"); e(f"  s_mov_b32 s98, {n}"); e("  s_branch L_FIX")
e("L_FIX:"); e("  s_mov_b32 s29, 0x07060302")
for j in range(36):
    r = XR + j
    e(f"  v_lshlrev_b32 v12, 16, v{r}"); e(f"  v_and_b32 v13, 0xffff0000, v{r}"); e("  v_fma_f32 v12, v12, 0, v12"); e("  v_fma_f32 v13, v13, 0, v13")
    e(f"  v_perm_b32 v{r}, v13, v12, s29")
e("  s_cmp_eq_u32 s98, 1"); e("  s_cbranch_scc1 L_FIXR1"); e("  s_branch L_FIXR2")
e('.section .rodata,"a"'); e(".p2align 6"); e(f".amdhsa_kernel {K}")
e("  .amdhsa_next_free_vgpr 200"); e("  .amdhsa_next_free_sgpr 102"); e("  .amdhsa_accum_offset 200")
e("  .amdhsa_group_segment_fixed_size 0"); e("  .amdhsa_kernarg_size 64"); e("  .amdhsa_user_sgpr_count 2")
e("  .amdhsa_user_sgpr_kernarg_segment_ptr 1"); e("  .amdhsa_system_sgpr_workgroup_id_x 1"); e("  .amdhsa_float_denorm_mode_32 3")
e(".end_amdhsa_kernel")
open(sys.argv[1], "w").write("\n".join(out) + "\n")
```

```python
import sys
NAME = "standalone__moe_arch_mod__prompt"
S, D, F = 2048, 576, 4608
XB = S*D*2
WB = D*F*2
opts = dict(a.split("=") for a in sys.argv[2:] if "=" in a)
def O(k, d): return int(opts.get(k, d))
STAMP = O("stamp", 0); AMP = opts.get("amp"); FINE = O("fine", 0)
if AMP: STAMP = 1
GS = O("gs", 64); REP = O("rep", 4); RS = 256*GS
LG = {16: 0, 32: 1, 64: 2}[GS]; LR = {1: 0, 2: 1, 4: 2, 8: 3}[REP]; NL = REP*GS//16
assert NL <= 16
WS_E = 0; WS_GRAN = 4096; WS_SLAB = 4096 + REP*RS; WS_SIZE = 1 << 20; WS_STAMP = 1 << 21
N0 = O("n0", 2); W1 = O("w1", 4); W2 = O("w2", 4); WE = O("we", 2); PB = O("pb", 7); RP = O("rp", 0)
HR = O("hr", 4); HT = O("ht", 2); HG = O("hg", 1)
PSL = O("psl", 2); SPIN = O("spin", 200000); RSL = O("rsl", 0)
CFN = " sc1" if O("cf", 0) else ""; LATEC = O("latec", 0); FL = {0: "", 1: " sc1", 2: " sc0 sc1", 3: " sc1 nt", 4: " nt"}; CW = FL[O("cw", 0)]; CH = FL[O("ch", 0)]; WD4E = O("wd4e", 1); EFS = O("efs", 1); LOWP = O("lowp", 1); CPRIO = O("cprio", 0)
NWT = 144; NH = 14
out = []
def e(s="", c=None): out.append(s if c is None else f"{s:<72}; {c}")
def cm(s): out.append("; " + s)
def stamp(i, wait=False):
    if STAMP and (i in (0, 7) or not FINE):
        e(f"  s_memrealtime s[{64+2*i}:{65+2*i}]")
        if wait: e("  s_waitcnt lgkmcnt(0)")
def fs(i, wait=False):
    if FINE:
        e(f"  s_memtime s[{64+2*i}:{65+2*i}]")
        if wait: e("  s_waitcnt lgkmcnt(0)")
def stamp_flush():
    if AMP:
        A, B, KK, WV, WG = map(int, AMP.split(","))
        stamp(7, True)
        e(f"  s_cmp_lg_u32 s2, {WG}"); e("  s_cbranch_scc1 L_AMPX")
        e(f"  s_cmp_lg_u32 s3, {WV}"); e("  s_cbranch_scc1 L_AMPX")
        e(f"  s_sub_u32 s60, s{64+2*B}, s{64+2*A}")
        e(f"  s_mul_i32 s60, s60, {KK}")
        e("L_AMP:"); e("  s_memrealtime s[62:63]"); e("  s_waitcnt lgkmcnt(0)"); e("  s_sub_u32 s62, s62, s78")
        e("  s_cmp_lt_u32 s62, s60"); e("  s_cbranch_scc1 L_AMP"); e("L_AMPX:")
    elif STAMP:
        if FINE: e("  s_memtime s[78:79]"); e("  s_waitcnt lgkmcnt(0)")
        else: stamp(7, True)
        e("  s_mov_b64 exec, 1")
        e("  s_lshl_b32 s60, s2, 3"); e("  s_add_u32 s60, s60, s3"); e("  s_lshl_b32 s60, s60, 6")
        e(f"  s_add_u32 s60, s60, {WS_STAMP}"); e("  s_mov_b32 s18, 0x1000000"); e("  v_mov_b32 v1, 0")
        for j in range(4):
            for k in range(4): e(f"  v_mov_b32 v{4+k}, s{64+4*j+k}")
            e(f"  buffer_store_dwordx4 v[4:7], v1, s[16:19], s60 offen offset:{16*j}"); e("  s_nop 1")

hdr = open('cdna_kernels/%s.s.ref' % NAME).read().split('\n')
for l in hdr:
    if l.startswith('; @launch'): break
    e(l)
XIMG = 73728; TAGL = XIMG + 2304; TEX = XIMG + 3072; WRIMG = TEX + 1024; LDS = 83968
e(f"; @launch grid=(256,1,1) block=(320,1,1) lds={LDS}")
DOC = """
One launch, 256 workgroups of 5 waves, one per CU (LDS and VGPR use allow one).
 role 4 (wave 0), every WG : 8 rows of x -> router scores -> local top-2 -> tagged granule in d_ws,
                             later the copy of its rows that were not routed.
 WGs 0..143, roles 0..3    : 32 columns of w_gate / w_up (LDS-DMA, transposing LDS reads, MFMA),
                             SwiGLU, the matching 32 rows of w_down (MFMA), tagged partial sums in d_ws.
 WGs 0..143, role 4        : gathers the 256 granules, global top-2, brings both rows into LDS;
                             72 of them add up the 144 partial sums of 8 columns and write the routed rows.
 WGs 144..255, roles 0..3  : pull weight lines into the L2 that the weight WGs with the same id mod 8
                             are expected to share (speed only, nothing depends on it).
 Hand-offs between WGs are 16-byte pieces that carry a tag, written and read with sc1.
 tag = d_ws[0] + 0x01010101; d_ws[0] is set to the tag at the end, so it differs from launch to launch.
"""
for l in DOC.strip("\n").split("\n"): cm(l)
e('.amdgcn_target "amdgcn-amd-amdhsa--gfx950"'); e(".text")
K = NAME + "_kernel"
e(f".globl {K}"); e(".p2align 8"); e(f".type {K},@function"); e(f"{K}:")
DPPM = "row_mask:0xf bank_mask:0xf"
AF = 12; BF = 48; ACC = 120; WD = 128; AD = 160; XR = 84; WR = 48; R0 = 48
VXW = 192; VA2 = 193; VTAG = 194; DUMC = 196; DUM = 197
QS = 16*9216

def slice_calc():
    e("  s_and_b32 s45, s2, 7"); e("  s_mul_i32 s45, s45, 18"); e("  s_lshr_b32 s44, s2, 3")
    e("  s_add_u32 s45, s45, s44", "slice: neighbours are 8 ids apart")
def setup0():
    e("  v_and_b32 v2, 15, v0"); e("  v_lshrrev_b32 v3, 4, v0")
    e("  v_mul_u32_u24 v4, 9216, v3"); e("  v_lshl_add_u32 v4, v2, 4, v4", "w_down: row 8g, 16-byte chunk c")
    e(f"  s_mul_i32 s34, s45, {32*1152}"); e("  s_lshl_b32 s35, s3, 8"); e("  s_add_u32 s34, s34, s35"); e("  s_add_u32 s35, s34, 4608")
def setup1():
    e("  v_lshrrev_b32 v5, 2, v2"); e("  v_lshl_add_u32 v5, v3, 3, v5"); e("  v_and_b32 v6, 1, v0"); e("  v_lshl_add_u32 v5, v6, 2, v5")
    e("  v_lshlrev_b32 v5, 3, v5"); e("  v_and_b32 v6, 2, v0"); e("  v_lshl_add_u32 v5, v6, 1, v5")
    e(f"  v_add_u32 v5, {TEX}, v5", "exchange table: this lane's (f, token)")
    e("  v_and_b32 v6, 1, v0"); e("  v_cmp_eq_u32 vcc, 1, v6"); e("  v_mov_b32 v6, 0xffff"); e("  v_mov_b32 v7, 0xffff0000")
    e("  v_cndmask_b32 v6, v6, v7, vcc", "half-word mask by lane parity")
    e("  v_lshlrev_b32 v7, 6, v2"); e("  v_lshl_add_u32 v7, v3, 4, v7", "partial-sum piece of this lane")
    e("  s_mul_i32 s36, s45, 4608"); e("  s_lshl_b32 s37, s3, 10"); e("  s_add_u32 s36, s36, s37"); e(f"  s_add_u32 s36, s36, {WS_SLAB}")
    e(f"  v_mov_b32 v{VTAG}, {TAGL}")
    e("  s_mov_b32 s56, 0x07060501"); e("  s_mov_b32 s57, 0x07060502"); e("  s_mov_b32 s58, 0x07060503")
    for j in range(0, 32, 2): e(f"  v_mov_b64 v[{AD+j}:{AD+j+1}], 0")
def wd_load(mp): e(f"  buffer_load_dwordx4 v[{WD+4*mp}:{WD+4*mp+3}], v4, s[12:15], s{34+(mp>>2)} offen offset:{1152*(mp&3)}")
ncopy = 0
def copy_stores(fl=""):
    global ncopy
    ncopy += 1
    e("  s_and_b32 s38, s32, 0xffff"); e("  s_and_b32 s39, s33, 0xffff")
    e("  v_cmp_ne_u32 s[52:53], s38, v11"); e("  v_cmp_ne_u32 s[54:55], s39, v11")
    e("  s_and_b64 exec, s[52:53], s[54:55]", "rows that are not routed")
    e("  s_cmp_lg_u64 s[96:97], 0"); e(f"  s_cbranch_scc1 L_FIX{ncopy}"); e(f"L_FIXR{ncopy}:")
    for i in range(9): e(f"  buffer_store_dwordx4 v[{XR+4*i}:{XR+4*i+3}], v10, s[20:23], s28 offen offset:{128*i}{fl}")

if STAMP:
    for i in range(2, 16): e(f"  s_mov_b32 s{64+i}, 0")
stamp(0)
cm("SRDs: x s[4:7], w_r or w_gate/w_up s[8:11], w_down s[12:15], d_ws s[16:19], d_out s[20:23]")
e("  s_load_dwordx2 s[4:5], s[0:1], 0"); e("  s_load_dwordx2 s[8:9], s[0:1], 8"); e("  s_load_dwordx2 s[16:17], s[0:1], 56")
e("  s_load_dwordx4 s[24:27], s[0:1], 16"); e("  s_load_dwordx2 s[12:13], s[0:1], 32"); e("  s_load_dwordx2 s[20:21], s[0:1], 40")
e("  s_getpc_b64 s[28:29]", "read one word of every line of the code: it lands in L2"); e("L_PC:")
e("  v_lshlrev_b32 v2, 7, v0"); e("  v_cmp_gt_u32 vcc, (L_CODE_END-L_PC+127)/128, v0")
e("  s_and_saveexec_b64 s[30:31], vcc"); e("  s_cbranch_execz L_NOPF")
e(f"  global_load_dword v{DUMC}, v2, s[28:29]"); e("L_NOPF:"); e("  s_mov_b64 exec, -1")
e("  v_lshrrev_b32 v1, 6, v0"); e("  v_and_b32 v0, 63, v0"); e("  v_readfirstlane_b32 s3, v1")
e("  s_cmp_ge_u32 s2, 256"); e("  s_cbranch_scc1 L_END")
e("  s_sub_u32 s3, s3, 1", "role: wave 0 -> 4, wave k -> k-1"); e("  s_cselect_b32 s3, 4, s3")
for r, v in ((6, XB), (7, "0x20000"), (11, "0x20000"), (14, WB), (15, "0x20000"), (18, WS_SIZE), (19, "0x20000"), (22, XB), (23, "0x20000")):
    e(f"  s_mov_b32 s{r}, {v}")
e("  s_cmp_lg_u32 s3, 4"); e("  s_cbranch_scc1 L_NOTX")
cm("---------------------------------------------------------------- role 4: router scores of 8 rows")
e("  s_setprio 3")
e(f"  s_mov_b32 s10, {D*2}"); e(f"  s_mov_b32 m0, {WRIMG}")
e("  v_lshlrev_b32 v8, 4, v0"); e("  v_and_b32 v1, 0x70, v8"); e("  v_lshrrev_b32 v9, 3, v0")
e("  v_mul_u32_u24 v10, 1152, v9"); e("  v_add_u32 v10, v10, v1", "8 lanes per row"); e("  s_mul_i32 s28, s2, 9216")
e("  s_waitcnt lgkmcnt(0)")
e(f"  s_load_dword s47, s[16:17], {WS_E}")
e("  buffer_load_dwordx4 v8, s[8:11], 0 offen lds", "w_r -> LDS"); e("  s_mov_b64 exec, 0xff")
e("  buffer_load_dwordx4 v8, s[8:11], 0 offen offset:1024 lds"); e("  s_mov_b64 exec, -1")
for i in range(9): e(f"  buffer_load_dwordx4 v[{XR+4*i}:{XR+4*i+3}], v10, s[4:7], s28 offen offset:{128*i}")
e(f"  v_add_u32 v1, {WRIMG}, v1")
e("  s_lshl_b32 s29, s2, 3"); e("  s_sub_u32 s29, 2047, s29"); e("  v_sub_u32 v11, s29, v9", "2047 - row"); e("  s_mov_b32 s30, 0xffff0000")
e(f"  s_and_b32 s29, s2, {REP-1}"); e(f"  s_mul_i32 s27, s29, {RS}"); e(f"  s_add_u32 s27, s27, {WS_GRAN}", "the copy of the granules this WG reads")
for j in range(1, 4): e(f"  s_add_u32 s{47+j}, s27, {64*GS*j}")
e("  s_and_b32 s29, s2, 7"); e("  s_lshl_b32 s29, s29, 5"); e("  s_lshr_b32 s31, s2, 3"); e("  s_add_u32 s29, s29, s31")
e(f"  s_mul_i32 s29, s29, {GS}"); e(f"  s_add_u32 s31, s29, {WS_GRAN}", "own granule")
e(f"  v_mul_u32_u24 v44, {GS}, v0")
for j in range(4): e(f"  v_mov_b32 v{12+j}, 0")
e("  v_bfrev_b32 v22, 1")
e(f"  v_bfe_u32 v21, v0, {LG}, {LR}"); e(f"  v_mul_u32_u24 v21, {RS}, v21"); e(f"  v_and_b32 v19, {GS//16-1}, v0"); e("  v_lshl_add_u32 v21, v19, 4, v21")
e(f"  s_mov_b32 s61, {SPIN}"); e(f"  v_mov_b32 v45, {TAGL}")
e("  s_waitcnt vmcnt(9) lgkmcnt(0)")
for i in range(9): e(f"  ds_read_b128 v[{WR+4*i}:{WR+4*i+3}], v1 offset:{128*i}")
e("  s_add_u32 s47, s47, 0x01010101", "tag of this launch"); e("  v_mov_b32 v18, s47")
for i in range(9):
    e(f"  s_waitcnt vmcnt({8-i}) lgkmcnt({8-i})")
    for j in range(4): e(f"  v_dot2c_f32_bf16 v{12+j}, v{XR+4*i+j}, v{WR+4*i+j}")
e("  s_nop 1")
e("  v_add_f32 v12, v12, v13"); e("  v_add_f32 v14, v14, v15"); e("  v_add_f32 v12, v12, v14")
e("  s_movk_i32 s29, 0x207"); e("  v_cmp_class_f32 s[96:97], v12, s29", "lanes that hold an inf or a NaN")
e(f"  v_add_f32_dpp v12, v12, v12 quad_perm:[1,0,3,2] {DPPM}"); e("  s_nop 1")
e(f"  v_add_f32_dpp v12, v12, v12 quad_perm:[2,3,0,1] {DPPM}"); e("  s_nop 1")
e(f"  v_add_f32_dpp v12, v12, v12 row_half_mirror {DPPM}")
cm("key = order-preserving bf16 score << 16 | 2047 - row; NaN sorts last")
e("  v_cvt_pk_bf16_f32 v13, v12, v12"); e("  v_cmp_u_f32 vcc, v12, v12"); e("  v_ashrrev_i32 v14, 31, v13")
e("  v_bitop3_b32 v13, v13, v14, v22 bitop3:0x1e"); e("  v_cndmask_b32 v13, v13, 0, vcc"); e("  v_and_or_b32 v13, v13, s30, v11")
e("  s_nop 1")
e(f"  v_max_u32_dpp v16, v13, v13 row_ror:8 {DPPM}"); e(f"  v_min_u32_dpp v17, v13, v13 row_ror:8 {DPPM}"); e("  s_nop 0")
for ctl in ("row_bcast:15 row_mask:0xa bank_mask:0xf", "row_bcast:31 row_mask:0xc bank_mask:0xf"):
    e(f"  v_min_u32_dpp v14, v16, v16 {ctl}"); e(f"  v_max_u32_dpp v16, v16, v16 {ctl}")
    e(f"  v_max_u32_dpp v15, v17, v17 {ctl}"); e("  v_max_u32 v17, v14, v15")
e(f"  s_lshl_b64 exec, {hex((1 << NL) - 1)}, 48", f"lanes 48..63 hold the pair: {REP} copies x {GS} bytes")
e("  buffer_store_dwordx4 v[16:19], v21, s[16:19], s31 offen sc1")
stamp(3)
e(f"  s_cmp_lt_u32 s2, {NWT}"); e("  s_cbranch_scc1 L_XG"); e("  s_barrier", "prefetch WG: let the other waves fill the queue"); e("L_XG:")
e("  ds_write_b32 v45, v18"); e("  s_mov_b64 exec, -1")
slice_calc(); setup0(); setup1()
e(f"  s_cmp_ge_u32 s2, {NWT}"); e("  s_cbranch_scc1 L_XH")
def wd4():
    e("  s_mov_b32 exec_lo, 0x00ff00ff", "columns 512..575 of w_down"); e("  s_mov_b32 exec_hi, 0x00ff00ff")
    for mp in range(8): wd_load(mp)
    e("  s_mov_b64 exec, -1")
if WD4E: wd4()
if RP:
    e("  v_lshlrev_b32 v46, 7, v0"); e(f"  s_mul_i32 s29, s45, {32*1152}")
    for r in range(RP):
        e(f"  buffer_load_dword v{DUM}, v46, s[12:15], s29 offen")
        if r < RP-1: e("  s_add_u32 s29, s29, 8192")
e("  s_waitcnt vmcnt(0)")
if O("nored5", 0): stamp(5)
e("L_P1:")
b = 48
for j in range(4): e(f"  buffer_load_dwordx4 v[{b+4*j}:{b+3+4*j}], v44, s[16:19], s{27 if j == 0 else 47+j} offen sc1")
e("  s_waitcnt vmcnt(0)")
e(f"  v_cmp_ne_u32 vcc, s47, v{b+2}"); e(f"  v_cmp_ne_u32 s[32:33], s47, v{b+6}")
e(f"  v_cmp_ne_u32 s[38:39], s47, v{b+10}"); e(f"  v_cmp_ne_u32 s[40:41], s47, v{b+14}")
e("  s_or_b64 vcc, vcc, s[32:33]"); e("  s_or_b64 s[38:39], s[38:39], s[40:41]"); e("  s_or_b64 vcc, vcc, s[38:39]")
e("  s_cbranch_scc0 L_PT")
e(f"  s_sleep {PSL}", "some granule is missing: back off and read again")
e("  s_sub_u32 s61, s61, 1"); e("  s_cbranch_scc0 L_P1")
e("  .p2align 3"); e("L_PT:")
def merge(a1, a2, b1, b2, o1, o2, t):
    e(f"  v_min_u32 v{t}, v{a1}, v{b1}"); e(f"  v_max_u32 v{o1}, v{a1}, v{b1}"); e(f"  v_max3_u32 v{o2}, v{t}, v{a2}, v{b2}")
merge(b, b+1, b+4, b+5, 40, 41, 12); merge(b+8, b+9, b+12, b+13, 42, 43, 13); merge(40, 41, 42, 43, 40, 41, 12)
e("  s_nop 0")
for ctl in (f"quad_perm:[1,0,3,2] {DPPM}", f"quad_perm:[2,3,0,1] {DPPM}", f"row_ror:4 {DPPM}", f"row_ror:8 {DPPM}",
            "row_bcast:15 row_mask:0xa bank_mask:0xf", "row_bcast:31 row_mask:0xc bank_mask:0xf"):
    e(f"  v_min_u32_dpp v12, v40, v40 {ctl}"); e(f"  v_max_u32_dpp v40, v40, v40 {ctl}")
    e(f"  v_max_u32_dpp v13, v41, v41 {ctl}"); e("  v_max_u32 v41, v12, v13")
e("  v_cmp_gt_u32 vcc, 8, v0"); e("  v_readlane_b32 s32, v40, 63", "global top-2 keys"); e("  v_readlane_b32 s33, v41, 63")
e(f"  s_cmp_ge_u32 s2, {NWT}"); e("  s_cbranch_scc1 L_XH2")
e("  s_and_b32 s38, s32, 0x7ff"); e("  s_and_b32 s39, s33, 0x7ff"); e("  s_sub_u32 s38, 2047, s38"); e("  s_sub_u32 s39, 2047, s39")
e("  s_mul_i32 s38, s38, 1152"); e("  s_mul_i32 s39, s39, 1152"); e(f"  s_mov_b32 m0, {XIMG}"); e("  s_sub_u32 s40, s39, 128")
e("  buffer_load_dwordx4 v8, s[4:7], s38 offen lds", "both routed rows -> LDS [2][1152 B]")
e("  s_add_u32 s41, s38, 1024"); e("  v_mov_b32 v12, s40"); e("  v_mov_b32 v13, s41"); e("  s_addk_i32 m0, 0x400")
e("  v_cndmask_b32 v12, v12, v13, vcc"); e("  v_add_u32 v12, v12, v8")
e("  buffer_load_dwordx4 v12, s[4:7], 0 offen lds")
e("  s_addk_i32 m0, 0x400"); e("  s_add_u32 s40, s39, 896"); e("  s_mov_b64 exec, 0xffff")
e("  buffer_load_dwordx4 v8, s[4:7], s40 offen lds"); e("  s_mov_b64 exec, -1")
stamp(1)
def final_setup():
    cm("last stage: lane row r = lane>>4 holds token r>>1, column 8u + 2(lane&3) + (r&1)")
    e("  v_cmp_gt_u32 vcc, 32, v0"); e("  v_mov_b32 v28, s33"); e("  v_mov_b32 v29, s32"); e("  v_and_b32 v31, 3, v0")
    e("  v_cndmask_b32 v28, v28, v29, vcc"); e("  v_and_b32 v29, 0xffff, v28"); e("  v_sub_u32 v29, 2047, v29")
    e("  v_mul_u32_u24 v29, 1152, v29"); e("  v_bfe_u32 v30, v0, 4, 1"); e("  v_lshlrev_b32 v30, 1, v30")
    e("  v_lshl_add_u32 v30, v31, 2, v30"); e("  v_add_u32 v29, v29, v30")
    e("  v_not_b32 v32, v28"); e("  v_ashrrev_i32 v32, 31, v32"); e("  v_or_b32 v32, 0x80000000, v32")
    e("  v_xor_b32 v32, v32, v28"); e("  v_and_b32 v32, 0xffff0000, v32", "the bf16 score back from the key"); e("  v_mul_f32 v32, 0xbfb8aa3b, v32")
    e("  v_exp_f32 v32, v32"); e("  v_lshrrev_b32 v33, 5, v0"); e("  v_add_f32 v32, 1.0, v32"); e("  v_rcp_f32 v32, v32")
    e("  v_mul_u32_u24 v33, 1152, v33"); e("  v_cvt_pk_bf16_f32 v32, v32, v32"); e("  v_and_b32 v32, 0xffff0000, v32", "sigmoid, rounded to bf16")
    e("  s_sub_u32 s46, s45, 72", "unit u = slice - 72"); e("  s_lshl_b32 s50, s46, 4"); e(f"  s_add_u32 s51, s50, {XIMG}"); e("  v_add3_u32 v33, v33, v30, s51")
    e("  v_lshrrev_b32 v34, 2, v0"); e("  v_mul_u32_u24 v34, 4608, v34"); e("  v_lshl_add_u32 v34, v31, 4, v34")
    e("  s_lshl_b32 s80, s46, 6"); e(f"  s_add_u32 s80, s80, {WS_SLAB}")
    for t in range(1, 9): e(f"  s_add_u32 s{80+t}, s80, {16*4608*t}")
    e("  s_mov_b32 s41, 0x0c04000c"); e("  s_mov_b32 s42, 0x04020100"); e("  v_mov_b32 v35, 0")
if EFS == 2: final_setup()
e("  s_barrier", "A: the rows are requested")
if not WD4E: wd4()
if EFS == 1: final_setup()
e(f"  s_waitcnt vmcnt({0 if WD4E else 8}) lgkmcnt(0)")
stamp(4, True)
e("  s_barrier", "B: the rows are in LDS")
if LOWP: e("  s_setprio 0")
if not LATEC: copy_stores(CW); e("  s_mov_b64 exec, -1")
if EFS == 0: final_setup()
if LOWP == 2: e("  s_setprio 3")
e("  s_branch L_JOIN")
e("L_XH:"); e("  s_barrier", "the prefetch is done"); e("  s_branch L_P1")
e("L_XH2:"); copy_stores(CH); e("  s_branch L_FIN")
cm("---------------------------------------------------------------- roles 0..3: (matrix, half of K)")
e("L_NOTX:")
e(f"  s_mov_b32 s10, {WB}")
e(f"  s_cmp_ge_u32 s2, {NWT}"); e("  s_cbranch_scc1 L_HELP")
slice_calc(); setup0()
e("  v_lshrrev_b32 v8, 2, v0"); e("  v_mul_u32_u24 v8, 9216, v8"); e("  v_lshrrev_b32 v9, 4, v0"); e("  v_and_b32 v9, 2, v9")
e("  v_xor_b32 v9, v9, v0"); e("  v_and_b32 v9, 3, v9"); e("  v_lshl_add_u32 v8, v9, 4, v8", "16 rows x 64 B, halves swapped in rows 8..15")
e("  s_and_b32 s28, s3, 1"); e(f"  s_mul_i32 s28, s28, {288*9216}"); e("  s_lshl_b32 s29, s45, 6"); e("  s_add_u32 s28, s28, s29")
e("  s_and_b32 s42, s45, 1", "the two WGs that share the lines start on different rows")
e(f"  s_mul_i32 s29, s42, {N0*QS}"); e(f"  s_add_u32 s46, s28, {2*N0*QS}"); e(f"  s_add_u32 s43, s28, {N0*QS}")
e("  s_sub_u32 s43, s43, s29"); e("  s_add_u32 s28, s28, s29")
e("  s_mul_i32 s30, s3, 18432"); e("  s_mov_b32 m0, s30")
e("  s_cmp_ge_u32 s3, 2"); e("  s_waitcnt lgkmcnt(0)")
e("  s_cselect_b32 s8, s26, s24"); e("  s_cselect_b32 s9, s27, s25")
stamp(1)
ops = [("W", i) for i in range(WE)] + [("D", i) for i in range(18)] + [("W", i) for i in range(WE, 8)]
pos = {op: n for n, op in enumerate(ops)}
nis = 0
def issue():
    global nis
    if nis >= len(ops): return False
    k, i = ops[nis]
    if k == "D":
        if i == N0: e("  s_mov_b32 s28, s43")
        if i == 2*N0: e("  s_mov_b32 s28, s46")
        e("  buffer_load_dwordx4 v8, s[8:11], s28 offen lds")
        if i < 17: e("  s_addk_i32 m0, 0x400"); e(f"  s_add_u32 s28, s28, {QS}")
    else: wd_load(i)
    nis += 1
    return True
def vwait(op): e(f"  s_waitcnt vmcnt({nis - pos[op] - 1})")
while nis < WE + min(N0, W1): issue()
setup1()
e("  v_lshlrev_b32 v9, 9, v3"); e("  v_bfe_u32 v10, v0, 2, 2"); e("  v_lshl_add_u32 v9, v10, 6, v9"); e("  v_and_b32 v10, 3, v0")
e("  v_lshl_add_u32 v9, v10, 3, v9"); e("  v_and_b32 v10, 1, v3"); e("  v_lshl_add_u32 v9, v10, 5, v9")
e("  v_add_u32 v9, s30, v9", "transposing reads, columns 0..15"); e("  v_xor_b32 v10, 32, v9", "columns 16..31")
e("  v_and_b32 v11, 1, v0"); e("  v_mul_u32_u24 v11, 1152, v11"); e("  v_lshl_add_u32 v11, v3, 4, v11")
e("  s_and_b32 s29, s3, 1"); e("  s_mul_i32 s29, s29, 576"); e(f"  s_add_u32 s29, s29, {XIMG}")
e(f"  s_mul_i32 s31, s42, {32*N0}")
e(f"  v_add_u32 v{VA2}, s29, v11", "x fragments"); e(f"  v_add_u32 v11, s31, v{VA2}"); e(f"  v_subrev_u32 v1, s31, v{VA2}")
e("  s_lshl_b32 s29, s3, 8"); e(f"  s_add_u32 s29, s29, {TEX}"); e(f"  v_lshl_add_u32 v{VXW}, v2, 3, s29")
def trreads(s):
    for hh in range(2):
        for u in range(2):
            r = BF + 8*s + 4*hh + 2*u
            e(f"  ds_read_b64_tr_b16 v[{r}:{r+1}], v{9+hh} offset:{2048*s+256*u}")
def mfmas(s):
    for hh in range(2):
        c = "0" if s == 0 else f"v[{ACC+4*hh}:{ACC+4*hh+3}]"
        r = BF + 8*s + 4*hh
        e(f"  v_mfma_f32_16x16x32_bf16 v[{ACC+4*hh}:{ACC+4*hh+3}], v[{AF+4*s}:{AF+4*s+3}], v[{r}:{r+3}], {c}")
E0 = N0 // 2
for s in range(PB):
    for h in range(2):
        need = 2*s + h
        def ok():
            if nis >= len(ops) or ops[nis][0] != "D": return False
            i = ops[nis][1]
            return i < need + 1 + W1 if i < N0 else (need >= N0 - 1 and i < need + 1 + W2)
        if ok() or h == 1: vwait(("D", need))
        while ok(): issue()
    if s == 0: stamp(2)
    trreads(s)
while ops[nis][0] == "D": issue()
stamp(5)
e("  s_barrier", "A")
while issue(): pass
e("  s_waitcnt lgkmcnt(0)"); e("  s_barrier", "B")
stamp(4, True); fs(1, True)
if CPRIO: e(f"  s_setprio {CPRIO}")
order = []
for s in range(9):
    ar = 11 if s < E0 else (1 if s < 2*E0 else VA2)
    e(f"  ds_read_b128 v[{AF+4*s}:{AF+4*s+3}], v{ar} offset:{64*s}"); order.append(f"A{s}")
late = list(range(PB, 9))
for s in range(9):
    if late and late[0] <= s + 1:
        t = late.pop(0); vwait(("D", 2*t+1)); trreads(t); order += [f"T{t}"]*4
    tag = f"A{s}" if s < PB else f"T{s}"
    need = len(order) - 1 - order[::-1].index(tag)
    e(f"  s_waitcnt lgkmcnt({min(15, len(order) - need - 1)})")
    mfmas(s)
stamp(3); fs(2)
e("  s_mov_b64 exec, 0xffff"); e("  s_nop 6")
e(f"  ds_write2_b64 v{VXW}, v[{ACC}:{ACC+1}], v[{ACC+4}:{ACC+5}] offset0:0 offset1:16")
e("  s_mov_b64 exec, -1")
cm("---------------------------------------------------------------- all 5 waves: SwiGLU, 128 columns of w_down each")
e("L_JOIN:")
e("  s_waitcnt lgkmcnt(0)"); fs(3, True); e("  s_barrier", "C: the four partial pre-activations are in LDS"); fs(4)
e("  ds_read2_b32 v[12:13], v5 offset0:0 offset1:64"); e("  ds_read2_b32 v[14:15], v5 offset0:128 offset1:192")
e(f"  ds_read_b32 v23, v{VTAG}")
e("  s_cmp_eq_u32 s3, 4"); e("  s_waitcnt lgkmcnt(0)")
e("  v_add_f32 v12, v12, v13"); e("  v_add_f32 v14, v14, v15")
e("  v_cvt_pk_bf16_f32 v12, v12, v14"); e("  v_lshlrev_b32 v13, 16, v12"); e("  v_mul_f32 v15, 0xbfb8aa3b, v13"); e("  v_exp_f32 v15, v15")
e("  v_and_b32 v14, 0xffff0000, v12"); e("  v_add_f32 v15, 1.0, v15"); e("  v_rcp_f32 v15, v15"); e("  s_nop 0")
e("  v_mul_f32 v13, v13, v15"); e("  v_cvt_pk_bf16_f32 v13, v13, v13"); e("  v_and_b32 v13, 0xffff0000, v13")
e("  v_mul_f32 v13, v13, v14"); e("  v_cvt_pk_bf16_f32 v13, v13, v13", "h = bf16(bf16(silu(a)) * u), in both halves")
fs(5)
e("  s_cbranch_scc1 L_W4"); e("  s_waitcnt vmcnt(0)"); e("L_W4:"); fs(6); e("  s_nop 0" if WD4E else "  s_waitcnt vmcnt(9)")
e(f"  v_and_b32_dpp v12, v13, v6 quad_perm:[0,0,2,2] {DPPM}"); e(f"  v_and_b32_dpp v16, v13, v6 quad_perm:[1,1,3,3] {DPPM}")
e("  s_nop 0"); e("  .p2align 3")
cm("A = h on a diagonal: D[token, column parity and pair][chunk] sums 4 rows of w_down per MFMA")
for mp in range(8):
    src = 12 if mp < 4 else 16; qq = mp & 3
    for r in range(4):
        n = (4*(r-qq)) % 16
        ctl = "quad_perm:[0,1,2,3]" if n == 0 else f"row_ror:{n}"
        e(f"  v_mov_b32_dpp v{AD+4*mp+r}, v{src} {ctl} row_mask:0xf bank_mask:{hex(1<<r)}")
    if mp >= 1:
        m = mp - 1; c = "0" if m == 0 else f"v[{ACC}:{ACC+3}]"
        e(f"  v_mfma_f32_16x16x32_bf16 v[{ACC}:{ACC+3}], v[{AD+4*m}:{AD+4*m+3}], v[{WD+4*m}:{WD+4*m+3}], {c}")
e("  s_nop 0")
e(f"  v_mfma_f32_16x16x32_bf16 v[{ACC}:{ACC+3}], v[{AD+28}:{AD+31}], v[{WD+28}:{WD+31}], v[{ACC}:{ACC+3}]")
e("  s_cselect_b32 exec_lo, 0x00ff00ff, -1"); e("  s_cselect_b32 exec_hi, 0x00ff00ff, -1"); e("  s_nop 5")
cm("4 sums (top 24 bits each) + tag in 16 bytes")
for j in range(3): e(f"  v_perm_b32 v{20+j}, v{ACC+j}, v{ACC+3}, s{56+j}")
e("  buffer_store_dwordx4 v[20:23], v7, s[16:19], s36 offen sc1")
if STAMP:
    e("  s_cbranch_scc1 L_S6"); stamp(6); e("  s_branch L_FIN"); e("L_S6:"); stamp(2)
else: e("  s_cbranch_scc0 L_FIN")
if LATEC == 1: e("  s_mov_b64 exec, -1"); copy_stores(CW)
e("  s_cmp_ge_u32 s46, 72"); e(f"  s_cbranch_scc1 {'L_WC' if LATEC == 2 else 'L_FIN'}")
cm("---------------------------------------------------------------- 72 waves: sum over the 144 WGs, write the routed rows")
e("  s_mov_b64 exec, -1"); e("  ds_read_u16_d16_hi v35, v33"); e(f"  s_mov_b32 s61, {SPIN}")
e("  s_waitcnt vmcnt(0)")
if RSL: e(f"  s_sleep {RSL}")
def rload(t): e(f"  buffer_load_dwordx4 v[{R0+4*t}:{R0+3+4*t}], v34, s[16:19], s{80+t} offen sc1")
def racc(t):
    r = R0 + 4*t
    e(f"  v_perm_b32 v{r+3}, v{r+1}, v{r}, s41"); e(f"  v_perm_b32 v{r+3}, v{r+2}, v{r+3}, s42")
    if t:
        e(f"  v_pk_add_f32 v[{R0}:{R0+1}], v[{R0}:{R0+1}], v[{r}:{r+1}]"); e(f"  v_pk_add_f32 v[{R0+2}:{R0+3}], v[{R0+2}:{R0+3}], v[{r+2}:{r+3}]")
def rchain(extra, lab):
    for t in range(9):
        if lab: e(f"L_R{t}:")
        e(f"  s_waitcnt vmcnt({8-t+extra})"); e(f"  v_cmp_ne_u32 vcc, s47, v{R0+4*t+3}"); e(f"  s_cbranch_vccnz L_RR{t}")
        if lab: e(f"L_RA{t}:")
        racc(t)
for t in range(9): rload(t)
if LATEC == 2:
    copy_stores(CW); e("  s_mov_b64 exec, -1")
    rchain(9, False)
    e("L_RD:")
else:
    rchain(0, True)
if not O("nored5", 0): stamp(5)
e("  s_nop 1"); e(f"  v_permlane32_swap_b32 v{R0}, v{R0+2}"); e(f"  v_permlane32_swap_b32 v{R0+1}, v{R0+3}")
e(f"  v_add_f32 v{R0}, v{R0}, v{R0+2}"); e(f"  v_add_f32 v{R0+1}, v{R0+1}, v{R0+3}"); e("  s_nop 1")
e(f"  v_permlane16_swap_b32 v{R0}, v{R0+1}"); e(f"  v_add_f32 v{R0}, v{R0}, v{R0+1}"); e("  s_nop 1")
e(f"  v_add_f32_dpp v{R0}, v{R0}, v{R0} row_ror:4 {DPPM}"); e("  s_nop 1"); e(f"  v_add_f32_dpp v{R0}, v{R0}, v{R0} row_ror:8 {DPPM}")
e(f"  v_cvt_pk_bf16_f32 v16, v{R0}, v{R0}"); e("  v_and_b32 v16, 0xffff0000, v16"); e("  v_mul_f32 v16, v16, v32")
e("  v_cvt_pk_bf16_f32 v16, v16, v16"); e("  v_and_b32 v16, 0xffff0000, v16"); e("  s_waitcnt lgkmcnt(0)")
e("  v_add_f32 v16, v16, v35"); e("  v_cvt_pk_bf16_f32 v16, v16, v16")
e("  s_mov_b32 exec_lo, 0x000f000f"); e("  s_mov_b32 exec_hi, 0x000f000f")
e("  buffer_store_short v16, v29, s[20:23], s50 offen" + CFN)
e("  s_cmp_lg_u32 s46, 0"); e("  s_cbranch_scc1 L_FIN")
e("  s_mov_b64 exec, 1", "every reader of d_ws[0] is behind the sums seen here"); e("  v_mov_b32 v16, s47"); e(f"  v_mov_b32 v17, {WS_E}")
e("  buffer_store_dword v16, v17, s[16:19], 0 offen" + CFN)
e("L_FIN:"); stamp_flush(); e("L_END:"); e("  s_endpgm")
if LATEC == 2:
    e("L_WC:"); e("  s_mov_b64 exec, -1"); e("  s_branch L_XH2")
    rchain(0, True); e("  s_branch L_RD")
for t in range(9):
    e(f"L_RR{t}:"); e("  s_sub_u32 s61, s61, 1"); e(f"  s_cbranch_scc1 L_RA{t}")
    for t2 in range(t, 9): rload(t2)
    e(f"  s_branch L_R{t}")
cm("---------------------------------------------------------------- prefetch waves: one word per 128-byte line")
e("L_HELP:")
e(f"  s_sub_u32 s28, s2, {NWT}"); e("  s_and_b32 s29, s28, 7"); e("  s_lshr_b32 s28, s28, 3")
e("  s_and_b32 s33, s3, 1"); e("  s_mul_i32 s33, s33, 288"); e(f"  s_mul_i32 s32, s28, {HR}"); e("  s_add_u32 s32, s32, s33")
e(f"  s_add_u32 s32, s32, {32*N0}"); e("  s_mul_i32 s32, s32, 9216"); e("  s_mul_i32 s34, s29, 1152"); e("  s_add_u32 s32, s32, s34")
e("  v_mul_u32_u24 v3, 0x1c72, v0"); e("  v_lshrrev_b32 v3, 16, v3", "lane / 9"); e("  v_mul_u32_u24 v4, 9, v3"); e("  v_sub_u32 v4, v0, v4")
e("  v_mul_u32_u24 v3, 9216, v3"); e("  v_lshl_add_u32 v3, v4, 7, v3")
e("  s_lshl2_add_u32 s28, s28, s3")
e(f"  s_mul_i32 s29, s29, {5184*128}")
if RP: e(f"  s_add_u32 s29, s29, {RP*8192}")
e("  v_lshlrev_b32 v2, 7, v0")
nr = -(-(288 - 32*N0) // (NH*HR))
assert nr - HG >= 1
e(f"  s_mov_b32 s30, {nr-HG}")
e("  s_cmp_ge_u32 s3, 2"); e("  s_waitcnt lgkmcnt(0)")
e("  s_cselect_b32 s8, s26, s24"); e("  s_cselect_b32 s9, s27, s25")
e(f"  s_bfm_b64 exec, {9*HR}, 0")
for r in range(HG):
    e(f"  buffer_load_dword v{DUM}, v3, s[8:11], s32 offen"); e(f"  s_add_u32 s32, s32, {NH*HR*9216}")
e("  s_barrier"); stamp(1)
e("L_HGL:"); e(f"  s_waitcnt vmcnt({HT-1})"); e(f"  buffer_load_dword v{DUM}, v3, s[8:11], s32 offen")
e(f"  s_add_u32 s32, s32, {NH*HR*9216}"); e("  s_sub_u32 s30, s30, 1"); e("  s_cmp_lg_u32 s30, 0"); e("  s_cbranch_scc1 L_HGL")
stamp(2)
CPS = 9 - 2*RP
e("  s_bfm_b64 exec, 32, 0")
e("L_HWL:")
e(f"  s_mul_hi_u32 s30, s28, {(2**32 + CPS - 1)//CPS}"); e(f"  s_mul_i32 s31, s30, {CPS}"); e("  s_sub_u32 s31, s28, s31")
e("  s_mul_i32 s30, s30, 36864"); e("  s_lshl_b32 s31, s31, 12"); e("  s_add_u32 s30, s30, s31"); e("  s_add_u32 s30, s30, s29")
e(f"  s_waitcnt vmcnt({HT-1})"); e(f"  buffer_load_dword v{DUM}, v2, s[12:15], s30 offen")
e("  s_add_u32 s28, s28, 56"); e(f"  s_cmp_lt_u32 s28, {18*CPS}"); e("  s_cbranch_scc1 L_HWL")
e("  s_waitcnt vmcnt(0)"); e("  s_barrier"); e("  s_branch L_FIN")
e("L_CODE_END:")
cm("rare path: x + x*0 turns an infinity into a NaN")
for n in range(1, ncopy+1):
    e(f"L_FIX{n}:"); e(f"  s_mov_b32 s98, {n}"); e("  s_branch L_FIX")
e("L_FIX:"); e("  s_mov_b32 s29, 0x07060302")
for j in range(36):
    r = XR + j
    e(f"  v_lshlrev_b32 v12, 16, v{r}"); e(f"  v_and_b32 v13, 0xffff0000, v{r}"); e("  v_fma_f32 v12, v12, 0, v12"); e("  v_fma_f32 v13, v13, 0, v13")
    e(f"  v_perm_b32 v{r}, v13, v12, s29")
e("  s_cmp_eq_u32 s98, 1"); e("  s_cbranch_scc1 L_FIXR1"); e("  s_branch L_FIXR2")
e('.section .rodata,"a"'); e(".p2align 6"); e(f".amdhsa_kernel {K}")
e("  .amdhsa_next_free_vgpr 200"); e("  .amdhsa_next_free_sgpr 102"); e("  .amdhsa_accum_offset 200")
e("  .amdhsa_group_segment_fixed_size 0"); e("  .amdhsa_kernarg_size 64"); e("  .amdhsa_user_sgpr_count 2")
e("  .amdhsa_user_sgpr_kernarg_segment_ptr 1"); e("  .amdhsa_system_sgpr_workgroup_id_x 1"); e("  .amdhsa_float_denorm_mode_32 3")
e(".end_amdhsa_kernel")
open(sys.argv[1], "w").write("\n".join(out) + "\n")
```

```python
import sys
NAME = "standalone__moe_arch_mod__prompt"
S, D, F = 2048, 576, 4608
XB = S*D*2
WB = D*F*2
opts = dict(a.split("=") for a in sys.argv[2:] if "=" in a)
def O(k, d): return int(opts.get(k, d))
STAMP = O("stamp", 0); AMP = opts.get("amp"); FINE = O("fine", 0)
if AMP: STAMP = 1
GS = O("gs", 64); REP = O("rep", 4); RS = 256*GS
LG = {16: 0, 32: 1, 64: 2}[GS]; LR = {1: 0, 2: 1, 4: 2, 8: 3}[REP]; NL = REP*GS//16
assert NL <= 16
WS_E = 0; WS_GRAN = 4096; WS_SLAB = 4096 + REP*RS; WS_SIZE = 1 << 20; WS_STAMP = 1 << 21
N0 = O("n0", 2); W1 = O("w1", 4); W2 = O("w2", 4); WE = O("we", 2); PB = O("pb", 7); RP = O("rp", 0)
HR = O("hr", 4); HT = O("ht", 2); HG = O("hg", 1)
PSL = O("psl", 2); SPIN = O("spin", 200000); RSL = O("rsl", 0)
CFN = {0: "", 1: " sc1", 2: " sc0 sc1"}[O("cf", 0)]; LATEC = O("latec", 0); FL = {0: "", 1: " sc1", 2: " sc0 sc1", 3: " sc1 nt", 4: " nt"}; HS = FL[O("hs", 1)]; HL = FL[O("hl", 1)]; CW = FL[O("cw", 0)]; CH = FL[O("ch", 0)]; WD4E = O("wd4e", 1); EFS = O("efs", 1); LOWP = O("lowp", 1); CPRIO = O("cprio", 0)
NWT = 144; NH = 14
out = []
def e(s="", c=None): out.append(s if c is None else f"{s:<72}; {c}")
def cm(s): out.append("; " + s)
def stamp(i, wait=False):
    if STAMP and (i in (0, 7) or not FINE):
        e(f"  s_memrealtime s[{64+2*i}:{65+2*i}]")
        if wait: e("  s_waitcnt lgkmcnt(0)")
def fs(i, wait=False):
    if FINE:
        e(f"  s_memtime s[{64+2*i}:{65+2*i}]")
        if wait: e("  s_waitcnt lgkmcnt(0)")
def stamp_flush():
    if AMP:
        A, B, KK, WV, WG = map(int, AMP.split(","))
        stamp(7, True)
        e(f"  s_cmp_lg_u32 s2, {WG}"); e("  s_cbranch_scc1 L_AMPX")
        e(f"  s_cmp_lg_u32 s3, {WV}"); e("  s_cbranch_scc1 L_AMPX")
        e(f"  s_sub_u32 s60, s{64+2*B}, s{64+2*A}")
        e(f"  s_mul_i32 s60, s60, {KK}")
        e("L_AMP:"); e("  s_memrealtime s[62:63]"); e("  s_waitcnt lgkmcnt(0)"); e("  s_sub_u32 s62, s62, s78")
        e("  s_cmp_lt_u32 s62, s60"); e("  s_cbranch_scc1 L_AMP"); e("L_AMPX:")
    elif STAMP:
        if FINE: e("  s_memtime s[78:79]"); e("  s_waitcnt lgkmcnt(0)")
        else: stamp(7, True)
        e("  s_mov_b64 exec, 1")
        e("  s_lshl_b32 s60, s2, 3"); e("  s_add_u32 s60, s60, s3"); e("  s_lshl_b32 s60, s60, 6")
        e(f"  s_add_u32 s60, s60, {WS_STAMP}"); e("  s_mov_b32 s18, 0x1000000"); e("  v_mov_b32 v1, 0")
        for j in range(4):
            for k in range(4): e(f"  v_mov_b32 v{4+k}, s{64+4*j+k}")
            e(f"  buffer_store_dwordx4 v[4:7], v1, s[16:19], s60 offen offset:{16*j}"); e("  s_nop 1")

hdr = open('cdna_kernels/%s.s.ref' % NAME).read().split('\n')
for l in hdr:
    if l.startswith('; @launch'): break
    e(l)
XIMG = 73728; TAGL = XIMG + 2304; TEX = XIMG + 3072; WRIMG = TEX + 1024; LDS = 83968
e(f"; @launch grid=(256,1,1) block=(320,1,1) lds={LDS}")
DOC = """
One launch, 256 workgroups of 5 waves, one per CU (LDS and VGPR use allow one).
 role 4 (wave 0), every WG : 8 rows of x -> router scores -> local top-2 -> tagged granule in d_ws,
                             later the copy of its rows that were not routed.
 WGs 0..143, roles 0..3    : 32 columns of w_gate / w_up (LDS-DMA, transposing LDS reads, MFMA),
                             SwiGLU, the matching 32 rows of w_down (MFMA), tagged partial sums in d_ws.
 WGs 0..143, role 4        : gathers the 256 granules, global top-2, brings both rows into LDS;
                             72 of them add up the 144 partial sums of 8 columns and write the routed rows.
 WGs 144..255, roles 0..3  : pull weight lines into the L2 that the weight WGs with the same id mod 8
                             are expected to share (speed only, nothing depends on it).
 Hand-offs between WGs are 16-byte pieces that carry a tag, written and read with sc1.
 tag = d_ws[0] + 0x01010101; d_ws[0] is set to the tag at the end, so it differs from launch to launch.
"""
for l in DOC.strip("\n").split("\n"): cm(l)
e('.amdgcn_target "amdgcn-amd-amdhsa--gfx950"'); e(".text")
K = NAME + "_kernel"
e(f".globl {K}"); e(".p2align 8"); e(f".type {K},@function"); e(f"{K}:")
DPPM = "row_mask:0xf bank_mask:0xf"
AF = 12; BF = 48; ACC = 120; WD = 128; AD = 160; XR = 84; WR = 48; R0 = 48
VXW = 192; VA2 = 193; VTAG = 194; DUMC = 196; DUM = 197
QS = 16*9216

def slice_calc():
    e("  s_and_b32 s45, s2, 7"); e("  s_mul_i32 s45, s45, 18"); e("  s_lshr_b32 s44, s2, 3")
    e("  s_add_u32 s45, s45, s44", "slice: neighbours are 8 ids apart")
def setup0():
    e("  v_and_b32 v2, 15, v0"); e("  v_lshrrev_b32 v3, 4, v0")
    e("  v_mul_u32_u24 v4, 9216, v3"); e("  v_lshl_add_u32 v4, v2, 4, v4", "w_down: row 8g, 16-byte chunk c")
    e(f"  s_mul_i32 s34, s45, {32*1152}"); e("  s_lshl_b32 s35, s3, 8"); e("  s_add_u32 s34, s34, s35"); e("  s_add_u32 s35, s34, 4608")
def setup1():
    e("  v_lshrrev_b32 v5, 2, v2"); e("  v_lshl_add_u32 v5, v3, 3, v5"); e("  v_and_b32 v6, 1, v0"); e("  v_lshl_add_u32 v5, v6, 2, v5")
    e("  v_lshlrev_b32 v5, 3, v5"); e("  v_and_b32 v6, 2, v0"); e("  v_lshl_add_u32 v5, v6, 1, v5")
    e(f"  v_add_u32 v5, {TEX}, v5", "exchange table: this lane's (f, token)")
    e("  v_and_b32 v6, 1, v0"); e("  v_cmp_eq_u32 vcc, 1, v6"); e("  v_mov_b32 v6, 0xffff"); e("  v_mov_b32 v7, 0xffff0000")
    e("  v_cndmask_b32 v6, v6, v7, vcc", "half-word mask by lane parity")
    e("  v_lshlrev_b32 v7, 6, v2"); e("  v_lshl_add_u32 v7, v3, 4, v7", "partial-sum piece of this lane")
    e("  s_mul_i32 s36, s45, 4608"); e("  s_lshl_b32 s37, s3, 10"); e("  s_add_u32 s36, s36, s37"); e(f"  s_add_u32 s36, s36, {WS_SLAB}")
    e(f"  v_mov_b32 v{VTAG}, {TAGL}")
    e("  s_mov_b32 s56, 0x07060501"); e("  s_mov_b32 s57, 0x07060502"); e("  s_mov_b32 s58, 0x07060503")
    for j in range(0, 32, 2): e(f"  v_mov_b64 v[{AD+j}:{AD+j+1}], 0")
def wd_load(mp): e(f"  buffer_load_dwordx4 v[{WD+4*mp}:{WD+4*mp+3}], v4, s[12:15], s{34+(mp>>2)} offen offset:{1152*(mp&3)}")
ncopy = 0
def copy_stores(fl=""):
    global ncopy
    ncopy += 1
    e("  s_and_b32 s38, s32, 0xffff"); e("  s_and_b32 s39, s33, 0xffff")
    e("  v_cmp_ne_u32 s[52:53], s38, v11"); e("  v_cmp_ne_u32 s[54:55], s39, v11")
    e("  s_and_b64 exec, s[52:53], s[54:55]", "rows that are not routed")
    e("  s_cmp_lg_u64 s[96:97], 0"); e(f"  s_cbranch_scc1 L_FIX{ncopy}"); e(f"L_FIXR{ncopy}:")
    for i in range(9): e(f"  buffer_store_dwordx4 v[{XR+4*i}:{XR+4*i+3}], v10, s[20:23], s28 offen offset:{128*i}{fl}")

if STAMP:
    for i in range(2, 16): e(f"  s_mov_b32 s{64+i}, 0")
stamp(0)
cm("SRDs: x s[4:7], w_r or w_gate/w_up s[8:11], w_down s[12:15], d_ws s[16:19], d_out s[20:23]")
e("  s_load_dwordx2 s[4:5], s[0:1], 0"); e("  s_load_dwordx2 s[8:9], s[0:1], 8"); e("  s_load_dwordx2 s[16:17], s[0:1], 56")
e("  s_load_dwordx4 s[24:27], s[0:1], 16"); e("  s_load_dwordx2 s[12:13], s[0:1], 32"); e("  s_load_dwordx2 s[20:21], s[0:1], 40")
e("  s_getpc_b64 s[28:29]", "read one word of every line of the code: it lands in L2"); e("L_PC:")
e("  v_lshlrev_b32 v2, 7, v0"); e("  v_cmp_gt_u32 vcc, (L_CODE_END-L_PC+127)/128, v0")
e("  s_and_saveexec_b64 s[30:31], vcc"); e("  s_cbranch_execz L_NOPF")
e(f"  global_load_dword v{DUMC}, v2, s[28:29]"); e("L_NOPF:"); e("  s_mov_b64 exec, -1")
e("  v_lshrrev_b32 v1, 6, v0"); e("  v_and_b32 v0, 63, v0"); e("  v_readfirstlane_b32 s3, v1")
e("  s_cmp_ge_u32 s2, 256"); e("  s_cbranch_scc1 L_END")
e("  s_sub_u32 s3, s3, 1", "role: wave 0 -> 4, wave k -> k-1"); e("  s_cselect_b32 s3, 4, s3")
for r, v in ((6, XB), (7, "0x20000"), (11, "0x20000"), (14, WB), (15, "0x20000"), (18, WS_SIZE), (19, "0x20000"), (22, XB), (23, "0x20000")):
    e(f"  s_mov_b32 s{r}, {v}")
e("  s_cmp_lg_u32 s3, 4"); e("  s_cbranch_scc1 L_NOTX")
cm("---------------------------------------------------------------- role 4: router scores of 8 rows")
e("  s_setprio 3")
e(f"  s_mov_b32 s10, {D*2}"); e(f"  s_mov_b32 m0, {WRIMG}")
e("  v_lshlrev_b32 v8, 4, v0"); e("  v_and_b32 v1, 0x70, v8"); e("  v_lshrrev_b32 v9, 3, v0")
e("  v_mul_u32_u24 v10, 1152, v9"); e("  v_add_u32 v10, v10, v1", "8 lanes per row"); e("  s_mul_i32 s28, s2, 9216")
e("  s_waitcnt lgkmcnt(0)")
e(f"  s_load_dword s47, s[16:17], {WS_E}")
e("  buffer_load_dwordx4 v8, s[8:11], 0 offen lds", "w_r -> LDS"); e("  s_mov_b64 exec, 0xff")
e("  buffer_load_dwordx4 v8, s[8:11], 0 offen offset:1024 lds"); e("  s_mov_b64 exec, -1")
for i in range(9): e(f"  buffer_load_dwordx4 v[{XR+4*i}:{XR+4*i+3}], v10, s[4:7], s28 offen offset:{128*i}")
e(f"  v_add_u32 v1, {WRIMG}, v1")
e("  s_lshl_b32 s29, s2, 3"); e("  s_sub_u32 s29, 2047, s29"); e("  v_sub_u32 v11, s29, v9", "2047 - row"); e("  s_mov_b32 s30, 0xffff0000")
e(f"  s_and_b32 s29, s2, {REP-1}"); e(f"  s_mul_i32 s27, s29, {RS}"); e(f"  s_add_u32 s27, s27, {WS_GRAN}", "the copy of the granules this WG reads")
for j in range(1, 4): e(f"  s_add_u32 s{47+j}, s27, {64*GS*j}")
e("  s_and_b32 s29, s2, 7"); e("  s_lshl_b32 s29, s29, 5"); e("  s_lshr_b32 s31, s2, 3"); e("  s_add_u32 s29, s29, s31")
e(f"  s_mul_i32 s29, s29, {GS}"); e(f"  s_add_u32 s31, s29, {WS_GRAN}", "own granule")
e(f"  v_mul_u32_u24 v44, {GS}, v0")
for j in range(4): e(f"  v_mov_b32 v{12+j}, 0")
e("  v_bfrev_b32 v22, 1")
e(f"  v_bfe_u32 v21, v0, {LG}, {LR}"); e(f"  v_mul_u32_u24 v21, {RS}, v21"); e(f"  v_and_b32 v19, {GS//16-1}, v0"); e("  v_lshl_add_u32 v21, v19, 4, v21")
e(f"  s_mov_b32 s61, {SPIN}"); e(f"  v_mov_b32 v45, {TAGL}")
e("  s_waitcnt vmcnt(9) lgkmcnt(0)")
for i in range(9): e(f"  ds_read_b128 v[{WR+4*i}:{WR+4*i+3}], v1 offset:{128*i}")
e("  s_add_u32 s47, s47, 0x01010101", "tag of this launch"); e("  v_mov_b32 v18, s47")
for i in range(9):
    e(f"  s_waitcnt vmcnt({8-i}) lgkmcnt({8-i})")
    for j in range(4): e(f"  v_dot2c_f32_bf16 v{12+j}, v{XR+4*i+j}, v{WR+4*i+j}")
e("  s_nop 1")
e("  v_add_f32 v12, v12, v13"); e("  v_add_f32 v14, v14, v15"); e("  v_add_f32 v12, v12, v14")
e("  s_movk_i32 s29, 0x207"); e("  v_cmp_class_f32 s[96:97], v12, s29", "lanes that hold an inf or a NaN")
e(f"  v_add_f32_dpp v12, v12, v12 quad_perm:[1,0,3,2] {DPPM}"); e("  s_nop 1")
e(f"  v_add_f32_dpp v12, v12, v12 quad_perm:[2,3,0,1] {DPPM}"); e("  s_nop 1")
e(f"  v_add_f32_dpp v12, v12, v12 row_half_mirror {DPPM}")
cm("key = order-preserving bf16 score << 16 | 2047 - row; NaN sorts last")
e("  v_cvt_pk_bf16_f32 v13, v12, v12"); e("  v_cmp_u_f32 vcc, v12, v12"); e("  v_ashrrev_i32 v14, 31, v13")
e("  v_bitop3_b32 v13, v13, v14, v22 bitop3:0x1e"); e("  v_cndmask_b32 v13, v13, 0, vcc"); e("  v_and_or_b32 v13, v13, s30, v11")
e("  s_nop 1")
e(f"  v_max_u32_dpp v16, v13, v13 row_ror:8 {DPPM}"); e(f"  v_min_u32_dpp v17, v13, v13 row_ror:8 {DPPM}"); e("  s_nop 0")
for ctl in ("row_bcast:15 row_mask:0xa bank_mask:0xf", "row_bcast:31 row_mask:0xc bank_mask:0xf"):
    e(f"  v_min_u32_dpp v14, v16, v16 {ctl}"); e(f"  v_max_u32_dpp v16, v16, v16 {ctl}")
    e(f"  v_max_u32_dpp v15, v17, v17 {ctl}"); e("  v_max_u32 v17, v14, v15")
e(f"  s_lshl_b64 exec, {hex((1 << NL) - 1)}, 48", f"lanes 48..63 hold the pair: {REP} copies x {GS} bytes")
e("  buffer_store_dwordx4 v[16:19], v21, s[16:19], s31 offen" + HS)
stamp(3)
e(f"  s_cmp_lt_u32 s2, {NWT}"); e("  s_cbranch_scc1 L_XG"); e("  s_barrier", "prefetch WG: let the other waves fill the queue"); e("L_XG:")
e("  ds_write_b32 v45, v18"); e("  s_mov_b64 exec, -1")
slice_calc(); setup0(); setup1()
e(f"  s_cmp_ge_u32 s2, {NWT}"); e("  s_cbranch_scc1 L_XH")
def wd4():
    e("  s_mov_b32 exec_lo, 0x00ff00ff", "columns 512..575 of w_down"); e("  s_mov_b32 exec_hi, 0x00ff00ff")
    for mp in range(8): wd_load(mp)
    e("  s_mov_b64 exec, -1")
if WD4E: wd4()
if RP:
    e("  v_lshlrev_b32 v46, 7, v0"); e(f"  s_mul_i32 s29, s45, {32*1152}")
    for r in range(RP):
        e(f"  buffer_load_dword v{DUM}, v46, s[12:15], s29 offen")
        if r < RP-1: e("  s_add_u32 s29, s29, 8192")
e("  s_waitcnt vmcnt(0)")
if O("nored5", 0): stamp(5)
e("L_P1:")
b = 48
for j in range(4): e(f"  buffer_load_dwordx4 v[{b+4*j}:{b+3+4*j}], v44, s[16:19], s{27 if j == 0 else 47+j} offen" + HL)
e("  s_waitcnt vmcnt(0)")
e(f"  v_cmp_ne_u32 vcc, s47, v{b+2}"); e(f"  v_cmp_ne_u32 s[32:33], s47, v{b+6}")
e(f"  v_cmp_ne_u32 s[38:39], s47, v{b+10}"); e(f"  v_cmp_ne_u32 s[40:41], s47, v{b+14}")
e("  s_or_b64 vcc, vcc, s[32:33]"); e("  s_or_b64 s[38:39], s[38:39], s[40:41]"); e("  s_or_b64 vcc, vcc, s[38:39]")
e("  s_cbranch_scc0 L_PT")
e(f"  s_sleep {PSL}", "some granule is missing: back off and read again")
e("  s_sub_u32 s61, s61, 1"); e("  s_cbranch_scc0 L_P1")
e("  .p2align 3"); e("L_PT:")
def merge(a1, a2, b1, b2, o1, o2, t):
    e(f"  v_min_u32 v{t}, v{a1}, v{b1}"); e(f"  v_max_u32 v{o1}, v{a1}, v{b1}"); e(f"  v_max3_u32 v{o2}, v{t}, v{a2}, v{b2}")
merge(b, b+1, b+4, b+5, 40, 41, 12); merge(b+8, b+9, b+12, b+13, 42, 43, 13); merge(40, 41, 42, 43, 40, 41, 12)
e("  s_nop 0")
for ctl in (f"quad_perm:[1,0,3,2] {DPPM}", f"quad_perm:[2,3,0,1] {DPPM}", f"row_ror:4 {DPPM}", f"row_ror:8 {DPPM}",
            "row_bcast:15 row_mask:0xa bank_mask:0xf", "row_bcast:31 row_mask:0xc bank_mask:0xf"):
    e(f"  v_min_u32_dpp v12, v40, v40 {ctl}"); e(f"  v_max_u32_dpp v40, v40, v40 {ctl}")
    e(f"  v_max_u32_dpp v13, v41, v41 {ctl}"); e("  v_max_u32 v41, v12, v13")
e("  v_cmp_gt_u32 vcc, 8, v0"); e("  v_readlane_b32 s32, v40, 63", "global top-2 keys"); e("  v_readlane_b32 s33, v41, 63")
e(f"  s_cmp_ge_u32 s2, {NWT}"); e("  s_cbranch_scc1 L_XH2")
e("  s_and_b32 s38, s32, 0x7ff"); e("  s_and_b32 s39, s33, 0x7ff"); e("  s_sub_u32 s38, 2047, s38"); e("  s_sub_u32 s39, 2047, s39")
e("  s_mul_i32 s38, s38, 1152"); e("  s_mul_i32 s39, s39, 1152"); e(f"  s_mov_b32 m0, {XIMG}"); e("  s_sub_u32 s40, s39, 128")
e("  buffer_load_dwordx4 v8, s[4:7], s38 offen lds", "both routed rows -> LDS [2][1152 B]")
e("  s_add_u32 s41, s38, 1024"); e("  v_mov_b32 v12, s40"); e("  v_mov_b32 v13, s41"); e("  s_addk_i32 m0, 0x400")
e("  v_cndmask_b32 v12, v12, v13, vcc"); e("  v_add_u32 v12, v12, v8")
e("  buffer_load_dwordx4 v12, s[4:7], 0 offen lds")
e("  s_addk_i32 m0, 0x400"); e("  s_add_u32 s40, s39, 896"); e("  s_mov_b64 exec, 0xffff")
e("  buffer_load_dwordx4 v8, s[4:7], s40 offen lds"); e("  s_mov_b64 exec, -1")
stamp(1)
def final_setup():
    cm("last stage: lane row r = lane>>4 holds token r>>1, column 8u + 2(lane&3) + (r&1)")
    e("  v_cmp_gt_u32 vcc, 32, v0"); e("  v_mov_b32 v28, s33"); e("  v_mov_b32 v29, s32"); e("  v_and_b32 v31, 3, v0")
    e("  v_cndmask_b32 v28, v28, v29, vcc"); e("  v_and_b32 v29, 0xffff, v28"); e("  v_sub_u32 v29, 2047, v29")
    e("  v_mul_u32_u24 v29, 1152, v29"); e("  v_bfe_u32 v30, v0, 4, 1"); e("  v_lshlrev_b32 v30, 1, v30")
    e("  v_lshl_add_u32 v30, v31, 2, v30"); e("  v_add_u32 v29, v29, v30")
    e("  v_not_b32 v32, v28"); e("  v_ashrrev_i32 v32, 31, v32"); e("  v_or_b32 v32, 0x80000000, v32")
    e("  v_xor_b32 v32, v32, v28"); e("  v_and_b32 v32, 0xffff0000, v32", "the bf16 score back from the key"); e("  v_mul_f32 v32, 0xbfb8aa3b, v32")
    e("  v_exp_f32 v32, v32"); e("  v_lshrrev_b32 v33, 5, v0"); e("  v_add_f32 v32, 1.0, v32"); e("  v_rcp_f32 v32, v32")
    e("  v_mul_u32_u24 v33, 1152, v33"); e("  v_cvt_pk_bf16_f32 v32, v32, v32"); e("  v_and_b32 v32, 0xffff0000, v32", "sigmoid, rounded to bf16")
    e("  s_sub_u32 s46, s45, 72", "unit u = slice - 72"); e("  s_lshl_b32 s50, s46, 4"); e(f"  s_add_u32 s51, s50, {XIMG}"); e("  v_add3_u32 v33, v33, v30, s51")
    e("  v_lshrrev_b32 v34, 2, v0"); e("  v_mul_u32_u24 v34, 4608, v34"); e("  v_lshl_add_u32 v34, v31, 4, v34")
    e("  s_lshl_b32 s80, s46, 6"); e(f"  s_add_u32 s80, s80, {WS_SLAB}")
    for t in range(1, 9): e(f"  s_add_u32 s{80+t}, s80, {16*4608*t}")
    e("  s_mov_b32 s41, 0x0c04000c"); e("  s_mov_b32 s42, 0x04020100"); e("  v_mov_b32 v35, 0")
if EFS == 2: final_setup()
e("  s_barrier", "A: the rows are requested")
if not WD4E: wd4()
if EFS == 1: final_setup()
e(f"  s_waitcnt vmcnt({0 if WD4E else 8}) lgkmcnt(0)")
stamp(4, True)
e("  s_barrier", "B: the rows are in LDS")
if LOWP: e("  s_setprio 0")
if not LATEC: copy_stores(CW); e("  s_mov_b64 exec, -1")
if EFS == 0: final_setup()
if LOWP == 2: e("  s_setprio 3")
e("  s_branch L_JOIN")
e("L_XH:"); e("  s_barrier", "the prefetch is done"); e("  s_branch L_P1")
e("L_XH2:"); copy_stores(CH); e("  s_branch L_FIN")
cm("---------------------------------------------------------------- roles 0..3: (matrix, half of K)")
e("L_NOTX:")
e(f"  s_mov_b32 s10, {WB}")
e(f"  s_cmp_ge_u32 s2, {NWT}"); e("  s_cbranch_scc1 L_HELP")
slice_calc(); setup0()
e("  v_lshrrev_b32 v8, 2, v0"); e("  v_mul_u32_u24 v8, 9216, v8"); e("  v_lshrrev_b32 v9, 4, v0"); e("  v_and_b32 v9, 2, v9")
e("  v_xor_b32 v9, v9, v0"); e("  v_and_b32 v9, 3, v9"); e("  v_lshl_add_u32 v8, v9, 4, v8", "16 rows x 64 B, halves swapped in rows 8..15")
e("  s_and_b32 s28, s3, 1"); e(f"  s_mul_i32 s28, s28, {288*9216}"); e("  s_lshl_b32 s29, s45, 6"); e("  s_add_u32 s28, s28, s29")
e("  s_and_b32 s42, s45, 1", "the two WGs that share the lines start on different rows")
e(f"  s_mul_i32 s29, s42, {N0*QS}"); e(f"  s_add_u32 s46, s28, {2*N0*QS}"); e(f"  s_add_u32 s43, s28, {N0*QS}")
e("  s_sub_u32 s43, s43, s29"); e("  s_add_u32 s28, s28, s29")
e("  s_mul_i32 s30, s3, 18432"); e("  s_mov_b32 m0, s30")
e("  s_cmp_ge_u32 s3, 2"); e("  s_waitcnt lgkmcnt(0)")
e("  s_cselect_b32 s8, s26, s24"); e("  s_cselect_b32 s9, s27, s25")
stamp(1)
ops = [("W", i) for i in range(WE)] + [("D", i) for i in range(18)] + [("W", i) for i in range(WE, 8)]
pos = {op: n for n, op in enumerate(ops)}
nis = 0
def issue():
    global nis
    if nis >= len(ops): return False
    k, i = ops[nis]
    if k == "D":
        if i == N0: e("  s_mov_b32 s28, s43")
        if i == 2*N0: e("  s_mov_b32 s28, s46")
        e("  buffer_load_dwordx4 v8, s[8:11], s28 offen lds")
        if i < 17: e("  s_addk_i32 m0, 0x400"); e(f"  s_add_u32 s28, s28, {QS}")
    else: wd_load(i)
    nis += 1
    return True
def vwait(op): e(f"  s_waitcnt vmcnt({nis - pos[op] - 1})")
while nis < WE + min(N0, W1): issue()
setup1()
e("  v_lshlrev_b32 v9, 9, v3"); e("  v_bfe_u32 v10, v0, 2, 2"); e("  v_lshl_add_u32 v9, v10, 6, v9"); e("  v_and_b32 v10, 3, v0")
e("  v_lshl_add_u32 v9, v10, 3, v9"); e("  v_and_b32 v10, 1, v3"); e("  v_lshl_add_u32 v9, v10, 5, v9")
e("  v_add_u32 v9, s30, v9", "transposing reads, columns 0..15"); e("  v_xor_b32 v10, 32, v9", "columns 16..31")
e("  v_and_b32 v11, 1, v0"); e("  v_mul_u32_u24 v11, 1152, v11"); e("  v_lshl_add_u32 v11, v3, 4, v11")
e("  s_and_b32 s29, s3, 1"); e("  s_mul_i32 s29, s29, 576"); e(f"  s_add_u32 s29, s29, {XIMG}")
e(f"  s_mul_i32 s31, s42, {32*N0}")
e(f"  v_add_u32 v{VA2}, s29, v11", "x fragments"); e(f"  v_add_u32 v11, s31, v{VA2}"); e(f"  v_subrev_u32 v1, s31, v{VA2}")
e("  s_lshl_b32 s29, s3, 8"); e(f"  s_add_u32 s29, s29, {TEX}"); e(f"  v_lshl_add_u32 v{VXW}, v2, 3, s29")
def trreads(s):
    for hh in range(2):
        for u in range(2):
            r = BF + 8*s + 4*hh + 2*u
            e(f"  ds_read_b64_tr_b16 v[{r}:{r+1}], v{9+hh} offset:{2048*s+256*u}")
def mfmas(s):
    for hh in range(2):
        c = "0" if s == 0 else f"v[{ACC+4*hh}:{ACC+4*hh+3}]"
        r = BF + 8*s + 4*hh
        e(f"  v_mfma_f32_16x16x32_bf16 v[{ACC+4*hh}:{ACC+4*hh+3}], v[{AF+4*s}:{AF+4*s+3}], v[{r}:{r+3}], {c}")
E0 = N0 // 2
for s in range(PB):
    for h in range(2):
        need = 2*s + h
        def ok():
            if nis >= len(ops) or ops[nis][0] != "D": return False
            i = ops[nis][1]
            return i < need + 1 + W1 if i < N0 else (need >= N0 - 1 and i < need + 1 + W2)
        if ok() or h == 1: vwait(("D", need))
        while ok(): issue()
    if s == 0: stamp(2)
    trreads(s)
while ops[nis][0] == "D": issue()
stamp(5)
e("  s_barrier", "A")
while issue(): pass
e("  s_waitcnt lgkmcnt(0)"); e("  s_barrier", "B")
stamp(4, True); fs(1, True)
if CPRIO: e(f"  s_setprio {CPRIO}")
order = []
for s in range(9):
    ar = 11 if s < E0 else (1 if s < 2*E0 else VA2)
    e(f"  ds_read_b128 v[{AF+4*s}:{AF+4*s+3}], v{ar} offset:{64*s}"); order.append(f"A{s}")
late = list(range(PB, 9))
for s in range(9):
    if late and late[0] <= s + 1:
        t = late.pop(0); vwait(("D", 2*t+1)); trreads(t); order += [f"T{t}"]*4
    tag = f"A{s}" if s < PB else f"T{s}"
    need = len(order) - 1 - order[::-1].index(tag)
    e(f"  s_waitcnt lgkmcnt({min(15, len(order) - need - 1)})")
    mfmas(s)
stamp(3); fs(2)
e("  s_mov_b64 exec, 0xffff"); e("  s_nop 6")
e(f"  ds_write2_b64 v{VXW}, v[{ACC}:{ACC+1}], v[{ACC+4}:{ACC+5}] offset0:0 offset1:16")
e("  s_mov_b64 exec, -1")
cm("---------------------------------------------------------------- all 5 waves: SwiGLU, 128 columns of w_down each")
e("L_JOIN:")
e("  s_waitcnt lgkmcnt(0)"); fs(3, True); e("  s_barrier", "C: the four partial pre-activations are in LDS"); fs(4)
e("  ds_read2_b32 v[12:13], v5 offset0:0 offset1:64"); e("  ds_read2_b32 v[14:15], v5 offset0:128 offset1:192")
e(f"  ds_read_b32 v23, v{VTAG}")
e("  s_cmp_eq_u32 s3, 4"); e("  s_waitcnt lgkmcnt(0)")
e("  v_add_f32 v12, v12, v13"); e("  v_add_f32 v14, v14, v15")
e("  v_cvt_pk_bf16_f32 v12, v12, v14"); e("  v_lshlrev_b32 v13, 16, v12"); e("  v_mul_f32 v15, 0xbfb8aa3b, v13"); e("  v_exp_f32 v15, v15")
e("  v_and_b32 v14, 0xffff0000, v12"); e("  v_add_f32 v15, 1.0, v15"); e("  v_rcp_f32 v15, v15"); e("  s_nop 0")
e("  v_mul_f32 v13, v13, v15"); e("  v_cvt_pk_bf16_f32 v13, v13, v13"); e("  v_and_b32 v13, 0xffff0000, v13")
e("  v_mul_f32 v13, v13, v14"); e("  v_cvt_pk_bf16_f32 v13, v13, v13", "h = bf16(bf16(silu(a)) * u), in both halves")
fs(5)
e("  s_cbranch_scc1 L_W4"); e("  s_waitcnt vmcnt(0)"); e("L_W4:"); fs(6); e("  s_nop 0" if WD4E else "  s_waitcnt vmcnt(9)")
e(f"  v_and_b32_dpp v12, v13, v6 quad_perm:[0,0,2,2] {DPPM}"); e(f"  v_and_b32_dpp v16, v13, v6 quad_perm:[1,1,3,3] {DPPM}")
e("  s_nop 0"); e("  .p2align 3")
cm("A = h on a diagonal: D[token, column parity and pair][chunk] sums 4 rows of w_down per MFMA")
for mp in range(8):
    src = 12 if mp < 4 else 16; qq = mp & 3
    for r in range(4):
        n = (4*(r-qq)) % 16
        ctl = "quad_perm:[0,1,2,3]" if n == 0 else f"row_ror:{n}"
        e(f"  v_mov_b32_dpp v{AD+4*mp+r}, v{src} {ctl} row_mask:0xf bank_mask:{hex(1<<r)}")
    if mp >= 1:
        m = mp - 1; c = "0" if m == 0 else f"v[{ACC}:{ACC+3}]"
        e(f"  v_mfma_f32_16x16x32_bf16 v[{ACC}:{ACC+3}], v[{AD+4*m}:{AD+4*m+3}], v[{WD+4*m}:{WD+4*m+3}], {c}")
e("  s_nop 0")
e(f"  v_mfma_f32_16x16x32_bf16 v[{ACC}:{ACC+3}], v[{AD+28}:{AD+31}], v[{WD+28}:{WD+31}], v[{ACC}:{ACC+3}]")
e("  s_cselect_b32 exec_lo, 0x00ff00ff, -1"); e("  s_cselect_b32 exec_hi, 0x00ff00ff, -1"); e("  s_nop 5")
cm("4 sums (top 24 bits each) + tag in 16 bytes")
for j in range(3): e(f"  v_perm_b32 v{20+j}, v{ACC+j}, v{ACC+3}, s{56+j}")
e("  buffer_store_dwordx4 v[20:23], v7, s[16:19], s36 offen" + HS)
if STAMP:
    e("  s_cbranch_scc1 L_S6"); stamp(6); e("  s_branch L_FIN"); e("L_S6:"); stamp(2)
else: e("  s_cbranch_scc0 L_FIN")
if LATEC == 1: e("  s_mov_b64 exec, -1"); copy_stores(CW)
e("  s_cmp_ge_u32 s46, 72"); e(f"  s_cbranch_scc1 {'L_WC' if LATEC == 2 else 'L_FIN'}")
cm("---------------------------------------------------------------- 72 waves: sum over the 144 WGs, write the routed rows")
e("  s_mov_b64 exec, -1"); e("  ds_read_u16_d16_hi v35, v33"); e(f"  s_mov_b32 s61, {SPIN}")
e("  s_waitcnt vmcnt(0)")
if RSL: e(f"  s_sleep {RSL}")
def rload(t): e(f"  buffer_load_dwordx4 v[{R0+4*t}:{R0+3+4*t}], v34, s[16:19], s{80+t} offen" + HL)
def racc(t):
    r = R0 + 4*t
    e(f"  v_perm_b32 v{r+3}, v{r+1}, v{r}, s41"); e(f"  v_perm_b32 v{r+3}, v{r+2}, v{r+3}, s42")
    if t:
        e(f"  v_pk_add_f32 v[{R0}:{R0+1}], v[{R0}:{R0+1}], v[{r}:{r+1}]"); e(f"  v_pk_add_f32 v[{R0+2}:{R0+3}], v[{R0+2}:{R0+3}], v[{r+2}:{r+3}]")
def rchain(extra, lab):
    for t in range(9):
        if lab: e(f"L_R{t}:")
        e(f"  s_waitcnt vmcnt({8-t+extra})"); e(f"  v_cmp_ne_u32 vcc, s47, v{R0+4*t+3}"); e(f"  s_cbranch_vccnz L_RR{t}")
        if lab: e(f"L_RA{t}:")
        racc(t)
for t in range(9): rload(t)
if LATEC == 2:
    copy_stores(CW); e("  s_mov_b64 exec, -1")
    rchain(9, False)
    e("L_RD:")
else:
    rchain(0, True)
if not O("nored5", 0): stamp(5)
e("  s_nop 1"); e(f"  v_permlane32_swap_b32 v{R0}, v{R0+2}"); e(f"  v_permlane32_swap_b32 v{R0+1}, v{R0+3}")
e(f"  v_add_f32 v{R0}, v{R0}, v{R0+2}"); e(f"  v_add_f32 v{R0+1}, v{R0+1}, v{R0+3}"); e("  s_nop 1")
e(f"  v_permlane16_swap_b32 v{R0}, v{R0+1}"); e(f"  v_add_f32 v{R0}, v{R0}, v{R0+1}"); e("  s_nop 1")
e(f"  v_add_f32_dpp v{R0}, v{R0}, v{R0} row_ror:4 {DPPM}"); e("  s_nop 1"); e(f"  v_add_f32_dpp v{R0}, v{R0}, v{R0} row_ror:8 {DPPM}")
e(f"  v_cvt_pk_bf16_f32 v16, v{R0}, v{R0}"); e("  v_and_b32 v16, 0xffff0000, v16"); e("  v_mul_f32 v16, v16, v32")
e("  v_cvt_pk_bf16_f32 v16, v16, v16"); e("  v_and_b32 v16, 0xffff0000, v16"); e("  s_waitcnt lgkmcnt(0)")
e("  v_add_f32 v16, v16, v35"); e("  v_cvt_pk_bf16_f32 v16, v16, v16")
e("  s_mov_b32 exec_lo, 0x000f000f"); e("  s_mov_b32 exec_hi, 0x000f000f")
e("  buffer_store_short v16, v29, s[20:23], s50 offen" + CFN)
e("  s_cmp_lg_u32 s46, 0"); e("  s_cbranch_scc1 L_FIN")
e("  s_mov_b64 exec, 1", "every reader of d_ws[0] is behind the sums seen here"); e("  v_mov_b32 v16, s47"); e(f"  v_mov_b32 v17, {WS_E}")
e("  buffer_store_dword v16, v17, s[16:19], 0 offen" + CFN)
e("L_FIN:"); stamp_flush(); e("L_END:"); e("  s_endpgm")
if LATEC == 2:
    e("L_WC:"); e("  s_mov_b64 exec, -1"); e("  s_branch L_XH2")
    rchain(0, True); e("  s_branch L_RD")
for t in range(9):
    e(f"L_RR{t}:"); e("  s_sub_u32 s61, s61, 1"); e(f"  s_cbranch_scc1 L_RA{t}")
    for t2 in range(t, 9): rload(t2)
    e(f"  s_branch L_R{t}")
cm("---------------------------------------------------------------- prefetch waves: one word per 128-byte line")
e("L_HELP:")
e(f"  s_sub_u32 s28, s2, {NWT}"); e("  s_and_b32 s29, s28, 7"); e("  s_lshr_b32 s28, s28, 3")
e("  s_and_b32 s33, s3, 1"); e("  s_mul_i32 s33, s33, 288"); e(f"  s_mul_i32 s32, s28, {HR}"); e("  s_add_u32 s32, s32, s33")
e(f"  s_add_u32 s32, s32, {32*N0}"); e("  s_mul_i32 s32, s32, 9216"); e("  s_mul_i32 s34, s29, 1152"); e("  s_add_u32 s32, s32, s34")
e("  v_mul_u32_u24 v3, 0x1c72, v0"); e("  v_lshrrev_b32 v3, 16, v3", "lane / 9"); e("  v_mul_u32_u24 v4, 9, v3"); e("  v_sub_u32 v4, v0, v4")
e("  v_mul_u32_u24 v3, 9216, v3"); e("  v_lshl_add_u32 v3, v4, 7, v3")
e("  s_lshl2_add_u32 s28, s28, s3")
e(f"  s_mul_i32 s29, s29, {5184*128}")
if RP: e(f"  s_add_u32 s29, s29, {RP*8192}")
e("  v_lshlrev_b32 v2, 7, v0")
nr = -(-(288 - 32*N0) // (NH*HR))
assert nr - HG >= 1
e(f"  s_mov_b32 s30, {nr-HG}")
e("  s_cmp_ge_u32 s3, 2"); e("  s_waitcnt lgkmcnt(0)")
e("  s_cselect_b32 s8, s26, s24"); e("  s_cselect_b32 s9, s27, s25")
e(f"  s_bfm_b64 exec, {9*HR}, 0")
for r in range(HG):
    e(f"  buffer_load_dword v{DUM}, v3, s[8:11], s32 offen"); e(f"  s_add_u32 s32, s32, {NH*HR*9216}")
e("  s_barrier"); stamp(1)
e("L_HGL:"); e(f"  s_waitcnt vmcnt({HT-1})"); e(f"  buffer_load_dword v{DUM}, v3, s[8:11], s32 offen")
e(f"  s_add_u32 s32, s32, {NH*HR*9216}"); e("  s_sub_u32 s30, s30, 1"); e("  s_cmp_lg_u32 s30, 0"); e("  s_cbranch_scc1 L_HGL")
if O("gul", 0): e("  s_waitcnt vmcnt(0)")
stamp(2)
CPS = 9 - 2*RP
e("  s_bfm_b64 exec, 32, 0")
e("L_HWL:")
e(f"  s_mul_hi_u32 s30, s28, {(2**32 + CPS - 1)//CPS}"); e(f"  s_mul_i32 s31, s30, {CPS}"); e("  s_sub_u32 s31, s28, s31")
e("  s_mul_i32 s30, s30, 36864"); e("  s_lshl_b32 s31, s31, 12"); e("  s_add_u32 s30, s30, s31"); e("  s_add_u32 s30, s30, s29")
e(f"  s_waitcnt vmcnt({HT-1})"); e(f"  buffer_load_dword v{DUM}, v2, s[12:15], s30 offen")
e("  s_add_u32 s28, s28, 56"); e(f"  s_cmp_lt_u32 s28, {18*CPS}"); e("  s_cbranch_scc1 L_HWL")
e("  s_waitcnt vmcnt(0)"); e("  s_barrier"); e("  s_branch L_FIN")
e("L_CODE_END:")
cm("rare path: x + x*0 turns an infinity into a NaN")
for n in range(1, ncopy+1):
    e(f"L_FIX{n}:"); e(f"  s_mov_b32 s98, {n}"); e("  s_branch L_FIX")
e("L_FIX:"); e("  s_mov_b32 s29, 0x07060302")
for j in range(36):
    r = XR + j
    e(f"  v_lshlrev_b32 v12, 16, v{r}"); e(f"  v_and_b32 v13, 0xffff0000, v{r}"); e("  v_fma_f32 v12, v12, 0, v12"); e("  v_fma_f32 v13, v13, 0, v13")
    e(f"  v_perm_b32 v{r}, v13, v12, s29")
e("  s_cmp_eq_u32 s98, 1"); e("  s_cbranch_scc1 L_FIXR1"); e("  s_branch L_FIXR2")
e('.section .rodata,"a"'); e(".p2align 6"); e(f".amdhsa_kernel {K}")
e("  .amdhsa_next_free_vgpr 200"); e("  .amdhsa_next_free_sgpr 102"); e("  .amdhsa_accum_offset 200")
e("  .amdhsa_group_segment_fixed_size 0"); e("  .amdhsa_kernarg_size 64"); e("  .amdhsa_user_sgpr_count 2")
e("  .amdhsa_user_sgpr_kernarg_segment_ptr 1"); e("  .amdhsa_system_sgpr_workgroup_id_x 1"); e("  .amdhsa_float_denorm_mode_32 3")
e(".end_amdhsa_kernel")
open(sys.argv[1], "w").write("\n".join(out) + "\n")
```

```python
import sys
NAME = "standalone__moe_arch_mod__prompt"
S, D, F = 2048, 576, 4608
XB = S*D*2
WB = D*F*2
opts = dict(a.split("=") for a in sys.argv[2:] if "=" in a)
def O(k, d): return int(opts.get(k, d))
STAMP = O("stamp", 0); AMP = opts.get("amp"); FINE = O("fine", 0)
if AMP: STAMP = 1
GS = O("gs", 64); REP = O("rep", 4); RS = 256*GS
LG = {16: 0, 32: 1, 64: 2}[GS]; LR = {1: 0, 2: 1, 4: 2, 8: 3}[REP]; NL = REP*GS//16
assert NL <= 16
WS_E = 0; WS_GRAN = 4096; WS_SLAB = 4096 + REP*RS; WS_SIZE = 1 << 20; WS_STAMP = 1 << 21
N0 = O("n0", 2); W1 = O("w1", 4); W2 = O("w2", 4); WE = O("we", 2); PB = O("pb", 7); RP = O("rp", 0)
HR = O("hr", 4); HT = O("ht", 2); HG = O("hg", 1)
PSL = O("psl", 2); SPIN = O("spin", 200000); RSL = O("rsl", 0)
CFN = {0: "", 1: " sc1", 2: " sc0 sc1"}[O("cf", 0)]; WNT = " nt" if O("wnt", 0) else ""; PNT = " nt" if O("pnt", 0) else ""; GNT = " nt" if O("gnt", 0) else ""; XNT = " nt" if O("xnt", 0) else ""; LATEC = O("latec", 0); FL = {0: "", 1: " sc1", 2: " sc0 sc1", 3: " sc1 nt", 4: " nt"}; HS = FL[O("hs", 1)]; HL = FL[O("hl", 1)]; CW = FL[O("cw", 0)]; CH = FL[O("ch", 0)]; WD4E = O("wd4e", 1); EFS = O("efs", 1); LOWP = O("lowp", 1); CPRIO = O("cprio", 0)
NWT = 144; NH = 14
out = []
def e(s="", c=None): out.append(s if c is None else f"{s:<72}; {c}")
def cm(s): out.append("; " + s)
def stamp(i, wait=False):
    if STAMP and (i in (0, 7) or not FINE):
        e(f"  s_memrealtime s[{64+2*i}:{65+2*i}]")
        if wait: e("  s_waitcnt lgkmcnt(0)")
def fs(i, wait=False):
    if FINE:
        e(f"  s_memtime s[{64+2*i}:{65+2*i}]")
        if wait: e("  s_waitcnt lgkmcnt(0)")
def stamp_flush():
    if AMP:
        A, B, KK, WV, WG = map(int, AMP.split(","))
        stamp(7, True)
        e(f"  s_cmp_lg_u32 s2, {WG}"); e("  s_cbranch_scc1 L_AMPX")
        e(f"  s_cmp_lg_u32 s3, {WV}"); e("  s_cbranch_scc1 L_AMPX")
        e(f"  s_sub_u32 s60, s{64+2*B}, s{64+2*A}")
        e(f"  s_mul_i32 s60, s60, {KK}")
        e("L_AMP:"); e("  s_memrealtime s[62:63]"); e("  s_waitcnt lgkmcnt(0)"); e("  s_sub_u32 s62, s62, s78")
        e("  s_cmp_lt_u32 s62, s60"); e("  s_cbranch_scc1 L_AMP"); e("L_AMPX:")
    elif STAMP:
        if FINE: e("  s_memtime s[78:79]"); e("  s_waitcnt lgkmcnt(0)")
        else: stamp(7, True)
        e("  s_mov_b64 exec, 1")
        e("  s_lshl_b32 s60, s2, 3"); e("  s_add_u32 s60, s60, s3"); e("  s_lshl_b32 s60, s60, 6")
        e(f"  s_add_u32 s60, s60, {WS_STAMP}"); e("  s_mov_b32 s18, 0x1000000"); e("  v_mov_b32 v1, 0")
        for j in range(4):
            for k in range(4): e(f"  v_mov_b32 v{4+k}, s{64+4*j+k}")
            e(f"  buffer_store_dwordx4 v[4:7], v1, s[16:19], s60 offen offset:{16*j}"); e("  s_nop 1")

hdr = open('cdna_kernels/%s.s.ref' % NAME).read().split('\n')
for l in hdr:
    if l.startswith('; @launch'): break
    e(l)
XIMG = 73728; TAGL = XIMG + 2304; TEX = XIMG + 3072; WRIMG = TEX + 1024; LDS = 83968
e(f"; @launch grid=(256,1,1) block=(320,1,1) lds={LDS}")
DOC = """
One launch, 256 workgroups of 5 waves, one per CU (LDS and VGPR use allow one).
 role 4 (wave 0), every WG : 8 rows of x -> router scores -> local top-2 -> tagged granule in d_ws,
                             later the copy of its rows that were not routed.
 WGs 0..143, roles 0..3    : 32 columns of w_gate / w_up (LDS-DMA, transposing LDS reads, MFMA),
                             SwiGLU, the matching 32 rows of w_down (MFMA), tagged partial sums in d_ws.
 WGs 0..143, role 4        : gathers the 256 granules, global top-2, brings both rows into LDS;
                             72 of them add up the 144 partial sums of 8 columns and write the routed rows.
 WGs 144..255, roles 0..3  : pull weight lines into the L2 that the weight WGs with the same id mod 8
                             are expected to share (speed only, nothing depends on it).
 Hand-offs between WGs are 16-byte pieces that carry a tag, written and read with sc1.
 tag = d_ws[0] + 0x01010101; d_ws[0] is set to the tag at the end, so it differs from launch to launch.
"""
for l in DOC.strip("\n").split("\n"): cm(l)
e('.amdgcn_target "amdgcn-amd-amdhsa--gfx950"'); e(".text")
K = NAME + "_kernel"
e(f".globl {K}"); e(".p2align 8"); e(f".type {K},@function"); e(f"{K}:")
DPPM = "row_mask:0xf bank_mask:0xf"
AF = 12; BF = 48; ACC = 120; WD = 128; AD = 160; XR = 84; WR = 48; R0 = 48
VXW = 192; VA2 = 193; VTAG = 194; DUMC = 196; DUM = 197
QS = 16*9216

def slice_calc():
    e("  s_and_b32 s45, s2, 7"); e("  s_mul_i32 s45, s45, 18"); e("  s_lshr_b32 s44, s2, 3")
    e("  s_add_u32 s45, s45, s44", "slice: neighbours are 8 ids apart")
def setup0():
    e("  v_and_b32 v2, 15, v0"); e("  v_lshrrev_b32 v3, 4, v0")
    e("  v_mul_u32_u24 v4, 9216, v3"); e("  v_lshl_add_u32 v4, v2, 4, v4", "w_down: row 8g, 16-byte chunk c")
    e(f"  s_mul_i32 s34, s45, {32*1152}"); e("  s_lshl_b32 s35, s3, 8"); e("  s_add_u32 s34, s34, s35"); e("  s_add_u32 s35, s34, 4608")
def setup1():
    e("  v_lshrrev_b32 v5, 2, v2"); e("  v_lshl_add_u32 v5, v3, 3, v5"); e("  v_and_b32 v6, 1, v0"); e("  v_lshl_add_u32 v5, v6, 2, v5")
    e("  v_lshlrev_b32 v5, 3, v5"); e("  v_and_b32 v6, 2, v0"); e("  v_lshl_add_u32 v5, v6, 1, v5")
    e(f"  v_add_u32 v5, {TEX}, v5", "exchange table: this lane's (f, token)")
    e("  v_and_b32 v6, 1, v0"); e("  v_cmp_eq_u32 vcc, 1, v6"); e("  v_mov_b32 v6, 0xffff"); e("  v_mov_b32 v7, 0xffff0000")
    e("  v_cndmask_b32 v6, v6, v7, vcc", "half-word mask by lane parity")
    e("  v_lshlrev_b32 v7, 6, v2"); e("  v_lshl_add_u32 v7, v3, 4, v7", "partial-sum piece of this lane")
    e("  s_mul_i32 s36, s45, 4608"); e("  s_lshl_b32 s37, s3, 10"); e("  s_add_u32 s36, s36, s37"); e(f"  s_add_u32 s36, s36, {WS_SLAB}")
    e(f"  v_mov_b32 v{VTAG}, {TAGL}")
    e("  s_mov_b32 s56, 0x07060501"); e("  s_mov_b32 s57, 0x07060502"); e("  s_mov_b32 s58, 0x07060503")
    for j in range(0, 32, 2): e(f"  v_mov_b64 v[{AD+j}:{AD+j+1}], 0")
def wd_load(mp): e(f"  buffer_load_dwordx4 v[{WD+4*mp}:{WD+4*mp+3}], v4, s[12:15], s{34+(mp>>2)} offen offset:{1152*(mp&3)}" + WNT)
ncopy = 0
def copy_stores(fl=""):
    global ncopy
    ncopy += 1
    e("  s_and_b32 s38, s32, 0xffff"); e("  s_and_b32 s39, s33, 0xffff")
    e("  v_cmp_ne_u32 s[52:53], s38, v11"); e("  v_cmp_ne_u32 s[54:55], s39, v11")
    e("  s_and_b64 exec, s[52:53], s[54:55]", "rows that are not routed")
    e("  s_cmp_lg_u64 s[96:97], 0"); e(f"  s_cbranch_scc1 L_FIX{ncopy}"); e(f"L_FIXR{ncopy}:")
    for i in range(9): e(f"  buffer_store_dwordx4 v[{XR+4*i}:{XR+4*i+3}], v10, s[20:23], s28 offen offset:{128*i}{fl}")

if STAMP:
    for i in range(2, 16): e(f"  s_mov_b32 s{64+i}, 0")
stamp(0)
cm("SRDs: x s[4:7], w_r or w_gate/w_up s[8:11], w_down s[12:15], d_ws s[16:19], d_out s[20:23]")
e("  s_load_dwordx2 s[4:5], s[0:1], 0"); e("  s_load_dwordx2 s[8:9], s[0:1], 8"); e("  s_load_dwordx2 s[16:17], s[0:1], 56")
e("  s_load_dwordx4 s[24:27], s[0:1], 16"); e("  s_load_dwordx2 s[12:13], s[0:1], 32"); e("  s_load_dwordx2 s[20:21], s[0:1], 40")
e("  s_getpc_b64 s[28:29]", "read one word of every line of the code: it lands in L2"); e("L_PC:")
e("  v_lshlrev_b32 v2, 7, v0"); e("  v_cmp_gt_u32 vcc, (L_CODE_END-L_PC+127)/128, v0")
e("  s_and_saveexec_b64 s[30:31], vcc"); e("  s_cbranch_execz L_NOPF")
e(f"  global_load_dword v{DUMC}, v2, s[28:29]"); e("L_NOPF:"); e("  s_mov_b64 exec, -1")
e("  v_lshrrev_b32 v1, 6, v0"); e("  v_and_b32 v0, 63, v0"); e("  v_readfirstlane_b32 s3, v1")
e("  s_cmp_ge_u32 s2, 256"); e("  s_cbranch_scc1 L_END")
e("  s_sub_u32 s3, s3, 1", "role: wave 0 -> 4, wave k -> k-1"); e("  s_cselect_b32 s3, 4, s3")
for r, v in ((6, XB), (7, "0x20000"), (11, "0x20000"), (14, WB), (15, "0x20000"), (18, WS_SIZE), (19, "0x20000"), (22, XB), (23, "0x20000")):
    e(f"  s_mov_b32 s{r}, {v}")
e("  s_cmp_lg_u32 s3, 4"); e("  s_cbranch_scc1 L_NOTX")
cm("---------------------------------------------------------------- role 4: router scores of 8 rows")
e("  s_setprio 3")
e(f"  s_mov_b32 s10, {D*2}"); e(f"  s_mov_b32 m0, {WRIMG}")
e("  v_lshlrev_b32 v8, 4, v0"); e("  v_and_b32 v1, 0x70, v8"); e("  v_lshrrev_b32 v9, 3, v0")
e("  v_mul_u32_u24 v10, 1152, v9"); e("  v_add_u32 v10, v10, v1", "8 lanes per row"); e("  s_mul_i32 s28, s2, 9216")
e("  s_waitcnt lgkmcnt(0)")
e(f"  s_load_dword s47, s[16:17], {WS_E}")
e("  buffer_load_dwordx4 v8, s[8:11], 0 offen lds", "w_r -> LDS"); e("  s_mov_b64 exec, 0xff")
e("  buffer_load_dwordx4 v8, s[8:11], 0 offen offset:1024 lds"); e("  s_mov_b64 exec, -1")
for i in range(9): e(f"  buffer_load_dwordx4 v[{XR+4*i}:{XR+4*i+3}], v10, s[4:7], s28 offen offset:{128*i}" + XNT)
e(f"  v_add_u32 v1, {WRIMG}, v1")
e("  s_lshl_b32 s29, s2, 3"); e("  s_sub_u32 s29, 2047, s29"); e("  v_sub_u32 v11, s29, v9", "2047 - row"); e("  s_mov_b32 s30, 0xffff0000")
e(f"  s_and_b32 s29, s2, {REP-1}"); e(f"  s_mul_i32 s27, s29, {RS}"); e(f"  s_add_u32 s27, s27, {WS_GRAN}", "the copy of the granules this WG reads")
for j in range(1, 4): e(f"  s_add_u32 s{47+j}, s27, {64*GS*j}")
e("  s_and_b32 s29, s2, 7"); e("  s_lshl_b32 s29, s29, 5"); e("  s_lshr_b32 s31, s2, 3"); e("  s_add_u32 s29, s29, s31")
e(f"  s_mul_i32 s29, s29, {GS}"); e(f"  s_add_u32 s31, s29, {WS_GRAN}", "own granule")
e(f"  v_mul_u32_u24 v44, {GS}, v0")
for j in range(4): e(f"  v_mov_b32 v{12+j}, 0")
e("  v_bfrev_b32 v22, 1")
e(f"  v_bfe_u32 v21, v0, {LG}, {LR}"); e(f"  v_mul_u32_u24 v21, {RS}, v21"); e(f"  v_and_b32 v19, {GS//16-1}, v0"); e("  v_lshl_add_u32 v21, v19, 4, v21")
e(f"  s_mov_b32 s61, {SPIN}"); e(f"  v_mov_b32 v45, {TAGL}")
e("  s_waitcnt vmcnt(9) lgkmcnt(0)")
for i in range(9): e(f"  ds_read_b128 v[{WR+4*i}:{WR+4*i+3}], v1 offset:{128*i}")
e("  s_add_u32 s47, s47, 0x01010101", "tag of this launch"); e("  v_mov_b32 v18, s47")
for i in range(9):
    e(f"  s_waitcnt vmcnt({8-i}) lgkmcnt({8-i})")
    for j in range(4): e(f"  v_dot2c_f32_bf16 v{12+j}, v{XR+4*i+j}, v{WR+4*i+j}")
e("  s_nop 1")
e("  v_add_f32 v12, v12, v13"); e("  v_add_f32 v14, v14, v15"); e("  v_add_f32 v12, v12, v14")
e("  s_movk_i32 s29, 0x207"); e("  v_cmp_class_f32 s[96:97], v12, s29", "lanes that hold an inf or a NaN")
e(f"  v_add_f32_dpp v12, v12, v12 quad_perm:[1,0,3,2] {DPPM}"); e("  s_nop 1")
e(f"  v_add_f32_dpp v12, v12, v12 quad_perm:[2,3,0,1] {DPPM}"); e("  s_nop 1")
e(f"  v_add_f32_dpp v12, v12, v12 row_half_mirror {DPPM}")
cm("key = order-preserving bf16 score << 16 | 2047 - row; NaN sorts last")
e("  v_cvt_pk_bf16_f32 v13, v12, v12"); e("  v_cmp_u_f32 vcc, v12, v12"); e("  v_ashrrev_i32 v14, 31, v13")
e("  v_bitop3_b32 v13, v13, v14, v22 bitop3:0x1e"); e("  v_cndmask_b32 v13, v13, 0, vcc"); e("  v_and_or_b32 v13, v13, s30, v11")
e("  s_nop 1")
e(f"  v_max_u32_dpp v16, v13, v13 row_ror:8 {DPPM}"); e(f"  v_min_u32_dpp v17, v13, v13 row_ror:8 {DPPM}"); e("  s_nop 0")
for ctl in ("row_bcast:15 row_mask:0xa bank_mask:0xf", "row_bcast:31 row_mask:0xc bank_mask:0xf"):
    e(f"  v_min_u32_dpp v14, v16, v16 {ctl}"); e(f"  v_max_u32_dpp v16, v16, v16 {ctl}")
    e(f"  v_max_u32_dpp v15, v17, v17 {ctl}"); e("  v_max_u32 v17, v14, v15")
e(f"  s_lshl_b64 exec, {hex((1 << NL) - 1)}, 48", f"lanes 48..63 hold the pair: {REP} copies x {GS} bytes")
e("  buffer_store_dwordx4 v[16:19], v21, s[16:19], s31 offen" + HS)
stamp(3)
e(f"  s_cmp_lt_u32 s2, {NWT}"); e("  s_cbranch_scc1 L_XG"); e("  s_barrier", "prefetch WG: let the other waves fill the queue"); e("L_XG:")
e("  ds_write_b32 v45, v18"); e("  s_mov_b64 exec, -1")
slice_calc(); setup0(); setup1()
e(f"  s_cmp_ge_u32 s2, {NWT}"); e("  s_cbranch_scc1 L_XH")
def wd4():
    e("  s_mov_b32 exec_lo, 0x00ff00ff", "columns 512..575 of w_down"); e("  s_mov_b32 exec_hi, 0x00ff00ff")
    for mp in range(8): wd_load(mp)
    e("  s_mov_b64 exec, -1")
if WD4E: wd4()
if RP:
    e("  v_lshlrev_b32 v46, 7, v0"); e(f"  s_mul_i32 s29, s45, {32*1152}")
    for r in range(RP):
        e(f"  buffer_load_dword v{DUM}, v46, s[12:15], s29 offen" + PNT)
        if r < RP-1: e("  s_add_u32 s29, s29, 8192")
e("  s_waitcnt vmcnt(0)")
if O("nored5", 0): stamp(5)
e("L_P1:")
b = 48
for j in range(4): e(f"  buffer_load_dwordx4 v[{b+4*j}:{b+3+4*j}], v44, s[16:19], s{27 if j == 0 else 47+j} offen" + HL)
e("  s_waitcnt vmcnt(0)")
e(f"  v_cmp_ne_u32 vcc, s47, v{b+2}"); e(f"  v_cmp_ne_u32 s[32:33], s47, v{b+6}")
e(f"  v_cmp_ne_u32 s[38:39], s47, v{b+10}"); e(f"  v_cmp_ne_u32 s[40:41], s47, v{b+14}")
e("  s_or_b64 vcc, vcc, s[32:33]"); e("  s_or_b64 s[38:39], s[38:39], s[40:41]"); e("  s_or_b64 vcc, vcc, s[38:39]")
e("  s_cbranch_scc0 L_PT")
e(f"  s_sleep {PSL}", "some granule is missing: back off and read again")
e("  s_sub_u32 s61, s61, 1"); e("  s_cbranch_scc0 L_P1")
e("  .p2align 3"); e("L_PT:")
def merge(a1, a2, b1, b2, o1, o2, t):
    e(f"  v_min_u32 v{t}, v{a1}, v{b1}"); e(f"  v_max_u32 v{o1}, v{a1}, v{b1}"); e(f"  v_max3_u32 v{o2}, v{t}, v{a2}, v{b2}")
merge(b, b+1, b+4, b+5, 40, 41, 12); merge(b+8, b+9, b+12, b+13, 42, 43, 13); merge(40, 41, 42, 43, 40, 41, 12)
e("  s_nop 0")
for ctl in (f"quad_perm:[1,0,3,2] {DPPM}", f"quad_perm:[2,3,0,1] {DPPM}", f"row_ror:4 {DPPM}", f"row_ror:8 {DPPM}",
            "row_bcast:15 row_mask:0xa bank_mask:0xf", "row_bcast:31 row_mask:0xc bank_mask:0xf"):
    e(f"  v_min_u32_dpp v12, v40, v40 {ctl}"); e(f"  v_max_u32_dpp v40, v40, v40 {ctl}")
    e(f"  v_max_u32_dpp v13, v41, v41 {ctl}"); e("  v_max_u32 v41, v12, v13")
e("  v_cmp_gt_u32 vcc, 8, v0"); e("  v_readlane_b32 s32, v40, 63", "global top-2 keys"); e("  v_readlane_b32 s33, v41, 63")
e(f"  s_cmp_ge_u32 s2, {NWT}"); e("  s_cbranch_scc1 L_XH2")
e("  s_and_b32 s38, s32, 0x7ff"); e("  s_and_b32 s39, s33, 0x7ff"); e("  s_sub_u32 s38, 2047, s38"); e("  s_sub_u32 s39, 2047, s39")
e("  s_mul_i32 s38, s38, 1152"); e("  s_mul_i32 s39, s39, 1152"); e(f"  s_mov_b32 m0, {XIMG}"); e("  s_sub_u32 s40, s39, 128")
e("  buffer_load_dwordx4 v8, s[4:7], s38 offen lds", "both routed rows -> LDS [2][1152 B]")
e("  s_add_u32 s41, s38, 1024"); e("  v_mov_b32 v12, s40"); e("  v_mov_b32 v13, s41"); e("  s_addk_i32 m0, 0x400")
e("  v_cndmask_b32 v12, v12, v13, vcc"); e("  v_add_u32 v12, v12, v8")
e("  buffer_load_dwordx4 v12, s[4:7], 0 offen lds")
e("  s_addk_i32 m0, 0x400"); e("  s_add_u32 s40, s39, 896"); e("  s_mov_b64 exec, 0xffff")
e("  buffer_load_dwordx4 v8, s[4:7], s40 offen lds"); e("  s_mov_b64 exec, -1")
stamp(1)
def final_setup():
    cm("last stage: lane row r = lane>>4 holds token r>>1, column 8u + 2(lane&3) + (r&1)")
    e("  v_cmp_gt_u32 vcc, 32, v0"); e("  v_mov_b32 v28, s33"); e("  v_mov_b32 v29, s32"); e("  v_and_b32 v31, 3, v0")
    e("  v_cndmask_b32 v28, v28, v29, vcc"); e("  v_and_b32 v29, 0xffff, v28"); e("  v_sub_u32 v29, 2047, v29")
    e("  v_mul_u32_u24 v29, 1152, v29"); e("  v_bfe_u32 v30, v0, 4, 1"); e("  v_lshlrev_b32 v30, 1, v30")
    e("  v_lshl_add_u32 v30, v31, 2, v30"); e("  v_add_u32 v29, v29, v30")
    e("  v_not_b32 v32, v28"); e("  v_ashrrev_i32 v32, 31, v32"); e("  v_or_b32 v32, 0x80000000, v32")
    e("  v_xor_b32 v32, v32, v28"); e("  v_and_b32 v32, 0xffff0000, v32", "the bf16 score back from the key"); e("  v_mul_f32 v32, 0xbfb8aa3b, v32")
    e("  v_exp_f32 v32, v32"); e("  v_lshrrev_b32 v33, 5, v0"); e("  v_add_f32 v32, 1.0, v32"); e("  v_rcp_f32 v32, v32")
    e("  v_mul_u32_u24 v33, 1152, v33"); e("  v_cvt_pk_bf16_f32 v32, v32, v32"); e("  v_and_b32 v32, 0xffff0000, v32", "sigmoid, rounded to bf16")
    e("  s_sub_u32 s46, s45, 72", "unit u = slice - 72"); e("  s_lshl_b32 s50, s46, 4"); e(f"  s_add_u32 s51, s50, {XIMG}"); e("  v_add3_u32 v33, v33, v30, s51")
    e("  v_lshrrev_b32 v34, 2, v0"); e("  v_mul_u32_u24 v34, 4608, v34"); e("  v_lshl_add_u32 v34, v31, 4, v34")
    e("  s_lshl_b32 s80, s46, 6"); e(f"  s_add_u32 s80, s80, {WS_SLAB}")
    for t in range(1, 9): e(f"  s_add_u32 s{80+t}, s80, {16*4608*t}")
    e("  s_mov_b32 s41, 0x0c04000c"); e("  s_mov_b32 s42, 0x04020100"); e("  v_mov_b32 v35, 0")
if EFS == 2: final_setup()
e("  s_barrier", "A: the rows are requested")
if not WD4E: wd4()
if EFS == 1: final_setup()
e(f"  s_waitcnt vmcnt({0 if WD4E else 8}) lgkmcnt(0)")
stamp(4, True)
e("  s_barrier", "B: the rows are in LDS")
if LOWP: e("  s_setprio 0")
if not LATEC: copy_stores(CW); e("  s_mov_b64 exec, -1")
if EFS == 0: final_setup()
if LOWP == 2: e("  s_setprio 3")
e("  s_branch L_JOIN")
e("L_XH:"); e("  s_barrier", "the prefetch is done"); e("  s_branch L_P1")
e("L_XH2:"); copy_stores(CH); e("  s_branch L_FIN")
cm("---------------------------------------------------------------- roles 0..3: (matrix, half of K)")
e("L_NOTX:")
e(f"  s_mov_b32 s10, {WB}")
e(f"  s_cmp_ge_u32 s2, {NWT}"); e("  s_cbranch_scc1 L_HELP")
slice_calc(); setup0()
e("  v_lshrrev_b32 v8, 2, v0"); e("  v_mul_u32_u24 v8, 9216, v8"); e("  v_lshrrev_b32 v9, 4, v0"); e("  v_and_b32 v9, 2, v9")
e("  v_xor_b32 v9, v9, v0"); e("  v_and_b32 v9, 3, v9"); e("  v_lshl_add_u32 v8, v9, 4, v8", "16 rows x 64 B, halves swapped in rows 8..15")
e("  s_and_b32 s28, s3, 1"); e(f"  s_mul_i32 s28, s28, {288*9216}"); e("  s_lshl_b32 s29, s45, 6"); e("  s_add_u32 s28, s28, s29")
e("  s_and_b32 s42, s45, 1", "the two WGs that share the lines start on different rows")
e(f"  s_mul_i32 s29, s42, {N0*QS}"); e(f"  s_add_u32 s46, s28, {2*N0*QS}"); e(f"  s_add_u32 s43, s28, {N0*QS}")
e("  s_sub_u32 s43, s43, s29"); e("  s_add_u32 s28, s28, s29")
e("  s_mul_i32 s30, s3, 18432"); e("  s_mov_b32 m0, s30")
e("  s_cmp_ge_u32 s3, 2"); e("  s_waitcnt lgkmcnt(0)")
e("  s_cselect_b32 s8, s26, s24"); e("  s_cselect_b32 s9, s27, s25")
stamp(1)
ops = [("W", i) for i in range(WE)] + [("D", i) for i in range(18)] + [("W", i) for i in range(WE, 8)]
pos = {op: n for n, op in enumerate(ops)}
nis = 0
def issue():
    global nis
    if nis >= len(ops): return False
    k, i = ops[nis]
    if k == "D":
        if i == N0: e("  s_mov_b32 s28, s43")
        if i == 2*N0: e("  s_mov_b32 s28, s46")
        e("  buffer_load_dwordx4 v8, s[8:11], s28 offen lds")
        if i < 17: e("  s_addk_i32 m0, 0x400"); e(f"  s_add_u32 s28, s28, {QS}")
    else: wd_load(i)
    nis += 1
    return True
def vwait(op): e(f"  s_waitcnt vmcnt({nis - pos[op] - 1})")
while nis < WE + min(N0, W1): issue()
setup1()
e("  v_lshlrev_b32 v9, 9, v3"); e("  v_bfe_u32 v10, v0, 2, 2"); e("  v_lshl_add_u32 v9, v10, 6, v9"); e("  v_and_b32 v10, 3, v0")
e("  v_lshl_add_u32 v9, v10, 3, v9"); e("  v_and_b32 v10, 1, v3"); e("  v_lshl_add_u32 v9, v10, 5, v9")
e("  v_add_u32 v9, s30, v9", "transposing reads, columns 0..15"); e("  v_xor_b32 v10, 32, v9", "columns 16..31")
e("  v_and_b32 v11, 1, v0"); e("  v_mul_u32_u24 v11, 1152, v11"); e("  v_lshl_add_u32 v11, v3, 4, v11")
e("  s_and_b32 s29, s3, 1"); e("  s_mul_i32 s29, s29, 576"); e(f"  s_add_u32 s29, s29, {XIMG}")
e(f"  s_mul_i32 s31, s42, {32*N0}")
e(f"  v_add_u32 v{VA2}, s29, v11", "x fragments"); e(f"  v_add_u32 v11, s31, v{VA2}"); e(f"  v_subrev_u32 v1, s31, v{VA2}")
e("  s_lshl_b32 s29, s3, 8"); e(f"  s_add_u32 s29, s29, {TEX}"); e(f"  v_lshl_add_u32 v{VXW}, v2, 3, s29")
def trreads(s):
    for hh in range(2):
        for u in range(2):
            r = BF + 8*s + 4*hh + 2*u
            e(f"  ds_read_b64_tr_b16 v[{r}:{r+1}], v{9+hh} offset:{2048*s+256*u}")
def mfmas(s):
    for hh in range(2):
        c = "0" if s == 0 else f"v[{ACC+4*hh}:{ACC+4*hh+3}]"
        r = BF + 8*s + 4*hh
        e(f"  v_mfma_f32_16x16x32_bf16 v[{ACC+4*hh}:{ACC+4*hh+3}], v[{AF+4*s}:{AF+4*s+3}], v[{r}:{r+3}], {c}")
E0 = N0 // 2
for s in range(PB):
    for h in range(2):
        need = 2*s + h
        def ok():
            if nis >= len(ops) or ops[nis][0] != "D": return False
            i = ops[nis][1]
            return i < need + 1 + W1 if i < N0 else (need >= N0 - 1 and i < need + 1 + W2)
        if ok() or h == 1: vwait(("D", need))
        while ok(): issue()
    if s == 0: stamp(2)
    trreads(s)
while ops[nis][0] == "D": issue()
stamp(5)
e("  s_barrier", "A")
while issue(): pass
e("  s_waitcnt lgkmcnt(0)"); e("  s_barrier", "B")
stamp(4, True); fs(1, True)
if CPRIO: e(f"  s_setprio {CPRIO}")
order = []
for s in range(9):
    ar = 11 if s < E0 else (1 if s < 2*E0 else VA2)
    e(f"  ds_read_b128 v[{AF+4*s}:{AF+4*s+3}], v{ar} offset:{64*s}"); order.append(f"A{s}")
late = list(range(PB, 9))
for s in range(9):
    if late and late[0] <= s + 1:
        t = late.pop(0); vwait(("D", 2*t+1)); trreads(t); order += [f"T{t}"]*4
    tag = f"A{s}" if s < PB else f"T{s}"
    need = len(order) - 1 - order[::-1].index(tag)
    e(f"  s_waitcnt lgkmcnt({min(15, len(order) - need - 1)})")
    mfmas(s)
stamp(3); fs(2)
e("  s_mov_b64 exec, 0xffff"); e("  s_nop 6")
e(f"  ds_write2_b64 v{VXW}, v[{ACC}:{ACC+1}], v[{ACC+4}:{ACC+5}] offset0:0 offset1:16")
e("  s_mov_b64 exec, -1")
cm("---------------------------------------------------------------- all 5 waves: SwiGLU, 128 columns of w_down each")
e("L_JOIN:")
e("  s_waitcnt lgkmcnt(0)"); fs(3, True); e("  s_barrier", "C: the four partial pre-activations are in LDS"); fs(4)
e("  ds_read2_b32 v[12:13], v5 offset0:0 offset1:64"); e("  ds_read2_b32 v[14:15], v5 offset0:128 offset1:192")
e(f"  ds_read_b32 v23, v{VTAG}")
e("  s_cmp_eq_u32 s3, 4"); e("  s_waitcnt lgkmcnt(0)")
e("  v_add_f32 v12, v12, v13"); e("  v_add_f32 v14, v14, v15")
e("  v_cvt_pk_bf16_f32 v12, v12, v14"); e("  v_lshlrev_b32 v13, 16, v12"); e("  v_mul_f32 v15, 0xbfb8aa3b, v13"); e("  v_exp_f32 v15, v15")
e("  v_and_b32 v14, 0xffff0000, v12"); e("  v_add_f32 v15, 1.0, v15"); e("  v_rcp_f32 v15, v15"); e("  s_nop 0")
e("  v_mul_f32 v13, v13, v15"); e("  v_cvt_pk_bf16_f32 v13, v13, v13"); e("  v_and_b32 v13, 0xffff0000, v13")
e("  v_mul_f32 v13, v13, v14"); e("  v_cvt_pk_bf16_f32 v13, v13, v13", "h = bf16(bf16(silu(a)) * u), in both halves")
fs(5)
e("  s_cbranch_scc1 L_W4"); e("  s_waitcnt vmcnt(0)"); e("L_W4:"); fs(6); e("  s_nop 0" if WD4E else "  s_waitcnt vmcnt(9)")
e(f"  v_and_b32_dpp v12, v13, v6 quad_perm:[0,0,2,2] {DPPM}"); e(f"  v_and_b32_dpp v16, v13, v6 quad_perm:[1,1,3,3] {DPPM}")
e("  s_nop 0"); e("  .p2align 3")
cm("A = h on a diagonal: D[token, column parity and pair][chunk] sums 4 rows of w_down per MFMA")
for mp in range(8):
    src = 12 if mp < 4 else 16; qq = mp & 3
    for r in range(4):
        n = (4*(r-qq)) % 16
        ctl = "quad_perm:[0,1,2,3]" if n == 0 else f"row_ror:{n}"
        e(f"  v_mov_b32_dpp v{AD+4*mp+r}, v{src} {ctl} row_mask:0xf bank_mask:{hex(1<<r)}")
    if mp >= 1:
        m = mp - 1; c = "0" if m == 0 else f"v[{ACC}:{ACC+3}]"
        e(f"  v_mfma_f32_16x16x32_bf16 v[{ACC}:{ACC+3}], v[{AD+4*m}:{AD+4*m+3}], v[{WD+4*m}:{WD+4*m+3}], {c}")
e("  s_nop 0")
e(f"  v_mfma_f32_16x16x32_bf16 v[{ACC}:{ACC+3}], v[{AD+28}:{AD+31}], v[{WD+28}:{WD+31}], v[{ACC}:{ACC+3}]")
e("  s_cselect_b32 exec_lo, 0x00ff00ff, -1"); e("  s_cselect_b32 exec_hi, 0x00ff00ff, -1"); e("  s_nop 5")
cm("4 sums (top 24 bits each) + tag in 16 bytes")
for j in range(3): e(f"  v_perm_b32 v{20+j}, v{ACC+j}, v{ACC+3}, s{56+j}")
e("  buffer_store_dwordx4 v[20:23], v7, s[16:19], s36 offen" + HS)
if STAMP:
    e("  s_cbranch_scc1 L_S6"); stamp(6); e("  s_branch L_FIN"); e("L_S6:"); stamp(2)
else: e("  s_cbranch_scc0 L_FIN")
if LATEC == 1: e("  s_mov_b64 exec, -1"); copy_stores(CW)
e("  s_cmp_ge_u32 s46, 72"); e(f"  s_cbranch_scc1 {'L_WC' if LATEC == 2 else 'L_FIN'}")
cm("---------------------------------------------------------------- 72 waves: sum over the 144 WGs, write the routed rows")
e("  s_mov_b64 exec, -1"); e("  ds_read_u16_d16_hi v35, v33"); e(f"  s_mov_b32 s61, {SPIN}")
e("  s_waitcnt vmcnt(0)")
if RSL: e(f"  s_sleep {RSL}")
def rload(t): e(f"  buffer_load_dwordx4 v[{R0+4*t}:{R0+3+4*t}], v34, s[16:19], s{80+t} offen" + HL)
def racc(t):
    r = R0 + 4*t
    e(f"  v_perm_b32 v{r+3}, v{r+1}, v{r}, s41"); e(f"  v_perm_b32 v{r+3}, v{r+2}, v{r+3}, s42")
    if t:
        e(f"  v_pk_add_f32 v[{R0}:{R0+1}], v[{R0}:{R0+1}], v[{r}:{r+1}]"); e(f"  v_pk_add_f32 v[{R0+2}:{R0+3}], v[{R0+2}:{R0+3}], v[{r+2}:{r+3}]")
def rchain(extra, lab):
    for t in range(9):
        if lab: e(f"L_R{t}:")
        e(f"  s_waitcnt vmcnt({8-t+extra})"); e(f"  v_cmp_ne_u32 vcc, s47, v{R0+4*t+3}"); e(f"  s_cbranch_vccnz L_RR{t}")
        if lab: e(f"L_RA{t}:")
        racc(t)
for t in range(9): rload(t)
if LATEC == 2:
    copy_stores(CW); e("  s_mov_b64 exec, -1")
    rchain(9, False)
    e("L_RD:")
else:
    rchain(0, True)
if not O("nored5", 0): stamp(5)
e("  s_nop 1"); e(f"  v_permlane32_swap_b32 v{R0}, v{R0+2}"); e(f"  v_permlane32_swap_b32 v{R0+1}, v{R0+3}")
e(f"  v_add_f32 v{R0}, v{R0}, v{R0+2}"); e(f"  v_add_f32 v{R0+1}, v{R0+1}, v{R0+3}"); e("  s_nop 1")
e(f"  v_permlane16_swap_b32 v{R0}, v{R0+1}"); e(f"  v_add_f32 v{R0}, v{R0}, v{R0+1}"); e("  s_nop 1")
e(f"  v_add_f32_dpp v{R0}, v{R0}, v{R0} row_ror:4 {DPPM}"); e("  s_nop 1"); e(f"  v_add_f32_dpp v{R0}, v{R0}, v{R0} row_ror:8 {DPPM}")
e(f"  v_cvt_pk_bf16_f32 v16, v{R0}, v{R0}"); e("  v_and_b32 v16, 0xffff0000, v16"); e("  v_mul_f32 v16, v16, v32")
e("  v_cvt_pk_bf16_f32 v16, v16, v16"); e("  v_and_b32 v16, 0xffff0000, v16"); e("  s_waitcnt lgkmcnt(0)")
e("  v_add_f32 v16, v16, v35"); e("  v_cvt_pk_bf16_f32 v16, v16, v16")
e("  s_mov_b32 exec_lo, 0x000f000f"); e("  s_mov_b32 exec_hi, 0x000f000f")
e("  buffer_store_short v16, v29, s[20:23], s50 offen" + CFN)
e("  s_cmp_lg_u32 s46, 0"); e("  s_cbranch_scc1 L_FIN")
e("  s_mov_b64 exec, 1", "every reader of d_ws[0] is behind the sums seen here"); e("  v_mov_b32 v16, s47"); e(f"  v_mov_b32 v17, {WS_E}")
e("  buffer_store_dword v16, v17, s[16:19], 0 offen" + CFN)
e("L_FIN:"); stamp_flush(); e("L_END:"); e("  s_endpgm")
if LATEC == 2:
    e("L_WC:"); e("  s_mov_b64 exec, -1"); e("  s_branch L_XH2")
    rchain(0, True); e("  s_branch L_RD")
for t in range(9):
    e(f"L_RR{t}:"); e("  s_sub_u32 s61, s61, 1"); e(f"  s_cbranch_scc1 L_RA{t}")
    for t2 in range(t, 9): rload(t2)
    e(f"  s_branch L_R{t}")
cm("---------------------------------------------------------------- prefetch waves: one word per 128-byte line")
e("L_HELP:")
e(f"  s_sub_u32 s28, s2, {NWT}"); e("  s_and_b32 s29, s28, 7"); e("  s_lshr_b32 s28, s28, 3")
e("  s_and_b32 s33, s3, 1"); e("  s_mul_i32 s33, s33, 288"); e(f"  s_mul_i32 s32, s28, {HR}"); e("  s_add_u32 s32, s32, s33")
e(f"  s_add_u32 s32, s32, {32*N0}"); e("  s_mul_i32 s32, s32, 9216"); e("  s_mul_i32 s34, s29, 1152"); e("  s_add_u32 s32, s32, s34")
e("  v_mul_u32_u24 v3, 0x1c72, v0"); e("  v_lshrrev_b32 v3, 16, v3", "lane / 9"); e("  v_mul_u32_u24 v4, 9, v3"); e("  v_sub_u32 v4, v0, v4")
e("  v_mul_u32_u24 v3, 9216, v3"); e("  v_lshl_add_u32 v3, v4, 7, v3")
e("  s_lshl2_add_u32 s28, s28, s3")
e(f"  s_mul_i32 s29, s29, {5184*128}")
if RP: e(f"  s_add_u32 s29, s29, {RP*8192}")
e("  v_lshlrev_b32 v2, 7, v0")
nr = -(-(288 - 32*N0) // (NH*HR))
assert nr - HG >= 1
e(f"  s_mov_b32 s30, {nr-HG}")
e("  s_cmp_ge_u32 s3, 2"); e("  s_waitcnt lgkmcnt(0)")
e("  s_cselect_b32 s8, s26, s24"); e("  s_cselect_b32 s9, s27, s25")
e(f"  s_bfm_b64 exec, {9*HR}, 0")
for r in range(HG):
    e(f"  buffer_load_dword v{DUM}, v3, s[8:11], s32 offen" + GNT); e(f"  s_add_u32 s32, s32, {NH*HR*9216}")
e("  s_barrier"); stamp(1)
e("L_HGL:"); e(f"  s_waitcnt vmcnt({HT-1})"); e(f"  buffer_load_dword v{DUM}, v3, s[8:11], s32 offen" + GNT)
e(f"  s_add_u32 s32, s32, {NH*HR*9216}"); e("  s_sub_u32 s30, s30, 1"); e("  s_cmp_lg_u32 s30, 0"); e("  s_cbranch_scc1 L_HGL")
if O("gul", 0): e("  s_waitcnt vmcnt(0)")
stamp(2)
CPS = 9 - 2*RP
e("  s_bfm_b64 exec, 32, 0")
e("L_HWL:")
e(f"  s_mul_hi_u32 s30, s28, {(2**32 + CPS - 1)//CPS}"); e(f"  s_mul_i32 s31, s30, {CPS}"); e("  s_sub_u32 s31, s28, s31")
e("  s_mul_i32 s30, s30, 36864"); e("  s_lshl_b32 s31, s31, 12"); e("  s_add_u32 s30, s30, s31"); e("  s_add_u32 s30, s30, s29")
e(f"  s_waitcnt vmcnt({HT-1})"); e(f"  buffer_load_dword v{DUM}, v2, s[12:15], s30 offen" + PNT)
e("  s_add_u32 s28, s28, 56"); e(f"  s_cmp_lt_u32 s28, {18*CPS}"); e("  s_cbranch_scc1 L_HWL")
e("  s_waitcnt vmcnt(0)"); e("  s_barrier"); e("  s_branch L_FIN")
e("L_CODE_END:")
cm("rare path: x + x*0 turns an infinity into a NaN")
for n in range(1, ncopy+1):
    e(f"L_FIX{n}:"); e(f"  s_mov_b32 s98, {n}"); e("  s_branch L_FIX")
e("L_FIX:"); e("  s_mov_b32 s29, 0x07060302")
for j in range(36):
    r = XR + j
    e(f"  v_lshlrev_b32 v12, 16, v{r}"); e(f"  v_and_b32 v13, 0xffff0000, v{r}"); e("  v_fma_f32 v12, v12, 0, v12"); e("  v_fma_f32 v13, v13, 0, v13")
    e(f"  v_perm_b32 v{r}, v13, v12, s29")
e("  s_cmp_eq_u32 s98, 1"); e("  s_cbranch_scc1 L_FIXR1"); e("  s_branch L_FIXR2")
e('.section .rodata,"a"'); e(".p2align 6"); e(f".amdhsa_kernel {K}")
e("  .amdhsa_next_free_vgpr 200"); e("  .amdhsa_next_free_sgpr 102"); e("  .amdhsa_accum_offset 200")
e("  .amdhsa_group_segment_fixed_size 0"); e("  .amdhsa_kernarg_size 64"); e("  .amdhsa_user_sgpr_count 2")
e("  .amdhsa_user_sgpr_kernarg_segment_ptr 1"); e("  .amdhsa_system_sgpr_workgroup_id_x 1"); e("  .amdhsa_float_denorm_mode_32 3")
e(".end_amdhsa_kernel")
open(sys.argv[1], "w").write("\n".join(out) + "\n")
```

```python
import sys
NAME = "standalone__moe_arch_mod__prompt"
S, D, F = 2048, 576, 4608
XB = S*D*2
WB = D*F*2
opts = dict(a.split("=") for a in sys.argv[2:] if "=" in a)
def O(k, d): return int(opts.get(k, d))
STAMP = O("stamp", 0); AMP = opts.get("amp"); FINE = O("fine", 0)
if AMP: STAMP = 1
GS = O("gs", 64); REP = O("rep", 4); RS = 256*GS
LG = {16: 0, 32: 1, 64: 2}[GS]; LR = {1: 0, 2: 1, 4: 2, 8: 3}[REP]; NL = REP*GS//16
assert NL <= 16
WS_E = 0; WS_GRAN = 4096; WS_SLAB = 4096 + REP*RS; WS_SIZE = 1 << 20; WS_STAMP = 1 << 21
N0 = O("n0", 2); W1 = O("w1", 4); W2 = O("w2", 4); WE = O("we", 0); PB = O("pb", 7); RP = O("rp", 0)
HR = O("hr", 4); HT = O("ht", 2); HG = O("hg", 1)
PSL = O("psl", 2); SPIN = O("spin", 200000); RSL = O("rsl", 0)
CFN = {0: "", 1: " sc1", 2: " sc0 sc1"}[O("cf", 0)]; WNT = " nt" if O("wnt", 0) else ""; PNT = " nt" if O("pnt", 0) else ""; GNT = " nt" if O("gnt", 0) else ""; XNT = " nt" if O("xnt", 0) else ""; LATEC = O("latec", 0); FL = {0: "", 1: " sc1", 2: " sc0 sc1", 3: " sc1 nt", 4: " nt"}; HS = FL[O("hs", 1)]; HL = FL[O("hl", 1)]; CW = FL[O("cw", 0)]; CH = FL[O("ch", 0)]; WD4E = O("wd4e", 1); HWF = O("hwf", 0); HX = O("hx", 0); EFS = O("efs", 1); LOWP = O("lowp", 1); CPRIO = O("cprio", 0)
NWT = 144; NH = 14
out = []
def e(s="", c=None): out.append(s if c is None else f"{s:<72}; {c}")
def cm(s): out.append("; " + s)
def stamp(i, wait=False):
    if STAMP and (i in (0, 7) or not FINE):
        e(f"  s_memrealtime s[{64+2*i}:{65+2*i}]")
        if wait: e("  s_waitcnt lgkmcnt(0)")
def fs(i, wait=False):
    if FINE:
        e(f"  s_memtime s[{64+2*i}:{65+2*i}]")
        if wait: e("  s_waitcnt lgkmcnt(0)")
def stamp_flush():
    if AMP:
        A, B, KK, WV, WG = map(int, AMP.split(","))
        stamp(7, True)
        e(f"  s_cmp_lg_u32 s2, {WG}"); e("  s_cbranch_scc1 L_AMPX")
        e(f"  s_cmp_lg_u32 s3, {WV}"); e("  s_cbranch_scc1 L_AMPX")
        e(f"  s_sub_u32 s60, s{64+2*B}, s{64+2*A}")
        e(f"  s_mul_i32 s60, s60, {KK}")
        e("L_AMP:"); e("  s_memrealtime s[62:63]"); e("  s_waitcnt lgkmcnt(0)"); e("  s_sub_u32 s62, s62, s78")
        e("  s_cmp_lt_u32 s62, s60"); e("  s_cbranch_scc1 L_AMP"); e("L_AMPX:")
    elif STAMP:
        if FINE: e("  s_memtime s[78:79]"); e("  s_waitcnt lgkmcnt(0)")
        else: stamp(7, True)
        e("  s_mov_b64 exec, 1")
        e("  s_lshl_b32 s60, s2, 3"); e("  s_add_u32 s60, s60, s3"); e("  s_lshl_b32 s60, s60, 6")
        e(f"  s_add_u32 s60, s60, {WS_STAMP}"); e("  s_mov_b32 s18, 0x1000000"); e("  v_mov_b32 v1, 0")
        for j in range(4):
            for k in range(4): e(f"  v_mov_b32 v{4+k}, s{64+4*j+k}")
            e(f"  buffer_store_dwordx4 v[4:7], v1, s[16:19], s60 offen offset:{16*j}"); e("  s_nop 1")

hdr = open('cdna_kernels/%s.s.ref' % NAME).read().split('\n')
for l in hdr:
    if l.startswith('; @launch'): break
    e(l)
XIMG = 73728; TAGL = XIMG + 2304; TEX = XIMG + 3072; WRIMG = TEX + 1024; LDS = 83968
e(f"; @launch grid=(256,1,1) block=(320,1,1) lds={LDS}")
DOC = """
One launch, 256 workgroups of 5 waves, one per CU (LDS and VGPR use allow one).
 role 4 (wave 0), every WG : 8 rows of x -> router scores -> local top-2 -> tagged granule in d_ws,
                             later the copy of its rows that were not routed.
 WGs 0..143, roles 0..3    : 32 columns of w_gate / w_up (LDS-DMA, transposing LDS reads, MFMA),
                             SwiGLU, the matching 32 rows of w_down (MFMA), tagged partial sums in d_ws.
 WGs 0..143, role 4        : gathers the 256 granules, global top-2, brings both rows into LDS;
                             72 of them add up the 144 partial sums of 8 columns and write the routed rows.
 WGs 144..255, roles 0..3  : pull weight lines into the L2 that the weight WGs with the same id mod 8
                             are expected to share (speed only, nothing depends on it).
 Hand-offs between WGs are 16-byte pieces that carry a tag, written and read with sc1.
 tag = d_ws[0] + 0x01010101; d_ws[0] is set to the tag at the end, so it differs from launch to launch.
"""
for l in DOC.strip("\n").split("\n"): cm(l)
e('.amdgcn_target "amdgcn-amd-amdhsa--gfx950"'); e(".text")
K = NAME + "_kernel"
e(f".globl {K}"); e(".p2align 8"); e(f".type {K},@function"); e(f"{K}:")
DPPM = "row_mask:0xf bank_mask:0xf"
AF = 12; BF = 48; ACC = 120; WD = 128; AD = 160; XR = 84; WR = 48; R0 = 48
VXW = 192; VA2 = 193; VTAG = 194; DUMC = 196; DUM = 197
QS = 16*9216

def slice_calc():
    e("  s_and_b32 s45, s2, 7"); e("  s_mul_i32 s45, s45, 18"); e("  s_lshr_b32 s44, s2, 3")
    e("  s_add_u32 s45, s45, s44", "slice: neighbours are 8 ids apart")
def setup0():
    e("  v_and_b32 v2, 15, v0"); e("  v_lshrrev_b32 v3, 4, v0")
    e("  v_mul_u32_u24 v4, 9216, v3"); e("  v_lshl_add_u32 v4, v2, 4, v4", "w_down: row 8g, 16-byte chunk c")
    e(f"  s_mul_i32 s34, s45, {32*1152}"); e("  s_lshl_b32 s35, s3, 8"); e("  s_add_u32 s34, s34, s35"); e("  s_add_u32 s35, s34, 4608")
def setup1():
    e("  v_lshrrev_b32 v5, 2, v2"); e("  v_lshl_add_u32 v5, v3, 3, v5"); e("  v_and_b32 v6, 1, v0"); e("  v_lshl_add_u32 v5, v6, 2, v5")
    e("  v_lshlrev_b32 v5, 3, v5"); e("  v_and_b32 v6, 2, v0"); e("  v_lshl_add_u32 v5, v6, 1, v5")
    e(f"  v_add_u32 v5, {TEX}, v5", "exchange table: this lane's (f, token)")
    e("  v_and_b32 v6, 1, v0"); e("  v_cmp_eq_u32 vcc, 1, v6"); e("  v_mov_b32 v6, 0xffff"); e("  v_mov_b32 v7, 0xffff0000")
    e("  v_cndmask_b32 v6, v6, v7, vcc", "half-word mask by lane parity")
    e("  v_lshlrev_b32 v7, 6, v2"); e("  v_lshl_add_u32 v7, v3, 4, v7", "partial-sum piece of this lane")
    e("  s_mul_i32 s36, s45, 4608"); e("  s_lshl_b32 s37, s3, 10"); e("  s_add_u32 s36, s36, s37"); e(f"  s_add_u32 s36, s36, {WS_SLAB}")
    e(f"  v_mov_b32 v{VTAG}, {TAGL}")
    e("  s_mov_b32 s56, 0x07060501"); e("  s_mov_b32 s57, 0x07060502"); e("  s_mov_b32 s58, 0x07060503")
    for j in range(0, 32, 2): e(f"  v_mov_b64 v[{AD+j}:{AD+j+1}], 0")
def wd_load(mp): e(f"  buffer_load_dwordx4 v[{WD+4*mp}:{WD+4*mp+3}], v4, s[12:15], s{34+(mp>>2)} offen offset:{1152*(mp&3)}" + WNT)
ncopy = 0
def copy_stores(fl=""):
    global ncopy
    ncopy += 1
    e("  s_and_b32 s38, s32, 0xffff"); e("  s_and_b32 s39, s33, 0xffff")
    e("  v_cmp_ne_u32 s[52:53], s38, v11"); e("  v_cmp_ne_u32 s[54:55], s39, v11")
    e("  s_and_b64 exec, s[52:53], s[54:55]", "rows that are not routed")
    e("  s_cmp_lg_u64 s[96:97], 0"); e(f"  s_cbranch_scc1 L_FIX{ncopy}"); e(f"L_FIXR{ncopy}:")
    for i in range(9): e(f"  buffer_store_dwordx4 v[{XR+4*i}:{XR+4*i+3}], v10, s[20:23], s28 offen offset:{128*i}{fl}")

if STAMP:
    for i in range(2, 16): e(f"  s_mov_b32 s{64+i}, 0")
stamp(0)
cm("SRDs: x s[4:7], w_r or w_gate/w_up s[8:11], w_down s[12:15], d_ws s[16:19], d_out s[20:23]")
e("  s_load_dwordx2 s[4:5], s[0:1], 0"); e("  s_load_dwordx2 s[8:9], s[0:1], 8"); e("  s_load_dwordx2 s[16:17], s[0:1], 56")
e("  s_load_dwordx4 s[24:27], s[0:1], 16"); e("  s_load_dwordx2 s[12:13], s[0:1], 32"); e("  s_load_dwordx2 s[20:21], s[0:1], 40")
e("  s_getpc_b64 s[28:29]", "read one word of every line of the code: it lands in L2"); e("L_PC:")
e("  v_lshlrev_b32 v2, 7, v0"); e("  v_cmp_gt_u32 vcc, (L_CODE_END-L_PC+127)/128, v0")
e("  s_and_saveexec_b64 s[30:31], vcc"); e("  s_cbranch_execz L_NOPF")
e(f"  global_load_dword v{DUMC}, v2, s[28:29]"); e("L_NOPF:"); e("  s_mov_b64 exec, -1")
e("  v_lshrrev_b32 v1, 6, v0"); e("  v_and_b32 v0, 63, v0"); e("  v_readfirstlane_b32 s3, v1")
e("  s_cmp_ge_u32 s2, 256"); e("  s_cbranch_scc1 L_END")
e("  s_sub_u32 s3, s3, 1", "role: wave 0 -> 4, wave k -> k-1"); e("  s_cselect_b32 s3, 4, s3")
for r, v in ((6, XB), (7, "0x20000"), (11, "0x20000"), (14, WB), (15, "0x20000"), (18, WS_SIZE), (19, "0x20000"), (22, XB), (23, "0x20000")):
    e(f"  s_mov_b32 s{r}, {v}")
e("  s_cmp_lg_u32 s3, 4"); e("  s_cbranch_scc1 L_NOTX")
cm("---------------------------------------------------------------- role 4: router scores of 8 rows")
e("  s_setprio 3")
e(f"  s_mov_b32 s10, {D*2}"); e(f"  s_mov_b32 m0, {WRIMG}")
e("  v_lshlrev_b32 v8, 4, v0"); e("  v_and_b32 v1, 0x70, v8"); e("  v_lshrrev_b32 v9, 3, v0")
e("  v_mul_u32_u24 v10, 1152, v9"); e("  v_add_u32 v10, v10, v1", "8 lanes per row"); e("  s_mul_i32 s28, s2, 9216")
e("  s_waitcnt lgkmcnt(0)")
e(f"  s_load_dword s47, s[16:17], {WS_E}")
e("  buffer_load_dwordx4 v8, s[8:11], 0 offen lds", "w_r -> LDS"); e("  s_mov_b64 exec, 0xff")
e("  buffer_load_dwordx4 v8, s[8:11], 0 offen offset:1024 lds"); e("  s_mov_b64 exec, -1")
for i in range(9): e(f"  buffer_load_dwordx4 v[{XR+4*i}:{XR+4*i+3}], v10, s[4:7], s28 offen offset:{128*i}" + XNT)
e(f"  v_add_u32 v1, {WRIMG}, v1")
e("  s_lshl_b32 s29, s2, 3"); e("  s_sub_u32 s29, 2047, s29"); e("  v_sub_u32 v11, s29, v9", "2047 - row"); e("  s_mov_b32 s30, 0xffff0000")
e(f"  s_and_b32 s29, s2, {REP-1}"); e(f"  s_mul_i32 s27, s29, {RS}"); e(f"  s_add_u32 s27, s27, {WS_GRAN}", "the copy of the granules this WG reads")
for j in range(1, 4): e(f"  s_add_u32 s{47+j}, s27, {64*GS*j}")
e("  s_and_b32 s29, s2, 7"); e("  s_lshl_b32 s29, s29, 5"); e("  s_lshr_b32 s31, s2, 3"); e("  s_add_u32 s29, s29, s31")
e(f"  s_mul_i32 s29, s29, {GS}"); e(f"  s_add_u32 s31, s29, {WS_GRAN}", "own granule")
e(f"  v_mul_u32_u24 v44, {GS}, v0")
for j in range(4): e(f"  v_mov_b32 v{12+j}, 0")
e("  v_bfrev_b32 v22, 1")
e(f"  v_bfe_u32 v21, v0, {LG}, {LR}"); e(f"  v_mul_u32_u24 v21, {RS}, v21"); e(f"  v_and_b32 v19, {GS//16-1}, v0"); e("  v_lshl_add_u32 v21, v19, 4, v21")
e(f"  s_mov_b32 s61, {SPIN}"); e(f"  v_mov_b32 v45, {TAGL}")
e("  s_waitcnt vmcnt(9) lgkmcnt(0)")
for i in range(9): e(f"  ds_read_b128 v[{WR+4*i}:{WR+4*i+3}], v1 offset:{128*i}")
e("  s_add_u32 s47, s47, 0x01010101", "tag of this launch"); e("  v_mov_b32 v18, s47")
for i in range(9):
    e(f"  s_waitcnt vmcnt({8-i}) lgkmcnt({8-i})")
    for j in range(4): e(f"  v_dot2c_f32_bf16 v{12+j}, v{XR+4*i+j}, v{WR+4*i+j}")
e("  s_nop 1")
e("  v_add_f32 v12, v12, v13"); e("  v_add_f32 v14, v14, v15"); e("  v_add_f32 v12, v12, v14")
e("  s_movk_i32 s29, 0x207"); e("  v_cmp_class_f32 s[96:97], v12, s29", "lanes that hold an inf or a NaN")
e(f"  v_add_f32_dpp v12, v12, v12 quad_perm:[1,0,3,2] {DPPM}"); e("  s_nop 1")
e(f"  v_add_f32_dpp v12, v12, v12 quad_perm:[2,3,0,1] {DPPM}"); e("  s_nop 1")
e(f"  v_add_f32_dpp v12, v12, v12 row_half_mirror {DPPM}")
cm("key = order-preserving bf16 score << 16 | 2047 - row; NaN sorts last")
e("  v_cvt_pk_bf16_f32 v13, v12, v12"); e("  v_cmp_u_f32 vcc, v12, v12"); e("  v_ashrrev_i32 v14, 31, v13")
e("  v_bitop3_b32 v13, v13, v14, v22 bitop3:0x1e"); e("  v_cndmask_b32 v13, v13, 0, vcc"); e("  v_and_or_b32 v13, v13, s30, v11")
e("  s_nop 1")
e(f"  v_max_u32_dpp v16, v13, v13 row_ror:8 {DPPM}"); e(f"  v_min_u32_dpp v17, v13, v13 row_ror:8 {DPPM}"); e("  s_nop 0")
for ctl in ("row_bcast:15 row_mask:0xa bank_mask:0xf", "row_bcast:31 row_mask:0xc bank_mask:0xf"):
    e(f"  v_min_u32_dpp v14, v16, v16 {ctl}"); e(f"  v_max_u32_dpp v16, v16, v16 {ctl}")
    e(f"  v_max_u32_dpp v15, v17, v17 {ctl}"); e("  v_max_u32 v17, v14, v15")
e(f"  s_lshl_b64 exec, {hex((1 << NL) - 1)}, 48", f"lanes 48..63 hold the pair: {REP} copies x {GS} bytes")
e("  buffer_store_dwordx4 v[16:19], v21, s[16:19], s31 offen" + HS)
stamp(3)
e(f"  s_cmp_lt_u32 s2, {NWT}"); e("  s_cbranch_scc1 L_XG"); e("  s_barrier", "prefetch WG: let the other waves fill the queue"); e("L_XG:")
e("  ds_write_b32 v45, v18"); e("  s_mov_b64 exec, -1")
slice_calc(); setup0(); setup1()
e(f"  s_cmp_ge_u32 s2, {NWT}"); e("  s_cbranch_scc1 L_XH")
def wd4():
    e("  s_mov_b32 exec_lo, 0x00ff00ff", "columns 512..575 of w_down"); e("  s_mov_b32 exec_hi, 0x00ff00ff")
    for mp in range(8): wd_load(mp)
    e("  s_mov_b64 exec, -1")
if WD4E: wd4()
if RP:
    e("  v_lshlrev_b32 v46, 7, v0"); e(f"  s_mul_i32 s29, s45, {32*1152}")
    for r in range(RP):
        e(f"  buffer_load_dword v{DUM}, v46, s[12:15], s29 offen" + PNT)
        if r < RP-1: e("  s_add_u32 s29, s29, 8192")
e("  s_waitcnt vmcnt(0)")
if O("nored5", 0): stamp(5)
e("L_P1:")
b = 48
for j in range(4): e(f"  buffer_load_dwordx4 v[{b+4*j}:{b+3+4*j}], v44, s[16:19], s{27 if j == 0 else 47+j} offen" + HL)
e("  s_waitcnt vmcnt(0)")
e(f"  v_cmp_ne_u32 vcc, s47, v{b+2}"); e(f"  v_cmp_ne_u32 s[32:33], s47, v{b+6}")
e(f"  v_cmp_ne_u32 s[38:39], s47, v{b+10}"); e(f"  v_cmp_ne_u32 s[40:41], s47, v{b+14}")
e("  s_or_b64 vcc, vcc, s[32:33]"); e("  s_or_b64 s[38:39], s[38:39], s[40:41]"); e("  s_or_b64 vcc, vcc, s[38:39]")
e("  s_cbranch_scc0 L_PT")
e(f"  s_sleep {PSL}", "some granule is missing: back off and read again")
e("  s_sub_u32 s61, s61, 1"); e("  s_cbranch_scc0 L_P1")
e("  .p2align 3"); e("L_PT:")
def merge(a1, a2, b1, b2, o1, o2, t):
    e(f"  v_min_u32 v{t}, v{a1}, v{b1}"); e(f"  v_max_u32 v{o1}, v{a1}, v{b1}"); e(f"  v_max3_u32 v{o2}, v{t}, v{a2}, v{b2}")
merge(b, b+1, b+4, b+5, 40, 41, 12); merge(b+8, b+9, b+12, b+13, 42, 43, 13); merge(40, 41, 42, 43, 40, 41, 12)
e("  s_nop 0")
for ctl in (f"quad_perm:[1,0,3,2] {DPPM}", f"quad_perm:[2,3,0,1] {DPPM}", f"row_ror:4 {DPPM}", f"row_ror:8 {DPPM}",
            "row_bcast:15 row_mask:0xa bank_mask:0xf", "row_bcast:31 row_mask:0xc bank_mask:0xf"):
    e(f"  v_min_u32_dpp v12, v40, v40 {ctl}"); e(f"  v_max_u32_dpp v40, v40, v40 {ctl}")
    e(f"  v_max_u32_dpp v13, v41, v41 {ctl}"); e("  v_max_u32 v41, v12, v13")
e("  v_cmp_gt_u32 vcc, 8, v0"); e("  v_readlane_b32 s32, v40, 63", "global top-2 keys"); e("  v_readlane_b32 s33, v41, 63")
e(f"  s_cmp_ge_u32 s2, {NWT}"); e("  s_cbranch_scc1 L_XH2")
e("  s_and_b32 s38, s32, 0x7ff"); e("  s_and_b32 s39, s33, 0x7ff"); e("  s_sub_u32 s38, 2047, s38"); e("  s_sub_u32 s39, 2047, s39")
e("  s_mul_i32 s38, s38, 1152"); e("  s_mul_i32 s39, s39, 1152"); e(f"  s_mov_b32 m0, {XIMG}"); e("  s_sub_u32 s40, s39, 128")
e("  buffer_load_dwordx4 v8, s[4:7], s38 offen lds", "both routed rows -> LDS [2][1152 B]")
e("  s_add_u32 s41, s38, 1024"); e("  v_mov_b32 v12, s40"); e("  v_mov_b32 v13, s41"); e("  s_addk_i32 m0, 0x400")
e("  v_cndmask_b32 v12, v12, v13, vcc"); e("  v_add_u32 v12, v12, v8")
e("  buffer_load_dwordx4 v12, s[4:7], 0 offen lds")
e("  s_addk_i32 m0, 0x400"); e("  s_add_u32 s40, s39, 896"); e("  s_mov_b64 exec, 0xffff")
e("  buffer_load_dwordx4 v8, s[4:7], s40 offen lds"); e("  s_mov_b64 exec, -1")
stamp(1)
def final_setup():
    cm("last stage: lane row r = lane>>4 holds token r>>1, column 8u + 2(lane&3) + (r&1)")
    e("  v_cmp_gt_u32 vcc, 32, v0"); e("  v_mov_b32 v28, s33"); e("  v_mov_b32 v29, s32"); e("  v_and_b32 v31, 3, v0")
    e("  v_cndmask_b32 v28, v28, v29, vcc"); e("  v_and_b32 v29, 0xffff, v28"); e("  v_sub_u32 v29, 2047, v29")
    e("  v_mul_u32_u24 v29, 1152, v29"); e("  v_bfe_u32 v30, v0, 4, 1"); e("  v_lshlrev_b32 v30, 1, v30")
    e("  v_lshl_add_u32 v30, v31, 2, v30"); e("  v_add_u32 v29, v29, v30")
    e("  v_not_b32 v32, v28"); e("  v_ashrrev_i32 v32, 31, v32"); e("  v_or_b32 v32, 0x80000000, v32")
    e("  v_xor_b32 v32, v32, v28"); e("  v_and_b32 v32, 0xffff0000, v32", "the bf16 score back from the key"); e("  v_mul_f32 v32, 0xbfb8aa3b, v32")
    e("  v_exp_f32 v32, v32"); e("  v_lshrrev_b32 v33, 5, v0"); e("  v_add_f32 v32, 1.0, v32"); e("  v_rcp_f32 v32, v32")
    e("  v_mul_u32_u24 v33, 1152, v33"); e("  v_cvt_pk_bf16_f32 v32, v32, v32"); e("  v_and_b32 v32, 0xffff0000, v32", "sigmoid, rounded to bf16")
    e("  s_sub_u32 s46, s45, 72", "unit u = slice - 72"); e("  s_lshl_b32 s50, s46, 4"); e(f"  s_add_u32 s51, s50, {XIMG}"); e("  v_add3_u32 v33, v33, v30, s51")
    e("  v_lshrrev_b32 v34, 2, v0"); e("  v_mul_u32_u24 v34, 4608, v34"); e("  v_lshl_add_u32 v34, v31, 4, v34")
    e("  s_lshl_b32 s80, s46, 6"); e(f"  s_add_u32 s80, s80, {WS_SLAB}")
    for t in range(1, 9): e(f"  s_add_u32 s{80+t}, s80, {16*4608*t}")
    e("  s_mov_b32 s41, 0x0c04000c"); e("  s_mov_b32 s42, 0x04020100"); e("  v_mov_b32 v35, 0")
if EFS == 2: final_setup()
e("  s_barrier", "A: the rows are requested")
if not WD4E: wd4()
if EFS == 1: final_setup()
e(f"  s_waitcnt vmcnt({0 if WD4E else 8}) lgkmcnt(0)")
stamp(4, True)
e("  s_barrier", "B: the rows are in LDS")
if LOWP: e("  s_setprio 0")
if not LATEC: copy_stores(CW); e("  s_mov_b64 exec, -1")
if EFS == 0: final_setup()
if LOWP == 2: e("  s_setprio 3")
e("  s_branch L_JOIN")
e("L_XH:"); e("  s_barrier", "the prefetch is done"); e("  s_branch L_P1")
e("L_XH2:"); copy_stores(CH); e("  s_branch L_FIN")
cm("---------------------------------------------------------------- roles 0..3: (matrix, half of K)")
e("L_NOTX:")
e(f"  s_mov_b32 s10, {WB}")
e(f"  s_cmp_ge_u32 s2, {NWT}"); e("  s_cbranch_scc1 L_HELP")
slice_calc(); setup0()
e("  v_lshrrev_b32 v8, 2, v0"); e("  v_mul_u32_u24 v8, 9216, v8"); e("  v_lshrrev_b32 v9, 4, v0"); e("  v_and_b32 v9, 2, v9")
e("  v_xor_b32 v9, v9, v0"); e("  v_and_b32 v9, 3, v9"); e("  v_lshl_add_u32 v8, v9, 4, v8", "16 rows x 64 B, halves swapped in rows 8..15")
e("  s_and_b32 s28, s3, 1"); e(f"  s_mul_i32 s28, s28, {288*9216}"); e("  s_lshl_b32 s29, s45, 6"); e("  s_add_u32 s28, s28, s29")
e("  s_and_b32 s42, s45, 1", "the two WGs that share the lines start on different rows")
e(f"  s_mul_i32 s29, s42, {N0*QS}"); e(f"  s_add_u32 s46, s28, {2*N0*QS}"); e(f"  s_add_u32 s43, s28, {N0*QS}")
e("  s_sub_u32 s43, s43, s29"); e("  s_add_u32 s28, s28, s29")
e("  s_mul_i32 s30, s3, 18432"); e("  s_mov_b32 m0, s30")
e("  s_cmp_ge_u32 s3, 2"); e("  s_waitcnt lgkmcnt(0)")
e("  s_cselect_b32 s8, s26, s24"); e("  s_cselect_b32 s9, s27, s25")
stamp(1)
ops = [("W", i) for i in range(WE)] + [("D", i) for i in range(18)] + [("W", i) for i in range(WE, 8)]
pos = {op: n for n, op in enumerate(ops)}
nis = 0
def issue():
    global nis
    if nis >= len(ops): return False
    k, i = ops[nis]
    if k == "D":
        if i == N0: e("  s_mov_b32 s28, s43")
        if i == 2*N0: e("  s_mov_b32 s28, s46")
        e("  buffer_load_dwordx4 v8, s[8:11], s28 offen lds")
        if i < 17: e("  s_addk_i32 m0, 0x400"); e(f"  s_add_u32 s28, s28, {QS}")
    else: wd_load(i)
    nis += 1
    return True
def vwait(op): e(f"  s_waitcnt vmcnt({nis - pos[op] - 1})")
while nis < WE + min(N0, W1): issue()
setup1()
e("  v_lshlrev_b32 v9, 9, v3"); e("  v_bfe_u32 v10, v0, 2, 2"); e("  v_lshl_add_u32 v9, v10, 6, v9"); e("  v_and_b32 v10, 3, v0")
e("  v_lshl_add_u32 v9, v10, 3, v9"); e("  v_and_b32 v10, 1, v3"); e("  v_lshl_add_u32 v9, v10, 5, v9")
e("  v_add_u32 v9, s30, v9", "transposing reads, columns 0..15"); e("  v_xor_b32 v10, 32, v9", "columns 16..31")
e("  v_and_b32 v11, 1, v0"); e("  v_mul_u32_u24 v11, 1152, v11"); e("  v_lshl_add_u32 v11, v3, 4, v11")
e("  s_and_b32 s29, s3, 1"); e("  s_mul_i32 s29, s29, 576"); e(f"  s_add_u32 s29, s29, {XIMG}")
e(f"  s_mul_i32 s31, s42, {32*N0}")
e(f"  v_add_u32 v{VA2}, s29, v11", "x fragments"); e(f"  v_add_u32 v11, s31, v{VA2}"); e(f"  v_subrev_u32 v1, s31, v{VA2}")
e("  s_lshl_b32 s29, s3, 8"); e(f"  s_add_u32 s29, s29, {TEX}"); e(f"  v_lshl_add_u32 v{VXW}, v2, 3, s29")
def trreads(s):
    for hh in range(2):
        for u in range(2):
            r = BF + 8*s + 4*hh + 2*u
            e(f"  ds_read_b64_tr_b16 v[{r}:{r+1}], v{9+hh} offset:{2048*s+256*u}")
def mfmas(s):
    for hh in range(2):
        c = "0" if s == 0 else f"v[{ACC+4*hh}:{ACC+4*hh+3}]"
        r = BF + 8*s + 4*hh
        e(f"  v_mfma_f32_16x16x32_bf16 v[{ACC+4*hh}:{ACC+4*hh+3}], v[{AF+4*s}:{AF+4*s+3}], v[{r}:{r+3}], {c}")
E0 = N0 // 2
for s in range(PB):
    for h in range(2):
        need = 2*s + h
        def ok():
            if nis >= len(ops) or ops[nis][0] != "D": return False
            i = ops[nis][1]
            return i < need + 1 + W1 if i < N0 else (need >= N0 - 1 and i < need + 1 + W2)
        if ok() or h == 1: vwait(("D", need))
        while ok(): issue()
    if s == 0: stamp(2)
    trreads(s)
while ops[nis][0] == "D": issue()
stamp(5)
e("  s_barrier", "A")
while issue(): pass
e("  s_waitcnt lgkmcnt(0)"); e("  s_barrier", "B")
stamp(4, True); fs(1, True)
if CPRIO: e(f"  s_setprio {CPRIO}")
order = []
for s in range(9):
    ar = 11 if s < E0 else (1 if s < 2*E0 else VA2)
    e(f"  ds_read_b128 v[{AF+4*s}:{AF+4*s+3}], v{ar} offset:{64*s}"); order.append(f"A{s}")
late = list(range(PB, 9))
for s in range(9):
    if late and late[0] <= s + 1:
        t = late.pop(0); vwait(("D", 2*t+1)); trreads(t); order += [f"T{t}"]*4
    tag = f"A{s}" if s < PB else f"T{s}"
    need = len(order) - 1 - order[::-1].index(tag)
    e(f"  s_waitcnt lgkmcnt({min(15, len(order) - need - 1)})")
    mfmas(s)
stamp(3); fs(2)
e("  s_mov_b64 exec, 0xffff"); e("  s_nop 6")
e(f"  ds_write2_b64 v{VXW}, v[{ACC}:{ACC+1}], v[{ACC+4}:{ACC+5}] offset0:0 offset1:16")
e("  s_mov_b64 exec, -1")
cm("---------------------------------------------------------------- all 5 waves: SwiGLU, 128 columns of w_down each")
e("L_JOIN:")
e("  s_waitcnt lgkmcnt(0)"); fs(3, True); e("  s_barrier", "C: the four partial pre-activations are in LDS"); fs(4)
e("  ds_read2_b32 v[12:13], v5 offset0:0 offset1:64"); e("  ds_read2_b32 v[14:15], v5 offset0:128 offset1:192")
e(f"  ds_read_b32 v23, v{VTAG}")
e("  s_cmp_eq_u32 s3, 4"); e("  s_waitcnt lgkmcnt(0)")
e("  v_add_f32 v12, v12, v13"); e("  v_add_f32 v14, v14, v15")
e("  v_cvt_pk_bf16_f32 v12, v12, v14"); e("  v_lshlrev_b32 v13, 16, v12"); e("  v_mul_f32 v15, 0xbfb8aa3b, v13"); e("  v_exp_f32 v15, v15")
e("  v_and_b32 v14, 0xffff0000, v12"); e("  v_add_f32 v15, 1.0, v15"); e("  v_rcp_f32 v15, v15"); e("  s_nop 0")
e("  v_mul_f32 v13, v13, v15"); e("  v_cvt_pk_bf16_f32 v13, v13, v13"); e("  v_and_b32 v13, 0xffff0000, v13")
e("  v_mul_f32 v13, v13, v14"); e("  v_cvt_pk_bf16_f32 v13, v13, v13", "h = bf16(bf16(silu(a)) * u), in both halves")
fs(5)
e("  s_cbranch_scc1 L_W4"); e("  s_waitcnt vmcnt(0)"); e("L_W4:"); fs(6); e("  s_nop 0" if WD4E else "  s_waitcnt vmcnt(9)")
e(f"  v_and_b32_dpp v12, v13, v6 quad_perm:[0,0,2,2] {DPPM}"); e(f"  v_and_b32_dpp v16, v13, v6 quad_perm:[1,1,3,3] {DPPM}")
e("  s_nop 0"); e("  .p2align 3")
cm("A = h on a diagonal: D[token, column parity and pair][chunk] sums 4 rows of w_down per MFMA")
for mp in range(8):
    src = 12 if mp < 4 else 16; qq = mp & 3
    for r in range(4):
        n = (4*(r-qq)) % 16
        ctl = "quad_perm:[0,1,2,3]" if n == 0 else f"row_ror:{n}"
        e(f"  v_mov_b32_dpp v{AD+4*mp+r}, v{src} {ctl} row_mask:0xf bank_mask:{hex(1<<r)}")
    if mp >= 1:
        m = mp - 1; c = "0" if m == 0 else f"v[{ACC}:{ACC+3}]"
        e(f"  v_mfma_f32_16x16x32_bf16 v[{ACC}:{ACC+3}], v[{AD+4*m}:{AD+4*m+3}], v[{WD+4*m}:{WD+4*m+3}], {c}")
e("  s_nop 0")
e(f"  v_mfma_f32_16x16x32_bf16 v[{ACC}:{ACC+3}], v[{AD+28}:{AD+31}], v[{WD+28}:{WD+31}], v[{ACC}:{ACC+3}]")
e("  s_cselect_b32 exec_lo, 0x00ff00ff, -1"); e("  s_cselect_b32 exec_hi, 0x00ff00ff, -1"); e("  s_nop 5")
cm("4 sums (top 24 bits each) + tag in 16 bytes")
for j in range(3): e(f"  v_perm_b32 v{20+j}, v{ACC+j}, v{ACC+3}, s{56+j}")
e("  buffer_store_dwordx4 v[20:23], v7, s[16:19], s36 offen" + HS)
if STAMP:
    e("  s_cbranch_scc1 L_S6"); stamp(6); e("  s_branch L_FIN"); e("L_S6:"); stamp(2)
else: e("  s_cbranch_scc0 L_FIN")
if LATEC == 1: e("  s_mov_b64 exec, -1"); copy_stores(CW)
e("  s_cmp_ge_u32 s46, 72"); e(f"  s_cbranch_scc1 {'L_WC' if LATEC == 2 else 'L_FIN'}")
cm("---------------------------------------------------------------- 72 waves: sum over the 144 WGs, write the routed rows")
e("  s_mov_b64 exec, -1"); e("  ds_read_u16_d16_hi v35, v33"); e(f"  s_mov_b32 s61, {SPIN}")
e("  s_waitcnt vmcnt(0)")
if RSL: e(f"  s_sleep {RSL}")
def rload(t): e(f"  buffer_load_dwordx4 v[{R0+4*t}:{R0+3+4*t}], v34, s[16:19], s{80+t} offen" + HL)
def racc(t):
    r = R0 + 4*t
    e(f"  v_perm_b32 v{r+3}, v{r+1}, v{r}, s41"); e(f"  v_perm_b32 v{r+3}, v{r+2}, v{r+3}, s42")
    if t:
        e(f"  v_pk_add_f32 v[{R0}:{R0+1}], v[{R0}:{R0+1}], v[{r}:{r+1}]"); e(f"  v_pk_add_f32 v[{R0+2}:{R0+3}], v[{R0+2}:{R0+3}], v[{r+2}:{r+3}]")
def rchain(extra, lab):
    for t in range(9):
        if lab: e(f"L_R{t}:")
        e(f"  s_waitcnt vmcnt({8-t+extra})"); e(f"  v_cmp_ne_u32 vcc, s47, v{R0+4*t+3}"); e(f"  s_cbranch_vccnz L_RR{t}")
        if lab: e(f"L_RA{t}:")
        racc(t)
for t in range(9): rload(t)
if LATEC == 2:
    copy_stores(CW); e("  s_mov_b64 exec, -1")
    rchain(9, False)
    e("L_RD:")
else:
    rchain(0, True)
if not O("nored5", 0): stamp(5)
e("  s_nop 1"); e(f"  v_permlane32_swap_b32 v{R0}, v{R0+2}"); e(f"  v_permlane32_swap_b32 v{R0+1}, v{R0+3}")
e(f"  v_add_f32 v{R0}, v{R0}, v{R0+2}"); e(f"  v_add_f32 v{R0+1}, v{R0+1}, v{R0+3}"); e("  s_nop 1")
e(f"  v_permlane16_swap_b32 v{R0}, v{R0+1}"); e(f"  v_add_f32 v{R0}, v{R0}, v{R0+1}"); e("  s_nop 1")
e(f"  v_add_f32_dpp v{R0}, v{R0}, v{R0} row_ror:4 {DPPM}"); e("  s_nop 1"); e(f"  v_add_f32_dpp v{R0}, v{R0}, v{R0} row_ror:8 {DPPM}")
e(f"  v_cvt_pk_bf16_f32 v16, v{R0}, v{R0}"); e("  v_and_b32 v16, 0xffff0000, v16"); e("  v_mul_f32 v16, v16, v32")
e("  v_cvt_pk_bf16_f32 v16, v16, v16"); e("  v_and_b32 v16, 0xffff0000, v16"); e("  s_waitcnt lgkmcnt(0)")
e("  v_add_f32 v16, v16, v35"); e("  v_cvt_pk_bf16_f32 v16, v16, v16")
e("  s_mov_b32 exec_lo, 0x000f000f"); e("  s_mov_b32 exec_hi, 0x000f000f")
e("  buffer_store_short v16, v29, s[20:23], s50 offen" + CFN)
e("  s_cmp_lg_u32 s46, 0"); e("  s_cbranch_scc1 L_FIN")
e("  s_mov_b64 exec, 1", "every reader of d_ws[0] is behind the sums seen here"); e("  v_mov_b32 v16, s47"); e(f"  v_mov_b32 v17, {WS_E}")
e("  buffer_store_dword v16, v17, s[16:19], 0 offen" + CFN)
e("L_FIN:"); stamp_flush(); e("L_END:"); e("  s_endpgm")
if LATEC == 2:
    e("L_WC:"); e("  s_mov_b64 exec, -1"); e("  s_branch L_XH2")
    rchain(0, True); e("  s_branch L_RD")
for t in range(9):
    e(f"L_RR{t}:"); e("  s_sub_u32 s61, s61, 1"); e(f"  s_cbranch_scc1 L_RA{t}")
    for t2 in range(t, 9): rload(t2)
    e(f"  s_branch L_R{t}")
cm("---------------------------------------------------------------- prefetch waves: one word per 128-byte line")
e("L_HELP:")
e(f"  s_sub_u32 s28, s2, {NWT}"); e("  s_and_b32 s29, s28, 7"); e("  s_lshr_b32 s28, s28, 3")
e("  s_and_b32 s33, s3, 1"); e("  s_mul_i32 s33, s33, 288"); e(f"  s_mul_i32 s32, s28, {HR}"); e("  s_add_u32 s32, s32, s33")
e(f"  s_add_u32 s32, s32, {32*N0}"); e("  s_mul_i32 s32, s32, 9216"); e("  s_mul_i32 s34, s29, 1152"); e("  s_add_u32 s32, s32, s34")
e("  v_mul_u32_u24 v3, 0x1c72, v0"); e("  v_lshrrev_b32 v3, 16, v3", "lane / 9"); e("  v_mul_u32_u24 v4, 9, v3"); e("  v_sub_u32 v4, v0, v4")
e("  v_mul_u32_u24 v3, 9216, v3"); e("  v_lshl_add_u32 v3, v4, 7, v3")
e("  s_lshl2_add_u32 s28, s28, s3")
e(f"  s_mul_i32 s29, s29, {5184*128}")
if RP: e(f"  s_add_u32 s29, s29, {RP*8192}")
e("  v_lshlrev_b32 v2, 7, v0")
nr = -(-(288 - 32*N0) // (NH*HR))
assert nr - HG >= 1
e(f"  s_mov_b32 s30, {nr-HG}")
e("  s_cmp_ge_u32 s3, 2"); e("  s_waitcnt lgkmcnt(0)")
e("  s_cselect_b32 s8, s26, s24"); e("  s_cselect_b32 s9, s27, s25")
e(f"  s_bfm_b64 exec, {9*HR}, 0")
for r in range(HG):
    e(f"  buffer_load_dword v{DUM}, v3, s[8:11], s32 offen" + GNT); e(f"  s_add_u32 s32, s32, {NH*HR*9216}")
CPS = 9 - 2*RP
def wchunk(wait):
    e(f"  s_mul_hi_u32 s35, s28, {(2**32 + CPS - 1)//CPS}"); e(f"  s_mul_i32 s31, s35, {CPS}"); e("  s_sub_u32 s31, s28, s31")
    e("  s_mul_i32 s35, s35, 36864"); e("  s_lshl_b32 s31, s31, 12"); e("  s_add_u32 s35, s35, s31"); e("  s_add_u32 s35, s35, s29")
    if wait: e(f"  s_waitcnt vmcnt({HT-1})")
    e(f"  buffer_load_dword v{DUM}, v2, s[12:15], s35 offen" + PNT)
    e("  s_add_u32 s28, s28, 56")
e("  s_barrier"); stamp(1)
if HWF:
    e("  s_bfm_b64 exec, 32, 0")
    for _ in range(HWF): wchunk(False)
    e(f"  s_bfm_b64 exec, {9*HR}, 0")
e("L_HGL:"); e(f"  s_waitcnt vmcnt({HT-1+HX})"); e(f"  buffer_load_dword v{DUM}, v3, s[8:11], s32 offen" + GNT)
e(f"  s_add_u32 s32, s32, {NH*HR*9216}"); e("  s_sub_u32 s30, s30, 1"); e("  s_cmp_lg_u32 s30, 0"); e("  s_cbranch_scc1 L_HGL")
if O("gul", 0): e("  s_waitcnt vmcnt(0)")
stamp(2)
e("  s_bfm_b64 exec, 32, 0")
e("L_HWL:")
wchunk(True)
e(f"  s_cmp_lt_u32 s28, {18*CPS}"); e("  s_cbranch_scc1 L_HWL")
e("  s_waitcnt vmcnt(0)"); e("  s_barrier"); e("  s_branch L_FIN")
e("L_CODE_END:")
cm("rare path: x + x*0 turns an infinity into a NaN")
for n in range(1, ncopy+1):
    e(f"L_FIX{n}:"); e(f"  s_mov_b32 s98, {n}"); e("  s_branch L_FIX")
e("L_FIX:"); e("  s_mov_b32 s29, 0x07060302")
for j in range(36):
    r = XR + j
    e(f"  v_lshlrev_b32 v12, 16, v{r}"); e(f"  v_and_b32 v13, 0xffff0000, v{r}"); e("  v_fma_f32 v12, v12, 0, v12"); e("  v_fma_f32 v13, v13, 0, v13")
    e(f"  v_perm_b32 v{r}, v13, v12, s29")
e("  s_cmp_eq_u32 s98, 1"); e("  s_cbranch_scc1 L_FIXR1"); e("  s_branch L_FIXR2")
e('.section .rodata,"a"'); e(".p2align 6"); e(f".amdhsa_kernel {K}")
e("  .amdhsa_next_free_vgpr 200"); e("  .amdhsa_next_free_sgpr 102"); e("  .amdhsa_accum_offset 200")
e("  .amdhsa_group_segment_fixed_size 0"); e("  .amdhsa_kernarg_size 64"); e("  .amdhsa_user_sgpr_count 2")
e("  .amdhsa_user_sgpr_kernarg_segment_ptr 1"); e("  .amdhsa_system_sgpr_workgroup_id_x 1"); e("  .amdhsa_float_denorm_mode_32 3")
e(".end_amdhsa_kernel")
open(sys.argv[1], "w").write("\n".join(out) + "\n")
```

```python
import sys
NAME = "standalone__moe_arch_mod__prompt"
S, D, F = 2048, 576, 4608
XB = S*D*2
WB = D*F*2
opts = dict(a.split("=") for a in sys.argv[2:] if "=" in a)
def O(k, d): return int(opts.get(k, d))
STAMP = O("stamp", 0); AMP = opts.get("amp"); FINE = O("fine", 0)
if AMP: STAMP = 1
GS = O("gs", 64); REP = O("rep", 4); RS = 256*GS
LG = {16: 0, 32: 1, 64: 2}[GS]; LR = {1: 0, 2: 1, 4: 2, 8: 3}[REP]; NL = REP*GS//16
assert NL <= 16
WS_E = 0; WS_GRAN = 4096; WS_SLAB = 4096 + REP*RS; WS_SIZE = 1 << 20; WS_STAMP = 1 << 21
N0 = O("n0", 2); W1 = O("w1", 4); W2 = O("w2", 4); WE = O("we", 0); PB = O("pb", 7); RP = O("rp", 0)
HR = O("hr", 4); HT = O("ht", 2); HG = O("hg", 1)
PSL = O("psl", 2); SPIN = O("spin", 200000); RSL = O("rsl", 0)
CFN = {0: "", 1: " sc1", 2: " sc0 sc1"}[O("cf", 0)]; WNT = " nt" if O("wnt", 0) else ""; PNT = " nt" if O("pnt", 0) else ""; GNT = " nt" if O("gnt", 0) else ""; XNT = " nt" if O("xnt", 0) else ""; LATEC = O("latec", 1); FL = {0: "", 1: " sc1", 2: " sc0 sc1", 3: " sc1 nt", 4: " nt"}; HS = FL[O("hs", 1)]; HL = FL[O("hl", 1)]; CW = FL[O("cw", 1)]; CH = FL[O("ch", 1)]; WD4E = O("wd4e", 1); HWF = O("hwf", 0); HX = O("hx", 0); EFS = O("efs", 1); LOWP = O("lowp", 1); CPRIO = O("cprio", 0)
NWT = 144; NH = 14
out = []
def e(s="", c=None): out.append(s if c is None else f"{s:<72}; {c}")
def cm(s): out.append("; " + s)
def stamp(i, wait=False):
    if STAMP and (i in (0, 7) or not FINE):
        e(f"  s_memrealtime s[{64+2*i}:{65+2*i}]")
        if wait: e("  s_waitcnt lgkmcnt(0)")
def fs(i, wait=False):
    if FINE:
        e(f"  s_memtime s[{64+2*i}:{65+2*i}]")
        if wait: e("  s_waitcnt lgkmcnt(0)")
def stamp_flush():
    if AMP:
        A, B, KK, WV, WG = map(int, AMP.split(","))
        if O("endw", 0): e("  s_waitcnt vmcnt(0)")
        stamp(7, True)
        e(f"  s_cmp_lg_u32 s2, {WG}"); e("  s_cbranch_scc1 L_AMPX")
        e(f"  s_cmp_lg_u32 s3, {WV}"); e("  s_cbranch_scc1 L_AMPX")
        e(f"  s_sub_u32 s60, s{64+2*B}, s{64+2*A}")
        e(f"  s_mul_i32 s60, s60, {KK}")
        e("L_AMP:"); e("  s_memrealtime s[62:63]"); e("  s_waitcnt lgkmcnt(0)"); e("  s_sub_u32 s62, s62, s78")
        e("  s_cmp_lt_u32 s62, s60"); e("  s_cbranch_scc1 L_AMP"); e("L_AMPX:")
    elif STAMP:
        if FINE: e("  s_memtime s[78:79]"); e("  s_waitcnt lgkmcnt(0)")
        else: stamp(7, True)
        e("  s_mov_b64 exec, 1")
        e("  s_lshl_b32 s60, s2, 3"); e("  s_add_u32 s60, s60, s3"); e("  s_lshl_b32 s60, s60, 6")
        e(f"  s_add_u32 s60, s60, {WS_STAMP}"); e("  s_mov_b32 s18, 0x1000000"); e("  v_mov_b32 v1, 0")
        for j in range(4):
            for k in range(4): e(f"  v_mov_b32 v{4+k}, s{64+4*j+k}")
            e(f"  buffer_store_dwordx4 v[4:7], v1, s[16:19], s60 offen offset:{16*j}"); e("  s_nop 1")

hdr = open('cdna_kernels/%s.s.ref' % NAME).read().split('\n')
for l in hdr:
    if l.startswith('; @launch'): break
    e(l)
XIMG = 73728; TAGL = XIMG + 2304; TEX = XIMG + 3072; WRIMG = TEX + 1024; LDS = 83968
e(f"; @launch grid=(256,1,1) block=(320,1,1) lds={LDS}")
DOC = """
One launch, 256 workgroups of 5 waves, one per CU (LDS and VGPR use allow one).
 role 4 (wave 0), every WG : 8 rows of x -> router scores -> local top-2 -> tagged granule in d_ws,
                             later the copy of its rows that were not routed.
 WGs 0..143, roles 0..3    : 32 columns of w_gate / w_up (LDS-DMA, transposing LDS reads, MFMA),
                             SwiGLU, the matching 32 rows of w_down (MFMA), tagged partial sums in d_ws.
 WGs 0..143, role 4        : gathers the 256 granules, global top-2, brings both rows into LDS;
                             72 of them add up the 144 partial sums of 8 columns and write the routed rows.
 WGs 144..255, roles 0..3  : pull weight lines into the L2 that the weight WGs with the same id mod 8
                             are expected to share (speed only, nothing depends on it).
 Hand-offs between WGs are 16-byte pieces that carry a tag, written and read with sc1.
 tag = d_ws[0] + 0x01010101; d_ws[0] is set to the tag at the end, so it differs from launch to launch.
"""
for l in DOC.strip("\n").split("\n"): cm(l)
e('.amdgcn_target "amdgcn-amd-amdhsa--gfx950"'); e(".text")
K = NAME + "_kernel"
e(f".globl {K}"); e(".p2align 8"); e(f".type {K},@function"); e(f"{K}:")
DPPM = "row_mask:0xf bank_mask:0xf"
AF = 12; BF = 48; ACC = 120; WD = 128; AD = 160; XR = 84; WR = 48; R0 = 48
VXW = 192; VA2 = 193; VTAG = 194; DUMC = 196; DUM = 197
QS = 16*9216

def slice_calc():
    e("  s_and_b32 s45, s2, 7"); e("  s_mul_i32 s45, s45, 18"); e("  s_lshr_b32 s44, s2, 3")
    e("  s_add_u32 s45, s45, s44", "slice: neighbours are 8 ids apart")
def setup0():
    e("  v_and_b32 v2, 15, v0"); e("  v_lshrrev_b32 v3, 4, v0")
    e("  v_mul_u32_u24 v4, 9216, v3"); e("  v_lshl_add_u32 v4, v2, 4, v4", "w_down: row 8g, 16-byte chunk c")
    e(f"  s_mul_i32 s34, s45, {32*1152}"); e("  s_lshl_b32 s35, s3, 8"); e("  s_add_u32 s34, s34, s35"); e("  s_add_u32 s35, s34, 4608")
def setup1():
    e("  v_lshrrev_b32 v5, 2, v2"); e("  v_lshl_add_u32 v5, v3, 3, v5"); e("  v_and_b32 v6, 1, v0"); e("  v_lshl_add_u32 v5, v6, 2, v5")
    e("  v_lshlrev_b32 v5, 3, v5"); e("  v_and_b32 v6, 2, v0"); e("  v_lshl_add_u32 v5, v6, 1, v5")
    e(f"  v_add_u32 v5, {TEX}, v5", "exchange table: this lane's (f, token)")
    e("  v_and_b32 v6, 1, v0"); e("  v_cmp_eq_u32 vcc, 1, v6"); e("  v_mov_b32 v6, 0xffff"); e("  v_mov_b32 v7, 0xffff0000")
    e("  v_cndmask_b32 v6, v6, v7, vcc", "half-word mask by lane parity")
    e("  v_lshlrev_b32 v7, 6, v2"); e("  v_lshl_add_u32 v7, v3, 4, v7", "partial-sum piece of this lane")
    e("  s_mul_i32 s36, s45, 4608"); e("  s_lshl_b32 s37, s3, 10"); e("  s_add_u32 s36, s36, s37"); e(f"  s_add_u32 s36, s36, {WS_SLAB}")
    e(f"  v_mov_b32 v{VTAG}, {TAGL}")
    e("  s_mov_b32 s56, 0x07060501"); e("  s_mov_b32 s57, 0x07060502"); e("  s_mov_b32 s58, 0x07060503")
    for j in range(0, 32, 2): e(f"  v_mov_b64 v[{AD+j}:{AD+j+1}], 0")
def wd_load(mp): e(f"  buffer_load_dwordx4 v[{WD+4*mp}:{WD+4*mp+3}], v4, s[12:15], s{34+(mp>>2)} offen offset:{1152*(mp&3)}" + WNT)
ncopy = 0
def copy_stores(fl=""):
    global ncopy
    ncopy += 1
    e("  s_and_b32 s38, s32, 0xffff"); e("  s_and_b32 s39, s33, 0xffff")
    e("  v_cmp_ne_u32 s[52:53], s38, v11"); e("  v_cmp_ne_u32 s[54:55], s39, v11")
    e("  s_and_b64 exec, s[52:53], s[54:55]", "rows that are not routed")
    e("  s_cmp_lg_u64 s[96:97], 0"); e(f"  s_cbranch_scc1 L_FIX{ncopy}"); e(f"L_FIXR{ncopy}:")
    for i in range(9): e(f"  buffer_store_dwordx4 v[{XR+4*i}:{XR+4*i+3}], v10, s[20:23], s28 offen offset:{128*i}{fl}")

if STAMP:
    for i in range(2, 16): e(f"  s_mov_b32 s{64+i}, 0")
stamp(0)
cm("SRDs: x s[4:7], w_r or w_gate/w_up s[8:11], w_down s[12:15], d_ws s[16:19], d_out s[20:23]")
e("  s_load_dwordx2 s[4:5], s[0:1], 0"); e("  s_load_dwordx2 s[8:9], s[0:1], 8"); e("  s_load_dwordx2 s[16:17], s[0:1], 56")
e("  s_load_dwordx4 s[24:27], s[0:1], 16"); e("  s_load_dwordx2 s[12:13], s[0:1], 32"); e("  s_load_dwordx2 s[20:21], s[0:1], 40")
e("  s_getpc_b64 s[28:29]", "read one word of every line of the code: it lands in L2"); e("L_PC:")
e("  v_lshlrev_b32 v2, 7, v0"); e("  v_cmp_gt_u32 vcc, (L_CODE_END-L_PC+127)/128, v0")
e("  s_and_saveexec_b64 s[30:31], vcc"); e("  s_cbranch_execz L_NOPF")
e(f"  global_load_dword v{DUMC}, v2, s[28:29]"); e("L_NOPF:"); e("  s_mov_b64 exec, -1")
e("  v_lshrrev_b32 v1, 6, v0"); e("  v_and_b32 v0, 63, v0"); e("  v_readfirstlane_b32 s3, v1")
e("  s_cmp_ge_u32 s2, 256"); e("  s_cbranch_scc1 L_END")
e("  s_sub_u32 s3, s3, 1", "role: wave 0 -> 4, wave k -> k-1"); e("  s_cselect_b32 s3, 4, s3")
for r, v in ((6, XB), (7, "0x20000"), (11, "0x20000"), (14, WB), (15, "0x20000"), (18, WS_SIZE), (19, "0x20000"), (22, XB), (23, "0x20000")):
    e(f"  s_mov_b32 s{r}, {v}")
e("  s_cmp_lg_u32 s3, 4"); e("  s_cbranch_scc1 L_NOTX")
cm("---------------------------------------------------------------- role 4: router scores of 8 rows")
e("  s_setprio 3")
e(f"  s_mov_b32 s10, {D*2}"); e(f"  s_mov_b32 m0, {WRIMG}")
e("  v_lshlrev_b32 v8, 4, v0"); e("  v_and_b32 v1, 0x70, v8"); e("  v_lshrrev_b32 v9, 3, v0")
e("  v_mul_u32_u24 v10, 1152, v9"); e("  v_add_u32 v10, v10, v1", "8 lanes per row"); e("  s_mul_i32 s28, s2, 9216")
e("  s_waitcnt lgkmcnt(0)")
e(f"  s_load_dword s47, s[16:17], {WS_E}")
e("  buffer_load_dwordx4 v8, s[8:11], 0 offen lds", "w_r -> LDS"); e("  s_mov_b64 exec, 0xff")
e("  buffer_load_dwordx4 v8, s[8:11], 0 offen offset:1024 lds"); e("  s_mov_b64 exec, -1")
for i in range(9): e(f"  buffer_load_dwordx4 v[{XR+4*i}:{XR+4*i+3}], v10, s[4:7], s28 offen offset:{128*i}" + XNT)
e(f"  v_add_u32 v1, {WRIMG}, v1")
e("  s_lshl_b32 s29, s2, 3"); e("  s_sub_u32 s29, 2047, s29"); e("  v_sub_u32 v11, s29, v9", "2047 - row"); e("  s_mov_b32 s30, 0xffff0000")
e(f"  s_and_b32 s29, s2, {REP-1}"); e(f"  s_mul_i32 s27, s29, {RS}"); e(f"  s_add_u32 s27, s27, {WS_GRAN}", "the copy of the granules this WG reads")
for j in range(1, 4): e(f"  s_add_u32 s{47+j}, s27, {64*GS*j}")
e("  s_and_b32 s29, s2, 7"); e("  s_lshl_b32 s29, s29, 5"); e("  s_lshr_b32 s31, s2, 3"); e("  s_add_u32 s29, s29, s31")
e(f"  s_mul_i32 s29, s29, {GS}"); e(f"  s_add_u32 s31, s29, {WS_GRAN}", "own granule")
e(f"  v_mul_u32_u24 v44, {GS}, v0")
for j in range(4): e(f"  v_mov_b32 v{12+j}, 0")
e("  v_bfrev_b32 v22, 1")
e(f"  v_bfe_u32 v21, v0, {LG}, {LR}"); e(f"  v_mul_u32_u24 v21, {RS}, v21"); e(f"  v_and_b32 v19, {GS//16-1}, v0"); e("  v_lshl_add_u32 v21, v19, 4, v21")
e(f"  s_mov_b32 s61, {SPIN}"); e(f"  v_mov_b32 v45, {TAGL}")
e("  s_waitcnt vmcnt(9) lgkmcnt(0)")
for i in range(9): e(f"  ds_read_b128 v[{WR+4*i}:{WR+4*i+3}], v1 offset:{128*i}")
e("  s_add_u32 s47, s47, 0x01010101", "tag of this launch"); e("  v_mov_b32 v18, s47")
for i in range(9):
    e(f"  s_waitcnt vmcnt({8-i}) lgkmcnt({8-i})")
    for j in range(4): e(f"  v_dot2c_f32_bf16 v{12+j}, v{XR+4*i+j}, v{WR+4*i+j}")
e("  s_nop 1")
e("  v_add_f32 v12, v12, v13"); e("  v_add_f32 v14, v14, v15"); e("  v_add_f32 v12, v12, v14")
e("  s_movk_i32 s29, 0x207"); e("  v_cmp_class_f32 s[96:97], v12, s29", "lanes that hold an inf or a NaN")
e(f"  v_add_f32_dpp v12, v12, v12 quad_perm:[1,0,3,2] {DPPM}"); e("  s_nop 1")
e(f"  v_add_f32_dpp v12, v12, v12 quad_perm:[2,3,0,1] {DPPM}"); e("  s_nop 1")
e(f"  v_add_f32_dpp v12, v12, v12 row_half_mirror {DPPM}")
cm("key = order-preserving bf16 score << 16 | 2047 - row; NaN sorts last")
e("  v_cvt_pk_bf16_f32 v13, v12, v12"); e("  v_cmp_u_f32 vcc, v12, v12"); e("  v_ashrrev_i32 v14, 31, v13")
e("  v_bitop3_b32 v13, v13, v14, v22 bitop3:0x1e"); e("  v_cndmask_b32 v13, v13, 0, vcc"); e("  v_and_or_b32 v13, v13, s30, v11")
e("  s_nop 1")
e(f"  v_max_u32_dpp v16, v13, v13 row_ror:8 {DPPM}"); e(f"  v_min_u32_dpp v17, v13, v13 row_ror:8 {DPPM}"); e("  s_nop 0")
for ctl in ("row_bcast:15 row_mask:0xa bank_mask:0xf", "row_bcast:31 row_mask:0xc bank_mask:0xf"):
    e(f"  v_min_u32_dpp v14, v16, v16 {ctl}"); e(f"  v_max_u32_dpp v16, v16, v16 {ctl}")
    e(f"  v_max_u32_dpp v15, v17, v17 {ctl}"); e("  v_max_u32 v17, v14, v15")
e(f"  s_lshl_b64 exec, {hex((1 << NL) - 1)}, 48", f"lanes 48..63 hold the pair: {REP} copies x {GS} bytes")
e("  buffer_store_dwordx4 v[16:19], v21, s[16:19], s31 offen" + HS)
stamp(3)
e(f"  s_cmp_lt_u32 s2, {NWT}"); e("  s_cbranch_scc1 L_XG"); e("  s_barrier", "prefetch WG: let the other waves fill the queue"); e("L_XG:")
e("  ds_write_b32 v45, v18"); e("  s_mov_b64 exec, -1")
slice_calc(); setup0(); setup1()
e(f"  s_cmp_ge_u32 s2, {NWT}"); e("  s_cbranch_scc1 L_XH")
def wd4():
    e("  s_mov_b32 exec_lo, 0x00ff00ff", "columns 512..575 of w_down"); e("  s_mov_b32 exec_hi, 0x00ff00ff")
    for mp in range(8): wd_load(mp)
    e("  s_mov_b64 exec, -1")
if WD4E: wd4()
if RP:
    e("  v_lshlrev_b32 v46, 7, v0"); e(f"  s_mul_i32 s29, s45, {32*1152}")
    for r in range(RP):
        e(f"  buffer_load_dword v{DUM}, v46, s[12:15], s29 offen" + PNT)
        if r < RP-1: e("  s_add_u32 s29, s29, 8192")
e("  s_waitcnt vmcnt(0)")
if O("nored5", 0): stamp(5)
e("L_P1:")
if O("lsl", 0): e(f"  s_sleep {O('lsl', 0)}", "back off before every read of the granules")
b = 48
for j in range(4): e(f"  buffer_load_dwordx4 v[{b+4*j}:{b+3+4*j}], v44, s[16:19], s{27 if j == 0 else 47+j} offen" + HL)
e("  s_waitcnt vmcnt(0)")
e(f"  v_cmp_ne_u32 vcc, s47, v{b+2}"); e(f"  v_cmp_ne_u32 s[32:33], s47, v{b+6}")
e(f"  v_cmp_ne_u32 s[38:39], s47, v{b+10}"); e(f"  v_cmp_ne_u32 s[40:41], s47, v{b+14}")
e("  s_or_b64 vcc, vcc, s[32:33]"); e("  s_or_b64 s[38:39], s[38:39], s[40:41]"); e("  s_or_b64 vcc, vcc, s[38:39]")
e("  s_cbranch_scc0 L_PT")
if not O("lsl", 0): e(f"  s_sleep {PSL}", "some granule is missing: back off and read again")
e("  s_sub_u32 s61, s61, 1"); e("  s_cbranch_scc0 L_P1")
e("  .p2align 3"); e("L_PT:")
def merge(a1, a2, b1, b2, o1, o2, t):
    e(f"  v_min_u32 v{t}, v{a1}, v{b1}"); e(f"  v_max_u32 v{o1}, v{a1}, v{b1}"); e(f"  v_max3_u32 v{o2}, v{t}, v{a2}, v{b2}")
merge(b, b+1, b+4, b+5, 40, 41, 12); merge(b+8, b+9, b+12, b+13, 42, 43, 13); merge(40, 41, 42, 43, 40, 41, 12)
e("  s_nop 0")
for ctl in (f"quad_perm:[1,0,3,2] {DPPM}", f"quad_perm:[2,3,0,1] {DPPM}", f"row_ror:4 {DPPM}", f"row_ror:8 {DPPM}",
            "row_bcast:15 row_mask:0xa bank_mask:0xf", "row_bcast:31 row_mask:0xc bank_mask:0xf"):
    e(f"  v_min_u32_dpp v12, v40, v40 {ctl}"); e(f"  v_max_u32_dpp v40, v40, v40 {ctl}")
    e(f"  v_max_u32_dpp v13, v41, v41 {ctl}"); e("  v_max_u32 v41, v12, v13")
e("  v_cmp_gt_u32 vcc, 8, v0"); e("  v_readlane_b32 s32, v40, 63", "global top-2 keys"); e("  v_readlane_b32 s33, v41, 63")
e(f"  s_cmp_ge_u32 s2, {NWT}"); e("  s_cbranch_scc1 L_XH2")
e("  s_and_b32 s38, s32, 0x7ff"); e("  s_and_b32 s39, s33, 0x7ff"); e("  s_sub_u32 s38, 2047, s38"); e("  s_sub_u32 s39, 2047, s39")
e("  s_mul_i32 s38, s38, 1152"); e("  s_mul_i32 s39, s39, 1152"); e(f"  s_mov_b32 m0, {XIMG}"); e("  s_sub_u32 s40, s39, 128")
e("  buffer_load_dwordx4 v8, s[4:7], s38 offen lds", "both routed rows -> LDS [2][1152 B]")
e("  s_add_u32 s41, s38, 1024"); e("  v_mov_b32 v12, s40"); e("  v_mov_b32 v13, s41"); e("  s_addk_i32 m0, 0x400")
e("  v_cndmask_b32 v12, v12, v13, vcc"); e("  v_add_u32 v12, v12, v8")
e("  buffer_load_dwordx4 v12, s[4:7], 0 offen lds")
e("  s_addk_i32 m0, 0x400"); e("  s_add_u32 s40, s39, 896"); e("  s_mov_b64 exec, 0xffff")
e("  buffer_load_dwordx4 v8, s[4:7], s40 offen lds"); e("  s_mov_b64 exec, -1")
stamp(1)
def final_setup():
    cm("last stage: lane row r = lane>>4 holds token r>>1, column 8u + 2(lane&3) + (r&1)")
    e("  v_cmp_gt_u32 vcc, 32, v0"); e("  v_mov_b32 v28, s33"); e("  v_mov_b32 v29, s32"); e("  v_and_b32 v31, 3, v0")
    e("  v_cndmask_b32 v28, v28, v29, vcc"); e("  v_and_b32 v29, 0xffff, v28"); e("  v_sub_u32 v29, 2047, v29")
    e("  v_mul_u32_u24 v29, 1152, v29"); e("  v_bfe_u32 v30, v0, 4, 1"); e("  v_lshlrev_b32 v30, 1, v30")
    e("  v_lshl_add_u32 v30, v31, 2, v30"); e("  v_add_u32 v29, v29, v30")
    e("  v_not_b32 v32, v28"); e("  v_ashrrev_i32 v32, 31, v32"); e("  v_or_b32 v32, 0x80000000, v32")
    e("  v_xor_b32 v32, v32, v28"); e("  v_and_b32 v32, 0xffff0000, v32", "the bf16 score back from the key"); e("  v_mul_f32 v32, 0xbfb8aa3b, v32")
    e("  v_exp_f32 v32, v32"); e("  v_lshrrev_b32 v33, 5, v0"); e("  v_add_f32 v32, 1.0, v32"); e("  v_rcp_f32 v32, v32")
    e("  v_mul_u32_u24 v33, 1152, v33"); e("  v_cvt_pk_bf16_f32 v32, v32, v32"); e("  v_and_b32 v32, 0xffff0000, v32", "sigmoid, rounded to bf16")
    e("  s_sub_u32 s46, s45, 72", "unit u = slice - 72"); e("  s_lshl_b32 s50, s46, 4"); e(f"  s_add_u32 s51, s50, {XIMG}"); e("  v_add3_u32 v33, v33, v30, s51")
    e("  v_lshrrev_b32 v34, 2, v0"); e("  v_mul_u32_u24 v34, 4608, v34"); e("  v_lshl_add_u32 v34, v31, 4, v34")
    e("  s_lshl_b32 s80, s46, 6"); e(f"  s_add_u32 s80, s80, {WS_SLAB}")
    for t in range(1, 9): e(f"  s_add_u32 s{80+t}, s80, {16*4608*t}")
    e("  s_mov_b32 s41, 0x0c04000c"); e("  s_mov_b32 s42, 0x04020100"); e("  v_mov_b32 v35, 0")
if EFS == 2: final_setup()
e("  s_barrier", "A: the rows are requested")
if not WD4E: wd4()
if EFS == 1: final_setup()
e(f"  s_waitcnt vmcnt({0 if WD4E else 8}) lgkmcnt(0)")
stamp(4, True)
e("  s_barrier", "B: the rows are in LDS")
if LOWP: e("  s_setprio 0")
if not LATEC: copy_stores(CW); e("  s_mov_b64 exec, -1")
if EFS == 0: final_setup()
if LOWP == 2: e("  s_setprio 3")
e("  s_branch L_JOIN")
e("L_XH:"); e("  s_barrier", "the prefetch is done"); e("  s_branch L_P1")
e("L_XH2:"); copy_stores(CH); e("  s_branch L_FIN")
cm("---------------------------------------------------------------- roles 0..3: (matrix, half of K)")
e("L_NOTX:")
e(f"  s_mov_b32 s10, {WB}")
e(f"  s_cmp_ge_u32 s2, {NWT}"); e("  s_cbranch_scc1 L_HELP")
slice_calc(); setup0()
e("  v_lshrrev_b32 v8, 2, v0"); e("  v_mul_u32_u24 v8, 9216, v8"); e("  v_lshrrev_b32 v9, 4, v0"); e("  v_and_b32 v9, 2, v9")
e("  v_xor_b32 v9, v9, v0"); e("  v_and_b32 v9, 3, v9"); e("  v_lshl_add_u32 v8, v9, 4, v8", "16 rows x 64 B, halves swapped in rows 8..15")
e("  s_and_b32 s28, s3, 1"); e(f"  s_mul_i32 s28, s28, {288*9216}"); e("  s_lshl_b32 s29, s45, 6"); e("  s_add_u32 s28, s28, s29")
e("  s_and_b32 s42, s45, 1", "the two WGs that share the lines start on different rows")
e(f"  s_mul_i32 s29, s42, {N0*QS}"); e(f"  s_add_u32 s46, s28, {2*N0*QS}"); e(f"  s_add_u32 s43, s28, {N0*QS}")
e("  s_sub_u32 s43, s43, s29"); e("  s_add_u32 s28, s28, s29")
e("  s_mul_i32 s30, s3, 18432"); e("  s_mov_b32 m0, s30")
e("  s_cmp_ge_u32 s3, 2"); e("  s_waitcnt lgkmcnt(0)")
e("  s_cselect_b32 s8, s26, s24"); e("  s_cselect_b32 s9, s27, s25")
stamp(1)
ops = [("W", i) for i in range(WE)] + [("D", i) for i in range(18)] + [("W", i) for i in range(WE, 8)]
pos = {op: n for n, op in enumerate(ops)}
nis = 0
def issue():
    global nis
    if nis >= len(ops): return False
    k, i = ops[nis]
    if k == "D":
        if i == N0: e("  s_mov_b32 s28, s43")
        if i == 2*N0: e("  s_mov_b32 s28, s46")
        e("  buffer_load_dwordx4 v8, s[8:11], s28 offen lds")
        if i < 17: e("  s_addk_i32 m0, 0x400"); e(f"  s_add_u32 s28, s28, {QS}")
    else: wd_load(i)
    nis += 1
    return True
def vwait(op): e(f"  s_waitcnt vmcnt({nis - pos[op] - 1})")
while nis < WE + min(N0, W1): issue()
setup1()
e("  v_lshlrev_b32 v9, 9, v3"); e("  v_bfe_u32 v10, v0, 2, 2"); e("  v_lshl_add_u32 v9, v10, 6, v9"); e("  v_and_b32 v10, 3, v0")
e("  v_lshl_add_u32 v9, v10, 3, v9"); e("  v_and_b32 v10, 1, v3"); e("  v_lshl_add_u32 v9, v10, 5, v9")
e("  v_add_u32 v9, s30, v9", "transposing reads, columns 0..15"); e("  v_xor_b32 v10, 32, v9", "columns 16..31")
e("  v_and_b32 v11, 1, v0"); e("  v_mul_u32_u24 v11, 1152, v11"); e("  v_lshl_add_u32 v11, v3, 4, v11")
e("  s_and_b32 s29, s3, 1"); e("  s_mul_i32 s29, s29, 576"); e(f"  s_add_u32 s29, s29, {XIMG}")
e(f"  s_mul_i32 s31, s42, {32*N0}")
e(f"  v_add_u32 v{VA2}, s29, v11", "x fragments"); e(f"  v_add_u32 v11, s31, v{VA2}"); e(f"  v_subrev_u32 v1, s31, v{VA2}")
e("  s_lshl_b32 s29, s3, 8"); e(f"  s_add_u32 s29, s29, {TEX}"); e(f"  v_lshl_add_u32 v{VXW}, v2, 3, s29")
def trreads(s):
    for hh in range(2):
        for u in range(2):
            r = BF + 8*s + 4*hh + 2*u
            e(f"  ds_read_b64_tr_b16 v[{r}:{r+1}], v{9+hh} offset:{2048*s+256*u}")
def mfmas(s):
    for hh in range(2):
        c = "0" if s == 0 else f"v[{ACC+4*hh}:{ACC+4*hh+3}]"
        r = BF + 8*s + 4*hh
        e(f"  v_mfma_f32_16x16x32_bf16 v[{ACC+4*hh}:{ACC+4*hh+3}], v[{AF+4*s}:{AF+4*s+3}], v[{r}:{r+3}], {c}")
E0 = N0 // 2
for s in range(PB):
    for h in range(2):
        need = 2*s + h
        def ok():
            if nis >= len(ops) or ops[nis][0] != "D": return False
            i = ops[nis][1]
            return i < need + 1 + W1 if i < N0 else (need >= N0 - 1 and i < need + 1 + W2)
        if ok() or h == 1: vwait(("D", need))
        while ok(): issue()
    if s == 0: stamp(2)
    trreads(s)
while ops[nis][0] == "D": issue()
stamp(5)
e("  s_barrier", "A")
while issue(): pass
e("  s_waitcnt lgkmcnt(0)"); e("  s_barrier", "B")
stamp(4, True); fs(1, True)
if CPRIO: e(f"  s_setprio {CPRIO}")
order = []
for s in range(9):
    ar = 11 if s < E0 else (1 if s < 2*E0 else VA2)
    e(f"  ds_read_b128 v[{AF+4*s}:{AF+4*s+3}], v{ar} offset:{64*s}"); order.append(f"A{s}")
late = list(range(PB, 9))
for s in range(9):
    if late and late[0] <= s + 1:
        t = late.pop(0); vwait(("D", 2*t+1)); trreads(t); order += [f"T{t}"]*4
    tag = f"A{s}" if s < PB else f"T{s}"
    need = len(order) - 1 - order[::-1].index(tag)
    e(f"  s_waitcnt lgkmcnt({min(15, len(order) - need - 1)})")
    mfmas(s)
stamp(3); fs(2)
e("  s_mov_b64 exec, 0xffff"); e("  s_nop 6")
e(f"  ds_write2_b64 v{VXW}, v[{ACC}:{ACC+1}], v[{ACC+4}:{ACC+5}] offset0:0 offset1:16")
e("  s_mov_b64 exec, -1")
cm("---------------------------------------------------------------- all 5 waves: SwiGLU, 128 columns of w_down each")
e("L_JOIN:")
e("  s_waitcnt lgkmcnt(0)"); fs(3, True); e("  s_barrier", "C: the four partial pre-activations are in LDS"); fs(4)
e("  ds_read2_b32 v[12:13], v5 offset0:0 offset1:64"); e("  ds_read2_b32 v[14:15], v5 offset0:128 offset1:192")
e(f"  ds_read_b32 v23, v{VTAG}")
e("  s_cmp_eq_u32 s3, 4"); e("  s_waitcnt lgkmcnt(0)")
e("  v_add_f32 v12, v12, v13"); e("  v_add_f32 v14, v14, v15")
e("  v_cvt_pk_bf16_f32 v12, v12, v14"); e("  v_lshlrev_b32 v13, 16, v12"); e("  v_mul_f32 v15, 0xbfb8aa3b, v13"); e("  v_exp_f32 v15, v15")
e("  v_and_b32 v14, 0xffff0000, v12"); e("  v_add_f32 v15, 1.0, v15"); e("  v_rcp_f32 v15, v15"); e("  s_nop 0")
e("  v_mul_f32 v13, v13, v15"); e("  v_cvt_pk_bf16_f32 v13, v13, v13"); e("  v_and_b32 v13, 0xffff0000, v13")
e("  v_mul_f32 v13, v13, v14"); e("  v_cvt_pk_bf16_f32 v13, v13, v13", "h = bf16(bf16(silu(a)) * u), in both halves")
fs(5)
e("  s_cbranch_scc1 L_W4"); e("  s_waitcnt vmcnt(0)"); e("L_W4:"); fs(6); e("  s_nop 0" if WD4E else f"  s_waitcnt vmcnt({0 if LATEC else 9})")
e(f"  v_and_b32_dpp v12, v13, v6 quad_perm:[0,0,2,2] {DPPM}"); e(f"  v_and_b32_dpp v16, v13, v6 quad_perm:[1,1,3,3] {DPPM}")
e("  s_nop 0"); e("  .p2align 3")
cm("A = h on a diagonal: D[token, column parity and pair][chunk] sums 4 rows of w_down per MFMA")
for mp in range(8):
    src = 12 if mp < 4 else 16; qq = mp & 3
    for r in range(4):
        n = (4*(r-qq)) % 16
        ctl = "quad_perm:[0,1,2,3]" if n == 0 else f"row_ror:{n}"
        e(f"  v_mov_b32_dpp v{AD+4*mp+r}, v{src} {ctl} row_mask:0xf bank_mask:{hex(1<<r)}")
    if mp >= 1:
        m = mp - 1; c = "0" if m == 0 else f"v[{ACC}:{ACC+3}]"
        e(f"  v_mfma_f32_16x16x32_bf16 v[{ACC}:{ACC+3}], v[{AD+4*m}:{AD+4*m+3}], v[{WD+4*m}:{WD+4*m+3}], {c}")
e("  s_nop 0")
e(f"  v_mfma_f32_16x16x32_bf16 v[{ACC}:{ACC+3}], v[{AD+28}:{AD+31}], v[{WD+28}:{WD+31}], v[{ACC}:{ACC+3}]")
e("  s_cselect_b32 exec_lo, 0x00ff00ff, -1"); e("  s_cselect_b32 exec_hi, 0x00ff00ff, -1"); e("  s_nop 5")
cm("4 sums (top 24 bits each) + tag in 16 bytes")
for j in range(3): e(f"  v_perm_b32 v{20+j}, v{ACC+j}, v{ACC+3}, s{56+j}")
e("  buffer_store_dwordx4 v[20:23], v7, s[16:19], s36 offen" + HS)
if STAMP:
    e("  s_cbranch_scc1 L_S6"); stamp(6); e("  s_branch L_FIN"); e("L_S6:"); stamp(2)
else: e("  s_cbranch_scc0 L_FIN")
if LATEC == 1: e("  s_mov_b64 exec, -1"); copy_stores(CW)
e("  s_cmp_ge_u32 s46, 72"); e(f"  s_cbranch_scc1 {'L_WC' if LATEC == 2 else 'L_FIN'}")
cm("---------------------------------------------------------------- 72 waves: sum over the 144 WGs, write the routed rows")
e("  s_mov_b64 exec, -1"); e("  ds_read_u16_d16_hi v35, v33"); e(f"  s_mov_b32 s61, {SPIN}")
e("  s_waitcnt vmcnt(0)")
stamp(6)
if RSL: e(f"  s_sleep {RSL}")
def rload(t): e(f"  buffer_load_dwordx4 v[{R0+4*t}:{R0+3+4*t}], v34, s[16:19], s{80+t} offen" + HL)
def racc(t):
    r = R0 + 4*t
    e(f"  v_perm_b32 v{r+3}, v{r+1}, v{r}, s41"); e(f"  v_perm_b32 v{r+3}, v{r+2}, v{r+3}, s42")
    if t:
        e(f"  v_pk_add_f32 v[{R0}:{R0+1}], v[{R0}:{R0+1}], v[{r}:{r+1}]"); e(f"  v_pk_add_f32 v[{R0+2}:{R0+3}], v[{R0+2}:{R0+3}], v[{r+2}:{r+3}]")
def rchain(extra, lab):
    for t in range(9):
        if lab: e(f"L_R{t}:")
        e(f"  s_waitcnt vmcnt({8-t+extra})"); e(f"  v_cmp_ne_u32 vcc, s47, v{R0+4*t+3}"); e(f"  s_cbranch_vccnz L_RR{t}")
        if lab: e(f"L_RA{t}:")
        racc(t)
for t in range(9): rload(t)
if LATEC == 2:
    copy_stores(CW); e("  s_mov_b64 exec, -1")
    rchain(9, False)
    e("L_RD:")
else:
    rchain(0, True)
if not O("nored5", 0): stamp(5)
e("  s_nop 1"); e(f"  v_permlane32_swap_b32 v{R0}, v{R0+2}"); e(f"  v_permlane32_swap_b32 v{R0+1}, v{R0+3}")
e(f"  v_add_f32 v{R0}, v{R0}, v{R0+2}"); e(f"  v_add_f32 v{R0+1}, v{R0+1}, v{R0+3}"); e("  s_nop 1")
e(f"  v_permlane16_swap_b32 v{R0}, v{R0+1}"); e(f"  v_add_f32 v{R0}, v{R0}, v{R0+1}"); e("  s_nop 1")
e(f"  v_add_f32_dpp v{R0}, v{R0}, v{R0} row_ror:4 {DPPM}"); e("  s_nop 1"); e(f"  v_add_f32_dpp v{R0}, v{R0}, v{R0} row_ror:8 {DPPM}")
e(f"  v_cvt_pk_bf16_f32 v16, v{R0}, v{R0}"); e("  v_and_b32 v16, 0xffff0000, v16"); e("  v_mul_f32 v16, v16, v32")
e("  v_cvt_pk_bf16_f32 v16, v16, v16"); e("  v_and_b32 v16, 0xffff0000, v16"); e("  s_waitcnt lgkmcnt(0)")
e("  v_add_f32 v16, v16, v35"); e("  v_cvt_pk_bf16_f32 v16, v16, v16")
e("  s_mov_b32 exec_lo, 0x000f000f"); e("  s_mov_b32 exec_hi, 0x000f000f")
e("  buffer_store_short v16, v29, s[20:23], s50 offen" + CFN)
e("  s_cmp_lg_u32 s46, 0"); e("  s_cbranch_scc1 L_FIN")
e("  s_mov_b64 exec, 1", "every reader of d_ws[0] is behind the sums seen here"); e("  v_mov_b32 v16, s47"); e(f"  v_mov_b32 v17, {WS_E}")
e("  buffer_store_dword v16, v17, s[16:19], 0 offen" + CFN)
e("L_FIN:"); stamp_flush(); e("L_END:"); e("  s_endpgm")
if LATEC == 2:
    e("L_WC:"); e("  s_mov_b64 exec, -1"); e("  s_branch L_XH2")
    rchain(0, True); e("  s_branch L_RD")
for t in range(9):
    e(f"L_RR{t}:"); e("  s_sub_u32 s61, s61, 1"); e(f"  s_cbranch_scc1 L_RA{t}")
    for t2 in range(t, 9): rload(t2)
    e(f"  s_branch L_R{t}")
cm("---------------------------------------------------------------- prefetch waves: one word per 128-byte line")
e("L_HELP:")
e(f"  s_sub_u32 s28, s2, {NWT}"); e("  s_and_b32 s29, s28, 7"); e("  s_lshr_b32 s28, s28, 3")
e("  s_and_b32 s33, s3, 1"); e("  s_mul_i32 s33, s33, 288"); e(f"  s_mul_i32 s32, s28, {HR}"); e("  s_add_u32 s32, s32, s33")
e(f"  s_add_u32 s32, s32, {32*N0}"); e("  s_mul_i32 s32, s32, 9216"); e("  s_mul_i32 s34, s29, 1152"); e("  s_add_u32 s32, s32, s34")
e("  v_mul_u32_u24 v3, 0x1c72, v0"); e("  v_lshrrev_b32 v3, 16, v3", "lane / 9"); e("  v_mul_u32_u24 v4, 9, v3"); e("  v_sub_u32 v4, v0, v4")
e("  v_mul_u32_u24 v3, 9216, v3"); e("  v_lshl_add_u32 v3, v4, 7, v3")
e("  s_lshl2_add_u32 s28, s28, s3")
e(f"  s_mul_i32 s29, s29, {5184*128}")
if RP: e(f"  s_add_u32 s29, s29, {RP*8192}")
e("  v_lshlrev_b32 v2, 7, v0")
nr = -(-(288 - 32*N0) // (NH*HR))
assert nr - HG >= 1
e(f"  s_mov_b32 s30, {nr-HG}")
e("  s_cmp_ge_u32 s3, 2"); e("  s_waitcnt lgkmcnt(0)")
e("  s_cselect_b32 s8, s26, s24"); e("  s_cselect_b32 s9, s27, s25")
if O("tw", 0):
    e("  s_load_dword s40, s[12:13], 0", "first touch of w_down and d_out: address translation only")
    e("  s_load_dword s41, s[20:21], 0")
e(f"  s_bfm_b64 exec, {9*HR}, 0")
for r in range(HG):
    e(f"  buffer_load_dword v{DUM}, v3, s[8:11], s32 offen" + GNT); e(f"  s_add_u32 s32, s32, {NH*HR*9216}")
CPS = 9 - 2*RP
def wchunk(wait):
    e(f"  s_mul_hi_u32 s35, s28, {(2**32 + CPS - 1)//CPS}"); e(f"  s_mul_i32 s31, s35, {CPS}"); e("  s_sub_u32 s31, s28, s31")
    e("  s_mul_i32 s35, s35, 36864"); e("  s_lshl_b32 s31, s31, 12"); e("  s_add_u32 s35, s35, s31"); e("  s_add_u32 s35, s35, s29")
    if wait: e(f"  s_waitcnt vmcnt({HT-1})")
    e(f"  buffer_load_dword v{DUM}, v2, s[12:15], s35 offen" + PNT)
    e("  s_add_u32 s28, s28, 56")
e("  s_barrier"); stamp(1)
if HWF:
    e("  s_bfm_b64 exec, 32, 0")
    for _ in range(HWF): wchunk(False)
    e(f"  s_bfm_b64 exec, {9*HR}, 0")
e("L_HGL:"); e(f"  s_waitcnt vmcnt({HT-1+HX})"); e(f"  buffer_load_dword v{DUM}, v3, s[8:11], s32 offen" + GNT)
e(f"  s_add_u32 s32, s32, {NH*HR*9216}"); e("  s_sub_u32 s30, s30, 1"); e("  s_cmp_lg_u32 s30, 0"); e("  s_cbranch_scc1 L_HGL")
if O("gul", 0): e("  s_waitcnt vmcnt(0)")
stamp(2)
e("  s_bfm_b64 exec, 32, 0")
e("L_HWL:")
wchunk(True)
e(f"  s_cmp_lt_u32 s28, {18*CPS}"); e("  s_cbranch_scc1 L_HWL")
e("  s_waitcnt vmcnt(0)"); e("  s_barrier"); e("  s_branch L_FIN")
e("L_CODE_END:")
cm("rare path: x + x*0 turns an infinity into a NaN")
for n in range(1, ncopy+1):
    e(f"L_FIX{n}:"); e(f"  s_mov_b32 s98, {n}"); e("  s_branch L_FIX")
e("L_FIX:"); e("  s_mov_b32 s29, 0x07060302")
for j in range(36):
    r = XR + j
    e(f"  v_lshlrev_b32 v12, 16, v{r}"); e(f"  v_and_b32 v13, 0xffff0000, v{r}"); e("  v_fma_f32 v12, v12, 0, v12"); e("  v_fma_f32 v13, v13, 0, v13")
    e(f"  v_perm_b32 v{r}, v13, v12, s29")
e("  s_cmp_eq_u32 s98, 1"); e("  s_cbranch_scc1 L_FIXR1"); e("  s_branch L_FIXR2")
e('.section .rodata,"a"'); e(".p2align 6"); e(f".amdhsa_kernel {K}")
e("  .amdhsa_next_free_vgpr 200"); e("  .amdhsa_next_free_sgpr 102"); e("  .amdhsa_accum_offset 200")
e("  .amdhsa_group_segment_fixed_size 0"); e("  .amdhsa_kernarg_size 64"); e("  .amdhsa_user_sgpr_count 2")
e("  .amdhsa_user_sgpr_kernarg_segment_ptr 1"); e("  .amdhsa_system_sgpr_workgroup_id_x 1"); e("  .amdhsa_float_denorm_mode_32 3")
e(".end_amdhsa_kernel")
open(sys.argv[1], "w").write("\n".join(out) + "\n")
```

```python
import sys
NAME = "standalone__moe_arch_mod__prompt"
S, D, F = 2048, 576, 4608
XB = S*D*2
WB = D*F*2
opts = dict(a.split("=") for a in sys.argv[2:] if "=" in a)
def O(k, d): return int(opts.get(k, d))
STAMP = O("stamp", 0); AMP = opts.get("amp"); FINE = O("fine", 0)
if AMP: STAMP = 1
GS = O("gs", 64); REP = O("rep", 4); RS = 256*GS
LG = {16: 0, 32: 1, 64: 2}[GS]; LR = {1: 0, 2: 1, 4: 2, 8: 3}[REP]; NL = REP*GS//16
assert NL <= 16
WS_E = 0; WS_GRAN = 4096; WS_SLAB = 4096 + REP*RS; WS_SIZE = 1 << 20; WS_STAMP = 1 << 21
N0 = O("n0", 2); W1 = O("w1", 4); W2 = O("w2", 4); WE = O("we", 0); PB = O("pb", 7); RP = O("rp", 0)
HR = O("hr", 4); HT = O("ht", 2); HG = O("hg", 1)
PSL = O("psl", 2); SPIN = O("spin", 200000); RSL = O("rsl", 0)
CFN = {0: "", 1: " sc1", 2: " sc0 sc1"}[O("cf", 0)]; WNT = " nt" if O("wnt", 0) else ""; PNT = " nt" if O("pnt", 0) else ""; GNT = " nt" if O("gnt", 0) else ""; XNT = " nt" if O("xnt", 0) else ""; LATEC = O("latec", 1); FL = {0: "", 1: " sc1", 2: " sc0 sc1", 3: " sc1 nt", 4: " nt"}; HS = FL[O("hs", 1)]; HL = FL[O("hl", 1)]; CW = FL[O("cw", 1)]; CH = FL[O("ch", 1)]; WD4E = O("wd4e", 1); HWF = O("hwf", 0); HX = O("hx", 0); EFS = O("efs", 1); LOWP = O("lowp", 1); CPRIO = O("cprio", 0)
NWT = 144; NH = 14
out = []
def e(s="", c=None): out.append(s if c is None else f"{s:<72}; {c}")
def cm(s): out.append("; " + s)
def stamp(i, wait=False):
    if STAMP and (i in (0, 7) or not FINE):
        e(f"  s_memrealtime s[{64+2*i}:{65+2*i}]")
        if wait: e("  s_waitcnt lgkmcnt(0)")
def fs(i, wait=False):
    if FINE:
        e(f"  s_memtime s[{64+2*i}:{65+2*i}]")
        if wait: e("  s_waitcnt lgkmcnt(0)")
def stamp_flush():
    if AMP:
        A, B, KK, WV, WG = map(int, AMP.split(","))
        if O("endw", 0): e("  s_waitcnt vmcnt(0)")
        stamp(7, True)
        e(f"  s_cmp_lg_u32 s2, {WG}"); e("  s_cbranch_scc1 L_AMPX")
        e(f"  s_cmp_lg_u32 s3, {WV}"); e("  s_cbranch_scc1 L_AMPX")
        if A >= 30:
            e("  s_sleep 60"); e("  s_mov_b64 exec, -1"); e("  v_lshlrev_b32 v1, 4, v0"); e("  v_mov_b32 v2, 0x80000000"); e("  v_mov_b32 v3, 0")
            for i in range(18):
                e(f"  s_mov_b32 s92, {0xd0000 + 1024*i}")
                e("  buffer_load_dwordx4 v[24:27], v1, s[16:19], s92 offen sc1"); e("  s_waitcnt vmcnt(0)")
                if A in (30, 31, 32, 35): e("  v_subrev_u32 v24, s64, v24")
                elif A == 33: e("  v_sub_u32 v24, v24, v25")
                else: e("  v_subrev_u32 v24, s64, v25")
                e("  v_lshlrev_b32 v24, 12, v24"); e(f"  v_add_u32 v25, {64*i}, v0"); e("  v_or_b32 v24, v24, v25")
                e("  v_cmp_eq_u32 vcc, s47, v26"); e("  s_nop 1"); e("  v_cndmask_b32 v24, v2, v24, vcc"); e("  v_max_i32 v3, v3, v24" if i else "  v_mov_b32 v3, v24")
            for ctl in ("quad_perm:[1,0,3,2] row_mask:0xf bank_mask:0xf", "quad_perm:[2,3,0,1] row_mask:0xf bank_mask:0xf", "row_ror:4 row_mask:0xf bank_mask:0xf", "row_ror:8 row_mask:0xf bank_mask:0xf",
                        "row_bcast:15 row_mask:0xa bank_mask:0xf", "row_bcast:31 row_mask:0xc bank_mask:0xf"):
                e("  s_nop 1"); e(f"  v_max_i32_dpp v3, v3, v3 {ctl}")
            e("  s_nop 1"); e("  v_readlane_b32 s60, v3, 63")
            if A in (30, 33, 34): e("  s_ashr_i32 s60, s60, 12")
            elif A == 31: e("  s_bfe_u32 s60, s60, 0x30003")
            elif A == 32: e("  s_and_b32 s60, s60, 7")
            else: e("  s_bfe_u32 s60, s60, 0x50006")
            e("  s_memrealtime s[78:79]"); e("  s_waitcnt lgkmcnt(0)")
        else:
            e(f"  s_sub_u32 s60, s{64+2*B}, s{64+2*A}")
        e(f"  s_mul_i32 s60, s60, {KK}")
        e("L_AMP:"); e("  s_memrealtime s[62:63]"); e("  s_waitcnt lgkmcnt(0)"); e("  s_sub_u32 s62, s62, s78")
        e("  s_cmp_lt_u32 s62, s60"); e("  s_cbranch_scc1 L_AMP"); e("L_AMPX:")
    elif STAMP:
        if FINE: e("  s_memtime s[78:79]"); e("  s_waitcnt lgkmcnt(0)")
        else: stamp(7, True)
        e("  s_mov_b64 exec, 1")
        e("  s_lshl_b32 s60, s2, 3"); e("  s_add_u32 s60, s60, s3"); e("  s_lshl_b32 s60, s60, 6")
        e(f"  s_add_u32 s60, s60, {WS_STAMP}"); e("  s_mov_b32 s18, 0x1000000"); e("  v_mov_b32 v1, 0")
        for j in range(4):
            for k in range(4): e(f"  v_mov_b32 v{4+k}, s{64+4*j+k}")
            e(f"  buffer_store_dwordx4 v[4:7], v1, s[16:19], s60 offen offset:{16*j}"); e("  s_nop 1")

hdr = open('cdna_kernels/%s.s.ref' % NAME).read().split('\n')
for l in hdr:
    if l.startswith('; @launch'): break
    e(l)
XIMG = 73728; TAGL = XIMG + 2304; TEX = XIMG + 3072; WRIMG = TEX + 1024; LDS = 83968
e(f"; @launch grid=(256,1,1) block=(320,1,1) lds={LDS}")
DOC = """
One launch, 256 workgroups of 5 waves, one per CU (LDS and VGPR use allow one).
 role 4 (wave 0), every WG : 8 rows of x -> router scores -> local top-2 -> tagged granule in d_ws,
                             later the copy of its rows that were not routed.
 WGs 0..143, roles 0..3    : 32 columns of w_gate / w_up (LDS-DMA, transposing LDS reads, MFMA),
                             SwiGLU, the matching 32 rows of w_down (MFMA), tagged partial sums in d_ws.
 WGs 0..143, role 4        : gathers the 256 granules, global top-2, brings both rows into LDS;
                             72 of them add up the 144 partial sums of 8 columns and write the routed rows.
 WGs 144..255, roles 0..3  : pull weight lines into the L2 that the weight WGs with the same id mod 8
                             are expected to share (speed only, nothing depends on it).
 Hand-offs between WGs are 16-byte pieces that carry a tag, written and read with sc1.
 tag = d_ws[0] + 0x01010101; d_ws[0] is set to the tag at the end, so it differs from launch to launch.
"""
for l in DOC.strip("\n").split("\n"): cm(l)
e('.amdgcn_target "amdgcn-amd-amdhsa--gfx950"'); e(".text")
K = NAME + "_kernel"
e(f".globl {K}"); e(".p2align 8"); e(f".type {K},@function"); e(f"{K}:")
DPPM = "row_mask:0xf bank_mask:0xf"
AF = 12; BF = 48; ACC = 120; WD = 128; AD = 160; XR = 84; WR = 48; R0 = 48
VXW = 192; VA2 = 193; VTAG = 194; DUMC = 196; DUM = 197
QS = 16*9216

def slice_calc():
    e("  s_and_b32 s45, s2, 7"); e("  s_mul_i32 s45, s45, 18"); e("  s_lshr_b32 s44, s2, 3")
    e("  s_add_u32 s45, s45, s44", "slice: neighbours are 8 ids apart")
def setup0():
    e("  v_and_b32 v2, 15, v0"); e("  v_lshrrev_b32 v3, 4, v0")
    e("  v_mul_u32_u24 v4, 9216, v3"); e("  v_lshl_add_u32 v4, v2, 4, v4", "w_down: row 8g, 16-byte chunk c")
    e(f"  s_mul_i32 s34, s45, {32*1152}"); e("  s_lshl_b32 s35, s3, 8"); e("  s_add_u32 s34, s34, s35"); e("  s_add_u32 s35, s34, 4608")
def setup1():
    e("  v_lshrrev_b32 v5, 2, v2"); e("  v_lshl_add_u32 v5, v3, 3, v5"); e("  v_and_b32 v6, 1, v0"); e("  v_lshl_add_u32 v5, v6, 2, v5")
    e("  v_lshlrev_b32 v5, 3, v5"); e("  v_and_b32 v6, 2, v0"); e("  v_lshl_add_u32 v5, v6, 1, v5")
    e(f"  v_add_u32 v5, {TEX}, v5", "exchange table: this lane's (f, token)")
    e("  v_and_b32 v6, 1, v0"); e("  v_cmp_eq_u32 vcc, 1, v6"); e("  v_mov_b32 v6, 0xffff"); e("  v_mov_b32 v7, 0xffff0000")
    e("  v_cndmask_b32 v6, v6, v7, vcc", "half-word mask by lane parity")
    e("  v_lshlrev_b32 v7, 6, v2"); e("  v_lshl_add_u32 v7, v3, 4, v7", "partial-sum piece of this lane")
    e("  s_mul_i32 s36, s45, 4608"); e("  s_lshl_b32 s37, s3, 10"); e("  s_add_u32 s36, s36, s37"); e(f"  s_add_u32 s36, s36, {WS_SLAB}")
    e(f"  v_mov_b32 v{VTAG}, {TAGL}")
    e("  s_mov_b32 s56, 0x07060501"); e("  s_mov_b32 s57, 0x07060502"); e("  s_mov_b32 s58, 0x07060503")
    for j in range(0, 32, 2): e(f"  v_mov_b64 v[{AD+j}:{AD+j+1}], 0")
def wd_load(mp): e(f"  buffer_load_dwordx4 v[{WD+4*mp}:{WD+4*mp+3}], v4, s[12:15], s{34+(mp>>2)} offen offset:{1152*(mp&3)}" + WNT)
ncopy = 0
def copy_stores(fl=""):
    global ncopy
    ncopy += 1
    e("  s_and_b32 s38, s32, 0xffff"); e("  s_and_b32 s39, s33, 0xffff")
    e("  v_cmp_ne_u32 s[52:53], s38, v11"); e("  v_cmp_ne_u32 s[54:55], s39, v11")
    e("  s_and_b64 exec, s[52:53], s[54:55]", "rows that are not routed")
    e("  s_cmp_lg_u64 s[96:97], 0"); e(f"  s_cbranch_scc1 L_FIX{ncopy}"); e(f"L_FIXR{ncopy}:")
    for i in range(9): e(f"  buffer_store_dwordx4 v[{XR+4*i}:{XR+4*i+3}], v10, s[20:23], s28 offen offset:{128*i}{fl}")

if STAMP:
    for i in range(2, 16): e(f"  s_mov_b32 s{64+i}, 0")
stamp(0)
cm("SRDs: x s[4:7], w_r or w_gate/w_up s[8:11], w_down s[12:15], d_ws s[16:19], d_out s[20:23]")
e("  s_load_dwordx2 s[4:5], s[0:1], 0"); e("  s_load_dwordx2 s[8:9], s[0:1], 8"); e("  s_load_dwordx2 s[16:17], s[0:1], 56")
e("  s_load_dwordx4 s[24:27], s[0:1], 16"); e("  s_load_dwordx2 s[12:13], s[0:1], 32"); e("  s_load_dwordx2 s[20:21], s[0:1], 40")
e("  s_getpc_b64 s[28:29]", "read one word of every line of the code: it lands in L2"); e("L_PC:")
e("  v_lshlrev_b32 v2, 7, v0"); e("  v_cmp_gt_u32 vcc, (L_CODE_END-L_PC+127)/128, v0")
e("  s_and_saveexec_b64 s[30:31], vcc"); e("  s_cbranch_execz L_NOPF")
e(f"  global_load_dword v{DUMC}, v2, s[28:29]"); e("L_NOPF:"); e("  s_mov_b64 exec, -1")
e("  v_lshrrev_b32 v1, 6, v0"); e("  v_and_b32 v0, 63, v0"); e("  v_readfirstlane_b32 s3, v1")
e("  s_cmp_ge_u32 s2, 256"); e("  s_cbranch_scc1 L_END")
e("  s_sub_u32 s3, s3, 1", "role: wave 0 -> 4, wave k -> k-1"); e("  s_cselect_b32 s3, 4, s3")
for r, v in ((6, XB), (7, "0x20000"), (11, "0x20000"), (14, WB), (15, "0x20000"), (18, WS_SIZE), (19, "0x20000"), (22, XB), (23, "0x20000")):
    e(f"  s_mov_b32 s{r}, {v}")
e("  s_cmp_lg_u32 s3, 4"); e("  s_cbranch_scc1 L_NOTX")
cm("---------------------------------------------------------------- role 4: router scores of 8 rows")
e("  s_setprio 3")
e(f"  s_mov_b32 s10, {D*2}"); e(f"  s_mov_b32 m0, {WRIMG}")
e("  v_lshlrev_b32 v8, 4, v0"); e("  v_and_b32 v1, 0x70, v8"); e("  v_lshrrev_b32 v9, 3, v0")
e("  v_mul_u32_u24 v10, 1152, v9"); e("  v_add_u32 v10, v10, v1", "8 lanes per row"); e("  s_mul_i32 s28, s2, 9216")
e("  s_waitcnt lgkmcnt(0)")
e(f"  s_load_dword s47, s[16:17], {WS_E}")
e("  buffer_load_dwordx4 v8, s[8:11], 0 offen lds", "w_r -> LDS"); e("  s_mov_b64 exec, 0xff")
e("  buffer_load_dwordx4 v8, s[8:11], 0 offen offset:1024 lds"); e("  s_mov_b64 exec, -1")
for i in range(9): e(f"  buffer_load_dwordx4 v[{XR+4*i}:{XR+4*i+3}], v10, s[4:7], s28 offen offset:{128*i}" + XNT)
e(f"  v_add_u32 v1, {WRIMG}, v1")
e("  s_lshl_b32 s29, s2, 3"); e("  s_sub_u32 s29, 2047, s29"); e("  v_sub_u32 v11, s29, v9", "2047 - row"); e("  s_mov_b32 s30, 0xffff0000")
e(f"  s_and_b32 s29, s2, {REP-1}"); e(f"  s_mul_i32 s27, s29, {RS}"); e(f"  s_add_u32 s27, s27, {WS_GRAN}", "the copy of the granules this WG reads")
for j in range(1, 4): e(f"  s_add_u32 s{47+j}, s27, {64*GS*j}")
e("  s_and_b32 s29, s2, 7"); e("  s_lshl_b32 s29, s29, 5"); e("  s_lshr_b32 s31, s2, 3"); e("  s_add_u32 s29, s29, s31")
e(f"  s_mul_i32 s29, s29, {GS}"); e(f"  s_add_u32 s31, s29, {WS_GRAN}", "own granule")
e(f"  v_mul_u32_u24 v44, {GS}, v0")
for j in range(4): e(f"  v_mov_b32 v{12+j}, 0")
e("  v_bfrev_b32 v22, 1")
e(f"  v_bfe_u32 v21, v0, {LG}, {LR}"); e(f"  v_mul_u32_u24 v21, {RS}, v21"); e(f"  v_and_b32 v19, {GS//16-1}, v0"); e("  v_lshl_add_u32 v21, v19, 4, v21")
e(f"  s_mov_b32 s61, {SPIN}"); e(f"  v_mov_b32 v45, {TAGL}")
e("  s_waitcnt vmcnt(9) lgkmcnt(0)")
for i in range(9): e(f"  ds_read_b128 v[{WR+4*i}:{WR+4*i+3}], v1 offset:{128*i}")
e("  s_add_u32 s47, s47, 0x01010101", "tag of this launch"); e("  v_mov_b32 v18, s47")
for i in range(9):
    e(f"  s_waitcnt vmcnt({8-i}) lgkmcnt({8-i})")
    for j in range(4): e(f"  v_dot2c_f32_bf16 v{12+j}, v{XR+4*i+j}, v{WR+4*i+j}")
e("  s_nop 1")
e("  v_add_f32 v12, v12, v13"); e("  v_add_f32 v14, v14, v15"); e("  v_add_f32 v12, v12, v14")
e("  s_movk_i32 s29, 0x207"); e("  v_cmp_class_f32 s[96:97], v12, s29", "lanes that hold an inf or a NaN")
e(f"  v_add_f32_dpp v12, v12, v12 quad_perm:[1,0,3,2] {DPPM}"); e("  s_nop 1")
e(f"  v_add_f32_dpp v12, v12, v12 quad_perm:[2,3,0,1] {DPPM}"); e("  s_nop 1")
e(f"  v_add_f32_dpp v12, v12, v12 row_half_mirror {DPPM}")
cm("key = order-preserving bf16 score << 16 | 2047 - row; NaN sorts last")
e("  v_cvt_pk_bf16_f32 v13, v12, v12"); e("  v_cmp_u_f32 vcc, v12, v12"); e("  v_ashrrev_i32 v14, 31, v13")
e("  v_bitop3_b32 v13, v13, v14, v22 bitop3:0x1e"); e("  v_cndmask_b32 v13, v13, 0, vcc"); e("  v_and_or_b32 v13, v13, s30, v11")
e("  s_nop 1")
e(f"  v_max_u32_dpp v16, v13, v13 row_ror:8 {DPPM}"); e(f"  v_min_u32_dpp v17, v13, v13 row_ror:8 {DPPM}"); e("  s_nop 0")
for ctl in ("row_bcast:15 row_mask:0xa bank_mask:0xf", "row_bcast:31 row_mask:0xc bank_mask:0xf"):
    e(f"  v_min_u32_dpp v14, v16, v16 {ctl}"); e(f"  v_max_u32_dpp v16, v16, v16 {ctl}")
    e(f"  v_max_u32_dpp v15, v17, v17 {ctl}"); e("  v_max_u32 v17, v14, v15")
e(f"  s_lshl_b64 exec, {hex((1 << NL) - 1)}, 48", f"lanes 48..63 hold the pair: {REP} copies x {GS} bytes")
e("  buffer_store_dwordx4 v[16:19], v21, s[16:19], s31 offen" + HS)
stamp(3)
e(f"  s_cmp_lt_u32 s2, {NWT}"); e("  s_cbranch_scc1 L_XG"); e("  s_barrier", "prefetch WG: let the other waves fill the queue"); e("L_XG:")
e("  ds_write_b32 v45, v18"); e("  s_mov_b64 exec, -1")
slice_calc(); setup0(); setup1()
e(f"  s_cmp_ge_u32 s2, {NWT}"); e("  s_cbranch_scc1 L_XH")
def wd4():
    e("  s_mov_b32 exec_lo, 0x00ff00ff", "columns 512..575 of w_down"); e("  s_mov_b32 exec_hi, 0x00ff00ff")
    for mp in range(8): wd_load(mp)
    e("  s_mov_b64 exec, -1")
if WD4E: wd4()
if RP:
    e("  v_lshlrev_b32 v46, 7, v0"); e(f"  s_mul_i32 s29, s45, {32*1152}")
    for r in range(RP):
        e(f"  buffer_load_dword v{DUM}, v46, s[12:15], s29 offen" + PNT)
        if r < RP-1: e("  s_add_u32 s29, s29, 8192")
e("  s_waitcnt vmcnt(0)")
if O("nored5", 0): stamp(5)
e("L_P1:")
if O("lsl", 0): e(f"  s_sleep {O('lsl', 0)}", "back off before every read of the granules")
b = 48
for j in range(4): e(f"  buffer_load_dwordx4 v[{b+4*j}:{b+3+4*j}], v44, s[16:19], s{27 if j == 0 else 47+j} offen" + HL)
e("  s_waitcnt vmcnt(0)")
e(f"  v_cmp_ne_u32 vcc, s47, v{b+2}"); e(f"  v_cmp_ne_u32 s[32:33], s47, v{b+6}")
e(f"  v_cmp_ne_u32 s[38:39], s47, v{b+10}"); e(f"  v_cmp_ne_u32 s[40:41], s47, v{b+14}")
e("  s_or_b64 vcc, vcc, s[32:33]"); e("  s_or_b64 s[38:39], s[38:39], s[40:41]"); e("  s_or_b64 vcc, vcc, s[38:39]")
e("  s_cbranch_scc0 L_PT")
if not O("lsl", 0): e(f"  s_sleep {PSL}", "some granule is missing: back off and read again")
e("  s_sub_u32 s61, s61, 1"); e("  s_cbranch_scc0 L_P1")
e("  .p2align 3"); e("L_PT:")
def merge(a1, a2, b1, b2, o1, o2, t):
    e(f"  v_min_u32 v{t}, v{a1}, v{b1}"); e(f"  v_max_u32 v{o1}, v{a1}, v{b1}"); e(f"  v_max3_u32 v{o2}, v{t}, v{a2}, v{b2}")
merge(b, b+1, b+4, b+5, 40, 41, 12); merge(b+8, b+9, b+12, b+13, 42, 43, 13); merge(40, 41, 42, 43, 40, 41, 12)
e("  s_nop 0")
for ctl in (f"quad_perm:[1,0,3,2] {DPPM}", f"quad_perm:[2,3,0,1] {DPPM}", f"row_ror:4 {DPPM}", f"row_ror:8 {DPPM}",
            "row_bcast:15 row_mask:0xa bank_mask:0xf", "row_bcast:31 row_mask:0xc bank_mask:0xf"):
    e(f"  v_min_u32_dpp v12, v40, v40 {ctl}"); e(f"  v_max_u32_dpp v40, v40, v40 {ctl}")
    e(f"  v_max_u32_dpp v13, v41, v41 {ctl}"); e("  v_max_u32 v41, v12, v13")
e("  v_cmp_gt_u32 vcc, 8, v0"); e("  v_readlane_b32 s32, v40, 63", "global top-2 keys"); e("  v_readlane_b32 s33, v41, 63")
e(f"  s_cmp_ge_u32 s2, {NWT}"); e("  s_cbranch_scc1 L_XH2")
e("  s_and_b32 s38, s32, 0x7ff"); e("  s_and_b32 s39, s33, 0x7ff"); e("  s_sub_u32 s38, 2047, s38"); e("  s_sub_u32 s39, 2047, s39")
e("  s_mul_i32 s38, s38, 1152"); e("  s_mul_i32 s39, s39, 1152"); e(f"  s_mov_b32 m0, {XIMG}"); e("  s_sub_u32 s40, s39, 128")
e("  buffer_load_dwordx4 v8, s[4:7], s38 offen lds", "both routed rows -> LDS [2][1152 B]")
e("  s_add_u32 s41, s38, 1024"); e("  v_mov_b32 v12, s40"); e("  v_mov_b32 v13, s41"); e("  s_addk_i32 m0, 0x400")
e("  v_cndmask_b32 v12, v12, v13, vcc"); e("  v_add_u32 v12, v12, v8")
e("  buffer_load_dwordx4 v12, s[4:7], 0 offen lds")
e("  s_addk_i32 m0, 0x400"); e("  s_add_u32 s40, s39, 896"); e("  s_mov_b64 exec, 0xffff")
e("  buffer_load_dwordx4 v8, s[4:7], s40 offen lds"); e("  s_mov_b64 exec, -1")
stamp(1)
def final_setup():
    cm("last stage: lane row r = lane>>4 holds token r>>1, column 8u + 2(lane&3) + (r&1)")
    e("  v_cmp_gt_u32 vcc, 32, v0"); e("  v_mov_b32 v28, s33"); e("  v_mov_b32 v29, s32"); e("  v_and_b32 v31, 3, v0")
    e("  v_cndmask_b32 v28, v28, v29, vcc"); e("  v_and_b32 v29, 0xffff, v28"); e("  v_sub_u32 v29, 2047, v29")
    e("  v_mul_u32_u24 v29, 1152, v29"); e("  v_bfe_u32 v30, v0, 4, 1"); e("  v_lshlrev_b32 v30, 1, v30")
    e("  v_lshl_add_u32 v30, v31, 2, v30"); e("  v_add_u32 v29, v29, v30")
    e("  v_not_b32 v32, v28"); e("  v_ashrrev_i32 v32, 31, v32"); e("  v_or_b32 v32, 0x80000000, v32")
    e("  v_xor_b32 v32, v32, v28"); e("  v_and_b32 v32, 0xffff0000, v32", "the bf16 score back from the key"); e("  v_mul_f32 v32, 0xbfb8aa3b, v32")
    e("  v_exp_f32 v32, v32"); e("  v_lshrrev_b32 v33, 5, v0"); e("  v_add_f32 v32, 1.0, v32"); e("  v_rcp_f32 v32, v32")
    e("  v_mul_u32_u24 v33, 1152, v33"); e("  v_cvt_pk_bf16_f32 v32, v32, v32"); e("  v_and_b32 v32, 0xffff0000, v32", "sigmoid, rounded to bf16")
    e("  s_sub_u32 s46, s45, 72", "unit u = slice - 72"); e("  s_lshl_b32 s50, s46, 4"); e(f"  s_add_u32 s51, s50, {XIMG}"); e("  v_add3_u32 v33, v33, v30, s51")
    e("  v_lshrrev_b32 v34, 2, v0"); e("  v_mul_u32_u24 v34, 4608, v34"); e("  v_lshl_add_u32 v34, v31, 4, v34")
    e("  s_lshl_b32 s80, s46, 6"); e(f"  s_add_u32 s80, s80, {WS_SLAB}")
    for t in range(1, 9): e(f"  s_add_u32 s{80+t}, s80, {16*4608*t}")
    e("  s_mov_b32 s41, 0x0c04000c"); e("  s_mov_b32 s42, 0x04020100"); e("  v_mov_b32 v35, 0")
if EFS == 2: final_setup()
e("  s_barrier", "A: the rows are requested")
if not WD4E: wd4()
if EFS == 1: final_setup()
e(f"  s_waitcnt vmcnt({0 if WD4E else 8}) lgkmcnt(0)")
stamp(4, True)
e("  s_barrier", "B: the rows are in LDS")
if LOWP: e("  s_setprio 0")
if not LATEC: copy_stores(CW); e("  s_mov_b64 exec, -1")
if EFS == 0: final_setup()
if LOWP == 2: e("  s_setprio 3")
e("  s_branch L_JOIN")
e("L_XH:"); e("  s_barrier", "the prefetch is done"); e("  s_branch L_P1")
e("L_XH2:"); copy_stores(CH); e("  s_branch L_FIN")
cm("---------------------------------------------------------------- roles 0..3: (matrix, half of K)")
e("L_NOTX:")
e(f"  s_mov_b32 s10, {WB}")
e(f"  s_cmp_ge_u32 s2, {NWT}"); e("  s_cbranch_scc1 L_HELP")
slice_calc(); setup0()
e("  v_lshrrev_b32 v8, 2, v0"); e("  v_mul_u32_u24 v8, 9216, v8"); e("  v_lshrrev_b32 v9, 4, v0"); e("  v_and_b32 v9, 2, v9")
e("  v_xor_b32 v9, v9, v0"); e("  v_and_b32 v9, 3, v9"); e("  v_lshl_add_u32 v8, v9, 4, v8", "16 rows x 64 B, halves swapped in rows 8..15")
e("  s_and_b32 s28, s3, 1"); e(f"  s_mul_i32 s28, s28, {288*9216}"); e("  s_lshl_b32 s29, s45, 6"); e("  s_add_u32 s28, s28, s29")
e("  s_and_b32 s42, s45, 1", "the two WGs that share the lines start on different rows")
e(f"  s_mul_i32 s29, s42, {N0*QS}"); e(f"  s_add_u32 s46, s28, {2*N0*QS}"); e(f"  s_add_u32 s43, s28, {N0*QS}")
e("  s_sub_u32 s43, s43, s29"); e("  s_add_u32 s28, s28, s29")
e("  s_mul_i32 s30, s3, 18432"); e("  s_mov_b32 m0, s30")
e("  s_cmp_ge_u32 s3, 2"); e("  s_waitcnt lgkmcnt(0)")
e("  s_cselect_b32 s8, s26, s24"); e("  s_cselect_b32 s9, s27, s25")
stamp(1)
ops = [("W", i) for i in range(WE)] + [("D", i) for i in range(18)] + [("W", i) for i in range(WE, 8)]
pos = {op: n for n, op in enumerate(ops)}
nis = 0
def issue():
    global nis
    if nis >= len(ops): return False
    k, i = ops[nis]
    if k == "D":
        if i == N0: e("  s_mov_b32 s28, s43")
        if i == 2*N0: e("  s_mov_b32 s28, s46")
        e("  buffer_load_dwordx4 v8, s[8:11], s28 offen lds")
        if i < 17: e("  s_addk_i32 m0, 0x400"); e(f"  s_add_u32 s28, s28, {QS}")
    else: wd_load(i)
    nis += 1
    return True
def vwait(op): e(f"  s_waitcnt vmcnt({nis - pos[op] - 1})")
while nis < WE + min(N0, W1): issue()
setup1()
e("  v_lshlrev_b32 v9, 9, v3"); e("  v_bfe_u32 v10, v0, 2, 2"); e("  v_lshl_add_u32 v9, v10, 6, v9"); e("  v_and_b32 v10, 3, v0")
e("  v_lshl_add_u32 v9, v10, 3, v9"); e("  v_and_b32 v10, 1, v3"); e("  v_lshl_add_u32 v9, v10, 5, v9")
e("  v_add_u32 v9, s30, v9", "transposing reads, columns 0..15"); e("  v_xor_b32 v10, 32, v9", "columns 16..31")
e("  v_and_b32 v11, 1, v0"); e("  v_mul_u32_u24 v11, 1152, v11"); e("  v_lshl_add_u32 v11, v3, 4, v11")
e("  s_and_b32 s29, s3, 1"); e("  s_mul_i32 s29, s29, 576"); e(f"  s_add_u32 s29, s29, {XIMG}")
e(f"  s_mul_i32 s31, s42, {32*N0}")
e(f"  v_add_u32 v{VA2}, s29, v11", "x fragments"); e(f"  v_add_u32 v11, s31, v{VA2}"); e(f"  v_subrev_u32 v1, s31, v{VA2}")
e("  s_lshl_b32 s29, s3, 8"); e(f"  s_add_u32 s29, s29, {TEX}"); e(f"  v_lshl_add_u32 v{VXW}, v2, 3, s29")
def trreads(s):
    for hh in range(2):
        for u in range(2):
            r = BF + 8*s + 4*hh + 2*u
            e(f"  ds_read_b64_tr_b16 v[{r}:{r+1}], v{9+hh} offset:{2048*s+256*u}")
def mfmas(s):
    for hh in range(2):
        c = "0" if s == 0 else f"v[{ACC+4*hh}:{ACC+4*hh+3}]"
        r = BF + 8*s + 4*hh
        e(f"  v_mfma_f32_16x16x32_bf16 v[{ACC+4*hh}:{ACC+4*hh+3}], v[{AF+4*s}:{AF+4*s+3}], v[{r}:{r+3}], {c}")
E0 = N0 // 2
for s in range(PB):
    for h in range(2):
        need = 2*s + h
        def ok():
            if nis >= len(ops) or ops[nis][0] != "D": return False
            i = ops[nis][1]
            return i < need + 1 + W1 if i < N0 else (need >= N0 - 1 and i < need + 1 + W2)
        if ok() or h == 1: vwait(("D", need))
        while ok(): issue()
    if s == 0: stamp(2)
    trreads(s)
while ops[nis][0] == "D": issue()
stamp(5)
e("  s_barrier", "A")
while issue(): pass
e("  s_waitcnt lgkmcnt(0)"); e("  s_barrier", "B")
stamp(4, True); fs(1, True)
if CPRIO: e(f"  s_setprio {CPRIO}")
order = []
for s in range(9):
    ar = 11 if s < E0 else (1 if s < 2*E0 else VA2)
    e(f"  ds_read_b128 v[{AF+4*s}:{AF+4*s+3}], v{ar} offset:{64*s}"); order.append(f"A{s}")
late = list(range(PB, 9))
for s in range(9):
    if late and late[0] <= s + 1:
        t = late.pop(0); vwait(("D", 2*t+1)); trreads(t); order += [f"T{t}"]*4
    tag = f"A{s}" if s < PB else f"T{s}"
    need = len(order) - 1 - order[::-1].index(tag)
    e(f"  s_waitcnt lgkmcnt({min(15, len(order) - need - 1)})")
    mfmas(s)
stamp(3); fs(2)
e("  s_mov_b64 exec, 0xffff"); e("  s_nop 6")
e(f"  ds_write2_b64 v{VXW}, v[{ACC}:{ACC+1}], v[{ACC+4}:{ACC+5}] offset0:0 offset1:16")
e("  s_mov_b64 exec, -1")
cm("---------------------------------------------------------------- all 5 waves: SwiGLU, 128 columns of w_down each")
e("L_JOIN:")
e("  s_waitcnt lgkmcnt(0)"); fs(3, True); e("  s_barrier", "C: the four partial pre-activations are in LDS"); fs(4)
e("  ds_read2_b32 v[12:13], v5 offset0:0 offset1:64"); e("  ds_read2_b32 v[14:15], v5 offset0:128 offset1:192")
e(f"  ds_read_b32 v23, v{VTAG}")
e("  s_cmp_eq_u32 s3, 4"); e("  s_waitcnt lgkmcnt(0)")
e("  v_add_f32 v12, v12, v13"); e("  v_add_f32 v14, v14, v15")
e("  v_cvt_pk_bf16_f32 v12, v12, v14"); e("  v_lshlrev_b32 v13, 16, v12"); e("  v_mul_f32 v15, 0xbfb8aa3b, v13"); e("  v_exp_f32 v15, v15")
e("  v_and_b32 v14, 0xffff0000, v12"); e("  v_add_f32 v15, 1.0, v15"); e("  v_rcp_f32 v15, v15"); e("  s_nop 0")
e("  v_mul_f32 v13, v13, v15"); e("  v_cvt_pk_bf16_f32 v13, v13, v13"); e("  v_and_b32 v13, 0xffff0000, v13")
e("  v_mul_f32 v13, v13, v14"); e("  v_cvt_pk_bf16_f32 v13, v13, v13", "h = bf16(bf16(silu(a)) * u), in both halves")
fs(5)
e("  s_cbranch_scc1 L_W4"); e("  s_waitcnt vmcnt(0)"); e("L_W4:"); fs(6); e("  s_nop 0" if WD4E else f"  s_waitcnt vmcnt({0 if LATEC else 9})")
e(f"  v_and_b32_dpp v12, v13, v6 quad_perm:[0,0,2,2] {DPPM}"); e(f"  v_and_b32_dpp v16, v13, v6 quad_perm:[1,1,3,3] {DPPM}")
e("  s_nop 0"); e("  .p2align 3")
cm("A = h on a diagonal: D[token, column parity and pair][chunk] sums 4 rows of w_down per MFMA")
for mp in range(8):
    src = 12 if mp < 4 else 16; qq = mp & 3
    for r in range(4):
        n = (4*(r-qq)) % 16
        ctl = "quad_perm:[0,1,2,3]" if n == 0 else f"row_ror:{n}"
        e(f"  v_mov_b32_dpp v{AD+4*mp+r}, v{src} {ctl} row_mask:0xf bank_mask:{hex(1<<r)}")
    if mp >= 1:
        m = mp - 1; c = "0" if m == 0 else f"v[{ACC}:{ACC+3}]"
        e(f"  v_mfma_f32_16x16x32_bf16 v[{ACC}:{ACC+3}], v[{AD+4*m}:{AD+4*m+3}], v[{WD+4*m}:{WD+4*m+3}], {c}")
e("  s_nop 0")
e(f"  v_mfma_f32_16x16x32_bf16 v[{ACC}:{ACC+3}], v[{AD+28}:{AD+31}], v[{WD+28}:{WD+31}], v[{ACC}:{ACC+3}]")
e("  s_cselect_b32 exec_lo, 0x00ff00ff, -1"); e("  s_cselect_b32 exec_hi, 0x00ff00ff, -1"); e("  s_nop 5")
cm("4 sums (top 24 bits each) + tag in 16 bytes")
for j in range(3): e(f"  v_perm_b32 v{20+j}, v{ACC+j}, v{ACC+3}, s{56+j}")
e("  buffer_store_dwordx4 v[20:23], v7, s[16:19], s36 offen" + HS)
GATH = AMP and int(AMP.split(",")[0]) >= 30
if GATH:
    e("  s_memrealtime s[90:91]"); e("  s_waitcnt lgkmcnt(0)")
    e("  s_mov_b64 exec, 1"); e("  v_mov_b32 v24, s90"); e("  v_mov_b32 v25, s64"); e("  v_mov_b32 v26, v23"); e("  v_mov_b32 v27, 0")
    e("  s_lshl_b32 s92, s2, 3"); e("  s_add_u32 s92, s92, s3"); e("  s_lshl_b32 s92, s92, 4"); e("  s_add_u32 s92, s92, 0xd0000")
    e("  buffer_store_dwordx4 v[24:27], v27, s[16:19], s92 offen sc1")
    e("  s_cmp_eq_u32 s3, 4")
if STAMP:
    e("  s_cbranch_scc1 L_S6"); stamp(6); e("  s_branch L_FIN"); e("L_S6:"); stamp(2)
else: e("  s_cbranch_scc0 L_FIN")
if LATEC == 1: e("  s_mov_b64 exec, -1"); copy_stores(CW)
e("  s_cmp_ge_u32 s46, 72"); e(f"  s_cbranch_scc1 {'L_WC' if LATEC == 2 else 'L_FIN'}")
cm("---------------------------------------------------------------- 72 waves: sum over the 144 WGs, write the routed rows")
e("  s_mov_b64 exec, -1"); e("  ds_read_u16_d16_hi v35, v33"); e(f"  s_mov_b32 s61, {SPIN}")
e("  s_waitcnt vmcnt(0)")
stamp(6)
if RSL: e(f"  s_sleep {RSL}")
def rload(t): e(f"  buffer_load_dwordx4 v[{R0+4*t}:{R0+3+4*t}], v34, s[16:19], s{80+t} offen" + HL)
def racc(t):
    r = R0 + 4*t
    e(f"  v_perm_b32 v{r+3}, v{r+1}, v{r}, s41"); e(f"  v_perm_b32 v{r+3}, v{r+2}, v{r+3}, s42")
    if t:
        e(f"  v_pk_add_f32 v[{R0}:{R0+1}], v[{R0}:{R0+1}], v[{r}:{r+1}]"); e(f"  v_pk_add_f32 v[{R0+2}:{R0+3}], v[{R0+2}:{R0+3}], v[{r+2}:{r+3}]")
def rchain(extra, lab):
    for t in range(9):
        if lab: e(f"L_R{t}:")
        e(f"  s_waitcnt vmcnt({8-t+extra})"); e(f"  v_cmp_ne_u32 vcc, s47, v{R0+4*t+3}"); e(f"  s_cbranch_vccnz L_RR{t}")
        if lab: e(f"L_RA{t}:")
        racc(t)
for t in range(9): rload(t)
if LATEC == 2:
    copy_stores(CW); e("  s_mov_b64 exec, -1")
    rchain(9, False)
    e("L_RD:")
else:
    rchain(0, True)
if not O("nored5", 0): stamp(5)
e("  s_nop 1"); e(f"  v_permlane32_swap_b32 v{R0}, v{R0+2}"); e(f"  v_permlane32_swap_b32 v{R0+1}, v{R0+3}")
e(f"  v_add_f32 v{R0}, v{R0}, v{R0+2}"); e(f"  v_add_f32 v{R0+1}, v{R0+1}, v{R0+3}"); e("  s_nop 1")
e(f"  v_permlane16_swap_b32 v{R0}, v{R0+1}"); e(f"  v_add_f32 v{R0}, v{R0}, v{R0+1}"); e("  s_nop 1")
e(f"  v_add_f32_dpp v{R0}, v{R0}, v{R0} row_ror:4 {DPPM}"); e("  s_nop 1"); e(f"  v_add_f32_dpp v{R0}, v{R0}, v{R0} row_ror:8 {DPPM}")
e(f"  v_cvt_pk_bf16_f32 v16, v{R0}, v{R0}"); e("  v_and_b32 v16, 0xffff0000, v16"); e("  v_mul_f32 v16, v16, v32")
e("  v_cvt_pk_bf16_f32 v16, v16, v16"); e("  v_and_b32 v16, 0xffff0000, v16"); e("  s_waitcnt lgkmcnt(0)")
e("  v_add_f32 v16, v16, v35"); e("  v_cvt_pk_bf16_f32 v16, v16, v16")
e("  s_mov_b32 exec_lo, 0x000f000f"); e("  s_mov_b32 exec_hi, 0x000f000f")
e("  buffer_store_short v16, v29, s[20:23], s50 offen" + CFN)
e("  s_cmp_lg_u32 s46, 0"); e("  s_cbranch_scc1 L_FIN")
e("  s_mov_b64 exec, 1", "every reader of d_ws[0] is behind the sums seen here"); e("  v_mov_b32 v16, s47"); e(f"  v_mov_b32 v17, {WS_E}")
e("  buffer_store_dword v16, v17, s[16:19], 0 offen" + CFN)
e("L_FIN:"); stamp_flush(); e("L_END:"); e("  s_endpgm")
if LATEC == 2:
    e("L_WC:"); e("  s_mov_b64 exec, -1"); e("  s_branch L_XH2")
    rchain(0, True); e("  s_branch L_RD")
for t in range(9):
    e(f"L_RR{t}:"); e("  s_sub_u32 s61, s61, 1"); e(f"  s_cbranch_scc1 L_RA{t}")
    for t2 in range(t, 9): rload(t2)
    e(f"  s_branch L_R{t}")
cm("---------------------------------------------------------------- prefetch waves: one word per 128-byte line")
e("L_HELP:")
e(f"  s_sub_u32 s28, s2, {NWT}"); e("  s_and_b32 s29, s28, 7"); e("  s_lshr_b32 s28, s28, 3")
e("  s_and_b32 s33, s3, 1"); e("  s_mul_i32 s33, s33, 288"); e(f"  s_mul_i32 s32, s28, {HR}"); e("  s_add_u32 s32, s32, s33")
e(f"  s_add_u32 s32, s32, {32*N0}"); e("  s_mul_i32 s32, s32, 9216"); e("  s_mul_i32 s34, s29, 1152"); e("  s_add_u32 s32, s32, s34")
e("  v_mul_u32_u24 v3, 0x1c72, v0"); e("  v_lshrrev_b32 v3, 16, v3", "lane / 9"); e("  v_mul_u32_u24 v4, 9, v3"); e("  v_sub_u32 v4, v0, v4")
e("  v_mul_u32_u24 v3, 9216, v3"); e("  v_lshl_add_u32 v3, v4, 7, v3")
e("  s_lshl2_add_u32 s28, s28, s3")
e(f"  s_mul_i32 s29, s29, {5184*128}")
if RP: e(f"  s_add_u32 s29, s29, {RP*8192}")
e("  v_lshlrev_b32 v2, 7, v0")
nr = -(-(288 - 32*N0) // (NH*HR))
assert nr - HG >= 1
e(f"  s_mov_b32 s30, {nr-HG}")
e("  s_cmp_ge_u32 s3, 2"); e("  s_waitcnt lgkmcnt(0)")
e("  s_cselect_b32 s8, s26, s24"); e("  s_cselect_b32 s9, s27, s25")
if O("tw", 0):
    e("  s_load_dword s40, s[12:13], 0", "first touch of w_down and d_out: address translation only")
    e("  s_load_dword s41, s[20:21], 0")
e(f"  s_bfm_b64 exec, {9*HR}, 0")
for r in range(HG):
    e(f"  buffer_load_dword v{DUM}, v3, s[8:11], s32 offen" + GNT); e(f"  s_add_u32 s32, s32, {NH*HR*9216}")
CPS = 9 - 2*RP
def wchunk(wait):
    e(f"  s_mul_hi_u32 s35, s28, {(2**32 + CPS - 1)//CPS}"); e(f"  s_mul_i32 s31, s35, {CPS}"); e("  s_sub_u32 s31, s28, s31")
    e("  s_mul_i32 s35, s35, 36864"); e("  s_lshl_b32 s31, s31, 12"); e("  s_add_u32 s35, s35, s31"); e("  s_add_u32 s35, s35, s29")
    if wait: e(f"  s_waitcnt vmcnt({HT-1})")
    e(f"  buffer_load_dword v{DUM}, v2, s[12:15], s35 offen" + PNT)
    e("  s_add_u32 s28, s28, 56")
e("  s_barrier"); stamp(1)
if HWF:
    e("  s_bfm_b64 exec, 32, 0")
    for _ in range(HWF): wchunk(False)
    e(f"  s_bfm_b64 exec, {9*HR}, 0")
e("L_HGL:"); e(f"  s_waitcnt vmcnt({HT-1+HX})"); e(f"  buffer_load_dword v{DUM}, v3, s[8:11], s32 offen" + GNT)
e(f"  s_add_u32 s32, s32, {NH*HR*9216}"); e("  s_sub_u32 s30, s30, 1"); e("  s_cmp_lg_u32 s30, 0"); e("  s_cbranch_scc1 L_HGL")
if O("gul", 0): e("  s_waitcnt vmcnt(0)")
stamp(2)
e("  s_bfm_b64 exec, 32, 0")
e("L_HWL:")
wchunk(True)
e(f"  s_cmp_lt_u32 s28, {18*CPS}"); e("  s_cbranch_scc1 L_HWL")
e("  s_waitcnt vmcnt(0)"); e("  s_barrier"); e("  s_branch L_FIN")
e("L_CODE_END:")
cm("rare path: x + x*0 turns an infinity into a NaN")
for n in range(1, ncopy+1):
    e(f"L_FIX{n}:"); e(f"  s_mov_b32 s98, {n}"); e("  s_branch L_FIX")
e("L_FIX:"); e("  s_mov_b32 s29, 0x07060302")
for j in range(36):
    r = XR + j
    e(f"  v_lshlrev_b32 v12, 16, v{r}"); e(f"  v_and_b32 v13, 0xffff0000, v{r}"); e("  v_fma_f32 v12, v12, 0, v12"); e("  v_fma_f32 v13, v13, 0, v13")
    e(f"  v_perm_b32 v{r}, v13, v12, s29")
e("  s_cmp_eq_u32 s98, 1"); e("  s_cbranch_scc1 L_FIXR1"); e("  s_branch L_FIXR2")
e('.section .rodata,"a"'); e(".p2align 6"); e(f".amdhsa_kernel {K}")
e("  .amdhsa_next_free_vgpr 200"); e("  .amdhsa_next_free_sgpr 102"); e("  .amdhsa_accum_offset 200")
e("  .amdhsa_group_segment_fixed_size 0"); e("  .amdhsa_kernarg_size 64"); e("  .amdhsa_user_sgpr_count 2")
e("  .amdhsa_user_sgpr_kernarg_segment_ptr 1"); e("  .amdhsa_system_sgpr_workgroup_id_x 1"); e("  .amdhsa_float_denorm_mode_32 3")
e(".end_amdhsa_kernel")
open(sys.argv[1], "w").write("\n".join(out) + "\n")
```

```python
import sys
NAME = "standalone__moe_arch_mod__prompt"
S, D, F = 2048, 576, 4608
XB = S*D*2
WB = D*F*2
opts = dict(a.split("=") for a in sys.argv[2:] if "=" in a)
def O(k, d): return int(opts.get(k, d))
STAMP = O("stamp", 0); AMP = opts.get("amp"); FINE = O("fine", 0)
if AMP: STAMP = 1
GS = O("gs", 64); REP = O("rep", 4); RS = 256*GS
LG = {16: 0, 32: 1, 64: 2}[GS]; LR = {1: 0, 2: 1, 4: 2, 8: 3}[REP]; NL = REP*GS//16
assert NL <= 16
WS_E = 0; WS_GRAN = 4096; WS_SLAB = 4096 + REP*RS; WS_SIZE = 1 << 20; WS_STAMP = 1 << 21
N0 = O("n0", 2); W1 = O("w1", 4); W2 = O("w2", 4); WE = O("we", 0); PB = O("pb", 7); RP = O("rp", 0)
HR = O("hr", 4); HT = O("ht", 2); HG = O("hg", 1)
PSL = O("psl", 2); SPIN = O("spin", 200000); RSL = O("rsl", 0)
CFN = {0: "", 1: " sc1", 2: " sc0 sc1"}[O("cf", 0)]; WNT = " nt" if O("wnt", 0) else ""; PNT = " nt" if O("pnt", 0) else ""; GNT = " nt" if O("gnt", 0) else ""; XNT = " nt" if O("xnt", 0) else ""; LATEC = O("latec", 1); FL = {0: "", 1: " sc1", 2: " sc0 sc1", 3: " sc1 nt", 4: " nt"}; HS = FL[O("hs", 1)]; HL = FL[O("hl", 1)]; CW = FL[O("cw", 1)]; CH = FL[O("ch", 1)]; WD4E = O("wd4e", 1); HA = O("ha", 0); HWF = O("hwf", 0); HX = O("hx", 0); EFS = O("efs", 1); LOWP = O("lowp", 1); CPRIO = O("cprio", 0)
NWT = 144; NH = 14
out = []
def e(s="", c=None): out.append(s if c is None else f"{s:<72}; {c}")
def cm(s): out.append("; " + s)
def stamp(i, wait=False):
    if STAMP and (i in (0, 7) or not FINE):
        e(f"  s_memrealtime s[{64+2*i}:{65+2*i}]")
        if wait: e("  s_waitcnt lgkmcnt(0)")
def fs(i, wait=False):
    if FINE:
        e(f"  s_memtime s[{64+2*i}:{65+2*i}]")
        if wait: e("  s_waitcnt lgkmcnt(0)")
def stamp_flush():
    if AMP:
        A, B, KK, WV, WG = map(int, AMP.split(","))
        if O("endw", 0): e("  s_waitcnt vmcnt(0)")
        stamp(7, True)
        e(f"  s_cmp_lg_u32 s2, {WG}"); e("  s_cbranch_scc1 L_AMPX")
        e(f"  s_cmp_lg_u32 s3, {WV}"); e("  s_cbranch_scc1 L_AMPX")
        if A >= 30:
            e("  s_sleep 60"); e("  s_mov_b64 exec, -1"); e("  v_lshlrev_b32 v1, 4, v0"); e("  v_mov_b32 v2, 0x80000000"); e("  v_mov_b32 v3, 0")
            for i in range(18):
                e(f"  s_mov_b32 s92, {0xd0000 + 1024*i}")
                e("  buffer_load_dwordx4 v[24:27], v1, s[16:19], s92 offen sc1"); e("  s_waitcnt vmcnt(0)")
                if A in (30, 31, 32, 35): e("  v_subrev_u32 v24, s64, v24")
                elif A == 33: e("  v_sub_u32 v24, v24, v25")
                else: e("  v_subrev_u32 v24, s64, v25")
                e("  v_lshlrev_b32 v24, 12, v24"); e(f"  v_add_u32 v25, {64*i}, v0"); e("  v_or_b32 v24, v24, v25")
                e("  v_cmp_eq_u32 vcc, s47, v26"); e("  s_nop 1"); e("  v_cndmask_b32 v24, v2, v24, vcc"); e("  v_max_i32 v3, v3, v24" if i else "  v_mov_b32 v3, v24")
            for ctl in ("quad_perm:[1,0,3,2] row_mask:0xf bank_mask:0xf", "quad_perm:[2,3,0,1] row_mask:0xf bank_mask:0xf", "row_ror:4 row_mask:0xf bank_mask:0xf", "row_ror:8 row_mask:0xf bank_mask:0xf",
                        "row_bcast:15 row_mask:0xa bank_mask:0xf", "row_bcast:31 row_mask:0xc bank_mask:0xf"):
                e("  s_nop 1"); e(f"  v_max_i32_dpp v3, v3, v3 {ctl}")
            e("  s_nop 1"); e("  v_readlane_b32 s60, v3, 63")
            if A in (30, 33, 34): e("  s_ashr_i32 s60, s60, 12")
            elif A == 31: e("  s_bfe_u32 s60, s60, 0x30003")
            elif A == 32: e("  s_and_b32 s60, s60, 7")
            else: e("  s_bfe_u32 s60, s60, 0x50006")
            e("  s_memrealtime s[78:79]"); e("  s_waitcnt lgkmcnt(0)")
        else:
            e(f"  s_sub_u32 s60, s{64+2*B}, s{64+2*A}")
        e(f"  s_mul_i32 s60, s60, {KK}")
        e("L_AMP:"); e("  s_memrealtime s[62:63]"); e("  s_waitcnt lgkmcnt(0)"); e("  s_sub_u32 s62, s62, s78")
        e("  s_cmp_lt_u32 s62, s60"); e("  s_cbranch_scc1 L_AMP"); e("L_AMPX:")
    elif STAMP:
        if FINE: e("  s_memtime s[78:79]"); e("  s_waitcnt lgkmcnt(0)")
        else: stamp(7, True)
        e("  s_mov_b64 exec, 1")
        e("  s_lshl_b32 s60, s2, 3"); e("  s_add_u32 s60, s60, s3"); e("  s_lshl_b32 s60, s60, 6")
        e(f"  s_add_u32 s60, s60, {WS_STAMP}"); e("  s_mov_b32 s18, 0x1000000"); e("  v_mov_b32 v1, 0")
        for j in range(4):
            for k in range(4): e(f"  v_mov_b32 v{4+k}, s{64+4*j+k}")
            e(f"  buffer_store_dwordx4 v[4:7], v1, s[16:19], s60 offen offset:{16*j}"); e("  s_nop 1")

hdr = open('cdna_kernels/%s.s.ref' % NAME).read().split('\n')
for l in hdr:
    if l.startswith('; @launch'): break
    e(l)
XIMG = 73728; TAGL = XIMG + 2304; TEX = XIMG + 3072; WRIMG = TEX + 1024; LDS = 83968
e(f"; @launch grid=(256,1,1) block=(320,1,1) lds={LDS}")
DOC = """
One launch, 256 workgroups of 5 waves, one per CU (LDS and VGPR use allow one).
 role 4 (wave 0), every WG : 8 rows of x -> router scores -> local top-2 -> tagged granule in d_ws,
                             later the copy of its rows that were not routed.
 WGs 0..143, roles 0..3    : 32 columns of w_gate / w_up (LDS-DMA, transposing LDS reads, MFMA),
                             SwiGLU, the matching 32 rows of w_down (MFMA), tagged partial sums in d_ws.
 WGs 0..143, role 4        : gathers the 256 granules, global top-2, brings both rows into LDS;
                             72 of them add up the 144 partial sums of 8 columns and write the routed rows.
 WGs 144..255, roles 0..3  : pull weight lines into the L2 that the weight WGs with the same id mod 8
                             are expected to share (speed only, nothing depends on it).
 Hand-offs between WGs are 16-byte pieces that carry a tag, written and read with sc1.
 tag = d_ws[0] + 0x01010101; d_ws[0] is set to the tag at the end, so it differs from launch to launch.
"""
for l in DOC.strip("\n").split("\n"): cm(l)
e('.amdgcn_target "amdgcn-amd-amdhsa--gfx950"'); e(".text")
K = NAME + "_kernel"
e(f".globl {K}"); e(".p2align 8"); e(f".type {K},@function"); e(f"{K}:")
DPPM = "row_mask:0xf bank_mask:0xf"
AF = 12; BF = 48; ACC = 120; WD = 128; AD = 160; XR = 84; WR = 48; R0 = 48
VXW = 192; VA2 = 193; VTAG = 194; DUMC = 196; DUM = 197
QS = 16*9216

def slice_calc():
    e("  s_and_b32 s45, s2, 7"); e("  s_mul_i32 s45, s45, 18"); e("  s_lshr_b32 s44, s2, 3")
    e("  s_add_u32 s45, s45, s44", "slice: neighbours are 8 ids apart")
def setup0():
    e("  v_and_b32 v2, 15, v0"); e("  v_lshrrev_b32 v3, 4, v0")
    e("  v_mul_u32_u24 v4, 9216, v3"); e("  v_lshl_add_u32 v4, v2, 4, v4", "w_down: row 8g, 16-byte chunk c")
    e(f"  s_mul_i32 s34, s45, {32*1152}"); e("  s_lshl_b32 s35, s3, 8"); e("  s_add_u32 s34, s34, s35"); e("  s_add_u32 s35, s34, 4608")
def setup1():
    e("  v_lshrrev_b32 v5, 2, v2"); e("  v_lshl_add_u32 v5, v3, 3, v5"); e("  v_and_b32 v6, 1, v0"); e("  v_lshl_add_u32 v5, v6, 2, v5")
    e("  v_lshlrev_b32 v5, 3, v5"); e("  v_and_b32 v6, 2, v0"); e("  v_lshl_add_u32 v5, v6, 1, v5")
    e(f"  v_add_u32 v5, {TEX}, v5", "exchange table: this lane's (f, token)")
    e("  v_and_b32 v6, 1, v0"); e("  v_cmp_eq_u32 vcc, 1, v6"); e("  v_mov_b32 v6, 0xffff"); e("  v_mov_b32 v7, 0xffff0000")
    e("  v_cndmask_b32 v6, v6, v7, vcc", "half-word mask by lane parity")
    e("  v_lshlrev_b32 v7, 6, v2"); e("  v_lshl_add_u32 v7, v3, 4, v7", "partial-sum piece of this lane")
    e("  s_mul_i32 s36, s45, 4608"); e("  s_lshl_b32 s37, s3, 10"); e("  s_add_u32 s36, s36, s37"); e(f"  s_add_u32 s36, s36, {WS_SLAB}")
    e(f"  v_mov_b32 v{VTAG}, {TAGL}")
    e("  s_mov_b32 s56, 0x07060501"); e("  s_mov_b32 s57, 0x07060502"); e("  s_mov_b32 s58, 0x07060503")
    for j in range(0, 32, 2): e(f"  v_mov_b64 v[{AD+j}:{AD+j+1}], 0")
def wd_load(mp): e(f"  buffer_load_dwordx4 v[{WD+4*mp}:{WD+4*mp+3}], v4, s[12:15], s{34+(mp>>2)} offen offset:{1152*(mp&3)}" + WNT)
ncopy = 0
def copy_stores(fl=""):
    global ncopy
    ncopy += 1
    e("  s_and_b32 s38, s32, 0xffff"); e("  s_and_b32 s39, s33, 0xffff")
    e("  v_cmp_ne_u32 s[52:53], s38, v11"); e("  v_cmp_ne_u32 s[54:55], s39, v11")
    e("  s_and_b64 exec, s[52:53], s[54:55]", "rows that are not routed")
    e("  s_cmp_lg_u64 s[96:97], 0"); e(f"  s_cbranch_scc1 L_FIX{ncopy}"); e(f"L_FIXR{ncopy}:")
    for i in range(9): e(f"  buffer_store_dwordx4 v[{XR+4*i}:{XR+4*i+3}], v10, s[20:23], s28 offen offset:{128*i}{fl}")

if STAMP:
    for i in range(2, 16): e(f"  s_mov_b32 s{64+i}, 0")
stamp(0)
cm("SRDs: x s[4:7], w_r or w_gate/w_up s[8:11], w_down s[12:15], d_ws s[16:19], d_out s[20:23]")
e("  s_load_dwordx2 s[4:5], s[0:1], 0"); e("  s_load_dwordx2 s[8:9], s[0:1], 8"); e("  s_load_dwordx2 s[16:17], s[0:1], 56")
e("  s_load_dwordx4 s[24:27], s[0:1], 16"); e("  s_load_dwordx2 s[12:13], s[0:1], 32"); e("  s_load_dwordx2 s[20:21], s[0:1], 40")
e("  s_getpc_b64 s[28:29]", "read one word of every line of the code: it lands in L2"); e("L_PC:")
e("  v_lshlrev_b32 v2, 7, v0"); e("  v_cmp_gt_u32 vcc, (L_CODE_END-L_PC+127)/128, v0")
e("  s_and_saveexec_b64 s[30:31], vcc"); e("  s_cbranch_execz L_NOPF")
e(f"  global_load_dword v{DUMC}, v2, s[28:29]"); e("L_NOPF:"); e("  s_mov_b64 exec, -1")
e("  v_lshrrev_b32 v1, 6, v0"); e("  v_and_b32 v0, 63, v0"); e("  v_readfirstlane_b32 s3, v1")
e("  s_cmp_ge_u32 s2, 256"); e("  s_cbranch_scc1 L_END")
e("  s_sub_u32 s3, s3, 1", "role: wave 0 -> 4, wave k -> k-1"); e("  s_cselect_b32 s3, 4, s3")
for r, v in ((6, XB), (7, "0x20000"), (11, "0x20000"), (14, WB), (15, "0x20000"), (18, WS_SIZE), (19, "0x20000"), (22, XB), (23, "0x20000")):
    e(f"  s_mov_b32 s{r}, {v}")
e("  s_cmp_lg_u32 s3, 4"); e("  s_cbranch_scc1 L_NOTX")
cm("---------------------------------------------------------------- role 4: router scores of 8 rows")
e("  s_setprio 3")
e(f"  s_mov_b32 s10, {D*2}"); e(f"  s_mov_b32 m0, {WRIMG}")
e("  v_lshlrev_b32 v8, 4, v0"); e("  v_and_b32 v1, 0x70, v8"); e("  v_lshrrev_b32 v9, 3, v0")
e("  v_mul_u32_u24 v10, 1152, v9"); e("  v_add_u32 v10, v10, v1", "8 lanes per row"); e("  s_mul_i32 s28, s2, 9216")
e("  s_waitcnt lgkmcnt(0)")
e(f"  s_load_dword s47, s[16:17], {WS_E}")
e("  buffer_load_dwordx4 v8, s[8:11], 0 offen lds", "w_r -> LDS"); e("  s_mov_b64 exec, 0xff")
e("  buffer_load_dwordx4 v8, s[8:11], 0 offen offset:1024 lds"); e("  s_mov_b64 exec, -1")
for i in range(9): e(f"  buffer_load_dwordx4 v[{XR+4*i}:{XR+4*i+3}], v10, s[4:7], s28 offen offset:{128*i}" + XNT)
e(f"  v_add_u32 v1, {WRIMG}, v1")
e("  s_lshl_b32 s29, s2, 3"); e("  s_sub_u32 s29, 2047, s29"); e("  v_sub_u32 v11, s29, v9", "2047 - row"); e("  s_mov_b32 s30, 0xffff0000")
e(f"  s_and_b32 s29, s2, {REP-1}"); e(f"  s_mul_i32 s27, s29, {RS}"); e(f"  s_add_u32 s27, s27, {WS_GRAN}", "the copy of the granules this WG reads")
for j in range(1, 4): e(f"  s_add_u32 s{47+j}, s27, {64*GS*j}")
e("  s_and_b32 s29, s2, 7"); e("  s_lshl_b32 s29, s29, 5"); e("  s_lshr_b32 s31, s2, 3"); e("  s_add_u32 s29, s29, s31")
e(f"  s_mul_i32 s29, s29, {GS}"); e(f"  s_add_u32 s31, s29, {WS_GRAN}", "own granule")
e(f"  v_mul_u32_u24 v44, {GS}, v0")
for j in range(4): e(f"  v_mov_b32 v{12+j}, 0")
e("  v_bfrev_b32 v22, 1")
e(f"  v_bfe_u32 v21, v0, {LG}, {LR}"); e(f"  v_mul_u32_u24 v21, {RS}, v21"); e(f"  v_and_b32 v19, {GS//16-1}, v0"); e("  v_lshl_add_u32 v21, v19, 4, v21")
e(f"  s_mov_b32 s61, {SPIN}"); e(f"  v_mov_b32 v45, {TAGL}")
e("  s_waitcnt vmcnt(9) lgkmcnt(0)")
for i in range(9): e(f"  ds_read_b128 v[{WR+4*i}:{WR+4*i+3}], v1 offset:{128*i}")
e("  s_add_u32 s47, s47, 0x01010101", "tag of this launch"); e("  v_mov_b32 v18, s47")
for i in range(9):
    e(f"  s_waitcnt vmcnt({8-i}) lgkmcnt({8-i})")
    for j in range(4): e(f"  v_dot2c_f32_bf16 v{12+j}, v{XR+4*i+j}, v{WR+4*i+j}")
e("  s_nop 1")
e("  v_add_f32 v12, v12, v13"); e("  v_add_f32 v14, v14, v15"); e("  v_add_f32 v12, v12, v14")
e("  s_movk_i32 s29, 0x207"); e("  v_cmp_class_f32 s[96:97], v12, s29", "lanes that hold an inf or a NaN")
e(f"  v_add_f32_dpp v12, v12, v12 quad_perm:[1,0,3,2] {DPPM}"); e("  s_nop 1")
e(f"  v_add_f32_dpp v12, v12, v12 quad_perm:[2,3,0,1] {DPPM}"); e("  s_nop 1")
e(f"  v_add_f32_dpp v12, v12, v12 row_half_mirror {DPPM}")
cm("key = order-preserving bf16 score << 16 | 2047 - row; NaN sorts last")
e("  v_cvt_pk_bf16_f32 v13, v12, v12"); e("  v_cmp_u_f32 vcc, v12, v12"); e("  v_ashrrev_i32 v14, 31, v13")
e("  v_bitop3_b32 v13, v13, v14, v22 bitop3:0x1e"); e("  v_cndmask_b32 v13, v13, 0, vcc"); e("  v_and_or_b32 v13, v13, s30, v11")
e("  s_nop 1")
e(f"  v_max_u32_dpp v16, v13, v13 row_ror:8 {DPPM}"); e(f"  v_min_u32_dpp v17, v13, v13 row_ror:8 {DPPM}"); e("  s_nop 0")
for ctl in ("row_bcast:15 row_mask:0xa bank_mask:0xf", "row_bcast:31 row_mask:0xc bank_mask:0xf"):
    e(f"  v_min_u32_dpp v14, v16, v16 {ctl}"); e(f"  v_max_u32_dpp v16, v16, v16 {ctl}")
    e(f"  v_max_u32_dpp v15, v17, v17 {ctl}"); e("  v_max_u32 v17, v14, v15")
e(f"  s_lshl_b64 exec, {hex((1 << NL) - 1)}, 48", f"lanes 48..63 hold the pair: {REP} copies x {GS} bytes")
e("  buffer_store_dwordx4 v[16:19], v21, s[16:19], s31 offen" + HS)
stamp(3)
e(f"  s_cmp_lt_u32 s2, {NWT}"); e("  s_cbranch_scc1 L_XG"); e("  s_barrier", "prefetch WG: let the other waves fill the queue"); e("L_XG:")
e("  ds_write_b32 v45, v18"); e("  s_mov_b64 exec, -1")
slice_calc(); setup0(); setup1()
e(f"  s_cmp_ge_u32 s2, {NWT}"); e("  s_cbranch_scc1 L_XH")
def wd4():
    e("  s_mov_b32 exec_lo, 0x00ff00ff", "columns 512..575 of w_down"); e("  s_mov_b32 exec_hi, 0x00ff00ff")
    for mp in range(8): wd_load(mp)
    e("  s_mov_b64 exec, -1")
if WD4E: wd4()
if RP:
    e("  v_lshlrev_b32 v46, 7, v0"); e(f"  s_mul_i32 s29, s45, {32*1152}")
    for r in range(RP):
        e(f"  buffer_load_dword v{DUM}, v46, s[12:15], s29 offen" + PNT)
        if r < RP-1: e("  s_add_u32 s29, s29, 8192")
e("  s_waitcnt vmcnt(0)")
if O("nored5", 0): stamp(5)
e("L_P1:")
if O("lsl", 0): e(f"  s_sleep {O('lsl', 0)}", "back off before every read of the granules")
b = 48
for j in range(4): e(f"  buffer_load_dwordx4 v[{b+4*j}:{b+3+4*j}], v44, s[16:19], s{27 if j == 0 else 47+j} offen" + HL)
e("  s_waitcnt vmcnt(0)")
e(f"  v_cmp_ne_u32 vcc, s47, v{b+2}"); e(f"  v_cmp_ne_u32 s[32:33], s47, v{b+6}")
e(f"  v_cmp_ne_u32 s[38:39], s47, v{b+10}"); e(f"  v_cmp_ne_u32 s[40:41], s47, v{b+14}")
e("  s_or_b64 vcc, vcc, s[32:33]"); e("  s_or_b64 s[38:39], s[38:39], s[40:41]"); e("  s_or_b64 vcc, vcc, s[38:39]")
e("  s_cbranch_scc0 L_PT")
if not O("lsl", 0): e(f"  s_sleep {PSL}", "some granule is missing: back off and read again")
e("  s_sub_u32 s61, s61, 1"); e("  s_cbranch_scc0 L_P1")
e("  .p2align 3"); e("L_PT:")
def merge(a1, a2, b1, b2, o1, o2, t):
    e(f"  v_min_u32 v{t}, v{a1}, v{b1}"); e(f"  v_max_u32 v{o1}, v{a1}, v{b1}"); e(f"  v_max3_u32 v{o2}, v{t}, v{a2}, v{b2}")
merge(b, b+1, b+4, b+5, 40, 41, 12); merge(b+8, b+9, b+12, b+13, 42, 43, 13); merge(40, 41, 42, 43, 40, 41, 12)
e("  s_nop 0")
for ctl in (f"quad_perm:[1,0,3,2] {DPPM}", f"quad_perm:[2,3,0,1] {DPPM}", f"row_ror:4 {DPPM}", f"row_ror:8 {DPPM}",
            "row_bcast:15 row_mask:0xa bank_mask:0xf", "row_bcast:31 row_mask:0xc bank_mask:0xf"):
    e(f"  v_min_u32_dpp v12, v40, v40 {ctl}"); e(f"  v_max_u32_dpp v40, v40, v40 {ctl}")
    e(f"  v_max_u32_dpp v13, v41, v41 {ctl}"); e("  v_max_u32 v41, v12, v13")
e("  v_cmp_gt_u32 vcc, 8, v0"); e("  v_readlane_b32 s32, v40, 63", "global top-2 keys"); e("  v_readlane_b32 s33, v41, 63")
e(f"  s_cmp_ge_u32 s2, {NWT}"); e("  s_cbranch_scc1 L_XH2")
e("  s_and_b32 s38, s32, 0x7ff"); e("  s_and_b32 s39, s33, 0x7ff"); e("  s_sub_u32 s38, 2047, s38"); e("  s_sub_u32 s39, 2047, s39")
e("  s_mul_i32 s38, s38, 1152"); e("  s_mul_i32 s39, s39, 1152"); e(f"  s_mov_b32 m0, {XIMG}"); e("  s_sub_u32 s40, s39, 128")
e("  buffer_load_dwordx4 v8, s[4:7], s38 offen lds", "both routed rows -> LDS [2][1152 B]")
e("  s_add_u32 s41, s38, 1024"); e("  v_mov_b32 v12, s40"); e("  v_mov_b32 v13, s41"); e("  s_addk_i32 m0, 0x400")
e("  v_cndmask_b32 v12, v12, v13, vcc"); e("  v_add_u32 v12, v12, v8")
e("  buffer_load_dwordx4 v12, s[4:7], 0 offen lds")
e("  s_addk_i32 m0, 0x400"); e("  s_add_u32 s40, s39, 896"); e("  s_mov_b64 exec, 0xffff")
e("  buffer_load_dwordx4 v8, s[4:7], s40 offen lds"); e("  s_mov_b64 exec, -1")
stamp(1)
def final_setup():
    cm("last stage: lane row r = lane>>4 holds token r>>1, column 8u + 2(lane&3) + (r&1)")
    e("  v_cmp_gt_u32 vcc, 32, v0"); e("  v_mov_b32 v28, s33"); e("  v_mov_b32 v29, s32"); e("  v_and_b32 v31, 3, v0")
    e("  v_cndmask_b32 v28, v28, v29, vcc"); e("  v_and_b32 v29, 0xffff, v28"); e("  v_sub_u32 v29, 2047, v29")
    e("  v_mul_u32_u24 v29, 1152, v29"); e("  v_bfe_u32 v30, v0, 4, 1"); e("  v_lshlrev_b32 v30, 1, v30")
    e("  v_lshl_add_u32 v30, v31, 2, v30"); e("  v_add_u32 v29, v29, v30")
    e("  v_not_b32 v32, v28"); e("  v_ashrrev_i32 v32, 31, v32"); e("  v_or_b32 v32, 0x80000000, v32")
    e("  v_xor_b32 v32, v32, v28"); e("  v_and_b32 v32, 0xffff0000, v32", "the bf16 score back from the key"); e("  v_mul_f32 v32, 0xbfb8aa3b, v32")
    e("  v_exp_f32 v32, v32"); e("  v_lshrrev_b32 v33, 5, v0"); e("  v_add_f32 v32, 1.0, v32"); e("  v_rcp_f32 v32, v32")
    e("  v_mul_u32_u24 v33, 1152, v33"); e("  v_cvt_pk_bf16_f32 v32, v32, v32"); e("  v_and_b32 v32, 0xffff0000, v32", "sigmoid, rounded to bf16")
    e("  s_sub_u32 s46, s45, 72", "unit u = slice - 72"); e("  s_lshl_b32 s50, s46, 4"); e(f"  s_add_u32 s51, s50, {XIMG}"); e("  v_add3_u32 v33, v33, v30, s51")
    e("  v_lshrrev_b32 v34, 2, v0"); e("  v_mul_u32_u24 v34, 4608, v34"); e("  v_lshl_add_u32 v34, v31, 4, v34")
    e("  s_lshl_b32 s80, s46, 6"); e(f"  s_add_u32 s80, s80, {WS_SLAB}")
    for t in range(1, 9): e(f"  s_add_u32 s{80+t}, s80, {16*4608*t}")
    e("  s_mov_b32 s41, 0x0c04000c"); e("  s_mov_b32 s42, 0x04020100"); e("  v_mov_b32 v35, 0")
if EFS == 2: final_setup()
e("  s_barrier", "A: the rows are requested")
if not WD4E: wd4()
if EFS == 1: final_setup()
e(f"  s_waitcnt vmcnt({0 if WD4E else 8}) lgkmcnt(0)")
stamp(4, True)
e("  s_barrier", "B: the rows are in LDS")
if LOWP: e("  s_setprio 0")
if not LATEC: copy_stores(CW); e("  s_mov_b64 exec, -1")
if EFS == 0: final_setup()
if LOWP == 2: e("  s_setprio 3")
e("  s_branch L_JOIN")
e("L_XH:"); e("  s_barrier", "the prefetch is done"); e("  s_branch L_P1")
e("L_XH2:"); copy_stores(CH); e("  s_branch L_FIN")
cm("---------------------------------------------------------------- roles 0..3: (matrix, half of K)")
e("L_NOTX:")
e(f"  s_mov_b32 s10, {WB}")
e(f"  s_cmp_ge_u32 s2, {NWT}"); e("  s_cbranch_scc1 L_HELP")
slice_calc(); setup0()
e("  v_lshrrev_b32 v8, 2, v0"); e("  v_mul_u32_u24 v8, 9216, v8"); e("  v_lshrrev_b32 v9, 4, v0"); e("  v_and_b32 v9, 2, v9")
e("  v_xor_b32 v9, v9, v0"); e("  v_and_b32 v9, 3, v9"); e("  v_lshl_add_u32 v8, v9, 4, v8", "16 rows x 64 B, halves swapped in rows 8..15")
e("  s_and_b32 s28, s3, 1"); e(f"  s_mul_i32 s28, s28, {288*9216}"); e("  s_lshl_b32 s29, s45, 6"); e("  s_add_u32 s28, s28, s29")
e("  s_and_b32 s42, s45, 1", "the two WGs that share the lines start on different rows")
e(f"  s_mul_i32 s29, s42, {N0*QS}"); e(f"  s_add_u32 s46, s28, {2*N0*QS}"); e(f"  s_add_u32 s43, s28, {N0*QS}")
e("  s_sub_u32 s43, s43, s29"); e("  s_add_u32 s28, s28, s29")
e("  s_mul_i32 s30, s3, 18432"); e("  s_mov_b32 m0, s30")
e("  s_cmp_ge_u32 s3, 2"); e("  s_waitcnt lgkmcnt(0)")
e("  s_cselect_b32 s8, s26, s24"); e("  s_cselect_b32 s9, s27, s25")
stamp(1)
ops = [("W", i) for i in range(WE)] + [("D", i) for i in range(18)] + [("W", i) for i in range(WE, 8)]
pos = {op: n for n, op in enumerate(ops)}
nis = 0
def issue():
    global nis
    if nis >= len(ops): return False
    k, i = ops[nis]
    if k == "D":
        if i == N0: e("  s_mov_b32 s28, s43")
        if i == 2*N0: e("  s_mov_b32 s28, s46")
        e("  buffer_load_dwordx4 v8, s[8:11], s28 offen lds")
        if i < 17: e("  s_addk_i32 m0, 0x400"); e(f"  s_add_u32 s28, s28, {QS}")
    else: wd_load(i)
    nis += 1
    return True
def vwait(op): e(f"  s_waitcnt vmcnt({nis - pos[op] - 1})")
while nis < WE + min(N0, W1): issue()
setup1()
e("  v_lshlrev_b32 v9, 9, v3"); e("  v_bfe_u32 v10, v0, 2, 2"); e("  v_lshl_add_u32 v9, v10, 6, v9"); e("  v_and_b32 v10, 3, v0")
e("  v_lshl_add_u32 v9, v10, 3, v9"); e("  v_and_b32 v10, 1, v3"); e("  v_lshl_add_u32 v9, v10, 5, v9")
e("  v_add_u32 v9, s30, v9", "transposing reads, columns 0..15"); e("  v_xor_b32 v10, 32, v9", "columns 16..31")
e("  v_and_b32 v11, 1, v0"); e("  v_mul_u32_u24 v11, 1152, v11"); e("  v_lshl_add_u32 v11, v3, 4, v11")
e("  s_and_b32 s29, s3, 1"); e("  s_mul_i32 s29, s29, 576"); e(f"  s_add_u32 s29, s29, {XIMG}")
e(f"  s_mul_i32 s31, s42, {32*N0}")
e(f"  v_add_u32 v{VA2}, s29, v11", "x fragments"); e(f"  v_add_u32 v11, s31, v{VA2}"); e(f"  v_subrev_u32 v1, s31, v{VA2}")
e("  s_lshl_b32 s29, s3, 8"); e(f"  s_add_u32 s29, s29, {TEX}"); e(f"  v_lshl_add_u32 v{VXW}, v2, 3, s29")
def trreads(s):
    for hh in range(2):
        for u in range(2):
            r = BF + 8*s + 4*hh + 2*u
            e(f"  ds_read_b64_tr_b16 v[{r}:{r+1}], v{9+hh} offset:{2048*s+256*u}")
def mfmas(s):
    for hh in range(2):
        c = "0" if s == 0 else f"v[{ACC+4*hh}:{ACC+4*hh+3}]"
        r = BF + 8*s + 4*hh
        e(f"  v_mfma_f32_16x16x32_bf16 v[{ACC+4*hh}:{ACC+4*hh+3}], v[{AF+4*s}:{AF+4*s+3}], v[{r}:{r+3}], {c}")
E0 = N0 // 2
for s in range(PB):
    for h in range(2):
        need = 2*s + h
        def ok():
            if nis >= len(ops) or ops[nis][0] != "D": return False
            i = ops[nis][1]
            return i < need + 1 + W1 if i < N0 else (need >= N0 - 1 and i < need + 1 + W2)
        if ok() or h == 1: vwait(("D", need))
        while ok(): issue()
    if s == 0: stamp(2)
    trreads(s)
while ops[nis][0] == "D": issue()
stamp(5)
e("  s_barrier", "A")
while issue(): pass
e("  s_waitcnt lgkmcnt(0)"); e("  s_barrier", "B")
stamp(4, True); fs(1, True)
if CPRIO: e(f"  s_setprio {CPRIO}")
order = []
for s in range(9):
    ar = 11 if s < E0 else (1 if s < 2*E0 else VA2)
    e(f"  ds_read_b128 v[{AF+4*s}:{AF+4*s+3}], v{ar} offset:{64*s}"); order.append(f"A{s}")
late = list(range(PB, 9))
for s in range(9):
    if late and late[0] <= s + 1:
        t = late.pop(0); vwait(("D", 2*t+1)); trreads(t); order += [f"T{t}"]*4
    tag = f"A{s}" if s < PB else f"T{s}"
    need = len(order) - 1 - order[::-1].index(tag)
    e(f"  s_waitcnt lgkmcnt({min(15, len(order) - need - 1)})")
    mfmas(s)
stamp(3); fs(2)
e("  s_mov_b64 exec, 0xffff"); e("  s_nop 6")
e(f"  ds_write2_b64 v{VXW}, v[{ACC}:{ACC+1}], v[{ACC+4}:{ACC+5}] offset0:0 offset1:16")
e("  s_mov_b64 exec, -1")
cm("---------------------------------------------------------------- all 5 waves: SwiGLU, 128 columns of w_down each")
e("L_JOIN:")
e("  s_waitcnt lgkmcnt(0)"); fs(3, True); e("  s_barrier", "C: the four partial pre-activations are in LDS"); fs(4)
e("  ds_read2_b32 v[12:13], v5 offset0:0 offset1:64"); e("  ds_read2_b32 v[14:15], v5 offset0:128 offset1:192")
e(f"  ds_read_b32 v23, v{VTAG}")
e("  s_cmp_eq_u32 s3, 4"); e("  s_waitcnt lgkmcnt(0)")
e("  v_add_f32 v12, v12, v13"); e("  v_add_f32 v14, v14, v15")
e("  v_cvt_pk_bf16_f32 v12, v12, v14"); e("  v_lshlrev_b32 v13, 16, v12"); e("  v_mul_f32 v15, 0xbfb8aa3b, v13"); e("  v_exp_f32 v15, v15")
e("  v_and_b32 v14, 0xffff0000, v12"); e("  v_add_f32 v15, 1.0, v15"); e("  v_rcp_f32 v15, v15"); e("  s_nop 0")
e("  v_mul_f32 v13, v13, v15"); e("  v_cvt_pk_bf16_f32 v13, v13, v13"); e("  v_and_b32 v13, 0xffff0000, v13")
e("  v_mul_f32 v13, v13, v14"); e("  v_cvt_pk_bf16_f32 v13, v13, v13", "h = bf16(bf16(silu(a)) * u), in both halves")
fs(5)
e("  s_cbranch_scc1 L_W4"); e("  s_waitcnt vmcnt(0)"); e("L_W4:"); fs(6); e("  s_nop 0" if WD4E else f"  s_waitcnt vmcnt({0 if LATEC else 9})")
e(f"  v_and_b32_dpp v12, v13, v6 quad_perm:[0,0,2,2] {DPPM}"); e(f"  v_and_b32_dpp v16, v13, v6 quad_perm:[1,1,3,3] {DPPM}")
e("  s_nop 0"); e("  .p2align 3")
cm("A = h on a diagonal: D[token, column parity and pair][chunk] sums 4 rows of w_down per MFMA")
for mp in range(8):
    src = 12 if mp < 4 else 16; qq = mp & 3
    for r in range(4):
        n = (4*(r-qq)) % 16
        ctl = "quad_perm:[0,1,2,3]" if n == 0 else f"row_ror:{n}"
        e(f"  v_mov_b32_dpp v{AD+4*mp+r}, v{src} {ctl} row_mask:0xf bank_mask:{hex(1<<r)}")
    if mp >= 1:
        m = mp - 1; c = "0" if m == 0 else f"v[{ACC}:{ACC+3}]"
        e(f"  v_mfma_f32_16x16x32_bf16 v[{ACC}:{ACC+3}], v[{AD+4*m}:{AD+4*m+3}], v[{WD+4*m}:{WD+4*m+3}], {c}")
e("  s_nop 0")
e(f"  v_mfma_f32_16x16x32_bf16 v[{ACC}:{ACC+3}], v[{AD+28}:{AD+31}], v[{WD+28}:{WD+31}], v[{ACC}:{ACC+3}]")
e("  s_cselect_b32 exec_lo, 0x00ff00ff, -1"); e("  s_cselect_b32 exec_hi, 0x00ff00ff, -1"); e("  s_nop 5")
cm("4 sums (top 24 bits each) + tag in 16 bytes")
for j in range(3): e(f"  v_perm_b32 v{20+j}, v{ACC+j}, v{ACC+3}, s{56+j}")
e("  buffer_store_dwordx4 v[20:23], v7, s[16:19], s36 offen" + HS)
GATH = AMP and int(AMP.split(",")[0]) >= 30
if GATH:
    e("  s_memrealtime s[90:91]"); e("  s_waitcnt lgkmcnt(0)")
    e("  s_mov_b64 exec, 1"); e("  v_mov_b32 v24, s90"); e("  v_mov_b32 v25, s64"); e("  v_mov_b32 v26, v23"); e("  v_mov_b32 v27, 0")
    e("  s_lshl_b32 s92, s2, 3"); e("  s_add_u32 s92, s92, s3"); e("  s_lshl_b32 s92, s92, 4"); e("  s_add_u32 s92, s92, 0xd0000")
    e("  buffer_store_dwordx4 v[24:27], v27, s[16:19], s92 offen sc1")
    e("  s_cmp_eq_u32 s3, 4")
if STAMP:
    e("  s_cbranch_scc1 L_S6"); stamp(6); e("  s_branch L_FIN"); e("L_S6:"); stamp(2)
else: e("  s_cbranch_scc0 L_FIN")
if LATEC == 1: e("  s_mov_b64 exec, -1"); copy_stores(CW)
e("  s_cmp_ge_u32 s46, 72"); e(f"  s_cbranch_scc1 {'L_WC' if LATEC == 2 else 'L_FIN'}")
cm("---------------------------------------------------------------- 72 waves: sum over the 144 WGs, write the routed rows")
e("  s_mov_b64 exec, -1"); e("  ds_read_u16_d16_hi v35, v33"); e(f"  s_mov_b32 s61, {SPIN}")
e("  s_waitcnt vmcnt(0)")
stamp(6)
if RSL: e(f"  s_sleep {RSL}")
def rload(t): e(f"  buffer_load_dwordx4 v[{R0+4*t}:{R0+3+4*t}], v34, s[16:19], s{80+t} offen" + HL)
def racc(t):
    r = R0 + 4*t
    e(f"  v_perm_b32 v{r+3}, v{r+1}, v{r}, s41"); e(f"  v_perm_b32 v{r+3}, v{r+2}, v{r+3}, s42")
    if t:
        e(f"  v_pk_add_f32 v[{R0}:{R0+1}], v[{R0}:{R0+1}], v[{r}:{r+1}]"); e(f"  v_pk_add_f32 v[{R0+2}:{R0+3}], v[{R0+2}:{R0+3}], v[{r+2}:{r+3}]")
def rchain(extra, lab):
    for t in range(9):
        if lab: e(f"L_R{t}:")
        e(f"  s_waitcnt vmcnt({8-t+extra})"); e(f"  v_cmp_ne_u32 vcc, s47, v{R0+4*t+3}"); e(f"  s_cbranch_vccnz L_RR{t}")
        if lab: e(f"L_RA{t}:")
        racc(t)
for t in range(9): rload(t)
if LATEC == 2:
    copy_stores(CW); e("  s_mov_b64 exec, -1")
    rchain(9, False)
    e("L_RD:")
else:
    rchain(0, True)
if not O("nored5", 0): stamp(5)
e("  s_nop 1"); e(f"  v_permlane32_swap_b32 v{R0}, v{R0+2}"); e(f"  v_permlane32_swap_b32 v{R0+1}, v{R0+3}")
e(f"  v_add_f32 v{R0}, v{R0}, v{R0+2}"); e(f"  v_add_f32 v{R0+1}, v{R0+1}, v{R0+3}"); e("  s_nop 1")
e(f"  v_permlane16_swap_b32 v{R0}, v{R0+1}"); e(f"  v_add_f32 v{R0}, v{R0}, v{R0+1}"); e("  s_nop 1")
e(f"  v_add_f32_dpp v{R0}, v{R0}, v{R0} row_ror:4 {DPPM}"); e("  s_nop 1"); e(f"  v_add_f32_dpp v{R0}, v{R0}, v{R0} row_ror:8 {DPPM}")
e(f"  v_cvt_pk_bf16_f32 v16, v{R0}, v{R0}"); e("  v_and_b32 v16, 0xffff0000, v16"); e("  v_mul_f32 v16, v16, v32")
e("  v_cvt_pk_bf16_f32 v16, v16, v16"); e("  v_and_b32 v16, 0xffff0000, v16"); e("  s_waitcnt lgkmcnt(0)")
e("  v_add_f32 v16, v16, v35"); e("  v_cvt_pk_bf16_f32 v16, v16, v16")
e("  s_mov_b32 exec_lo, 0x000f000f"); e("  s_mov_b32 exec_hi, 0x000f000f")
e("  buffer_store_short v16, v29, s[20:23], s50 offen" + CFN)
e("  s_cmp_lg_u32 s46, 0"); e("  s_cbranch_scc1 L_FIN")
e("  s_mov_b64 exec, 1", "every reader of d_ws[0] is behind the sums seen here"); e("  v_mov_b32 v16, s47"); e(f"  v_mov_b32 v17, {WS_E}")
e("  buffer_store_dword v16, v17, s[16:19], 0 offen" + CFN)
e("L_FIN:"); stamp_flush(); e("L_END:"); e("  s_endpgm")
if LATEC == 2:
    e("L_WC:"); e("  s_mov_b64 exec, -1"); e("  s_branch L_XH2")
    rchain(0, True); e("  s_branch L_RD")
for t in range(9):
    e(f"L_RR{t}:"); e("  s_sub_u32 s61, s61, 1"); e(f"  s_cbranch_scc1 L_RA{t}")
    for t2 in range(t, 9): rload(t2)
    e(f"  s_branch L_R{t}")
cm("---------------------------------------------------------------- prefetch waves: one word per 128-byte line")
e("L_HELP:")
e(f"  s_sub_u32 s28, s2, {NWT}"); e("  s_and_b32 s29, s28, 7"); e("  s_lshr_b32 s28, s28, 3")
e("  s_and_b32 s33, s3, 1"); e("  s_mul_i32 s33, s33, 288"); e(f"  s_mul_i32 s32, s28, {HR}"); e("  s_add_u32 s32, s32, s33")
e(f"  s_add_u32 s32, s32, {32*N0}"); e("  s_mul_i32 s32, s32, 9216"); e("  s_mul_i32 s34, s29, 1152"); e("  s_add_u32 s32, s32, s34")
e("  v_mul_u32_u24 v3, 0x1c72, v0"); e("  v_lshrrev_b32 v3, 16, v3", "lane / 9"); e("  v_mul_u32_u24 v4, 9, v3"); e("  v_sub_u32 v4, v0, v4")
e("  v_mul_u32_u24 v3, 9216, v3"); e("  v_lshl_add_u32 v3, v4, 7, v3")
if HA:
    cm("the column block whose lines fill only half of a CU's L1 (byte column 384 mod 1024): all its rows first")
    e("  s_and_b32 s36, s3, 1"); e("  s_lshl1_add_u32 s36, s28, s36"); e(f"  s_mul_i32 s36, s36, {21*9216}")
    e("  s_cmp_ge_u32 s29, 4"); e("  s_addc_u32 s37, s29, 0"); e("  s_lshl_b32 s37, s37, 10"); e("  s_add_u32 s36, s36, s37"); e("  s_add_u32 s36, s36, 384")
    e("  v_cmp_lt_u32 vcc, 20, v0"); e("  v_mul_u32_u24 v5, 9216, v0"); e(f"  v_subrev_u32 v6, {21*9216 - 1024}, v5"); e("  v_cndmask_b32 v5, v5, v6, vcc")
    e("  s_cmp_eq_u32 s29, 3"); e("  s_cselect_b32 s37, 42, 21")
e("  s_lshl2_add_u32 s28, s28, s3")
e(f"  s_mul_i32 s29, s29, {5184*128}")
if RP: e(f"  s_add_u32 s29, s29, {RP*8192}")
e("  v_lshlrev_b32 v2, 7, v0")
nr = -(-(288 - 32*N0) // (NH*HR))
assert nr - HG >= 1
e(f"  s_mov_b32 s30, {nr-HG}")
e("  s_cmp_ge_u32 s3, 2"); e("  s_waitcnt lgkmcnt(0)")
e("  s_cselect_b32 s8, s26, s24"); e("  s_cselect_b32 s9, s27, s25")
if O("tw", 0):
    e("  s_load_dword s40, s[12:13], 0", "first touch of w_down and d_out: address translation only")
    e("  s_load_dword s41, s[20:21], 0")
if HA:
    e("  s_bfm_b64 exec, s37, 0"); e(f"  buffer_load_dword v{DUM}, v5, s[8:11], s36 offen")
e(f"  s_bfm_b64 exec, {9*HR}, 0")
for r in range(HG):
    e(f"  buffer_load_dword v{DUM}, v3, s[8:11], s32 offen" + GNT); e(f"  s_add_u32 s32, s32, {NH*HR*9216}")
CPS = 9 - 2*RP
def wchunk(wait):
    e(f"  s_mul_hi_u32 s35, s28, {(2**32 + CPS - 1)//CPS}"); e(f"  s_mul_i32 s31, s35, {CPS}"); e("  s_sub_u32 s31, s28, s31")
    e("  s_mul_i32 s35, s35, 36864"); e("  s_lshl_b32 s31, s31, 12"); e("  s_add_u32 s35, s35, s31"); e("  s_add_u32 s35, s35, s29")
    if wait: e(f"  s_waitcnt vmcnt({HT-1})")
    e(f"  buffer_load_dword v{DUM}, v2, s[12:15], s35 offen" + PNT)
    e("  s_add_u32 s28, s28, 56")
e("  s_barrier"); stamp(1)
if HWF:
    e("  s_bfm_b64 exec, 32, 0")
    for _ in range(HWF): wchunk(False)
    e(f"  s_bfm_b64 exec, {9*HR}, 0")
e("L_HGL:"); e(f"  s_waitcnt vmcnt({HT-1+HX})"); e(f"  buffer_load_dword v{DUM}, v3, s[8:11], s32 offen" + GNT)
e(f"  s_add_u32 s32, s32, {NH*HR*9216}"); e("  s_sub_u32 s30, s30, 1"); e("  s_cmp_lg_u32 s30, 0"); e("  s_cbranch_scc1 L_HGL")
if O("gul", 0): e("  s_waitcnt vmcnt(0)")
stamp(2)
e("  s_bfm_b64 exec, 32, 0")
e("L_HWL:")
wchunk(True)
e(f"  s_cmp_lt_u32 s28, {18*CPS}"); e("  s_cbranch_scc1 L_HWL")
e("  s_waitcnt vmcnt(0)"); e("  s_barrier"); e("  s_branch L_FIN")
e("L_CODE_END:")
cm("rare path: x + x*0 turns an infinity into a NaN")
for n in range(1, ncopy+1):
    e(f"L_FIX{n}:"); e(f"  s_mov_b32 s98, {n}"); e("  s_branch L_FIX")
e("L_FIX:"); e("  s_mov_b32 s29, 0x07060302")
for j in range(36):
    r = XR + j
    e(f"  v_lshlrev_b32 v12, 16, v{r}"); e(f"  v_and_b32 v13, 0xffff0000, v{r}"); e("  v_fma_f32 v12, v12, 0, v12"); e("  v_fma_f32 v13, v13, 0, v13")
    e(f"  v_perm_b32 v{r}, v13, v12, s29")
e("  s_cmp_eq_u32 s98, 1"); e("  s_cbranch_scc1 L_FIXR1"); e("  s_branch L_FIXR2")
e('.section .rodata,"a"'); e(".p2align 6"); e(f".amdhsa_kernel {K}")
e("  .amdhsa_next_free_vgpr 200"); e("  .amdhsa_next_free_sgpr 102"); e("  .amdhsa_accum_offset 200")
e("  .amdhsa_group_segment_fixed_size 0"); e("  .amdhsa_kernarg_size 64"); e("  .amdhsa_user_sgpr_count 2")
e("  .amdhsa_user_sgpr_kernarg_segment_ptr 1"); e("  .amdhsa_system_sgpr_workgroup_id_x 1"); e("  .amdhsa_float_denorm_mode_32 3")
e(".end_amdhsa_kernel")
open(sys.argv[1], "w").write("\n".join(out) + "\n")
```

```python
import sys
NAME = "standalone__moe_arch_mod__prompt"
S, D, F = 2048, 576, 4608
XB = S*D*2
WB = D*F*2
opts = dict(a.split("=") for a in sys.argv[2:] if "=" in a)
def O(k, d): return int(opts.get(k, d))
STAMP = O("stamp", 0); AMP = opts.get("amp"); FINE = O("fine", 0)
if AMP: STAMP = 1
GS = O("gs", 64); REP = O("rep", 4); RS = 256*GS
LG = {16: 0, 32: 1, 64: 2}[GS]; LR = {1: 0, 2: 1, 4: 2, 8: 3}[REP]; NL = REP*GS//16
assert NL <= 16
WS_E = 0; WS_GRAN = 4096; WS_SLAB = 4096 + REP*RS; WS_SIZE = 1 << 20; WS_STAMP = 1 << 21
N0 = O("n0", 2); W1 = O("w1", 4); W2 = O("w2", 4); WE = O("we", 0); PB = O("pb", 7); RP = O("rp", 0)
HR = O("hr", 4); HT = O("ht", 2); HG = O("hg", 1)
PSL = O("psl", 2); SPIN = O("spin", 200000); RSL = O("rsl", 0)
CFN = {0: "", 1: " sc1", 2: " sc0 sc1"}[O("cf", 0)]; WNT = " nt" if O("wnt", 0) else ""; PNT = " nt" if O("pnt", 0) else ""; GNT = " nt" if O("gnt", 0) else ""; XNT = " nt" if O("xnt", 0) else ""; LATEC = O("latec", 1); FL = {0: "", 1: " sc1", 2: " sc0 sc1", 3: " sc1 nt", 4: " nt"}; HS = FL[O("hs", 1)]; HL = FL[O("hl", 1)]; CW = FL[O("cw", 1)]; CH = FL[O("ch", 1)]; WD4E = O("wd4e", 1); HA = O("ha", 0); HWF = O("hwf", 0); HX = O("hx", 0); EFS = O("efs", 1); LOWP = O("lowp", 1); CPRIO = O("cprio", 0)
NWT = 144; NH = 14
out = []
def e(s="", c=None): out.append(s if c is None else f"{s:<72}; {c}")
def cm(s): out.append("; " + s)
def stamp(i, wait=False):
    if STAMP and (i in (0, 7) or not FINE):
        e(f"  s_memrealtime s[{64+2*i}:{65+2*i}]")
        if wait: e("  s_waitcnt lgkmcnt(0)")
def fs(i, wait=False):
    if FINE:
        e(f"  s_memtime s[{64+2*i}:{65+2*i}]")
        if wait: e("  s_waitcnt lgkmcnt(0)")
def stamp_flush():
    if AMP:
        A, B, KK, WV, WG = map(int, AMP.split(","))
        if O("endw", 0): e("  s_waitcnt vmcnt(0)")
        stamp(7, True)
        e(f"  s_cmp_lg_u32 s2, {WG}"); e("  s_cbranch_scc1 L_AMPX")
        e(f"  s_cmp_lg_u32 s3, {WV}"); e("  s_cbranch_scc1 L_AMPX")
        if A >= 30:
            e("  s_sleep 60"); e("  s_mov_b64 exec, -1"); e("  v_lshlrev_b32 v1, 4, v0"); e("  v_mov_b32 v2, 0x80000000"); e("  v_mov_b32 v3, 0")
            for i in range(18):
                e(f"  s_mov_b32 s92, {0xd0000 + 1024*i}")
                e("  buffer_load_dwordx4 v[24:27], v1, s[16:19], s92 offen sc1"); e("  s_waitcnt vmcnt(0)")
                if A in (30, 31, 32, 35): e("  v_subrev_u32 v24, s64, v24")
                elif A == 33: e("  v_sub_u32 v24, v24, v25")
                else: e("  v_subrev_u32 v24, s64, v25")
                e("  v_lshlrev_b32 v24, 12, v24"); e(f"  v_add_u32 v25, {64*i}, v0"); e("  v_or_b32 v24, v24, v25")
                e("  v_cmp_eq_u32 vcc, s47, v26"); e("  s_nop 1"); e("  v_cndmask_b32 v24, v2, v24, vcc"); e("  v_max_i32 v3, v3, v24" if i else "  v_mov_b32 v3, v24")
            for ctl in ("quad_perm:[1,0,3,2] row_mask:0xf bank_mask:0xf", "quad_perm:[2,3,0,1] row_mask:0xf bank_mask:0xf", "row_ror:4 row_mask:0xf bank_mask:0xf", "row_ror:8 row_mask:0xf bank_mask:0xf",
                        "row_bcast:15 row_mask:0xa bank_mask:0xf", "row_bcast:31 row_mask:0xc bank_mask:0xf"):
                e("  s_nop 1"); e(f"  v_max_i32_dpp v3, v3, v3 {ctl}")
            e("  s_nop 1"); e("  v_readlane_b32 s60, v3, 63")
            if A in (30, 33, 34): e("  s_ashr_i32 s60, s60, 12")
            elif A == 31: e("  s_bfe_u32 s60, s60, 0x30003")
            elif A == 32: e("  s_and_b32 s60, s60, 7")
            else: e("  s_bfe_u32 s60, s60, 0x50006")
            e("  s_memrealtime s[78:79]"); e("  s_waitcnt lgkmcnt(0)")
        else:
            e(f"  s_sub_u32 s60, s{64+2*B}, s{64+2*A}")
        e(f"  s_mul_i32 s60, s60, {KK}")
        e("L_AMP:"); e("  s_memrealtime s[62:63]"); e("  s_waitcnt lgkmcnt(0)"); e("  s_sub_u32 s62, s62, s78")
        e("  s_cmp_lt_u32 s62, s60"); e("  s_cbranch_scc1 L_AMP"); e("L_AMPX:")
    elif STAMP:
        if FINE: e("  s_memtime s[78:79]"); e("  s_waitcnt lgkmcnt(0)")
        else: stamp(7, True)
        e("  s_mov_b64 exec, 1")
        e("  s_lshl_b32 s60, s2, 3"); e("  s_add_u32 s60, s60, s3"); e("  s_lshl_b32 s60, s60, 6")
        e(f"  s_add_u32 s60, s60, {WS_STAMP}"); e("  s_mov_b32 s18, 0x1000000"); e("  v_mov_b32 v1, 0")
        for j in range(4):
            for k in range(4): e(f"  v_mov_b32 v{4+k}, s{64+4*j+k}")
            e(f"  buffer_store_dwordx4 v[4:7], v1, s[16:19], s60 offen offset:{16*j}"); e("  s_nop 1")

hdr = open('cdna_kernels/%s.s.ref' % NAME).read().split('\n')
for l in hdr:
    if l.startswith('; @launch'): break
    e(l)
XIMG = 73728; TAGL = XIMG + 2304; TEX = XIMG + 3072; WRIMG = TEX + 1024; LDS = 83968
e(f"; @launch grid=(256,1,1) block=(320,1,1) lds={LDS}")
DOC = """
One launch, 256 workgroups of 5 waves, one per CU (LDS and VGPR use allow one).
 role 4 (wave 0), every WG : 8 rows of x -> router scores -> local top-2 -> tagged granule in d_ws,
                             later the copy of its rows that were not routed.
 WGs 0..143, roles 0..3    : 32 columns of w_gate / w_up (LDS-DMA, transposing LDS reads, MFMA),
                             SwiGLU, the matching 32 rows of w_down (MFMA), tagged partial sums in d_ws.
 WGs 0..143, role 4        : gathers the 256 granules, global top-2, brings both rows into LDS;
                             72 of them add up the 144 partial sums of 8 columns and write the routed rows.
 WGs 144..255, roles 0..3  : pull weight lines into the L2 that the weight WGs with the same id mod 8
                             are expected to share (speed only, nothing depends on it).
 Hand-offs between WGs are 16-byte pieces that carry a tag, written and read with sc1.
 tag = d_ws[0] + 0x01010101; d_ws[0] is set to the tag at the end, so it differs from launch to launch.
"""
for l in DOC.strip("\n").split("\n"): cm(l)
e('.amdgcn_target "amdgcn-amd-amdhsa--gfx950"'); e(".text")
K = NAME + "_kernel"
e(f".globl {K}"); e(".p2align 8"); e(f".type {K},@function"); e(f"{K}:")
DPPM = "row_mask:0xf bank_mask:0xf"
AF = 12; BF = 48; ACC = 120; WD = 128; AD = 160; XR = 84; WR = 48; R0 = 48
VXW = 192; VA2 = 193; VTAG = 194; DUMC = 196; DUM = 197
QS = 16*9216

def slice_calc():
    e("  s_and_b32 s45, s2, 7"); e("  s_mul_i32 s45, s45, 18"); e("  s_lshr_b32 s44, s2, 3")
    e("  s_add_u32 s45, s45, s44", "slice: neighbours are 8 ids apart")
def setup0():
    e("  v_and_b32 v2, 15, v0"); e("  v_lshrrev_b32 v3, 4, v0")
    e("  v_mul_u32_u24 v4, 9216, v3"); e("  v_lshl_add_u32 v4, v2, 4, v4", "w_down: row 8g, 16-byte chunk c")
    e(f"  s_mul_i32 s34, s45, {32*1152}"); e("  s_lshl_b32 s35, s3, 8"); e("  s_add_u32 s34, s34, s35"); e("  s_add_u32 s35, s34, 4608")
def setup1():
    e("  v_lshrrev_b32 v5, 2, v2"); e("  v_lshl_add_u32 v5, v3, 3, v5"); e("  v_and_b32 v6, 1, v0"); e("  v_lshl_add_u32 v5, v6, 2, v5")
    e("  v_lshlrev_b32 v5, 3, v5"); e("  v_and_b32 v6, 2, v0"); e("  v_lshl_add_u32 v5, v6, 1, v5")
    e(f"  v_add_u32 v5, {TEX}, v5", "exchange table: this lane's (f, token)")
    e("  v_and_b32 v6, 1, v0"); e("  v_cmp_eq_u32 vcc, 1, v6"); e("  v_mov_b32 v6, 0xffff"); e("  v_mov_b32 v7, 0xffff0000")
    e("  v_cndmask_b32 v6, v6, v7, vcc", "half-word mask by lane parity")
    e("  v_lshlrev_b32 v7, 6, v2"); e("  v_lshl_add_u32 v7, v3, 4, v7", "partial-sum piece of this lane")
    e("  s_mul_i32 s36, s45, 4608"); e("  s_lshl_b32 s37, s3, 10"); e("  s_add_u32 s36, s36, s37"); e(f"  s_add_u32 s36, s36, {WS_SLAB}")
    e(f"  v_mov_b32 v{VTAG}, {TAGL}")
    e("  s_mov_b32 s56, 0x07060501"); e("  s_mov_b32 s57, 0x07060502"); e("  s_mov_b32 s58, 0x07060503")
    for j in range(0, 32, 2): e(f"  v_mov_b64 v[{AD+j}:{AD+j+1}], 0")
def wd_load(mp): e(f"  buffer_load_dwordx4 v[{WD+4*mp}:{WD+4*mp+3}], v4, s[12:15], s{34+(mp>>2)} offen offset:{1152*(mp&3)}" + WNT)
ncopy = 0
def copy_stores(fl=""):
    global ncopy
    ncopy += 1
    e("  s_and_b32 s38, s32, 0xffff"); e("  s_and_b32 s39, s33, 0xffff")
    e("  v_cmp_ne_u32 s[52:53], s38, v11"); e("  v_cmp_ne_u32 s[54:55], s39, v11")
    e("  s_and_b64 exec, s[52:53], s[54:55]", "rows that are not routed")
    e("  s_cmp_lg_u64 s[96:97], 0"); e(f"  s_cbranch_scc1 L_FIX{ncopy}"); e(f"L_FIXR{ncopy}:")
    for i in range(9): e(f"  buffer_store_dwordx4 v[{XR+4*i}:{XR+4*i+3}], v10, s[20:23], s28 offen offset:{128*i}{fl}")

if STAMP:
    for i in range(2, 16): e(f"  s_mov_b32 s{64+i}, 0")
stamp(0)
cm("SRDs: x s[4:7], w_r or w_gate/w_up s[8:11], w_down s[12:15], d_ws s[16:19], d_out s[20:23]")
e("  s_load_dwordx2 s[4:5], s[0:1], 0"); e("  s_load_dwordx2 s[8:9], s[0:1], 8"); e("  s_load_dwordx2 s[16:17], s[0:1], 56")
e("  s_load_dwordx4 s[24:27], s[0:1], 16"); e("  s_load_dwordx2 s[12:13], s[0:1], 32"); e("  s_load_dwordx2 s[20:21], s[0:1], 40")
e("  s_getpc_b64 s[28:29]", "read one word of every line of the code: it lands in L2"); e("L_PC:")
e("  v_lshlrev_b32 v2, 7, v0"); e("  v_cmp_gt_u32 vcc, (L_CODE_END-L_PC+127)/128, v0")
e("  s_and_saveexec_b64 s[30:31], vcc"); e("  s_cbranch_execz L_NOPF")
e(f"  global_load_dword v{DUMC}, v2, s[28:29]"); e("L_NOPF:"); e("  s_mov_b64 exec, -1")
e("  v_lshrrev_b32 v1, 6, v0"); e("  v_and_b32 v0, 63, v0"); e("  v_readfirstlane_b32 s3, v1")
e("  s_cmp_ge_u32 s2, 256"); e("  s_cbranch_scc1 L_END")
e("  s_sub_u32 s3, s3, 1", "role: wave 0 -> 4, wave k -> k-1"); e("  s_cselect_b32 s3, 4, s3")
for r, v in ((6, XB), (7, "0x20000"), (11, "0x20000"), (14, WB), (15, "0x20000"), (18, WS_SIZE), (19, "0x20000"), (22, XB), (23, "0x20000")):
    e(f"  s_mov_b32 s{r}, {v}")
e("  s_cmp_lg_u32 s3, 4"); e("  s_cbranch_scc1 L_NOTX")
cm("---------------------------------------------------------------- role 4: router scores of 8 rows")
e("  s_setprio 3")
e(f"  s_mov_b32 s10, {D*2}"); e(f"  s_mov_b32 m0, {WRIMG}")
e("  v_lshlrev_b32 v8, 4, v0"); e("  v_and_b32 v1, 0x70, v8"); e("  v_lshrrev_b32 v9, 3, v0")
e("  v_mul_u32_u24 v10, 1152, v9"); e("  v_add_u32 v10, v10, v1", "8 lanes per row"); e("  s_mul_i32 s28, s2, 9216")
e("  s_waitcnt lgkmcnt(0)")
e(f"  s_load_dword s47, s[16:17], {WS_E}")
e("  buffer_load_dwordx4 v8, s[8:11], 0 offen lds", "w_r -> LDS"); e("  s_mov_b64 exec, 0xff")
e("  buffer_load_dwordx4 v8, s[8:11], 0 offen offset:1024 lds"); e("  s_mov_b64 exec, -1")
for i in range(9): e(f"  buffer_load_dwordx4 v[{XR+4*i}:{XR+4*i+3}], v10, s[4:7], s28 offen offset:{128*i}" + XNT)
e(f"  v_add_u32 v1, {WRIMG}, v1")
e("  s_lshl_b32 s29, s2, 3"); e("  s_sub_u32 s29, 2047, s29"); e("  v_sub_u32 v11, s29, v9", "2047 - row"); e("  s_mov_b32 s30, 0xffff0000")
e(f"  s_and_b32 s29, s2, {REP-1}"); e(f"  s_mul_i32 s27, s29, {RS}"); e(f"  s_add_u32 s27, s27, {WS_GRAN}", "the copy of the granules this WG reads")
for j in range(1, 4): e(f"  s_add_u32 s{47+j}, s27, {64*GS*j}")
e("  s_and_b32 s29, s2, 7"); e("  s_lshl_b32 s29, s29, 5"); e("  s_lshr_b32 s31, s2, 3"); e("  s_add_u32 s29, s29, s31")
e(f"  s_mul_i32 s29, s29, {GS}"); e(f"  s_add_u32 s31, s29, {WS_GRAN}", "own granule")
e(f"  v_mul_u32_u24 v44, {GS}, v0")
for j in range(4): e(f"  v_mov_b32 v{12+j}, 0")
e("  v_bfrev_b32 v22, 1")
e(f"  v_bfe_u32 v21, v0, {LG}, {LR}"); e(f"  v_mul_u32_u24 v21, {RS}, v21"); e(f"  v_and_b32 v19, {GS//16-1}, v0"); e("  v_lshl_add_u32 v21, v19, 4, v21")
e(f"  s_mov_b32 s61, {SPIN}"); e(f"  v_mov_b32 v45, {TAGL}")
e("  s_waitcnt vmcnt(9) lgkmcnt(0)")
for i in range(9): e(f"  ds_read_b128 v[{WR+4*i}:{WR+4*i+3}], v1 offset:{128*i}")
e("  s_add_u32 s47, s47, 0x01010101", "tag of this launch"); e("  v_mov_b32 v18, s47")
for i in range(9):
    e(f"  s_waitcnt vmcnt({8-i}) lgkmcnt({8-i})")
    for j in range(4): e(f"  v_dot2c_f32_bf16 v{12+j}, v{XR+4*i+j}, v{WR+4*i+j}")
e("  s_nop 1")
e("  v_add_f32 v12, v12, v13"); e("  v_add_f32 v14, v14, v15"); e("  v_add_f32 v12, v12, v14")
e("  s_movk_i32 s29, 0x207"); e("  v_cmp_class_f32 s[96:97], v12, s29", "lanes that hold an inf or a NaN")
e(f"  v_add_f32_dpp v12, v12, v12 quad_perm:[1,0,3,2] {DPPM}"); e("  s_nop 1")
e(f"  v_add_f32_dpp v12, v12, v12 quad_perm:[2,3,0,1] {DPPM}"); e("  s_nop 1")
e(f"  v_add_f32_dpp v12, v12, v12 row_half_mirror {DPPM}")
cm("key = order-preserving bf16 score << 16 | 2047 - row; NaN sorts last")
e("  v_cvt_pk_bf16_f32 v13, v12, v12"); e("  v_cmp_u_f32 vcc, v12, v12"); e("  v_ashrrev_i32 v14, 31, v13")
e("  v_bitop3_b32 v13, v13, v14, v22 bitop3:0x1e"); e("  v_cndmask_b32 v13, v13, 0, vcc"); e("  v_and_or_b32 v13, v13, s30, v11")
e("  s_nop 1")
e(f"  v_max_u32_dpp v16, v13, v13 row_ror:8 {DPPM}"); e(f"  v_min_u32_dpp v17, v13, v13 row_ror:8 {DPPM}"); e("  s_nop 0")
for ctl in ("row_bcast:15 row_mask:0xa bank_mask:0xf", "row_bcast:31 row_mask:0xc bank_mask:0xf"):
    e(f"  v_min_u32_dpp v14, v16, v16 {ctl}"); e(f"  v_max_u32_dpp v16, v16, v16 {ctl}")
    e(f"  v_max_u32_dpp v15, v17, v17 {ctl}"); e("  v_max_u32 v17, v14, v15")
e(f"  s_lshl_b64 exec, {hex((1 << NL) - 1)}, 48", f"lanes 48..63 hold the pair: {REP} copies x {GS} bytes")
e("  buffer_store_dwordx4 v[16:19], v21, s[16:19], s31 offen" + HS)
stamp(3)
e(f"  s_cmp_lt_u32 s2, {NWT}"); e("  s_cbranch_scc1 L_XG"); e("  s_barrier", "prefetch WG: let the other waves fill the queue"); e("L_XG:")
e("  ds_write_b32 v45, v18"); e("  s_mov_b64 exec, -1")
slice_calc(); setup0(); setup1()
e(f"  s_cmp_ge_u32 s2, {NWT}"); e("  s_cbranch_scc1 L_XH")
def wd4():
    e("  s_mov_b32 exec_lo, 0x00ff00ff", "columns 512..575 of w_down"); e("  s_mov_b32 exec_hi, 0x00ff00ff")
    for mp in range(8): wd_load(mp)
    e("  s_mov_b64 exec, -1")
if WD4E: wd4()
if RP:
    e("  v_lshlrev_b32 v46, 7, v0"); e(f"  s_mul_i32 s29, s45, {32*1152}")
    for r in range(RP):
        e(f"  buffer_load_dword v{DUM}, v46, s[12:15], s29 offen" + PNT)
        if r < RP-1: e("  s_add_u32 s29, s29, 8192")
e("  s_waitcnt vmcnt(0)")
if O("nored5", 0): stamp(5)
e("L_P1:")
if O("lsl", 0): e(f"  s_sleep {O('lsl', 0)}", "back off before every read of the granules")
b = 48
for j in range(4): e(f"  buffer_load_dwordx4 v[{b+4*j}:{b+3+4*j}], v44, s[16:19], s{27 if j == 0 else 47+j} offen" + HL)
e("  s_waitcnt vmcnt(0)")
e(f"  v_cmp_ne_u32 vcc, s47, v{b+2}"); e(f"  v_cmp_ne_u32 s[32:33], s47, v{b+6}")
e(f"  v_cmp_ne_u32 s[38:39], s47, v{b+10}"); e(f"  v_cmp_ne_u32 s[40:41], s47, v{b+14}")
e("  s_or_b64 vcc, vcc, s[32:33]"); e("  s_or_b64 s[38:39], s[38:39], s[40:41]"); e("  s_or_b64 vcc, vcc, s[38:39]")
e("  s_cbranch_scc0 L_PT")
if not O("lsl", 0): e(f"  s_sleep {PSL}", "some granule is missing: back off and read again")
e("  s_sub_u32 s61, s61, 1"); e("  s_cbranch_scc0 L_P1")
e("  .p2align 3"); e("L_PT:")
def merge(a1, a2, b1, b2, o1, o2, t):
    e(f"  v_min_u32 v{t}, v{a1}, v{b1}"); e(f"  v_max_u32 v{o1}, v{a1}, v{b1}"); e(f"  v_max3_u32 v{o2}, v{t}, v{a2}, v{b2}")
merge(b, b+1, b+4, b+5, 40, 41, 12); merge(b+8, b+9, b+12, b+13, 42, 43, 13); merge(40, 41, 42, 43, 40, 41, 12)
e("  s_nop 0")
for ctl in (f"quad_perm:[1,0,3,2] {DPPM}", f"quad_perm:[2,3,0,1] {DPPM}", f"row_ror:4 {DPPM}", f"row_ror:8 {DPPM}",
            "row_bcast:15 row_mask:0xa bank_mask:0xf", "row_bcast:31 row_mask:0xc bank_mask:0xf"):
    e(f"  v_min_u32_dpp v12, v40, v40 {ctl}"); e(f"  v_max_u32_dpp v40, v40, v40 {ctl}")
    e(f"  v_max_u32_dpp v13, v41, v41 {ctl}"); e("  v_max_u32 v41, v12, v13")
e("  v_cmp_gt_u32 vcc, 8, v0"); e("  v_readlane_b32 s32, v40, 63", "global top-2 keys"); e("  v_readlane_b32 s33, v41, 63")
e(f"  s_cmp_ge_u32 s2, {NWT}"); e("  s_cbranch_scc1 L_XH2")
e("  s_and_b32 s38, s32, 0x7ff"); e("  s_and_b32 s39, s33, 0x7ff"); e("  s_sub_u32 s38, 2047, s38"); e("  s_sub_u32 s39, 2047, s39")
e("  s_mul_i32 s38, s38, 1152"); e("  s_mul_i32 s39, s39, 1152"); e(f"  s_mov_b32 m0, {XIMG}"); e("  s_sub_u32 s40, s39, 128")
e("  buffer_load_dwordx4 v8, s[4:7], s38 offen lds", "both routed rows -> LDS [2][1152 B]")
e("  s_add_u32 s41, s38, 1024"); e("  v_mov_b32 v12, s40"); e("  v_mov_b32 v13, s41"); e("  s_addk_i32 m0, 0x400")
e("  v_cndmask_b32 v12, v12, v13, vcc"); e("  v_add_u32 v12, v12, v8")
e("  buffer_load_dwordx4 v12, s[4:7], 0 offen lds")
e("  s_addk_i32 m0, 0x400"); e("  s_add_u32 s40, s39, 896"); e("  s_mov_b64 exec, 0xffff")
e("  buffer_load_dwordx4 v8, s[4:7], s40 offen lds"); e("  s_mov_b64 exec, -1")
stamp(1)
def final_setup():
    cm("last stage: lane row r = lane>>4 holds token r>>1, column 8u + 2(lane&3) + (r&1)")
    e("  v_cmp_gt_u32 vcc, 32, v0"); e("  v_mov_b32 v28, s33"); e("  v_mov_b32 v29, s32"); e("  v_and_b32 v31, 3, v0")
    e("  v_cndmask_b32 v28, v28, v29, vcc"); e("  v_and_b32 v29, 0xffff, v28"); e("  v_sub_u32 v29, 2047, v29")
    e("  v_mul_u32_u24 v29, 1152, v29"); e("  v_bfe_u32 v30, v0, 4, 1"); e("  v_lshlrev_b32 v30, 1, v30")
    e("  v_lshl_add_u32 v30, v31, 2, v30"); e("  v_add_u32 v29, v29, v30")
    e("  v_not_b32 v32, v28"); e("  v_ashrrev_i32 v32, 31, v32"); e("  v_or_b32 v32, 0x80000000, v32")
    e("  v_xor_b32 v32, v32, v28"); e("  v_and_b32 v32, 0xffff0000, v32", "the bf16 score back from the key"); e("  v_mul_f32 v32, 0xbfb8aa3b, v32")
    e("  v_exp_f32 v32, v32"); e("  v_lshrrev_b32 v33, 5, v0"); e("  v_add_f32 v32, 1.0, v32"); e("  v_rcp_f32 v32, v32")
    e("  v_mul_u32_u24 v33, 1152, v33"); e("  v_cvt_pk_bf16_f32 v32, v32, v32"); e("  v_and_b32 v32, 0xffff0000, v32", "sigmoid, rounded to bf16")
    e("  s_sub_u32 s46, s45, 72", "unit u = slice - 72"); e("  s_lshl_b32 s50, s46, 4"); e(f"  s_add_u32 s51, s50, {XIMG}"); e("  v_add3_u32 v33, v33, v30, s51")
    e("  v_lshrrev_b32 v34, 2, v0"); e("  v_mul_u32_u24 v34, 4608, v34"); e("  v_lshl_add_u32 v34, v31, 4, v34")
    e("  s_lshl_b32 s80, s46, 6"); e(f"  s_add_u32 s80, s80, {WS_SLAB}")
    for t in range(1, 9): e(f"  s_add_u32 s{80+t}, s80, {16*4608*t}")
    e("  s_mov_b32 s41, 0x0c04000c"); e("  s_mov_b32 s42, 0x04020100"); e("  v_mov_b32 v35, 0")
if EFS == 2: final_setup()
e("  s_barrier", "A: the rows are requested")
if not WD4E: wd4()
if EFS == 1: final_setup()
e(f"  s_waitcnt vmcnt({0 if WD4E else 8}) lgkmcnt(0)")
stamp(4, True)
e("  s_barrier", "B: the rows are in LDS")
if LOWP: e("  s_setprio 0")
if not LATEC: copy_stores(CW); e("  s_mov_b64 exec, -1")
if EFS == 0: final_setup()
if LOWP == 2: e("  s_setprio 3")
e("  s_branch L_JOIN")
e("L_XH:"); e("  s_barrier", "the prefetch is done"); e("  s_branch L_P1")
e("L_XH2:"); copy_stores(CH); e("  s_branch L_FIN")
cm("---------------------------------------------------------------- roles 0..3: (matrix, half of K)")
e("L_NOTX:")
e(f"  s_mov_b32 s10, {WB}")
e(f"  s_cmp_ge_u32 s2, {NWT}"); e("  s_cbranch_scc1 L_HELP")
slice_calc(); setup0()
e("  v_lshrrev_b32 v8, 2, v0"); e("  v_mul_u32_u24 v8, 9216, v8"); e("  v_lshrrev_b32 v9, 4, v0"); e("  v_and_b32 v9, 2, v9")
e("  v_xor_b32 v9, v9, v0"); e("  v_and_b32 v9, 3, v9"); e("  v_lshl_add_u32 v8, v9, 4, v8", "16 rows x 64 B, halves swapped in rows 8..15")
e("  s_and_b32 s28, s3, 1"); e(f"  s_mul_i32 s28, s28, {288*9216}"); e("  s_lshl_b32 s29, s45, 6"); e("  s_add_u32 s28, s28, s29")
e("  s_and_b32 s42, s45, 1", "the two WGs that share the lines start on different rows")
e(f"  s_mul_i32 s29, s42, {N0*QS}"); e(f"  s_add_u32 s46, s28, {2*N0*QS}"); e(f"  s_add_u32 s43, s28, {N0*QS}")
e("  s_sub_u32 s43, s43, s29"); e("  s_add_u32 s28, s28, s29")
e("  s_mul_i32 s30, s3, 18432"); e("  s_mov_b32 m0, s30")
e("  s_cmp_ge_u32 s3, 2"); e("  s_waitcnt lgkmcnt(0)")
e("  s_cselect_b32 s8, s26, s24"); e("  s_cselect_b32 s9, s27, s25")
stamp(1)
ops = [("W", i) for i in range(WE)] + [("D", i) for i in range(18)] + [("W", i) for i in range(WE, 8)]
pos = {op: n for n, op in enumerate(ops)}
nis = 0
def issue():
    global nis
    if nis >= len(ops): return False
    k, i = ops[nis]
    if k == "D":
        if N0 and i == N0: e("  s_mov_b32 s28, s43")
        if N0 and i == 2*N0: e("  s_mov_b32 s28, s46")
        e("  buffer_load_dwordx4 v8, s[8:11], s28 offen lds")
        if i < 17: e("  s_addk_i32 m0, 0x400"); e(f"  s_add_u32 s28, s28, {QS}")
    else: wd_load(i)
    nis += 1
    return True
def vwait(op): e(f"  s_waitcnt vmcnt({nis - pos[op] - 1})")
while nis < WE + min(N0, W1): issue()
setup1()
e("  v_lshlrev_b32 v9, 9, v3"); e("  v_bfe_u32 v10, v0, 2, 2"); e("  v_lshl_add_u32 v9, v10, 6, v9"); e("  v_and_b32 v10, 3, v0")
e("  v_lshl_add_u32 v9, v10, 3, v9"); e("  v_and_b32 v10, 1, v3"); e("  v_lshl_add_u32 v9, v10, 5, v9")
e("  v_add_u32 v9, s30, v9", "transposing reads, columns 0..15"); e("  v_xor_b32 v10, 32, v9", "columns 16..31")
e("  v_and_b32 v11, 1, v0"); e("  v_mul_u32_u24 v11, 1152, v11"); e("  v_lshl_add_u32 v11, v3, 4, v11")
e("  s_and_b32 s29, s3, 1"); e("  s_mul_i32 s29, s29, 576"); e(f"  s_add_u32 s29, s29, {XIMG}")
e(f"  s_mul_i32 s31, s42, {32*N0}")
e(f"  v_add_u32 v{VA2}, s29, v11", "x fragments"); e(f"  v_add_u32 v11, s31, v{VA2}"); e(f"  v_subrev_u32 v1, s31, v{VA2}")
e("  s_lshl_b32 s29, s3, 8"); e(f"  s_add_u32 s29, s29, {TEX}"); e(f"  v_lshl_add_u32 v{VXW}, v2, 3, s29")
def trreads(s):
    for hh in range(2):
        for u in range(2):
            r = BF + 8*s + 4*hh + 2*u
            e(f"  ds_read_b64_tr_b16 v[{r}:{r+1}], v{9+hh} offset:{2048*s+256*u}")
def mfmas(s):
    for hh in range(2):
        c = "0" if s == 0 else f"v[{ACC+4*hh}:{ACC+4*hh+3}]"
        r = BF + 8*s + 4*hh
        e(f"  v_mfma_f32_16x16x32_bf16 v[{ACC+4*hh}:{ACC+4*hh+3}], v[{AF+4*s}:{AF+4*s+3}], v[{r}:{r+3}], {c}")
E0 = N0 // 2
if N0 == 0:
    e(f"  s_waitcnt vmcnt({O('dsw', 0)})", "w_down is in; the prefetch is far enough ahead by now")
    stamp(2)
    while nis < WE + W2: issue()
for s in range(PB):
    for h in range(2):
        need = 2*s + h
        def ok():
            if nis >= len(ops) or ops[nis][0] != "D": return False
            i = ops[nis][1]
            return i < need + 1 + W1 if i < N0 else (need >= N0 - 1 and i < need + 1 + W2)
        if ok() or h == 1: vwait(("D", need))
        while ok(): issue()
    if s == 0 and N0: stamp(2)
    trreads(s)
while nis < len(ops) and ops[nis][0] == "D": issue()
stamp(5)
e("  s_barrier", "A")
while issue(): pass
e("  s_waitcnt lgkmcnt(0)"); e("  s_barrier", "B")
stamp(4, True); fs(1, True)
if CPRIO: e(f"  s_setprio {CPRIO}")
order = []
for s in range(9):
    ar = 11 if s < E0 else (1 if s < 2*E0 else VA2)
    e(f"  ds_read_b128 v[{AF+4*s}:{AF+4*s+3}], v{ar} offset:{64*s}"); order.append(f"A{s}")
late = list(range(PB, 9))
for s in range(9):
    if late and late[0] <= s + 1:
        t = late.pop(0); vwait(("D", 2*t+1)); trreads(t); order += [f"T{t}"]*4
    tag = f"A{s}" if s < PB else f"T{s}"
    need = len(order) - 1 - order[::-1].index(tag)
    e(f"  s_waitcnt lgkmcnt({min(15, len(order) - need - 1)})")
    mfmas(s)
stamp(3); fs(2)
e("  s_mov_b64 exec, 0xffff"); e("  s_nop 6")
e(f"  ds_write2_b64 v{VXW}, v[{ACC}:{ACC+1}], v[{ACC+4}:{ACC+5}] offset0:0 offset1:16")
e("  s_mov_b64 exec, -1")
cm("---------------------------------------------------------------- all 5 waves: SwiGLU, 128 columns of w_down each")
e("L_JOIN:")
e("  s_waitcnt lgkmcnt(0)"); fs(3, True); e("  s_barrier", "C: the four partial pre-activations are in LDS"); fs(4)
e("  ds_read2_b32 v[12:13], v5 offset0:0 offset1:64"); e("  ds_read2_b32 v[14:15], v5 offset0:128 offset1:192")
e(f"  ds_read_b32 v23, v{VTAG}")
e("  s_cmp_eq_u32 s3, 4"); e("  s_waitcnt lgkmcnt(0)")
e("  v_add_f32 v12, v12, v13"); e("  v_add_f32 v14, v14, v15")
e("  v_cvt_pk_bf16_f32 v12, v12, v14"); e("  v_lshlrev_b32 v13, 16, v12"); e("  v_mul_f32 v15, 0xbfb8aa3b, v13"); e("  v_exp_f32 v15, v15")
e("  v_and_b32 v14, 0xffff0000, v12"); e("  v_add_f32 v15, 1.0, v15"); e("  v_rcp_f32 v15, v15"); e("  s_nop 0")
e("  v_mul_f32 v13, v13, v15"); e("  v_cvt_pk_bf16_f32 v13, v13, v13"); e("  v_and_b32 v13, 0xffff0000, v13")
e("  v_mul_f32 v13, v13, v14"); e("  v_cvt_pk_bf16_f32 v13, v13, v13", "h = bf16(bf16(silu(a)) * u), in both halves")
fs(5)
e("  s_cbranch_scc1 L_W4"); e("  s_waitcnt vmcnt(0)"); e("L_W4:"); fs(6); e("  s_nop 0" if WD4E else f"  s_waitcnt vmcnt({0 if LATEC else 9})")
e(f"  v_and_b32_dpp v12, v13, v6 quad_perm:[0,0,2,2] {DPPM}"); e(f"  v_and_b32_dpp v16, v13, v6 quad_perm:[1,1,3,3] {DPPM}")
e("  s_nop 0"); e("  .p2align 3")
cm("A = h on a diagonal: D[token, column parity and pair][chunk] sums 4 rows of w_down per MFMA")
for mp in range(8):
    src = 12 if mp < 4 else 16; qq = mp & 3
    for r in range(4):
        n = (4*(r-qq)) % 16
        ctl = "quad_perm:[0,1,2,3]" if n == 0 else f"row_ror:{n}"
        e(f"  v_mov_b32_dpp v{AD+4*mp+r}, v{src} {ctl} row_mask:0xf bank_mask:{hex(1<<r)}")
    if mp >= 1:
        m = mp - 1; c = "0" if m == 0 else f"v[{ACC}:{ACC+3}]"
        e(f"  v_mfma_f32_16x16x32_bf16 v[{ACC}:{ACC+3}], v[{AD+4*m}:{AD+4*m+3}], v[{WD+4*m}:{WD+4*m+3}], {c}")
e("  s_nop 0")
e(f"  v_mfma_f32_16x16x32_bf16 v[{ACC}:{ACC+3}], v[{AD+28}:{AD+31}], v[{WD+28}:{WD+31}], v[{ACC}:{ACC+3}]")
e("  s_cselect_b32 exec_lo, 0x00ff00ff, -1"); e("  s_cselect_b32 exec_hi, 0x00ff00ff, -1"); e("  s_nop 5")
cm("4 sums (top 24 bits each) + tag in 16 bytes")
for j in range(3): e(f"  v_perm_b32 v{20+j}, v{ACC+j}, v{ACC+3}, s{56+j}")
e("  buffer_store_dwordx4 v[20:23], v7, s[16:19], s36 offen" + HS)
GATH = AMP and int(AMP.split(",")[0]) >= 30
if GATH:
    e("  s_memrealtime s[90:91]"); e("  s_waitcnt lgkmcnt(0)")
    e("  s_mov_b64 exec, 1"); e("  v_mov_b32 v24, s90"); e("  v_mov_b32 v25, s64"); e("  v_mov_b32 v26, v23"); e("  v_mov_b32 v27, 0")
    e("  s_lshl_b32 s92, s2, 3"); e("  s_add_u32 s92, s92, s3"); e("  s_lshl_b32 s92, s92, 4"); e("  s_add_u32 s92, s92, 0xd0000")
    e("  buffer_store_dwordx4 v[24:27], v27, s[16:19], s92 offen sc1")
    e("  s_cmp_eq_u32 s3, 4")
if STAMP:
    e("  s_cbranch_scc1 L_S6"); stamp(6); e("  s_branch L_FIN"); e("L_S6:"); stamp(2)
else: e("  s_cbranch_scc0 L_FIN")
if LATEC == 1: e("  s_mov_b64 exec, -1"); copy_stores(CW)
e("  s_cmp_ge_u32 s46, 72"); e(f"  s_cbranch_scc1 {'L_WC' if LATEC == 2 else 'L_FIN'}")
cm("---------------------------------------------------------------- 72 waves: sum over the 144 WGs, write the routed rows")
e("  s_mov_b64 exec, -1"); e("  ds_read_u16_d16_hi v35, v33"); e(f"  s_mov_b32 s61, {SPIN}")
e("  s_waitcnt vmcnt(0)")
stamp(6)
if RSL: e(f"  s_sleep {RSL}")
def rload(t): e(f"  buffer_load_dwordx4 v[{R0+4*t}:{R0+3+4*t}], v34, s[16:19], s{80+t} offen" + HL)
def racc(t):
    r = R0 + 4*t
    e(f"  v_perm_b32 v{r+3}, v{r+1}, v{r}, s41"); e(f"  v_perm_b32 v{r+3}, v{r+2}, v{r+3}, s42")
    if t:
        e(f"  v_pk_add_f32 v[{R0}:{R0+1}], v[{R0}:{R0+1}], v[{r}:{r+1}]"); e(f"  v_pk_add_f32 v[{R0+2}:{R0+3}], v[{R0+2}:{R0+3}], v[{r+2}:{r+3}]")
def rchain(extra, lab):
    for t in range(9):
        if lab: e(f"L_R{t}:")
        e(f"  s_waitcnt vmcnt({8-t+extra})"); e(f"  v_cmp_ne_u32 vcc, s47, v{R0+4*t+3}"); e(f"  s_cbranch_vccnz L_RR{t}")
        if lab: e(f"L_RA{t}:")
        racc(t)
for t in range(9): rload(t)
if LATEC == 2:
    copy_stores(CW); e("  s_mov_b64 exec, -1")
    rchain(9, False)
    e("L_RD:")
else:
    rchain(0, True)
if not O("nored5", 0): stamp(5)
e("  s_nop 1"); e(f"  v_permlane32_swap_b32 v{R0}, v{R0+2}"); e(f"  v_permlane32_swap_b32 v{R0+1}, v{R0+3}")
e(f"  v_add_f32 v{R0}, v{R0}, v{R0+2}"); e(f"  v_add_f32 v{R0+1}, v{R0+1}, v{R0+3}"); e("  s_nop 1")
e(f"  v_permlane16_swap_b32 v{R0}, v{R0+1}"); e(f"  v_add_f32 v{R0}, v{R0}, v{R0+1}"); e("  s_nop 1")
e(f"  v_add_f32_dpp v{R0}, v{R0}, v{R0} row_ror:4 {DPPM}"); e("  s_nop 1"); e(f"  v_add_f32_dpp v{R0}, v{R0}, v{R0} row_ror:8 {DPPM}")
e(f"  v_cvt_pk_bf16_f32 v16, v{R0}, v{R0}"); e("  v_and_b32 v16, 0xffff0000, v16"); e("  v_mul_f32 v16, v16, v32")
e("  v_cvt_pk_bf16_f32 v16, v16, v16"); e("  v_and_b32 v16, 0xffff0000, v16"); e("  s_waitcnt lgkmcnt(0)")
e("  v_add_f32 v16, v16, v35"); e("  v_cvt_pk_bf16_f32 v16, v16, v16")
e("  s_mov_b32 exec_lo, 0x000f000f"); e("  s_mov_b32 exec_hi, 0x000f000f")
e("  buffer_store_short v16, v29, s[20:23], s50 offen" + CFN)
e("  s_cmp_lg_u32 s46, 0"); e("  s_cbranch_scc1 L_FIN")
e("  s_mov_b64 exec, 1", "every reader of d_ws[0] is behind the sums seen here"); e("  v_mov_b32 v16, s47"); e(f"  v_mov_b32 v17, {WS_E}")
e("  buffer_store_dword v16, v17, s[16:19], 0 offen" + CFN)
e("L_FIN:"); stamp_flush(); e("L_END:"); e("  s_endpgm")
if LATEC == 2:
    e("L_WC:"); e("  s_mov_b64 exec, -1"); e("  s_branch L_XH2")
    rchain(0, True); e("  s_branch L_RD")
for t in range(9):
    e(f"L_RR{t}:"); e("  s_sub_u32 s61, s61, 1"); e(f"  s_cbranch_scc1 L_RA{t}")
    for t2 in range(t, 9): rload(t2)
    e(f"  s_branch L_R{t}")
cm("---------------------------------------------------------------- prefetch waves: one word per 128-byte line")
e("L_HELP:")
e(f"  s_sub_u32 s28, s2, {NWT}"); e("  s_and_b32 s29, s28, 7"); e("  s_lshr_b32 s28, s28, 3")
e("  s_and_b32 s33, s3, 1"); e("  s_mul_i32 s33, s33, 288"); e(f"  s_mul_i32 s32, s28, {HR}"); e("  s_add_u32 s32, s32, s33")
e(f"  s_add_u32 s32, s32, {32*N0}"); e("  s_mul_i32 s32, s32, 9216"); e("  s_mul_i32 s34, s29, 1152"); e("  s_add_u32 s32, s32, s34")
e("  v_mul_u32_u24 v3, 0x1c72, v0"); e("  v_lshrrev_b32 v3, 16, v3", "lane / 9"); e("  v_mul_u32_u24 v4, 9, v3"); e("  v_sub_u32 v4, v0, v4")
e("  v_mul_u32_u24 v3, 9216, v3"); e("  v_lshl_add_u32 v3, v4, 7, v3")
if HA:
    cm("the column block whose lines fill only half of a CU's L1 (byte column 384 mod 1024): all its rows first")
    e("  s_and_b32 s36, s3, 1"); e("  s_lshl1_add_u32 s36, s28, s36"); e(f"  s_mul_i32 s36, s36, {21*9216}")
    e("  s_cmp_ge_u32 s29, 4"); e("  s_addc_u32 s37, s29, 0"); e("  s_lshl_b32 s37, s37, 10"); e("  s_add_u32 s36, s36, s37"); e("  s_add_u32 s36, s36, 384")
    e("  v_cmp_lt_u32 vcc, 20, v0"); e("  v_mul_u32_u24 v5, 9216, v0"); e(f"  v_subrev_u32 v6, {21*9216 - 1024}, v5"); e("  v_cndmask_b32 v5, v5, v6, vcc")
    e("  s_cmp_eq_u32 s29, 3"); e("  s_cselect_b32 s37, 42, 21")
e("  s_lshl2_add_u32 s28, s28, s3")
e(f"  s_mul_i32 s29, s29, {5184*128}")
if RP: e(f"  s_add_u32 s29, s29, {RP*8192}")
e("  v_lshlrev_b32 v2, 7, v0")
nr = -(-(288 - 32*N0) // (NH*HR))
assert nr - HG >= 1
e(f"  s_mov_b32 s30, {nr-HG}")
e("  s_cmp_ge_u32 s3, 2"); e("  s_waitcnt lgkmcnt(0)")
e("  s_cselect_b32 s8, s26, s24"); e("  s_cselect_b32 s9, s27, s25")
if O("tw", 0):
    e("  s_load_dword s40, s[12:13], 0", "first touch of w_down and d_out: address translation only")
    e("  s_load_dword s41, s[20:21], 0")
if HA:
    e("  s_bfm_b64 exec, s37, 0"); e(f"  buffer_load_dword v{DUM}, v5, s[8:11], s36 offen")
e(f"  s_bfm_b64 exec, {9*HR}, 0")
for r in range(HG):
    e(f"  buffer_load_dword v{DUM}, v3, s[8:11], s32 offen" + GNT); e(f"  s_add_u32 s32, s32, {NH*HR*9216}")
CPS = 9 - 2*RP
def wchunk(wait):
    e(f"  s_mul_hi_u32 s35, s28, {(2**32 + CPS - 1)//CPS}"); e(f"  s_mul_i32 s31, s35, {CPS}"); e("  s_sub_u32 s31, s28, s31")
    e("  s_mul_i32 s35, s35, 36864"); e("  s_lshl_b32 s31, s31, 12"); e("  s_add_u32 s35, s35, s31"); e("  s_add_u32 s35, s35, s29")
    if wait: e(f"  s_waitcnt vmcnt({HT-1})")
    e(f"  buffer_load_dword v{DUM}, v2, s[12:15], s35 offen" + PNT)
    e("  s_add_u32 s28, s28, 56")
e("  s_barrier"); stamp(1)
if HWF:
    e("  s_bfm_b64 exec, 32, 0")
    for _ in range(HWF): wchunk(False)
    e(f"  s_bfm_b64 exec, {9*HR}, 0")
e("L_HGL:"); e(f"  s_waitcnt vmcnt({HT-1+HX})"); e(f"  buffer_load_dword v{DUM}, v3, s[8:11], s32 offen" + GNT)
e(f"  s_add_u32 s32, s32, {NH*HR*9216}"); e("  s_sub_u32 s30, s30, 1"); e("  s_cmp_lg_u32 s30, 0"); e("  s_cbranch_scc1 L_HGL")
if O("gul", 0): e("  s_waitcnt vmcnt(0)")
stamp(2)
if WE == 4:
    e("  s_bfm_b64 exec, 36, 0")
    e("L_HWL:")
    e("  s_mul_i32 s35, s28, 9216"); e("  s_add_u32 s35, s35, s29"); e("  s_add_u32 s35, s35, 4608")
    e(f"  s_waitcnt vmcnt({HT-1})"); e(f"  buffer_load_dword v{DUM}, v2, s[12:15], s35 offen" + PNT)
    e("  s_add_u32 s28, s28, 56"); e("  s_cmp_lt_u32 s28, 72"); e("  s_cbranch_scc1 L_HWL")
elif WE < 8:
    e("  s_bfm_b64 exec, 32, 0")
    e("L_HWL:")
    wchunk(not O("hwn", 0))
    e(f"  s_cmp_lt_u32 s28, {18*CPS}"); e("  s_cbranch_scc1 L_HWL")
e("  s_waitcnt vmcnt(0)"); e("  s_barrier"); e("  s_branch L_FIN")
e("L_CODE_END:")
cm("rare path: x + x*0 turns an infinity into a NaN")
for n in range(1, ncopy+1):
    e(f"L_FIX{n}:"); e(f"  s_mov_b32 s98, {n}"); e("  s_branch L_FIX")
e("L_FIX:"); e("  s_mov_b32 s29, 0x07060302")
for j in range(36):
    r = XR + j
    e(f"  v_lshlrev_b32 v12, 16, v{r}"); e(f"  v_and_b32 v13, 0xffff0000, v{r}"); e("  v_fma_f32 v12, v12, 0, v12"); e("  v_fma_f32 v13, v13, 0, v13")
    e(f"  v_perm_b32 v{r}, v13, v12, s29")
e("  s_cmp_eq_u32 s98, 1"); e("  s_cbranch_scc1 L_FIXR1"); e("  s_branch L_FIXR2")
e('.section .rodata,"a"'); e(".p2align 6"); e(f".amdhsa_kernel {K}")
e("  .amdhsa_next_free_vgpr 200"); e("  .amdhsa_next_free_sgpr 102"); e("  .amdhsa_accum_offset 200")
e("  .amdhsa_group_segment_fixed_size 0"); e("  .amdhsa_kernarg_size 64"); e("  .amdhsa_user_sgpr_count 2")
e("  .amdhsa_user_sgpr_kernarg_segment_ptr 1"); e("  .amdhsa_system_sgpr_workgroup_id_x 1"); e("  .amdhsa_float_denorm_mode_32 3")
e(".end_amdhsa_kernel")
open(sys.argv[1], "w").write("\n".join(out) + "\n")
```

```python
import sys
NAME = "standalone__moe_arch_mod__prompt"
S, D, F = 2048, 576, 4608
XB = S*D*2
WB = D*F*2
opts = dict(a.split("=") for a in sys.argv[2:] if "=" in a)
def O(k, d): return int(opts.get(k, d))
STAMP = O("stamp", 0); AMP = opts.get("amp"); FINE = O("fine", 0)
if AMP: STAMP = 1
GS = O("gs", 64); REP = O("rep", 4); RS = 256*GS
LG = {16: 0, 32: 1, 64: 2}[GS]; LR = {1: 0, 2: 1, 4: 2, 8: 3}[REP]; NL = REP*GS//16
assert NL <= 16
WS_E = 0; WS_GRAN = 4096; WS_SLAB = 4096 + REP*RS; WS_SIZE = 1 << 20; WS_STAMP = 1 << 21
N0 = O("n0", 2); W1 = O("w1", 4); W2 = O("w2", 4); WE = O("we", 0); PB = O("pb", 7); RP = O("rp", 0)
HR = O("hr", 4); HT = O("ht", 2); HG = O("hg", 1)
PSL = O("psl", 2); SPIN = O("spin", 200000); RSL = O("rsl", 0)
CFN = {0: "", 1: " sc1", 2: " sc0 sc1"}[O("cf", 0)]; WNT = " nt" if O("wnt", 0) else ""; PNT = " nt" if O("pnt", 0) else ""; GNT = " nt" if O("gnt", 0) else ""; XNT = " nt" if O("xnt", 0) else ""; LATEC = O("latec", 1); FL = {0: "", 1: " sc1", 2: " sc0 sc1", 3: " sc1 nt", 4: " nt"}; HS = FL[O("hs", 1)]; HL = FL[O("hl", 1)]; CW = FL[O("cw", 1)]; CH = FL[O("ch", 1)]; WD4E = O("wd4e", 1); NEAR = O("near", 0); UNG = O("ung", 0); HA = O("ha", 0); HWF = O("hwf", 0); HX = O("hx", 0); EFS = O("efs", 1); LOWP = O("lowp", 1); CPRIO = O("cprio", 0)
NWT = 144; NH = 14
out = []
def e(s="", c=None): out.append(s if c is None else f"{s:<72}; {c}")
def cm(s): out.append("; " + s)
def stamp(i, wait=False):
    if STAMP and (i in (0, 7) or not FINE):
        e(f"  s_memrealtime s[{64+2*i}:{65+2*i}]")
        if wait: e("  s_waitcnt lgkmcnt(0)")
def fs(i, wait=False):
    if FINE:
        e(f"  s_memtime s[{64+2*i}:{65+2*i}]")
        if wait: e("  s_waitcnt lgkmcnt(0)")
def stamp_flush():
    if AMP:
        A, B, KK, WV, WG = map(int, AMP.split(","))
        if O("endw", 0): e("  s_waitcnt vmcnt(0)")
        stamp(7, True)
        e(f"  s_cmp_lg_u32 s2, {WG}"); e("  s_cbranch_scc1 L_AMPX")
        e(f"  s_cmp_lg_u32 s3, {WV}"); e("  s_cbranch_scc1 L_AMPX")
        if A >= 30:
            e("  s_sleep 60"); e("  s_mov_b64 exec, -1"); e("  v_lshlrev_b32 v1, 4, v0"); e("  v_mov_b32 v2, 0x80000000"); e("  v_mov_b32 v3, 0")
            for i in range(18):
                e(f"  s_mov_b32 s92, {0xd0000 + 1024*i}")
                e("  buffer_load_dwordx4 v[24:27], v1, s[16:19], s92 offen sc1"); e("  s_waitcnt vmcnt(0)")
                if A in (30, 31, 32, 35): e("  v_subrev_u32 v24, s64, v24")
                elif A == 33: e("  v_sub_u32 v24, v24, v25")
                else: e("  v_subrev_u32 v24, s64, v25")
                e("  v_lshlrev_b32 v24, 12, v24"); e(f"  v_add_u32 v25, {64*i}, v0"); e("  v_or_b32 v24, v24, v25")
                e("  v_cmp_eq_u32 vcc, s47, v26"); e("  s_nop 1"); e("  v_cndmask_b32 v24, v2, v24, vcc"); e("  v_max_i32 v3, v3, v24" if i else "  v_mov_b32 v3, v24")
            for ctl in ("quad_perm:[1,0,3,2] row_mask:0xf bank_mask:0xf", "quad_perm:[2,3,0,1] row_mask:0xf bank_mask:0xf", "row_ror:4 row_mask:0xf bank_mask:0xf", "row_ror:8 row_mask:0xf bank_mask:0xf",
                        "row_bcast:15 row_mask:0xa bank_mask:0xf", "row_bcast:31 row_mask:0xc bank_mask:0xf"):
                e("  s_nop 1"); e(f"  v_max_i32_dpp v3, v3, v3 {ctl}")
            e("  s_nop 1"); e("  v_readlane_b32 s60, v3, 63")
            if A in (30, 33, 34): e("  s_ashr_i32 s60, s60, 12")
            elif A == 31: e("  s_bfe_u32 s60, s60, 0x30003")
            elif A == 32: e("  s_and_b32 s60, s60, 7")
            else: e("  s_bfe_u32 s60, s60, 0x50006")
            e("  s_memrealtime s[78:79]"); e("  s_waitcnt lgkmcnt(0)")
        else:
            e(f"  s_sub_u32 s60, s{64+2*B}, s{64+2*A}")
        e(f"  s_mul_i32 s60, s60, {KK}")
        e("L_AMP:"); e("  s_memrealtime s[62:63]"); e("  s_waitcnt lgkmcnt(0)"); e("  s_sub_u32 s62, s62, s78")
        e("  s_cmp_lt_u32 s62, s60"); e("  s_cbranch_scc1 L_AMP"); e("L_AMPX:")
    elif STAMP:
        if FINE: e("  s_memtime s[78:79]"); e("  s_waitcnt lgkmcnt(0)")
        else: stamp(7, True)
        e("  s_mov_b64 exec, 1")
        e("  s_lshl_b32 s60, s2, 3"); e("  s_add_u32 s60, s60, s3"); e("  s_lshl_b32 s60, s60, 6")
        e(f"  s_add_u32 s60, s60, {WS_STAMP}"); e("  s_mov_b32 s18, 0x1000000"); e("  v_mov_b32 v1, 0")
        for j in range(4):
            for k in range(4): e(f"  v_mov_b32 v{4+k}, s{64+4*j+k}")
            e(f"  buffer_store_dwordx4 v[4:7], v1, s[16:19], s60 offen offset:{16*j}"); e("  s_nop 1")

hdr = open('cdna_kernels/%s.s.ref' % NAME).read().split('\n')
for l in hdr:
    if l.startswith('; @launch'): break
    e(l)
XIMG = 73728; TAGL = XIMG + 2304; TEX = XIMG + 3072; WRIMG = TEX + 1024; LDS = 83968
e(f"; @launch grid=(256,1,1) block=(320,1,1) lds={LDS}")
DOC = """
One launch, 256 workgroups of 5 waves, one per CU (LDS and VGPR use allow one).
 role 4 (wave 0), every WG : 8 rows of x -> router scores -> local top-2 -> tagged granule in d_ws,
                             later the copy of its rows that were not routed.
 WGs 0..143, roles 0..3    : 32 columns of w_gate / w_up (LDS-DMA, transposing LDS reads, MFMA),
                             SwiGLU, the matching 32 rows of w_down (MFMA), tagged partial sums in d_ws.
 WGs 0..143, role 4        : gathers the 256 granules, global top-2, brings both rows into LDS;
                             72 of them add up the 144 partial sums of 8 columns and write the routed rows.
 WGs 144..255, roles 0..3  : pull weight lines into the L2 that the weight WGs with the same id mod 8
                             are expected to share (speed only, nothing depends on it).
 Hand-offs between WGs are 16-byte pieces that carry a tag, written and read with sc1.
 tag = d_ws[0] + 0x01010101; d_ws[0] is set to the tag at the end, so it differs from launch to launch.
"""
for l in DOC.strip("\n").split("\n"): cm(l)
e('.amdgcn_target "amdgcn-amd-amdhsa--gfx950"'); e(".text")
K = NAME + "_kernel"
e(f".globl {K}"); e(".p2align 8"); e(f".type {K},@function"); e(f"{K}:")
DPPM = "row_mask:0xf bank_mask:0xf"
AF = 12; BF = 48; ACC = 120; WD = 128; AD = 160; XR = 84; WR = 48; R0 = 48
VXW = 192; VA2 = 193; VTAG = 194; DUMC = 196; DUM = 197
QS = 16*9216

def slice_calc():
    e("  s_and_b32 s45, s2, 7"); e("  s_mul_i32 s45, s45, 18"); e("  s_lshr_b32 s44, s2, 3")
    e("  s_add_u32 s45, s45, s44", "slice: neighbours are 8 ids apart")
def setup0():
    e("  v_and_b32 v2, 15, v0"); e("  v_lshrrev_b32 v3, 4, v0")
    e("  v_mul_u32_u24 v4, 9216, v3"); e("  v_lshl_add_u32 v4, v2, 4, v4", "w_down: row 8g, 16-byte chunk c")
    e(f"  s_mul_i32 s34, s45, {32*1152}"); e("  s_lshl_b32 s35, s3, 8"); e("  s_add_u32 s34, s34, s35"); e("  s_add_u32 s35, s34, 4608")
def setup1():
    e("  v_lshrrev_b32 v5, 2, v2"); e("  v_lshl_add_u32 v5, v3, 3, v5"); e("  v_and_b32 v6, 1, v0"); e("  v_lshl_add_u32 v5, v6, 2, v5")
    e("  v_lshlrev_b32 v5, 3, v5"); e("  v_and_b32 v6, 2, v0"); e("  v_lshl_add_u32 v5, v6, 1, v5")
    e(f"  v_add_u32 v5, {TEX}, v5", "exchange table: this lane's (f, token)")
    e("  v_and_b32 v6, 1, v0"); e("  v_cmp_eq_u32 vcc, 1, v6"); e("  v_mov_b32 v6, 0xffff"); e("  v_mov_b32 v7, 0xffff0000")
    e("  v_cndmask_b32 v6, v6, v7, vcc", "half-word mask by lane parity")
    e("  v_lshlrev_b32 v7, 6, v2"); e("  v_lshl_add_u32 v7, v3, 4, v7", "partial-sum piece of this lane")
    e("  s_mul_i32 s36, s45, 4608"); e("  s_lshl_b32 s37, s3, 10"); e("  s_add_u32 s36, s36, s37"); e(f"  s_add_u32 s36, s36, {WS_SLAB}")
    e(f"  v_mov_b32 v{VTAG}, {TAGL}")
    e("  s_mov_b32 s56, 0x07060501"); e("  s_mov_b32 s57, 0x07060502"); e("  s_mov_b32 s58, 0x07060503")
    for j in range(0, 32, 2): e(f"  v_mov_b64 v[{AD+j}:{AD+j+1}], 0")
def wd_load(mp): e(f"  buffer_load_dwordx4 v[{WD+4*mp}:{WD+4*mp+3}], v4, s[12:15], s{34+(mp>>2)} offen offset:{1152*(mp&3)}" + WNT)
ncopy = 0
def copy_stores(fl=""):
    global ncopy
    ncopy += 1
    e("  s_and_b32 s38, s32, 0xffff"); e("  s_and_b32 s39, s33, 0xffff")
    e("  v_cmp_ne_u32 s[52:53], s38, v11"); e("  v_cmp_ne_u32 s[54:55], s39, v11")
    e("  s_and_b64 exec, s[52:53], s[54:55]", "rows that are not routed")
    e("  s_cmp_lg_u64 s[96:97], 0"); e(f"  s_cbranch_scc1 L_FIX{ncopy}"); e(f"L_FIXR{ncopy}:")
    for i in range(9): e(f"  buffer_store_dwordx4 v[{XR+4*i}:{XR+4*i+3}], v10, s[20:23], s28 offen offset:{128*i}{fl}")

if STAMP:
    for i in range(2, 16): e(f"  s_mov_b32 s{64+i}, 0")
stamp(0)
cm("SRDs: x s[4:7], w_r or w_gate/w_up s[8:11], w_down s[12:15], d_ws s[16:19], d_out s[20:23]")
e("  s_load_dwordx2 s[4:5], s[0:1], 0"); e("  s_load_dwordx2 s[8:9], s[0:1], 8"); e("  s_load_dwordx2 s[16:17], s[0:1], 56")
e("  s_load_dwordx4 s[24:27], s[0:1], 16"); e("  s_load_dwordx2 s[12:13], s[0:1], 32"); e("  s_load_dwordx2 s[20:21], s[0:1], 40")
e("  s_getpc_b64 s[28:29]", "read one word of every line of the code: it lands in L2"); e("L_PC:")
e("  v_lshlrev_b32 v2, 7, v0"); e("  v_cmp_gt_u32 vcc, (L_CODE_END-L_PC+127)/128, v0")
e("  s_and_saveexec_b64 s[30:31], vcc"); e("  s_cbranch_execz L_NOPF")
e(f"  global_load_dword v{DUMC}, v2, s[28:29]"); e("L_NOPF:"); e("  s_mov_b64 exec, -1")
e("  v_lshrrev_b32 v1, 6, v0"); e("  v_and_b32 v0, 63, v0"); e("  v_readfirstlane_b32 s3, v1")
e("  s_cmp_ge_u32 s2, 256"); e("  s_cbranch_scc1 L_END")
e("  s_sub_u32 s3, s3, 1", "role: wave 0 -> 4, wave k -> k-1"); e("  s_cselect_b32 s3, 4, s3")
for r, v in ((6, XB), (7, "0x20000"), (11, "0x20000"), (14, WB), (15, "0x20000"), (18, WS_SIZE), (19, "0x20000"), (22, XB), (23, "0x20000")):
    e(f"  s_mov_b32 s{r}, {v}")
if NEAR == 2:
    e(f"  s_mov_b32 s10, {WB}"); e("  s_cmp_eq_u32 s3, 4"); e("  s_cbranch_scc1 L_X1")
    e(f"  s_cmp_ge_u32 s2, {NWT}"); e("  s_cbranch_scc1 L_HELP"); e("  s_branch L_NOTX"); e("L_X1:")
else:
    e("  s_cmp_lg_u32 s3, 4"); e("  s_cbranch_scc1 L_NOTX")
cm("---------------------------------------------------------------- role 4: router scores of 8 rows")
e("  s_setprio 3")
e(f"  s_mov_b32 s10, {D*2}"); e(f"  s_mov_b32 m0, {WRIMG}")
e("  v_lshlrev_b32 v8, 4, v0"); e("  v_and_b32 v1, 0x70, v8"); e("  v_lshrrev_b32 v9, 3, v0")
e("  v_mul_u32_u24 v10, 1152, v9"); e("  v_add_u32 v10, v10, v1", "8 lanes per row"); e("  s_mul_i32 s28, s2, 9216")
e("  s_waitcnt lgkmcnt(0)")
e(f"  s_load_dword s47, s[16:17], {WS_E}")
e("  buffer_load_dwordx4 v8, s[8:11], 0 offen lds", "w_r -> LDS"); e("  s_mov_b64 exec, 0xff")
e("  buffer_load_dwordx4 v8, s[8:11], 0 offen offset:1024 lds"); e("  s_mov_b64 exec, -1")
for i in range(9): e(f"  buffer_load_dwordx4 v[{XR+4*i}:{XR+4*i+3}], v10, s[4:7], s28 offen offset:{128*i}" + XNT)
if NEAR: e("  s_branch L_X2")
e("#MARK XINIT"); e("L_X2:")
e(f"  v_add_u32 v1, {WRIMG}, v1")
e("  s_lshl_b32 s29, s2, 3"); e("  s_sub_u32 s29, 2047, s29"); e("  v_sub_u32 v11, s29, v9", "2047 - row"); e("  s_mov_b32 s30, 0xffff0000")
e(f"  s_and_b32 s29, s2, {REP-1}"); e(f"  s_mul_i32 s27, s29, {RS}"); e(f"  s_add_u32 s27, s27, {WS_GRAN}", "the copy of the granules this WG reads")
for j in range(1, 4): e(f"  s_add_u32 s{47+j}, s27, {64*GS*j}")
e("  s_and_b32 s29, s2, 7"); e("  s_lshl_b32 s29, s29, 5"); e("  s_lshr_b32 s31, s2, 3"); e("  s_add_u32 s29, s29, s31")
e(f"  s_mul_i32 s29, s29, {GS}"); e(f"  s_add_u32 s31, s29, {WS_GRAN}", "own granule")
e(f"  v_mul_u32_u24 v44, {GS}, v0")
for j in range(4): e(f"  v_mov_b32 v{12+j}, 0")
e("  v_bfrev_b32 v22, 1")
e(f"  v_bfe_u32 v21, v0, {LG}, {LR}"); e(f"  v_mul_u32_u24 v21, {RS}, v21"); e(f"  v_and_b32 v19, {GS//16-1}, v0"); e("  v_lshl_add_u32 v21, v19, 4, v21")
e(f"  s_mov_b32 s61, {SPIN}"); e(f"  v_mov_b32 v45, {TAGL}")
e("  s_waitcnt vmcnt(9) lgkmcnt(0)")
for i in range(9): e(f"  ds_read_b128 v[{WR+4*i}:{WR+4*i+3}], v1 offset:{128*i}")
e("  s_add_u32 s47, s47, 0x01010101", "tag of this launch"); e("  v_mov_b32 v18, s47")
for i in range(9):
    e(f"  s_waitcnt vmcnt({8-i}) lgkmcnt({8-i})")
    for j in range(4): e(f"  v_dot2c_f32_bf16 v{12+j}, v{XR+4*i+j}, v{WR+4*i+j}")
e("  s_nop 1")
e("  v_add_f32 v12, v12, v13"); e("  v_add_f32 v14, v14, v15"); e("  v_add_f32 v12, v12, v14")
e("  s_movk_i32 s29, 0x207"); e("  v_cmp_class_f32 s[96:97], v12, s29", "lanes that hold an inf or a NaN")
e(f"  v_add_f32_dpp v12, v12, v12 quad_perm:[1,0,3,2] {DPPM}"); e("  s_nop 1")
e(f"  v_add_f32_dpp v12, v12, v12 quad_perm:[2,3,0,1] {DPPM}"); e("  s_nop 1")
e(f"  v_add_f32_dpp v12, v12, v12 row_half_mirror {DPPM}")
cm("key = order-preserving bf16 score << 16 | 2047 - row; NaN sorts last")
e("  v_cvt_pk_bf16_f32 v13, v12, v12"); e("  v_cmp_u_f32 vcc, v12, v12"); e("  v_ashrrev_i32 v14, 31, v13")
e("  v_bitop3_b32 v13, v13, v14, v22 bitop3:0x1e"); e("  v_cndmask_b32 v13, v13, 0, vcc"); e("  v_and_or_b32 v13, v13, s30, v11")
e("  s_nop 1")
e(f"  v_max_u32_dpp v16, v13, v13 row_ror:8 {DPPM}"); e(f"  v_min_u32_dpp v17, v13, v13 row_ror:8 {DPPM}"); e("  s_nop 0")
for ctl in ("row_bcast:15 row_mask:0xa bank_mask:0xf", "row_bcast:31 row_mask:0xc bank_mask:0xf"):
    e(f"  v_min_u32_dpp v14, v16, v16 {ctl}"); e(f"  v_max_u32_dpp v16, v16, v16 {ctl}")
    e(f"  v_max_u32_dpp v15, v17, v17 {ctl}"); e("  v_max_u32 v17, v14, v15")
e(f"  s_lshl_b64 exec, {hex((1 << NL) - 1)}, 48", f"lanes 48..63 hold the pair: {REP} copies x {GS} bytes")
e("  buffer_store_dwordx4 v[16:19], v21, s[16:19], s31 offen" + HS)
stamp(3)
e(f"  s_cmp_lt_u32 s2, {NWT}"); e("  s_cbranch_scc1 L_XG"); e("  s_barrier", "prefetch WG: let the other waves fill the queue"); e("L_XG:")
e("  ds_write_b32 v45, v18"); e("  s_mov_b64 exec, -1")
slice_calc(); setup0(); setup1()
e(f"  s_cmp_ge_u32 s2, {NWT}"); e("  s_cbranch_scc1 L_XH")
def wd4():
    e("  s_mov_b32 exec_lo, 0x00ff00ff", "columns 512..575 of w_down"); e("  s_mov_b32 exec_hi, 0x00ff00ff")
    for mp in range(8): wd_load(mp)
    e("  s_mov_b64 exec, -1")
if WD4E: wd4()
if RP:
    e("  v_lshlrev_b32 v46, 7, v0"); e(f"  s_mul_i32 s29, s45, {32*1152}")
    for r in range(RP):
        e(f"  buffer_load_dword v{DUM}, v46, s[12:15], s29 offen" + PNT)
        if r < RP-1: e("  s_add_u32 s29, s29, 8192")
e("  s_waitcnt vmcnt(0)")
if O("nored5", 0): stamp(5)
e("L_P1:")
if O("lsl", 0): e(f"  s_sleep {O('lsl', 0)}", "back off before every read of the granules")
b = 48
for j in range(4): e(f"  buffer_load_dwordx4 v[{b+4*j}:{b+3+4*j}], v44, s[16:19], s{27 if j == 0 else 47+j} offen" + HL)
e("  s_waitcnt vmcnt(0)")
e(f"  v_cmp_ne_u32 vcc, s47, v{b+2}"); e(f"  v_cmp_ne_u32 s[32:33], s47, v{b+6}")
e(f"  v_cmp_ne_u32 s[38:39], s47, v{b+10}"); e(f"  v_cmp_ne_u32 s[40:41], s47, v{b+14}")
e("  s_or_b64 vcc, vcc, s[32:33]"); e("  s_or_b64 s[38:39], s[38:39], s[40:41]"); e("  s_or_b64 vcc, vcc, s[38:39]")
e("  s_cbranch_scc0 L_PT")
if not O("lsl", 0): e(f"  s_sleep {PSL}", "some granule is missing: back off and read again")
e("  s_sub_u32 s61, s61, 1"); e("  s_cbranch_scc0 L_P1")
e("  .p2align 3"); e("L_PT:")
def merge(a1, a2, b1, b2, o1, o2, t):
    e(f"  v_min_u32 v{t}, v{a1}, v{b1}"); e(f"  v_max_u32 v{o1}, v{a1}, v{b1}"); e(f"  v_max3_u32 v{o2}, v{t}, v{a2}, v{b2}")
merge(b, b+1, b+4, b+5, 40, 41, 12); merge(b+8, b+9, b+12, b+13, 42, 43, 13); merge(40, 41, 42, 43, 40, 41, 12)
e("  s_nop 0")
for ctl in (f"quad_perm:[1,0,3,2] {DPPM}", f"quad_perm:[2,3,0,1] {DPPM}", f"row_ror:4 {DPPM}", f"row_ror:8 {DPPM}",
            "row_bcast:15 row_mask:0xa bank_mask:0xf", "row_bcast:31 row_mask:0xc bank_mask:0xf"):
    e(f"  v_min_u32_dpp v12, v40, v40 {ctl}"); e(f"  v_max_u32_dpp v40, v40, v40 {ctl}")
    e(f"  v_max_u32_dpp v13, v41, v41 {ctl}"); e("  v_max_u32 v41, v12, v13")
e("  v_cmp_gt_u32 vcc, 8, v0"); e("  v_readlane_b32 s32, v40, 63", "global top-2 keys"); e("  v_readlane_b32 s33, v41, 63")
e(f"  s_cmp_ge_u32 s2, {NWT}"); e("  s_cbranch_scc1 L_XH2")
e("  s_and_b32 s38, s32, 0x7ff"); e("  s_and_b32 s39, s33, 0x7ff"); e("  s_sub_u32 s38, 2047, s38"); e("  s_sub_u32 s39, 2047, s39")
e("  s_mul_i32 s38, s38, 1152"); e("  s_mul_i32 s39, s39, 1152"); e(f"  s_mov_b32 m0, {XIMG}"); e("  s_sub_u32 s40, s39, 128")
e("  buffer_load_dwordx4 v8, s[4:7], s38 offen lds", "both routed rows -> LDS [2][1152 B]")
e("  s_add_u32 s41, s38, 1024"); e("  v_mov_b32 v12, s40"); e("  v_mov_b32 v13, s41"); e("  s_addk_i32 m0, 0x400")
e("  v_cndmask_b32 v12, v12, v13, vcc"); e("  v_add_u32 v12, v12, v8")
e("  buffer_load_dwordx4 v12, s[4:7], 0 offen lds")
e("  s_addk_i32 m0, 0x400"); e("  s_add_u32 s40, s39, 896"); e("  s_mov_b64 exec, 0xffff")
e("  buffer_load_dwordx4 v8, s[4:7], s40 offen lds"); e("  s_mov_b64 exec, -1")
stamp(1)
def final_setup():
    cm("last stage: lane row r = lane>>4 holds token r>>1, column 8u + 2(lane&3) + (r&1)")
    e("  v_cmp_gt_u32 vcc, 32, v0"); e("  v_mov_b32 v28, s33"); e("  v_mov_b32 v29, s32"); e("  v_and_b32 v31, 3, v0")
    e("  v_cndmask_b32 v28, v28, v29, vcc"); e("  v_and_b32 v29, 0xffff, v28"); e("  v_sub_u32 v29, 2047, v29")
    e("  v_mul_u32_u24 v29, 1152, v29"); e("  v_bfe_u32 v30, v0, 4, 1"); e("  v_lshlrev_b32 v30, 1, v30")
    e("  v_lshl_add_u32 v30, v31, 2, v30"); e("  v_add_u32 v29, v29, v30")
    e("  v_not_b32 v32, v28"); e("  v_ashrrev_i32 v32, 31, v32"); e("  v_or_b32 v32, 0x80000000, v32")
    e("  v_xor_b32 v32, v32, v28"); e("  v_and_b32 v32, 0xffff0000, v32", "the bf16 score back from the key"); e("  v_mul_f32 v32, 0xbfb8aa3b, v32")
    e("  v_exp_f32 v32, v32"); e("  v_lshrrev_b32 v33, 5, v0"); e("  v_add_f32 v32, 1.0, v32"); e("  v_rcp_f32 v32, v32")
    e("  v_mul_u32_u24 v33, 1152, v33"); e("  v_cvt_pk_bf16_f32 v32, v32, v32"); e("  v_and_b32 v32, 0xffff0000, v32", "sigmoid, rounded to bf16")
    e("  s_sub_u32 s46, s45, 72", "unit u = slice - 72"); e("  s_lshl_b32 s50, s46, 4"); e(f"  s_add_u32 s51, s50, {XIMG}"); e("  v_add3_u32 v33, v33, v30, s51")
    e("  v_lshrrev_b32 v34, 2, v0"); e("  v_mul_u32_u24 v34, 4608, v34"); e("  v_lshl_add_u32 v34, v31, 4, v34")
    e("  s_lshl_b32 s80, s46, 6"); e(f"  s_add_u32 s80, s80, {WS_SLAB}")
    for t in range(1, 9): e(f"  s_add_u32 s{80+t}, s80, {16*4608*t}")
    e("  s_mov_b32 s41, 0x0c04000c"); e("  s_mov_b32 s42, 0x04020100"); e("  v_mov_b32 v35, 0")
if EFS == 2: final_setup()
e("  s_barrier", "A: the rows are requested")
if not WD4E: wd4()
if EFS == 1: final_setup()
e(f"  s_waitcnt vmcnt({0 if WD4E else 8}) lgkmcnt(0)")
stamp(4, True)
e("  s_barrier", "B: the rows are in LDS")
if LOWP: e("  s_setprio 0")
if not LATEC: copy_stores(CW); e("  s_mov_b64 exec, -1")
if EFS == 0: final_setup()
if LOWP == 2: e("  s_setprio 3")
e("  s_branch L_JOIN")
e("L_XH:"); e("  s_barrier", "the prefetch is done"); e("  s_branch L_P1")
e("L_XH2:"); copy_stores(CH); e("  s_branch L_FIN")
cm("---------------------------------------------------------------- roles 0..3: (matrix, half of K)")
e("#MARK C0"); e("L_NOTX:")
e(f"  s_mov_b32 s10, {WB}")
e(f"  s_cmp_ge_u32 s2, {NWT}"); e("  s_cbranch_scc1 L_HELP")
slice_calc(); setup0()
e("  v_lshrrev_b32 v8, 2, v0"); e("  v_mul_u32_u24 v8, 9216, v8"); e("  v_lshrrev_b32 v9, 4, v0"); e("  v_and_b32 v9, 2, v9")
e("  v_xor_b32 v9, v9, v0"); e("  v_and_b32 v9, 3, v9"); e("  v_lshl_add_u32 v8, v9, 4, v8", "16 rows x 64 B, halves swapped in rows 8..15")
e("  s_and_b32 s28, s3, 1"); e(f"  s_mul_i32 s28, s28, {288*9216}"); e("  s_lshl_b32 s29, s45, 6"); e("  s_add_u32 s28, s28, s29")
e("  s_and_b32 s42, s45, 1", "the two WGs that share the lines start on different rows")
e(f"  s_mul_i32 s29, s42, {N0*QS}"); e(f"  s_add_u32 s46, s28, {2*N0*QS}"); e(f"  s_add_u32 s43, s28, {N0*QS}")
e("  s_sub_u32 s43, s43, s29"); e("  s_add_u32 s28, s28, s29")
e("  s_mul_i32 s30, s3, 18432"); e("  s_mov_b32 m0, s30")
e("  s_cmp_ge_u32 s3, 2"); e("  s_waitcnt lgkmcnt(0)")
e("  s_cselect_b32 s8, s26, s24"); e("  s_cselect_b32 s9, s27, s25")
stamp(1)
ops = [("W", i) for i in range(WE)] + [("D", i) for i in range(18)] + [("W", i) for i in range(WE, 8)]
pos = {op: n for n, op in enumerate(ops)}
nis = 0
def issue():
    global nis
    if nis >= len(ops): return False
    k, i = ops[nis]
    if k == "D":
        if N0 and i == N0: e("  s_mov_b32 s28, s43")
        if N0 and i == 2*N0: e("  s_mov_b32 s28, s46")
        e("  buffer_load_dwordx4 v8, s[8:11], s28 offen lds")
        if i < 17: e("  s_addk_i32 m0, 0x400"); e(f"  s_add_u32 s28, s28, {QS}")
    else: wd_load(i)
    nis += 1
    return True
def vwait(op): e(f"  s_waitcnt vmcnt({nis - pos[op] - 1})")
while nis < WE + min(N0, W1): issue()
if NEAR & 1: e("  s_branch L_C2")
e("#MARK C1"); e("L_C2:")
setup1()
e("  v_lshlrev_b32 v9, 9, v3"); e("  v_bfe_u32 v10, v0, 2, 2"); e("  v_lshl_add_u32 v9, v10, 6, v9"); e("  v_and_b32 v10, 3, v0")
e("  v_lshl_add_u32 v9, v10, 3, v9"); e("  v_and_b32 v10, 1, v3"); e("  v_lshl_add_u32 v9, v10, 5, v9")
e("  v_add_u32 v9, s30, v9", "transposing reads, columns 0..15"); e("  v_xor_b32 v10, 32, v9", "columns 16..31")
e("  v_and_b32 v11, 1, v0"); e("  v_mul_u32_u24 v11, 1152, v11"); e("  v_lshl_add_u32 v11, v3, 4, v11")
e("  s_and_b32 s29, s3, 1"); e("  s_mul_i32 s29, s29, 576"); e(f"  s_add_u32 s29, s29, {XIMG}")
e(f"  s_mul_i32 s31, s42, {32*N0}")
e(f"  v_add_u32 v{VA2}, s29, v11", "x fragments"); e(f"  v_add_u32 v11, s31, v{VA2}"); e(f"  v_subrev_u32 v1, s31, v{VA2}")
e("  s_lshl_b32 s29, s3, 8"); e(f"  s_add_u32 s29, s29, {TEX}"); e(f"  v_lshl_add_u32 v{VXW}, v2, 3, s29")
def trreads(s):
    for hh in range(2):
        for u in range(2):
            r = BF + 8*s + 4*hh + 2*u
            e(f"  ds_read_b64_tr_b16 v[{r}:{r+1}], v{9+hh} offset:{2048*s+256*u}")
def mfmas(s):
    for hh in range(2):
        c = "0" if s == 0 else f"v[{ACC+4*hh}:{ACC+4*hh+3}]"
        r = BF + 8*s + 4*hh
        e(f"  v_mfma_f32_16x16x32_bf16 v[{ACC+4*hh}:{ACC+4*hh+3}], v[{AF+4*s}:{AF+4*s+3}], v[{r}:{r+3}], {c}")
E0 = N0 // 2
if N0 == 0:
    e(f"  s_waitcnt vmcnt({O('dsw', 0)})", "w_down is in; the prefetch is far enough ahead by now")
    stamp(2)
    while nis < WE + W2: issue()
for s in range(PB):
    for h in range(2):
        need = 2*s + h
        def ok():
            if nis >= len(ops) or ops[nis][0] != "D": return False
            i = ops[nis][1]
            return i < need + 1 + W1 if i < N0 else (need >= N0 - 1 and i < need + 1 + W2)
        if ok() or h == 1: vwait(("D", need))
        while ok(): issue()
    if s == 0 and N0: stamp(2)
    trreads(s)
while nis < len(ops) and ops[nis][0] == "D": issue()
stamp(5)
e("  s_barrier", "A")
while issue(): pass
e("  s_waitcnt lgkmcnt(0)"); e("  s_barrier", "B")
stamp(4, True); fs(1, True)
if CPRIO: e(f"  s_setprio {CPRIO}")
order = []
for s in range(9):
    ar = 11 if s < E0 else (1 if s < 2*E0 else VA2)
    e(f"  ds_read_b128 v[{AF+4*s}:{AF+4*s+3}], v{ar} offset:{64*s}"); order.append(f"A{s}")
late = list(range(PB, 9))
for s in range(9):
    if late and late[0] <= s + 1:
        t = late.pop(0); vwait(("D", 2*t+1)); trreads(t); order += [f"T{t}"]*4
    tag = f"A{s}" if s < PB else f"T{s}"
    need = len(order) - 1 - order[::-1].index(tag)
    e(f"  s_waitcnt lgkmcnt({min(15, len(order) - need - 1)})")
    mfmas(s)
stamp(3); fs(2)
e("  s_mov_b64 exec, 0xffff"); e("  s_nop 6")
e(f"  ds_write2_b64 v{VXW}, v[{ACC}:{ACC+1}], v[{ACC+4}:{ACC+5}] offset0:0 offset1:16")
e("  s_mov_b64 exec, -1")
cm("---------------------------------------------------------------- all 5 waves: SwiGLU, 128 columns of w_down each")
e("L_JOIN:")
e("  s_waitcnt lgkmcnt(0)"); fs(3, True); e("  s_barrier", "C: the four partial pre-activations are in LDS"); fs(4)
e("  ds_read2_b32 v[12:13], v5 offset0:0 offset1:64"); e("  ds_read2_b32 v[14:15], v5 offset0:128 offset1:192")
e(f"  ds_read_b32 v23, v{VTAG}")
e("  s_cmp_eq_u32 s3, 4"); e("  s_waitcnt lgkmcnt(0)")
e("  v_add_f32 v12, v12, v13"); e("  v_add_f32 v14, v14, v15")
e("  v_cvt_pk_bf16_f32 v12, v12, v14"); e("  v_lshlrev_b32 v13, 16, v12"); e("  v_mul_f32 v15, 0xbfb8aa3b, v13"); e("  v_exp_f32 v15, v15")
e("  v_and_b32 v14, 0xffff0000, v12"); e("  v_add_f32 v15, 1.0, v15"); e("  v_rcp_f32 v15, v15"); e("  s_nop 0")
e("  v_mul_f32 v13, v13, v15"); e("  v_cvt_pk_bf16_f32 v13, v13, v13"); e("  v_and_b32 v13, 0xffff0000, v13")
e("  v_mul_f32 v13, v13, v14"); e("  v_cvt_pk_bf16_f32 v13, v13, v13", "h = bf16(bf16(silu(a)) * u), in both halves")
fs(5)
e("  s_cbranch_scc1 L_W4"); e("  s_waitcnt vmcnt(0)"); e("L_W4:"); fs(6); e("  s_nop 0" if WD4E else f"  s_waitcnt vmcnt({0 if LATEC else 9})")
e(f"  v_and_b32_dpp v12, v13, v6 quad_perm:[0,0,2,2] {DPPM}"); e(f"  v_and_b32_dpp v16, v13, v6 quad_perm:[1,1,3,3] {DPPM}")
e("  s_nop 0"); e("  .p2align 3")
cm("A = h on a diagonal: D[token, column parity and pair][chunk] sums 4 rows of w_down per MFMA")
for mp in range(8):
    src = 12 if mp < 4 else 16; qq = mp & 3
    for r in range(4):
        n = (4*(r-qq)) % 16
        ctl = "quad_perm:[0,1,2,3]" if n == 0 else f"row_ror:{n}"
        e(f"  v_mov_b32_dpp v{AD+4*mp+r}, v{src} {ctl} row_mask:0xf bank_mask:{hex(1<<r)}")
    if mp >= 1:
        m = mp - 1; c = "0" if m == 0 else f"v[{ACC}:{ACC+3}]"
        e(f"  v_mfma_f32_16x16x32_bf16 v[{ACC}:{ACC+3}], v[{AD+4*m}:{AD+4*m+3}], v[{WD+4*m}:{WD+4*m+3}], {c}")
e("  s_nop 0")
e(f"  v_mfma_f32_16x16x32_bf16 v[{ACC}:{ACC+3}], v[{AD+28}:{AD+31}], v[{WD+28}:{WD+31}], v[{ACC}:{ACC+3}]")
e("  s_cselect_b32 exec_lo, 0x00ff00ff, -1"); e("  s_cselect_b32 exec_hi, 0x00ff00ff, -1"); e("  s_nop 5")
cm("4 sums (top 24 bits each) + tag in 16 bytes")
for j in range(3): e(f"  v_perm_b32 v{20+j}, v{ACC+j}, v{ACC+3}, s{56+j}")
e("  buffer_store_dwordx4 v[20:23], v7, s[16:19], s36 offen" + HS)
GATH = AMP and int(AMP.split(",")[0]) >= 30
if GATH:
    e("  s_memrealtime s[90:91]"); e("  s_waitcnt lgkmcnt(0)")
    e("  s_mov_b64 exec, 1"); e("  v_mov_b32 v24, s90"); e("  v_mov_b32 v25, s64"); e("  v_mov_b32 v26, v23"); e("  v_mov_b32 v27, 0")
    e("  s_lshl_b32 s92, s2, 3"); e("  s_add_u32 s92, s92, s3"); e("  s_lshl_b32 s92, s92, 4"); e("  s_add_u32 s92, s92, 0xd0000")
    e("  buffer_store_dwordx4 v[24:27], v27, s[16:19], s92 offen sc1")
    e("  s_cmp_eq_u32 s3, 4")
if STAMP:
    e("  s_cbranch_scc1 L_S6"); stamp(6); e("  s_branch L_FIN"); e("L_S6:"); stamp(2)
else: e("  s_cbranch_scc0 L_FIN")
if LATEC == 1: e("  s_mov_b64 exec, -1"); copy_stores(CW)
e("  s_cmp_ge_u32 s46, 72"); e(f"  s_cbranch_scc1 {'L_WC' if LATEC == 2 else 'L_FIN'}")
cm("---------------------------------------------------------------- 72 waves: sum over the 144 WGs, write the routed rows")
e("  s_mov_b64 exec, -1"); e("  ds_read_u16_d16_hi v35, v33"); e(f"  s_mov_b32 s61, {SPIN}")
e("  s_waitcnt vmcnt(0)")
stamp(6)
if RSL: e(f"  s_sleep {RSL}")
def rload(t): e(f"  buffer_load_dwordx4 v[{R0+4*t}:{R0+3+4*t}], v34, s[16:19], s{80+t} offen" + HL)
def racc(t):
    r = R0 + 4*t
    e(f"  v_perm_b32 v{r+3}, v{r+1}, v{r}, s41"); e(f"  v_perm_b32 v{r+3}, v{r+2}, v{r+3}, s42")
    if t:
        e(f"  v_pk_add_f32 v[{R0}:{R0+1}], v[{R0}:{R0+1}], v[{r}:{r+1}]"); e(f"  v_pk_add_f32 v[{R0+2}:{R0+3}], v[{R0+2}:{R0+3}], v[{r+2}:{r+3}]")
def rchain(extra, lab):
    for t in range(9):
        if lab: e(f"L_R{t}:")
        e(f"  s_waitcnt vmcnt({8-t+extra})"); e(f"  v_cmp_ne_u32 vcc, s47, v{R0+4*t+3}"); e(f"  s_cbranch_vccnz L_RR{t}")
        if lab: e(f"L_RA{t}:")
        racc(t)
for t in range(9): rload(t)
if LATEC == 2:
    copy_stores(CW); e("  s_mov_b64 exec, -1")
    rchain(9, False)
    e("L_RD:")
else:
    rchain(0, True)
if not O("nored5", 0): stamp(5)
e("  s_nop 1"); e(f"  v_permlane32_swap_b32 v{R0}, v{R0+2}"); e(f"  v_permlane32_swap_b32 v{R0+1}, v{R0+3}")
e(f"  v_add_f32 v{R0}, v{R0}, v{R0+2}"); e(f"  v_add_f32 v{R0+1}, v{R0+1}, v{R0+3}"); e("  s_nop 1")
e(f"  v_permlane16_swap_b32 v{R0}, v{R0+1}"); e(f"  v_add_f32 v{R0}, v{R0}, v{R0+1}"); e("  s_nop 1")
e(f"  v_add_f32_dpp v{R0}, v{R0}, v{R0} row_ror:4 {DPPM}"); e("  s_nop 1"); e(f"  v_add_f32_dpp v{R0}, v{R0}, v{R0} row_ror:8 {DPPM}")
e(f"  v_cvt_pk_bf16_f32 v16, v{R0}, v{R0}"); e("  v_and_b32 v16, 0xffff0000, v16"); e("  v_mul_f32 v16, v16, v32")
e("  v_cvt_pk_bf16_f32 v16, v16, v16"); e("  v_and_b32 v16, 0xffff0000, v16"); e("  s_waitcnt lgkmcnt(0)")
e("  v_add_f32 v16, v16, v35"); e("  v_cvt_pk_bf16_f32 v16, v16, v16")
e("  s_mov_b32 exec_lo, 0x000f000f"); e("  s_mov_b32 exec_hi, 0x000f000f")
e("  buffer_store_short v16, v29, s[20:23], s50 offen" + CFN)
e("  s_cmp_lg_u32 s46, 0"); e("  s_cbranch_scc1 L_FIN")
e("  s_mov_b64 exec, 1", "every reader of d_ws[0] is behind the sums seen here"); e("  v_mov_b32 v16, s47"); e(f"  v_mov_b32 v17, {WS_E}")
e("  buffer_store_dword v16, v17, s[16:19], 0 offen" + CFN)
e("L_FIN:"); stamp_flush(); e("L_END:"); e("  s_endpgm")
if LATEC == 2:
    e("L_WC:"); e("  s_mov_b64 exec, -1"); e("  s_branch L_XH2")
    rchain(0, True); e("  s_branch L_RD")
for t in range(9):
    e(f"L_RR{t}:"); e("  s_sub_u32 s61, s61, 1"); e(f"  s_cbranch_scc1 L_RA{t}")
    for t2 in range(t, 9): rload(t2)
    e(f"  s_branch L_R{t}")
cm("---------------------------------------------------------------- prefetch waves: one word per 128-byte line")
e("#MARK H0"); e("L_HELP:")
e(f"  s_sub_u32 s28, s2, {NWT}"); e("  s_and_b32 s29, s28, 7"); e("  s_lshr_b32 s28, s28, 3")
e("  s_and_b32 s33, s3, 1"); e("  s_mul_i32 s33, s33, 288"); e(f"  s_mul_i32 s32, s28, {HR}"); e("  s_add_u32 s32, s32, s33")
e(f"  s_add_u32 s32, s32, {32*N0}"); e("  s_mul_i32 s32, s32, 9216"); e("  s_mul_i32 s34, s29, 1152"); e("  s_add_u32 s32, s32, s34")
e("  v_mul_u32_u24 v3, 0x1c72, v0"); e("  v_lshrrev_b32 v3, 16, v3", "lane / 9"); e("  v_mul_u32_u24 v4, 9, v3"); e("  v_sub_u32 v4, v0, v4")
e("  v_mul_u32_u24 v3, 9216, v3"); e("  v_lshl_add_u32 v3, v4, 7, v3")
if HA:
    cm("the column block whose lines fill only half of a CU's L1 (byte column 384 mod 1024): all its rows first")
    e("  s_and_b32 s36, s3, 1"); e("  s_lshl1_add_u32 s36, s28, s36"); e(f"  s_mul_i32 s36, s36, {21*9216}")
    e("  s_cmp_ge_u32 s29, 4"); e("  s_addc_u32 s37, s29, 0"); e("  s_lshl_b32 s37, s37, 10"); e("  s_add_u32 s36, s36, s37"); e("  s_add_u32 s36, s36, 384")
    e("  v_cmp_lt_u32 vcc, 20, v0"); e("  v_mul_u32_u24 v5, 9216, v0"); e(f"  v_subrev_u32 v6, {21*9216 - 1024}, v5"); e("  v_cndmask_b32 v5, v5, v6, vcc")
    e("  s_cmp_eq_u32 s29, 3"); e("  s_cselect_b32 s37, 42, 21")
e("  s_lshl2_add_u32 s28, s28, s3")
e(f"  s_mul_i32 s29, s29, {5184*128}")
if RP: e(f"  s_add_u32 s29, s29, {RP*8192}")
e("  v_lshlrev_b32 v2, 7, v0")
nr = -(-(288 - 32*N0) // (NH*HR))
assert nr - HG >= 1
e(f"  s_mov_b32 s30, {nr-HG}")
e("  s_cmp_ge_u32 s3, 2"); e("  s_waitcnt lgkmcnt(0)")
e("  s_cselect_b32 s8, s26, s24"); e("  s_cselect_b32 s9, s27, s25")
if O("tw", 0):
    e("  s_load_dword s40, s[12:13], 0", "first touch of w_down and d_out: address translation only")
    e("  s_load_dword s41, s[20:21], 0")
if HA:
    e("  s_bfm_b64 exec, s37, 0"); e(f"  buffer_load_dword v{DUM}, v5, s[8:11], s36 offen")
e(f"  s_bfm_b64 exec, {9*HR}, 0")
for r in range(HG):
    e(f"  buffer_load_dword v{DUM}, v3, s[8:11], s32 offen" + GNT); e(f"  s_add_u32 s32, s32, {NH*HR*9216}")
CPS = 9 - 2*RP
def wchunk(wait):
    e(f"  s_mul_hi_u32 s35, s28, {(2**32 + CPS - 1)//CPS}"); e(f"  s_mul_i32 s31, s35, {CPS}"); e("  s_sub_u32 s31, s28, s31")
    e("  s_mul_i32 s35, s35, 36864"); e("  s_lshl_b32 s31, s31, 12"); e("  s_add_u32 s35, s35, s31"); e("  s_add_u32 s35, s35, s29")
    if wait: e(f"  s_waitcnt vmcnt({HT-1})")
    e(f"  buffer_load_dword v{DUM}, v2, s[12:15], s35 offen" + PNT)
    e("  s_add_u32 s28, s28, 56")
if not UNG: e("  s_barrier")
stamp(1)
if HWF:
    e("  s_bfm_b64 exec, 32, 0")
    for _ in range(HWF): wchunk(False)
    e(f"  s_bfm_b64 exec, {9*HR}, 0")
e("L_HGL:"); e(f"  s_waitcnt vmcnt({HT-1+HX})"); e(f"  buffer_load_dword v{DUM}, v3, s[8:11], s32 offen" + GNT)
e(f"  s_add_u32 s32, s32, {NH*HR*9216}"); e("  s_sub_u32 s30, s30, 1"); e("  s_cmp_lg_u32 s30, 0"); e("  s_cbranch_scc1 L_HGL")
if O("gul", 0): e("  s_waitcnt vmcnt(0)")
stamp(2)
if WE == 4:
    e("  s_bfm_b64 exec, 36, 0")
    e("L_HWL:")
    e("  s_mul_i32 s35, s28, 9216"); e("  s_add_u32 s35, s35, s29"); e("  s_add_u32 s35, s35, 4608")
    e(f"  s_waitcnt vmcnt({HT-1})"); e(f"  buffer_load_dword v{DUM}, v2, s[12:15], s35 offen" + PNT)
    e("  s_add_u32 s28, s28, 56"); e("  s_cmp_lt_u32 s28, 72"); e("  s_cbranch_scc1 L_HWL")
elif WE < 8:
    e("  s_bfm_b64 exec, 32, 0")
    e("L_HWL:")
    wchunk(not O("hwn", 0))
    e(f"  s_cmp_lt_u32 s28, {18*CPS}"); e("  s_cbranch_scc1 L_HWL")
if UNG: e("  s_barrier")
e("  s_waitcnt vmcnt(0)"); e("  s_barrier"); e("  s_branch L_FIN")
e("#MARK H1"); e("L_CODE_END:")
cm("rare path: x + x*0 turns an infinity into a NaN")
for n in range(1, ncopy+1):
    e(f"L_FIX{n}:"); e(f"  s_mov_b32 s98, {n}"); e("  s_branch L_FIX")
e("L_FIX:"); e("  s_mov_b32 s29, 0x07060302")
for j in range(36):
    r = XR + j
    e(f"  v_lshlrev_b32 v12, 16, v{r}"); e(f"  v_and_b32 v13, 0xffff0000, v{r}"); e("  v_fma_f32 v12, v12, 0, v12"); e("  v_fma_f32 v13, v13, 0, v13")
    e(f"  v_perm_b32 v{r}, v13, v12, s29")
e("  s_cmp_eq_u32 s98, 1"); e("  s_cbranch_scc1 L_FIXR1"); e("  s_branch L_FIXR2")
e('.section .rodata,"a"'); e(".p2align 6"); e(f".amdhsa_kernel {K}")
e("  .amdhsa_next_free_vgpr 200"); e("  .amdhsa_next_free_sgpr 102"); e("  .amdhsa_accum_offset 200")
e("  .amdhsa_group_segment_fixed_size 0"); e("  .amdhsa_kernarg_size 64"); e("  .amdhsa_user_sgpr_count 2")
e("  .amdhsa_user_sgpr_kernarg_segment_ptr 1"); e("  .amdhsa_system_sgpr_workgroup_id_x 1"); e("  .amdhsa_float_denorm_mode_32 3")
e(".end_amdhsa_kernel")
def cut(a, b):
    i = out.index("#MARK " + a); j = out.index("#MARK " + b)
    blk = out[i+1:j]; del out[i:j+1]; return blk
blk = []
if NEAR & 2:
    h = cut("H0", "H1")
    if not NEAR & 1:
        pass
    blk += h
if NEAR & 1: blk = cut("C0", "C1") + blk
i = out.index("#MARK XINIT"); out[i:i+1] = blk
out = [l for l in out if not l.startswith("#MARK")]
if not NEAR: out = [l for l in out if l not in ("L_X2:", "L_C2:")]
open(sys.argv[1], "w").write("\n".join(out) + "\n")
```

```python
import sys
NAME = "standalone__moe_arch_mod__prompt"
S, D, F = 2048, 576, 4608
XB = S*D*2
WB = D*F*2
opts = dict(a.split("=") for a in sys.argv[2:] if "=" in a)
def O(k, d): return int(opts.get(k, d))
STAMP = O("stamp", 0); AMP = opts.get("amp"); FINE = O("fine", 0)
if AMP: STAMP = 1
GS = O("gs", 64); REP = O("rep", 4); RS = 256*GS
LG = {16: 0, 32: 1, 64: 2}[GS]; LR = {1: 0, 2: 1, 4: 2, 8: 3}[REP]; NL = REP*GS//16
assert NL <= 16
WS_E = 0; WS_GRAN = 4096; WS_SLAB = 4096 + REP*RS; WS_SIZE = 1 << 20; WS_STAMP = 1 << 21
N0 = O("n0", 2); W1 = O("w1", 4); W2 = O("w2", 4); WE = O("we", 0); PB = O("pb", 7); RP = O("rp", 0)
HR = O("hr", 4); HT = O("ht", 2); HG = O("hg", 1)
PSL = O("psl", 2); SPIN = O("spin", 200000); RSL = O("rsl", 0)
CFN = {0: "", 1: " sc1", 2: " sc0 sc1"}[O("cf", 0)]; WNT = " nt" if O("wnt", 0) else ""; PNT = " nt" if O("pnt", 0) else ""; GNT = " nt" if O("gnt", 0) else ""; XNT = " nt" if O("xnt", 0) else ""; LATEC = O("latec", 1); FL = {0: "", 1: " sc1", 2: " sc0 sc1", 3: " sc1 nt", 4: " nt"}; HS = FL[O("hs", 1)]; HL = FL[O("hl", 1)]; CW = FL[O("cw", 1)]; CH = FL[O("ch", 1)]; WD4E = O("wd4e", 1); NEAR = O("near", 0); UNG = O("ung", 0); HA = O("ha", 0); HWF = O("hwf", 0); HX = O("hx", 0); EFS = O("efs", 1); LOWP = O("lowp", 1); CPRIO = O("cprio", 0)
NWT = 144; NH = 14
out = []
def e(s="", c=None): out.append(s if c is None else f"{s:<72}; {c}")
def cm(s): out.append("; " + s)
def stamp(i, wait=False):
    if STAMP and (i in (0, 7) or not FINE):
        e(f"  s_memrealtime s[{64+2*i}:{65+2*i}]")
        if wait: e("  s_waitcnt lgkmcnt(0)")
def fs(i, wait=False):
    if FINE:
        e(f"  s_memtime s[{64+2*i}:{65+2*i}]")
        if wait: e("  s_waitcnt lgkmcnt(0)")
def stamp_flush():
    if AMP:
        A, B, KK, WV, WG = map(int, AMP.split(","))
        if O("endw", 0): e("  s_waitcnt vmcnt(0)")
        stamp(7, True)
        e(f"  s_cmp_lg_u32 s2, {WG}"); e("  s_cbranch_scc1 L_AMPX")
        e(f"  s_cmp_lg_u32 s3, {WV}"); e("  s_cbranch_scc1 L_AMPX")
        if A >= 30:
            e("  s_sleep 60"); e("  s_mov_b64 exec, -1"); e("  v_lshlrev_b32 v1, 4, v0"); e("  v_mov_b32 v2, 0x80000000"); e("  v_mov_b32 v3, 0")
            for i in range(18):
                e(f"  s_mov_b32 s92, {0xd0000 + 1024*i}")
                e("  buffer_load_dwordx4 v[24:27], v1, s[16:19], s92 offen sc1"); e("  s_waitcnt vmcnt(0)")
                if A in (30, 31, 32, 35): e("  v_subrev_u32 v24, s64, v24")
                elif A == 33: e("  v_sub_u32 v24, v24, v25")
                else: e("  v_subrev_u32 v24, s64, v25")
                e("  v_lshlrev_b32 v24, 12, v24"); e(f"  v_add_u32 v25, {64*i}, v0"); e("  v_or_b32 v24, v24, v25")
                e("  v_cmp_eq_u32 vcc, s47, v26"); e("  s_nop 1"); e("  v_cndmask_b32 v24, v2, v24, vcc"); e("  v_max_i32 v3, v3, v24" if i else "  v_mov_b32 v3, v24")
            for ctl in ("quad_perm:[1,0,3,2] row_mask:0xf bank_mask:0xf", "quad_perm:[2,3,0,1] row_mask:0xf bank_mask:0xf", "row_ror:4 row_mask:0xf bank_mask:0xf", "row_ror:8 row_mask:0xf bank_mask:0xf",
                        "row_bcast:15 row_mask:0xa bank_mask:0xf", "row_bcast:31 row_mask:0xc bank_mask:0xf"):
                e("  s_nop 1"); e(f"  v_max_i32_dpp v3, v3, v3 {ctl}")
            e("  s_nop 1"); e("  v_readlane_b32 s60, v3, 63")
            if A in (30, 33, 34): e("  s_ashr_i32 s60, s60, 12")
            elif A == 31: e("  s_bfe_u32 s60, s60, 0x30003")
            elif A == 32: e("  s_and_b32 s60, s60, 7")
            else: e("  s_bfe_u32 s60, s60, 0x50006")
            e("  s_memrealtime s[78:79]"); e("  s_waitcnt lgkmcnt(0)")
        else:
            e(f"  s_sub_u32 s60, s{64+2*B}, s{64+2*A}")
        e(f"  s_mul_i32 s60, s60, {KK}")
        e("L_AMP:"); e("  s_memrealtime s[62:63]"); e("  s_waitcnt lgkmcnt(0)"); e("  s_sub_u32 s62, s62, s78")
        e("  s_cmp_lt_u32 s62, s60"); e("  s_cbranch_scc1 L_AMP"); e("L_AMPX:")
    elif STAMP:
        if FINE: e("  s_memtime s[78:79]"); e("  s_waitcnt lgkmcnt(0)")
        else: stamp(7, True)
        e("  s_mov_b64 exec, 1")
        e("  s_lshl_b32 s60, s2, 3"); e("  s_add_u32 s60, s60, s3"); e("  s_lshl_b32 s60, s60, 6")
        e(f"  s_add_u32 s60, s60, {WS_STAMP}"); e("  s_mov_b32 s18, 0x1000000"); e("  v_mov_b32 v1, 0")
        for j in range(4):
            for k in range(4): e(f"  v_mov_b32 v{4+k}, s{64+4*j+k}")
            e(f"  buffer_store_dwordx4 v[4:7], v1, s[16:19], s60 offen offset:{16*j}"); e("  s_nop 1")

hdr = open('cdna_kernels/%s.s.ref' % NAME).read().split('\n')
for l in hdr:
    if l.startswith('; @launch'): break
    e(l)
XIMG = 73728; TAGL = XIMG + 2304; TEX = XIMG + 3072; WRIMG = TEX + 1024; LDS = 83968
e(f"; @launch grid=(256,1,1) block=(320,1,1) lds={LDS}")
DOC = """
One launch, 256 workgroups of 5 waves, one per CU (LDS and VGPR use allow one).
 role 4 (wave 0), every WG : 8 rows of x -> router scores -> local top-2 -> tagged granule in d_ws,
                             later the copy of its rows that were not routed.
 WGs 0..143, roles 0..3    : 32 columns of w_gate / w_up (LDS-DMA, transposing LDS reads, MFMA),
                             SwiGLU, the matching 32 rows of w_down (MFMA), tagged partial sums in d_ws.
 WGs 0..143, role 4        : gathers the 256 granules, global top-2, brings both rows into LDS;
                             72 of them add up the 144 partial sums of 8 columns and write the routed rows.
 WGs 144..255, roles 0..3  : pull weight lines into the L2 that the weight WGs with the same id mod 8
                             are expected to share (speed only, nothing depends on it).
 Hand-offs between WGs are 16-byte pieces that carry a tag, written and read with sc1.
 tag = d_ws[0] + 0x01010101; d_ws[0] is set to the tag at the end, so it differs from launch to launch.
"""
for l in DOC.strip("\n").split("\n"): cm(l)
e('.amdgcn_target "amdgcn-amd-amdhsa--gfx950"'); e(".text")
K = NAME + "_kernel"
e(f".globl {K}"); e(".p2align 8"); e(f".type {K},@function"); e(f"{K}:")
DPPM = "row_mask:0xf bank_mask:0xf"
AF = 12; BF = 48; ACC = 120; WD = 128; AD = 160; XR = 84; WR = 48; R0 = 48
VXW = 192; VA2 = 193; VTAG = 194; DUMC = 196; DUM = 197
QS = 16*9216

def slice_calc():
    e("  s_and_b32 s45, s2, 7"); e("  s_mul_i32 s45, s45, 18"); e("  s_lshr_b32 s44, s2, 3")
    e("  s_add_u32 s45, s45, s44", "slice: neighbours are 8 ids apart")
def setup0():
    e("  v_and_b32 v2, 15, v0"); e("  v_lshrrev_b32 v3, 4, v0")
    e("  v_mul_u32_u24 v4, 9216, v3"); e("  v_lshl_add_u32 v4, v2, 4, v4", "w_down: row 8g, 16-byte chunk c")
    e(f"  s_mul_i32 s34, s45, {32*1152}"); e("  s_lshl_b32 s35, s3, 8"); e("  s_add_u32 s34, s34, s35"); e("  s_add_u32 s35, s34, 4608")
def setup1():
    e("  v_lshrrev_b32 v5, 2, v2"); e("  v_lshl_add_u32 v5, v3, 3, v5"); e("  v_and_b32 v6, 1, v0"); e("  v_lshl_add_u32 v5, v6, 2, v5")
    e("  v_lshlrev_b32 v5, 3, v5"); e("  v_and_b32 v6, 2, v0"); e("  v_lshl_add_u32 v5, v6, 1, v5")
    e(f"  v_add_u32 v5, {TEX}, v5", "exchange table: this lane's (f, token)")
    e("  v_and_b32 v6, 1, v0"); e("  v_cmp_eq_u32 vcc, 1, v6"); e("  v_mov_b32 v6, 0xffff"); e("  v_mov_b32 v7, 0xffff0000")
    e("  v_cndmask_b32 v6, v6, v7, vcc", "half-word mask by lane parity")
    e("  v_lshlrev_b32 v7, 6, v2"); e("  v_lshl_add_u32 v7, v3, 4, v7", "partial-sum piece of this lane")
    e("  s_mul_i32 s36, s45, 4608"); e("  s_lshl_b32 s37, s3, 10"); e("  s_add_u32 s36, s36, s37"); e(f"  s_add_u32 s36, s36, {WS_SLAB}")
    e(f"  v_mov_b32 v{VTAG}, {TAGL}")
    e("  s_mov_b32 s56, 0x07060501"); e("  s_mov_b32 s57, 0x07060502"); e("  s_mov_b32 s58, 0x07060503")
    for j in range(0, 32, 2): e(f"  v_mov_b64 v[{AD+j}:{AD+j+1}], 0")
def wd_load(mp): e(f"  buffer_load_dwordx4 v[{WD+4*mp}:{WD+4*mp+3}], v4, s[12:15], s{34+(mp>>2)} offen offset:{1152*(mp&3)}" + WNT)
ncopy = 0
def copy_stores(fl=""):
    global ncopy
    ncopy += 1
    e("  s_and_b32 s38, s32, 0xffff"); e("  s_and_b32 s39, s33, 0xffff")
    e("  v_cmp_ne_u32 s[52:53], s38, v11"); e("  v_cmp_ne_u32 s[54:55], s39, v11")
    e("  s_and_b64 exec, s[52:53], s[54:55]", "rows that are not routed")
    e("  s_cmp_lg_u64 s[96:97], 0"); e(f"  s_cbranch_scc1 L_FIX{ncopy}"); e(f"L_FIXR{ncopy}:")
    for i in range(9): e(f"  buffer_store_dwordx4 v[{XR+4*i}:{XR+4*i+3}], v10, s[20:23], s28 offen offset:{128*i}{fl}")

if STAMP:
    for i in range(2, 16): e(f"  s_mov_b32 s{64+i}, 0")
stamp(0)
cm("SRDs: x s[4:7], w_r or w_gate/w_up s[8:11], w_down s[12:15], d_ws s[16:19], d_out s[20:23]")
e("  s_load_dwordx2 s[4:5], s[0:1], 0"); e("  s_load_dwordx2 s[8:9], s[0:1], 8"); e("  s_load_dwordx2 s[16:17], s[0:1], 56")
e("  s_load_dwordx4 s[24:27], s[0:1], 16"); e("  s_load_dwordx2 s[12:13], s[0:1], 32"); e("  s_load_dwordx2 s[20:21], s[0:1], 40")
e("  s_getpc_b64 s[28:29]", "read one word of every line of the code: it lands in L2"); e("L_PC:")
e("  v_lshlrev_b32 v2, 7, v0"); e("  v_cmp_gt_u32 vcc, (L_CODE_END-L_PC+127)/128, v0")
e("  s_and_saveexec_b64 s[30:31], vcc"); e("  s_cbranch_execz L_NOPF")
e(f"  global_load_dword v{DUMC}, v2, s[28:29]"); e("L_NOPF:"); e("  s_mov_b64 exec, -1")
e("  v_lshrrev_b32 v1, 6, v0"); e("  v_and_b32 v0, 63, v0"); e("  v_readfirstlane_b32 s3, v1")
e("  s_cmp_ge_u32 s2, 256"); e("  s_cbranch_scc1 L_END")
e("  s_sub_u32 s3, s3, 1", "role: wave 0 -> 4, wave k -> k-1"); e("  s_cselect_b32 s3, 4, s3")
for r, v in ((6, XB), (7, "0x20000"), (11, "0x20000"), (14, WB), (15, "0x20000"), (18, WS_SIZE), (19, "0x20000"), (22, XB), (23, "0x20000")):
    e(f"  s_mov_b32 s{r}, {v}")
if NEAR == 2:
    e(f"  s_mov_b32 s10, {WB}"); e("  s_cmp_eq_u32 s3, 4"); e("  s_cbranch_scc1 L_X1")
    e(f"  s_cmp_ge_u32 s2, {NWT}"); e("  s_cbranch_scc1 L_HELP"); e("  s_branch L_NOTX"); e("L_X1:")
else:
    e("  s_cmp_lg_u32 s3, 4"); e("  s_cbranch_scc1 L_NOTX")
cm("---------------------------------------------------------------- role 4: router scores of 8 rows")
e("  s_setprio 3")
e(f"  s_mov_b32 s10, {D*2}"); e(f"  s_mov_b32 m0, {WRIMG}")
e("  v_lshlrev_b32 v8, 4, v0"); e("  v_and_b32 v1, 0x70, v8"); e("  v_lshrrev_b32 v9, 3, v0")
e("  v_mul_u32_u24 v10, 1152, v9"); e("  v_add_u32 v10, v10, v1", "8 lanes per row"); e("  s_mul_i32 s28, s2, 9216")
e("  s_waitcnt lgkmcnt(0)")
e(f"  s_load_dword s47, s[16:17], {WS_E}")
e("  buffer_load_dwordx4 v8, s[8:11], 0 offen lds", "w_r -> LDS"); e("  s_mov_b64 exec, 0xff")
e("  buffer_load_dwordx4 v8, s[8:11], 0 offen offset:1024 lds"); e("  s_mov_b64 exec, -1")
for i in range(9): e(f"  buffer_load_dwordx4 v[{XR+4*i}:{XR+4*i+3}], v10, s[4:7], s28 offen offset:{128*i}" + XNT)
if NEAR: e("  s_branch L_X2")
e("#MARK XINIT"); e("L_X2:")
e(f"  v_add_u32 v1, {WRIMG}, v1")
e("  s_lshl_b32 s29, s2, 3"); e("  s_sub_u32 s29, 2047, s29"); e("  v_sub_u32 v11, s29, v9", "2047 - row"); e("  s_mov_b32 s30, 0xffff0000")
e(f"  s_and_b32 s29, s2, {REP-1}"); e(f"  s_mul_i32 s27, s29, {RS}"); e(f"  s_add_u32 s27, s27, {WS_GRAN}", "the copy of the granules this WG reads")
for j in range(1, 4): e(f"  s_add_u32 s{47+j}, s27, {64*GS*j}")
e("  s_and_b32 s29, s2, 7"); e("  s_lshl_b32 s29, s29, 5"); e("  s_lshr_b32 s31, s2, 3"); e("  s_add_u32 s29, s29, s31")
e(f"  s_mul_i32 s29, s29, {GS}"); e(f"  s_add_u32 s31, s29, {WS_GRAN}", "own granule")
e(f"  v_mul_u32_u24 v44, {GS}, v0")
for j in range(4): e(f"  v_mov_b32 v{12+j}, 0")
e("  v_bfrev_b32 v22, 1")
e(f"  v_bfe_u32 v21, v0, {LG}, {LR}"); e(f"  v_mul_u32_u24 v21, {RS}, v21"); e(f"  v_and_b32 v19, {GS//16-1}, v0"); e("  v_lshl_add_u32 v21, v19, 4, v21")
e(f"  s_mov_b32 s61, {SPIN}"); e(f"  v_mov_b32 v45, {TAGL}")
e("  s_waitcnt vmcnt(9) lgkmcnt(0)")
for i in range(9): e(f"  ds_read_b128 v[{WR+4*i}:{WR+4*i+3}], v1 offset:{128*i}")
e("  s_add_u32 s47, s47, 0x01010101", "tag of this launch"); e("  v_mov_b32 v18, s47")
for i in range(9):
    e(f"  s_waitcnt vmcnt({8-i}) lgkmcnt({8-i})")
    for j in range(4): e(f"  v_dot2c_f32_bf16 v{12+j}, v{XR+4*i+j}, v{WR+4*i+j}")
e("  s_nop 1")
e("  v_add_f32 v12, v12, v13"); e("  v_add_f32 v14, v14, v15"); e("  v_add_f32 v12, v12, v14")
e("  s_movk_i32 s29, 0x207"); e("  v_cmp_class_f32 s[96:97], v12, s29", "lanes that hold an inf or a NaN")
e(f"  v_add_f32_dpp v12, v12, v12 quad_perm:[1,0,3,2] {DPPM}"); e("  s_nop 1")
e(f"  v_add_f32_dpp v12, v12, v12 quad_perm:[2,3,0,1] {DPPM}"); e("  s_nop 1")
e(f"  v_add_f32_dpp v12, v12, v12 row_half_mirror {DPPM}")
cm("key = order-preserving bf16 score << 16 | 2047 - row; NaN sorts last")
e("  v_cvt_pk_bf16_f32 v13, v12, v12"); e("  v_cmp_u_f32 vcc, v12, v12"); e("  v_ashrrev_i32 v14, 31, v13")
e("  v_bitop3_b32 v13, v13, v14, v22 bitop3:0x1e"); e("  v_cndmask_b32 v13, v13, 0, vcc"); e("  v_and_or_b32 v13, v13, s30, v11")
e("  s_nop 1")
e(f"  v_max_u32_dpp v16, v13, v13 row_ror:8 {DPPM}"); e(f"  v_min_u32_dpp v17, v13, v13 row_ror:8 {DPPM}"); e("  s_nop 0")
for ctl in ("row_bcast:15 row_mask:0xa bank_mask:0xf", "row_bcast:31 row_mask:0xc bank_mask:0xf"):
    e(f"  v_min_u32_dpp v14, v16, v16 {ctl}"); e(f"  v_max_u32_dpp v16, v16, v16 {ctl}")
    e(f"  v_max_u32_dpp v15, v17, v17 {ctl}"); e("  v_max_u32 v17, v14, v15")
e(f"  s_lshl_b64 exec, {hex((1 << NL) - 1)}, 48", f"lanes 48..63 hold the pair: {REP} copies x {GS} bytes")
e("  buffer_store_dwordx4 v[16:19], v21, s[16:19], s31 offen" + HS)
stamp(3)
e(f"  s_cmp_lt_u32 s2, {NWT}"); e("  s_cbranch_scc1 L_XG"); e("  s_barrier", "prefetch WG: let the other waves fill the queue"); e("L_XG:")
e("  ds_write_b32 v45, v18"); e("  s_mov_b64 exec, -1")
slice_calc(); setup0(); setup1()
e(f"  s_cmp_ge_u32 s2, {NWT}"); e("  s_cbranch_scc1 L_XH")
def wd4():
    e("  s_mov_b32 exec_lo, 0x00ff00ff", "columns 512..575 of w_down"); e("  s_mov_b32 exec_hi, 0x00ff00ff")
    for mp in range(8): wd_load(mp)
    e("  s_mov_b64 exec, -1")
if WD4E: wd4()
if RP:
    e("  v_lshlrev_b32 v46, 7, v0"); e(f"  s_mul_i32 s29, s45, {32*1152}")
    for r in range(RP):
        e(f"  buffer_load_dword v{DUM}, v46, s[12:15], s29 offen" + PNT)
        if r < RP-1: e("  s_add_u32 s29, s29, 8192")
e("  s_waitcnt vmcnt(0)")
if O("nored5", 0): stamp(5)
e("L_P1:")
if O("lsl", 0): e(f"  s_sleep {O('lsl', 0)}", "back off before every read of the granules")
b = 48
for j in range(4): e(f"  buffer_load_dwordx4 v[{b+4*j}:{b+3+4*j}], v44, s[16:19], s{27 if j == 0 else 47+j} offen" + HL)
e("  s_waitcnt vmcnt(0)")
e(f"  v_cmp_ne_u32 vcc, s47, v{b+2}"); e(f"  v_cmp_ne_u32 s[32:33], s47, v{b+6}")
e(f"  v_cmp_ne_u32 s[38:39], s47, v{b+10}"); e(f"  v_cmp_ne_u32 s[40:41], s47, v{b+14}")
e("  s_or_b64 vcc, vcc, s[32:33]"); e("  s_or_b64 s[38:39], s[38:39], s[40:41]"); e("  s_or_b64 vcc, vcc, s[38:39]")
e("  s_cbranch_scc0 L_PT")
if not O("lsl", 0): e(f"  s_sleep {PSL}", "some granule is missing: back off and read again")
e("  s_sub_u32 s61, s61, 1"); e("  s_cbranch_scc0 L_P1")
e("  .p2align 3"); e("L_PT:")
def merge(a1, a2, b1, b2, o1, o2, t):
    e(f"  v_min_u32 v{t}, v{a1}, v{b1}"); e(f"  v_max_u32 v{o1}, v{a1}, v{b1}"); e(f"  v_max3_u32 v{o2}, v{t}, v{a2}, v{b2}")
merge(b, b+1, b+4, b+5, 40, 41, 12); merge(b+8, b+9, b+12, b+13, 42, 43, 13); merge(40, 41, 42, 43, 40, 41, 12)
e("  s_nop 0")
for ctl in (f"quad_perm:[1,0,3,2] {DPPM}", f"quad_perm:[2,3,0,1] {DPPM}", f"row_ror:4 {DPPM}", f"row_ror:8 {DPPM}",
            "row_bcast:15 row_mask:0xa bank_mask:0xf", "row_bcast:31 row_mask:0xc bank_mask:0xf"):
    e(f"  v_min_u32_dpp v12, v40, v40 {ctl}"); e(f"  v_max_u32_dpp v40, v40, v40 {ctl}")
    e(f"  v_max_u32_dpp v13, v41, v41 {ctl}"); e("  v_max_u32 v41, v12, v13")
e("  v_cmp_gt_u32 vcc, 8, v0"); e("  v_readlane_b32 s32, v40, 63", "global top-2 keys"); e("  v_readlane_b32 s33, v41, 63")
e(f"  s_cmp_ge_u32 s2, {NWT}"); e("  s_cbranch_scc1 L_XH2")
e("  s_and_b32 s38, s32, 0x7ff"); e("  s_and_b32 s39, s33, 0x7ff"); e("  s_sub_u32 s38, 2047, s38"); e("  s_sub_u32 s39, 2047, s39")
e("  s_mul_i32 s38, s38, 1152"); e("  s_mul_i32 s39, s39, 1152"); e(f"  s_mov_b32 m0, {XIMG}"); e("  s_sub_u32 s40, s39, 128")
e("  buffer_load_dwordx4 v8, s[4:7], s38 offen lds", "both routed rows -> LDS [2][1152 B]")
e("  s_add_u32 s41, s38, 1024"); e("  v_mov_b32 v12, s40"); e("  v_mov_b32 v13, s41"); e("  s_addk_i32 m0, 0x400")
e("  v_cndmask_b32 v12, v12, v13, vcc"); e("  v_add_u32 v12, v12, v8")
e("  buffer_load_dwordx4 v12, s[4:7], 0 offen lds")
e("  s_addk_i32 m0, 0x400"); e("  s_add_u32 s40, s39, 896"); e("  s_mov_b64 exec, 0xffff")
e("  buffer_load_dwordx4 v8, s[4:7], s40 offen lds"); e("  s_mov_b64 exec, -1")
stamp(1)
def final_setup():
    cm("last stage: lane row r = lane>>4 holds token r>>1, column 8u + 2(lane&3) + (r&1)")
    e("  v_cmp_gt_u32 vcc, 32, v0"); e("  v_mov_b32 v28, s33"); e("  v_mov_b32 v29, s32"); e("  v_and_b32 v31, 3, v0")
    e("  v_cndmask_b32 v28, v28, v29, vcc"); e("  v_and_b32 v29, 0xffff, v28"); e("  v_sub_u32 v29, 2047, v29")
    e("  v_mul_u32_u24 v29, 1152, v29"); e("  v_bfe_u32 v30, v0, 4, 1"); e("  v_lshlrev_b32 v30, 1, v30")
    e("  v_lshl_add_u32 v30, v31, 2, v30"); e("  v_add_u32 v29, v29, v30")
    e("  v_not_b32 v32, v28"); e("  v_ashrrev_i32 v32, 31, v32"); e("  v_or_b32 v32, 0x80000000, v32")
    e("  v_xor_b32 v32, v32, v28"); e("  v_and_b32 v32, 0xffff0000, v32", "the bf16 score back from the key"); e("  v_mul_f32 v32, 0xbfb8aa3b, v32")
    e("  v_exp_f32 v32, v32"); e("  v_lshrrev_b32 v33, 5, v0"); e("  v_add_f32 v32, 1.0, v32"); e("  v_rcp_f32 v32, v32")
    e("  v_mul_u32_u24 v33, 1152, v33"); e("  v_cvt_pk_bf16_f32 v32, v32, v32"); e("  v_and_b32 v32, 0xffff0000, v32", "sigmoid, rounded to bf16")
    e("  s_sub_u32 s46, s45, 72", "unit u = slice - 72"); e("  s_lshl_b32 s50, s46, 4"); e(f"  s_add_u32 s51, s50, {XIMG}"); e("  v_add3_u32 v33, v33, v30, s51")
    e("  v_lshrrev_b32 v34, 2, v0"); e("  v_mul_u32_u24 v34, 4608, v34"); e("  v_lshl_add_u32 v34, v31, 4, v34")
    e("  s_lshl_b32 s80, s46, 6"); e(f"  s_add_u32 s80, s80, {WS_SLAB}")
    for t in range(1, 9): e(f"  s_add_u32 s{80+t}, s80, {16*4608*t}")
    e("  s_mov_b32 s41, 0x0c04000c"); e("  s_mov_b32 s42, 0x04020100"); e("  v_mov_b32 v35, 0")
if EFS == 2: final_setup()
e("  s_barrier", "A: the rows are requested")
if not WD4E: wd4()
if EFS == 1: final_setup()
e(f"  s_waitcnt vmcnt({0 if WD4E else 8}) lgkmcnt(0)")
stamp(4, True)
e("  s_barrier", "B: the rows are in LDS")
if LOWP: e("  s_setprio 0")
if not LATEC: copy_stores(CW); e("  s_mov_b64 exec, -1")
if EFS == 0: final_setup()
if LOWP == 2: e("  s_setprio 3")
e("  s_branch L_JOIN")
e("L_XH:"); e("  s_barrier", "the prefetch is done"); e("  s_branch L_P1")
e("L_XH2:"); copy_stores(CH); e("  s_branch L_FIN")
cm("---------------------------------------------------------------- roles 0..3: (matrix, half of K)")
e("#MARK C0"); e("L_NOTX:")
e(f"  s_mov_b32 s10, {WB}")
e(f"  s_cmp_ge_u32 s2, {NWT}"); e("  s_cbranch_scc1 L_HELP")
slice_calc(); setup0()
e("  v_lshrrev_b32 v8, 2, v0"); e("  v_mul_u32_u24 v8, 9216, v8"); e("  v_lshrrev_b32 v9, 4, v0"); e("  v_and_b32 v9, 2, v9")
e("  v_xor_b32 v9, v9, v0"); e("  v_and_b32 v9, 3, v9"); e("  v_lshl_add_u32 v8, v9, 4, v8", "16 rows x 64 B, halves swapped in rows 8..15")
e("  s_and_b32 s28, s3, 1"); e(f"  s_mul_i32 s28, s28, {288*9216}"); e("  s_lshl_b32 s29, s45, 6"); e("  s_add_u32 s28, s28, s29")
e("  s_and_b32 s42, s45, 1", "the two WGs that share the lines start on different rows")
e(f"  s_mul_i32 s29, s42, {N0*QS}"); e(f"  s_add_u32 s46, s28, {2*N0*QS}"); e(f"  s_add_u32 s43, s28, {N0*QS}")
e("  s_sub_u32 s43, s43, s29"); e("  s_add_u32 s28, s28, s29")
e("  s_mul_i32 s30, s3, 18432"); e("  s_mov_b32 m0, s30")
e("  s_cmp_ge_u32 s3, 2"); e("  s_waitcnt lgkmcnt(0)")
e("  s_cselect_b32 s8, s26, s24"); e("  s_cselect_b32 s9, s27, s25")
stamp(1)
ops = [("W", i) for i in range(WE)] + [("D", i) for i in range(18)] + [("W", i) for i in range(WE, 8)]
pos = {op: n for n, op in enumerate(ops)}
nis = 0
def issue():
    global nis
    if nis >= len(ops): return False
    k, i = ops[nis]
    if k == "D":
        if N0 and i == N0: e("  s_mov_b32 s28, s43")
        if N0 and i == 2*N0: e("  s_mov_b32 s28, s46")
        e("  buffer_load_dwordx4 v8, s[8:11], s28 offen lds")
        if i < 17: e("  s_addk_i32 m0, 0x400"); e(f"  s_add_u32 s28, s28, {QS}")
    else: wd_load(i)
    nis += 1
    return True
def vwait(op): e(f"  s_waitcnt vmcnt({nis - pos[op] - 1})")
while nis < WE + min(N0, W1): issue()
if NEAR & 1: e("  s_branch L_C2")
e("#MARK C1"); e("L_C2:")
setup1()
e("  v_lshlrev_b32 v9, 9, v3"); e("  v_bfe_u32 v10, v0, 2, 2"); e("  v_lshl_add_u32 v9, v10, 6, v9"); e("  v_and_b32 v10, 3, v0")
e("  v_lshl_add_u32 v9, v10, 3, v9"); e("  v_and_b32 v10, 1, v3"); e("  v_lshl_add_u32 v9, v10, 5, v9")
e("  v_add_u32 v9, s30, v9", "transposing reads, columns 0..15"); e("  v_xor_b32 v10, 32, v9", "columns 16..31")
e("  v_and_b32 v11, 1, v0"); e("  v_mul_u32_u24 v11, 1152, v11"); e("  v_lshl_add_u32 v11, v3, 4, v11")
e("  s_and_b32 s29, s3, 1"); e("  s_mul_i32 s29, s29, 576"); e(f"  s_add_u32 s29, s29, {XIMG}")
e(f"  s_mul_i32 s31, s42, {32*N0}")
e(f"  v_add_u32 v{VA2}, s29, v11", "x fragments"); e(f"  v_add_u32 v11, s31, v{VA2}"); e(f"  v_subrev_u32 v1, s31, v{VA2}")
e("  s_lshl_b32 s29, s3, 8"); e(f"  s_add_u32 s29, s29, {TEX}"); e(f"  v_lshl_add_u32 v{VXW}, v2, 3, s29")
def trreads(s):
    for hh in range(2):
        for u in range(2):
            r = BF + 8*s + 4*hh + 2*u
            e(f"  ds_read_b64_tr_b16 v[{r}:{r+1}], v{9+hh} offset:{2048*s+256*u}")
def mfmas(s):
    for hh in range(2):
        c = "0" if s == 0 else f"v[{ACC+4*hh}:{ACC+4*hh+3}]"
        r = BF + 8*s + 4*hh
        e(f"  v_mfma_f32_16x16x32_bf16 v[{ACC+4*hh}:{ACC+4*hh+3}], v[{AF+4*s}:{AF+4*s+3}], v[{r}:{r+3}], {c}")
E0 = N0 // 2
if N0 == 0:
    e(f"  s_waitcnt vmcnt({O('dsw', 0)})", "w_down is in; the prefetch is far enough ahead by now")
    stamp(2)
    while nis < WE + W2: issue()
for s in range(PB):
    for h in range(2):
        need = 2*s + h
        def ok():
            if nis >= len(ops) or ops[nis][0] != "D": return False
            i = ops[nis][1]
            return i < need + 1 + W1 if i < N0 else (need >= N0 - 1 and i < need + 1 + W2)
        if ok() or h == 1: vwait(("D", need))
        while ok(): issue()
    if s == 0 and N0: stamp(2)
    trreads(s)
while nis < len(ops) and ops[nis][0] == "D": issue()
stamp(5)
e("  s_barrier", "A")
while issue(): pass
e("  s_waitcnt lgkmcnt(0)"); e("  s_barrier", "B")
stamp(4, True); fs(1, True)
if CPRIO: e(f"  s_setprio {CPRIO}")
order = []
for s in range(9):
    ar = 11 if s < E0 else (1 if s < 2*E0 else VA2)
    e(f"  ds_read_b128 v[{AF+4*s}:{AF+4*s+3}], v{ar} offset:{64*s}"); order.append(f"A{s}")
late = list(range(PB, 9))
for s in range(9):
    if late and late[0] <= s + 1:
        t = late.pop(0); vwait(("D", 2*t+1)); trreads(t); order += [f"T{t}"]*4
    tag = f"A{s}" if s < PB else f"T{s}"
    need = len(order) - 1 - order[::-1].index(tag)
    e(f"  s_waitcnt lgkmcnt({min(15, len(order) - need - 1)})")
    mfmas(s)
stamp(3); fs(2)
e("  s_mov_b64 exec, 0xffff"); e("  s_nop 6")
e(f"  ds_write2_b64 v{VXW}, v[{ACC}:{ACC+1}], v[{ACC+4}:{ACC+5}] offset0:0 offset1:16")
e("  s_mov_b64 exec, -1")
cm("---------------------------------------------------------------- all 5 waves: SwiGLU, 128 columns of w_down each")
e("L_JOIN:")
e("  s_waitcnt lgkmcnt(0)"); fs(3, True); e("  s_barrier", "C: the four partial pre-activations are in LDS"); fs(4)
e("  ds_read2_b32 v[12:13], v5 offset0:0 offset1:64"); e("  ds_read2_b32 v[14:15], v5 offset0:128 offset1:192")
e(f"  ds_read_b32 v23, v{VTAG}")
e("  s_cmp_eq_u32 s3, 4"); e("  s_waitcnt lgkmcnt(0)")
e("  v_add_f32 v12, v12, v13"); e("  v_add_f32 v14, v14, v15")
e("  v_cvt_pk_bf16_f32 v12, v12, v14"); e("  v_lshlrev_b32 v13, 16, v12"); e("  v_mul_f32 v15, 0xbfb8aa3b, v13"); e("  v_exp_f32 v15, v15")
e("  v_and_b32 v14, 0xffff0000, v12"); e("  v_add_f32 v15, 1.0, v15"); e("  v_rcp_f32 v15, v15"); e("  s_nop 0")
e("  v_mul_f32 v13, v13, v15"); e("  v_cvt_pk_bf16_f32 v13, v13, v13"); e("  v_and_b32 v13, 0xffff0000, v13")
e("  v_mul_f32 v13, v13, v14"); e("  v_cvt_pk_bf16_f32 v13, v13, v13", "h = bf16(bf16(silu(a)) * u), in both halves")
fs(5)
e("  s_cbranch_scc1 L_W4"); e("  s_waitcnt vmcnt(0)"); e("L_W4:"); fs(6); e("  s_nop 0" if WD4E else f"  s_waitcnt vmcnt({0 if LATEC else 9})")
e(f"  v_and_b32_dpp v12, v13, v6 quad_perm:[0,0,2,2] {DPPM}"); e(f"  v_and_b32_dpp v16, v13, v6 quad_perm:[1,1,3,3] {DPPM}")
e("  s_nop 0"); e("  .p2align 3")
cm("A = h on a diagonal: D[token, column parity and pair][chunk] sums 4 rows of w_down per MFMA")
for mp in range(8):
    src = 12 if mp < 4 else 16; qq = mp & 3
    for r in range(4):
        n = (4*(r-qq)) % 16
        ctl = "quad_perm:[0,1,2,3]" if n == 0 else f"row_ror:{n}"
        e(f"  v_mov_b32_dpp v{AD+4*mp+r}, v{src} {ctl} row_mask:0xf bank_mask:{hex(1<<r)}")
    if mp >= 1:
        m = mp - 1; c = "0" if m == 0 else f"v[{ACC}:{ACC+3}]"
        e(f"  v_mfma_f32_16x16x32_bf16 v[{ACC}:{ACC+3}], v[{AD+4*m}:{AD+4*m+3}], v[{WD+4*m}:{WD+4*m+3}], {c}")
e("  s_nop 0")
e(f"  v_mfma_f32_16x16x32_bf16 v[{ACC}:{ACC+3}], v[{AD+28}:{AD+31}], v[{WD+28}:{WD+31}], v[{ACC}:{ACC+3}]")
e("  s_cselect_b32 exec_lo, 0x00ff00ff, -1"); e("  s_cselect_b32 exec_hi, 0x00ff00ff, -1"); e("  s_nop 5")
cm("4 sums (top 24 bits each) + tag in 16 bytes")
for j in range(3): e(f"  v_perm_b32 v{20+j}, v{ACC+j}, v{ACC+3}, s{56+j}")
e("  buffer_store_dwordx4 v[20:23], v7, s[16:19], s36 offen" + HS)
GATH = AMP and int(AMP.split(",")[0]) >= 30
if GATH:
    e("  s_memrealtime s[90:91]"); e("  s_waitcnt lgkmcnt(0)")
    e("  s_mov_b64 exec, 1"); e("  v_mov_b32 v24, s90"); e("  v_mov_b32 v25, s64"); e("  v_mov_b32 v26, v23"); e("  v_mov_b32 v27, 0")
    e("  s_lshl_b32 s92, s2, 3"); e("  s_add_u32 s92, s92, s3"); e("  s_lshl_b32 s92, s92, 4"); e("  s_add_u32 s92, s92, 0xd0000")
    e("  buffer_store_dwordx4 v[24:27], v27, s[16:19], s92 offen sc1")
    e("  s_cmp_eq_u32 s3, 4")
if STAMP:
    e("  s_cbranch_scc1 L_S6"); stamp(6); e("  s_branch L_FIN"); e("L_S6:"); stamp(2)
else: e("  s_cbranch_scc0 L_FIN")
if LATEC == 1: e("  s_mov_b64 exec, -1"); copy_stores(CW)
e("  s_cmp_ge_u32 s46, 72"); e(f"  s_cbranch_scc1 {'L_WC' if LATEC == 2 else 'L_FIN'}")
cm("---------------------------------------------------------------- 72 waves: sum over the 144 WGs, write the routed rows")
e("  s_mov_b64 exec, -1"); e("  ds_read_u16_d16_hi v35, v33"); e(f"  s_mov_b32 s61, {SPIN}")
e("  s_waitcnt vmcnt(0)")
stamp(6)
if RSL: e(f"  s_sleep {RSL}")
def rload(t): e(f"  buffer_load_dwordx4 v[{R0+4*t}:{R0+3+4*t}], v34, s[16:19], s{80+t} offen" + HL)
def racc(t):
    r = R0 + 4*t
    e(f"  v_perm_b32 v{r+3}, v{r+1}, v{r}, s41"); e(f"  v_perm_b32 v{r+3}, v{r+2}, v{r+3}, s42")
    if t:
        e(f"  v_pk_add_f32 v[{R0}:{R0+1}], v[{R0}:{R0+1}], v[{r}:{r+1}]"); e(f"  v_pk_add_f32 v[{R0+2}:{R0+3}], v[{R0+2}:{R0+3}], v[{r+2}:{r+3}]")
def rchain(extra, lab):
    for t in range(9):
        if lab: e(f"L_R{t}:")
        e(f"  s_waitcnt vmcnt({8-t+extra})"); e(f"  v_cmp_ne_u32 vcc, s47, v{R0+4*t+3}"); e(f"  s_cbranch_vccnz L_RR{t}")
        if lab: e(f"L_RA{t}:")
        racc(t)
for t in range(9): rload(t)
if LATEC == 2:
    copy_stores(CW); e("  s_mov_b64 exec, -1")
    rchain(9, False)
    e("L_RD:")
else:
    rchain(0, True)
if not O("nored5", 0): stamp(5)
e("  s_nop 1"); e(f"  v_permlane32_swap_b32 v{R0}, v{R0+2}"); e(f"  v_permlane32_swap_b32 v{R0+1}, v{R0+3}")
e(f"  v_add_f32 v{R0}, v{R0}, v{R0+2}"); e(f"  v_add_f32 v{R0+1}, v{R0+1}, v{R0+3}"); e("  s_nop 1")
e(f"  v_permlane16_swap_b32 v{R0}, v{R0+1}"); e(f"  v_add_f32 v{R0}, v{R0}, v{R0+1}"); e("  s_nop 1")
e(f"  v_add_f32_dpp v{R0}, v{R0}, v{R0} row_ror:4 {DPPM}"); e("  s_nop 1"); e(f"  v_add_f32_dpp v{R0}, v{R0}, v{R0} row_ror:8 {DPPM}")
e(f"  v_cvt_pk_bf16_f32 v16, v{R0}, v{R0}"); e("  v_and_b32 v16, 0xffff0000, v16"); e("  v_mul_f32 v16, v16, v32")
e("  v_cvt_pk_bf16_f32 v16, v16, v16"); e("  v_and_b32 v16, 0xffff0000, v16"); e("  s_waitcnt lgkmcnt(0)")
e("  v_add_f32 v16, v16, v35"); e("  v_cvt_pk_bf16_f32 v16, v16, v16")
e("  s_mov_b32 exec_lo, 0x000f000f"); e("  s_mov_b32 exec_hi, 0x000f000f")
e("  buffer_store_short v16, v29, s[20:23], s50 offen" + CFN)
e("  s_cmp_lg_u32 s46, 0"); e("  s_cbranch_scc1 L_FIN")
e("  s_mov_b64 exec, 1", "every reader of d_ws[0] is behind the sums seen here"); e("  v_mov_b32 v16, s47"); e(f"  v_mov_b32 v17, {WS_E}")
e("  buffer_store_dword v16, v17, s[16:19], 0 offen" + CFN)
e("L_FIN:"); stamp_flush(); e("L_END:"); e("  s_endpgm")
if LATEC == 2:
    e("L_WC:"); e("  s_mov_b64 exec, -1"); e("  s_branch L_XH2")
    rchain(0, True); e("  s_branch L_RD")
for t in range(9):
    e(f"L_RR{t}:"); e("  s_sub_u32 s61, s61, 1"); e(f"  s_cbranch_scc1 L_RA{t}")
    for t2 in range(t, 9): rload(t2)
    e(f"  s_branch L_R{t}")
cm("---------------------------------------------------------------- prefetch waves: one word per 128-byte line")
e("#MARK H0"); e("L_HELP:")
e(f"  s_sub_u32 s28, s2, {NWT}"); e("  s_and_b32 s29, s28, 7"); e("  s_lshr_b32 s28, s28, 3")
e("  s_and_b32 s33, s3, 1"); e("  s_mul_i32 s33, s33, 288"); e(f"  s_mul_i32 s32, s28, {HR}"); e("  s_add_u32 s32, s32, s33")
e(f"  s_add_u32 s32, s32, {32*N0}"); e("  s_mul_i32 s32, s32, 9216"); e("  s_mul_i32 s34, s29, 1152"); e("  s_add_u32 s32, s32, s34")
e("  v_mul_u32_u24 v3, 0x1c72, v0"); e("  v_lshrrev_b32 v3, 16, v3", "lane / 9"); e("  v_mul_u32_u24 v4, 9, v3"); e("  v_sub_u32 v4, v0, v4")
e("  v_mul_u32_u24 v3, 9216, v3"); e("  v_lshl_add_u32 v3, v4, 7, v3")
if HA:
    cm("the column block whose lines fill only half of a CU's L1 (byte column 384 mod 1024): all its rows first")
    e("  s_and_b32 s36, s3, 1"); e("  s_lshl1_add_u32 s36, s28, s36"); e(f"  s_mul_i32 s36, s36, {21*9216}")
    e("  s_cmp_ge_u32 s29, 4"); e("  s_addc_u32 s37, s29, 0"); e("  s_lshl_b32 s37, s37, 10"); e("  s_add_u32 s36, s36, s37"); e("  s_add_u32 s36, s36, 384")
    e("  v_cmp_lt_u32 vcc, 20, v0"); e("  v_mul_u32_u24 v5, 9216, v0"); e(f"  v_subrev_u32 v6, {21*9216 - 1024}, v5"); e("  v_cndmask_b32 v5, v5, v6, vcc")
    e("  s_cmp_eq_u32 s29, 3"); e("  s_cselect_b32 s37, 42, 21")
e("  s_lshl2_add_u32 s28, s28, s3")
e(f"  s_mul_i32 s29, s29, {5184*128}")
if RP: e(f"  s_add_u32 s29, s29, {RP*8192}")
e("  v_lshlrev_b32 v2, 7, v0")
nr = -(-(288 - 32*N0) // (NH*HR))
assert nr - HG >= 1
e(f"  s_mov_b32 s30, {nr-HG}")
e("  s_cmp_ge_u32 s3, 2"); e("  s_waitcnt lgkmcnt(0)")
e("  s_cselect_b32 s8, s26, s24"); e("  s_cselect_b32 s9, s27, s25")
if O("tw", 0):
    e("  s_load_dword s40, s[12:13], 0", "first touch of w_down and d_out: address translation only")
    e("  s_load_dword s41, s[20:21], 0")
if HA:
    e("  s_bfm_b64 exec, s37, 0"); e(f"  buffer_load_dword v{DUM}, v5, s[8:11], s36 offen")
e(f"  s_bfm_b64 exec, {9*HR}, 0")
for r in range(HG):
    e(f"  buffer_load_dword v{DUM}, v3, s[8:11], s32 offen" + GNT); e(f"  s_add_u32 s32, s32, {NH*HR*9216}")
CPS = 9 - 2*RP
def wchunk(wait):
    if O("wil", 0):
        e(f"  s_mul_hi_u32 s31, s28, {(2**32 + 17)//18}"); e("  s_mul_i32 s35, s31, 18"); e("  s_sub_u32 s35, s28, s35")
    else:
        e(f"  s_mul_hi_u32 s35, s28, {(2**32 + CPS - 1)//CPS}"); e(f"  s_mul_i32 s31, s35, {CPS}"); e("  s_sub_u32 s31, s28, s31")
    e("  s_mul_i32 s35, s35, 36864"); e("  s_lshl_b32 s31, s31, 12"); e("  s_add_u32 s35, s35, s31"); e("  s_add_u32 s35, s35, s29")
    if wait: e(f"  s_waitcnt vmcnt({HT-1})")
    e(f"  buffer_load_dword v{DUM}, v2, s[12:15], s35 offen" + PNT)
    e("  s_add_u32 s28, s28, 56")
if not UNG: e("  s_barrier")
stamp(1)
if HWF:
    e("  s_bfm_b64 exec, 32, 0")
    for _ in range(HWF): wchunk(False)
    e(f"  s_bfm_b64 exec, {9*HR}, 0")
e("L_HGL:"); e(f"  s_waitcnt vmcnt({HT-1+HX})"); e(f"  buffer_load_dword v{DUM}, v3, s[8:11], s32 offen" + GNT)
e(f"  s_add_u32 s32, s32, {NH*HR*9216}"); e("  s_sub_u32 s30, s30, 1"); e("  s_cmp_lg_u32 s30, 0"); e("  s_cbranch_scc1 L_HGL")
if O("gul", 0): e("  s_waitcnt vmcnt(0)")
stamp(2)
if WE == 4:
    e("  s_bfm_b64 exec, 36, 0")
    e("L_HWL:")
    e("  s_mul_i32 s35, s28, 9216"); e("  s_add_u32 s35, s35, s29"); e("  s_add_u32 s35, s35, 4608")
    e(f"  s_waitcnt vmcnt({HT-1})"); e(f"  buffer_load_dword v{DUM}, v2, s[12:15], s35 offen" + PNT)
    e("  s_add_u32 s28, s28, 56"); e("  s_cmp_lt_u32 s28, 72"); e("  s_cbranch_scc1 L_HWL")
elif WE < 8:
    e("  s_bfm_b64 exec, 32, 0")
    e("L_HWL:")
    wchunk(not O("hwn", 0))
    e(f"  s_cmp_lt_u32 s28, {18*CPS}"); e("  s_cbranch_scc1 L_HWL")
if UNG: e("  s_barrier")
e("  s_waitcnt vmcnt(0)"); e("  s_barrier"); e("  s_branch L_FIN")
e("#MARK H1"); e("L_CODE_END:")
cm("rare path: x + x*0 turns an infinity into a NaN")
for n in range(1, ncopy+1):
    e(f"L_FIX{n}:"); e(f"  s_mov_b32 s98, {n}"); e("  s_branch L_FIX")
e("L_FIX:"); e("  s_mov_b32 s29, 0x07060302")
for j in range(36):
    r = XR + j
    e(f"  v_lshlrev_b32 v12, 16, v{r}"); e(f"  v_and_b32 v13, 0xffff0000, v{r}"); e("  v_fma_f32 v12, v12, 0, v12"); e("  v_fma_f32 v13, v13, 0, v13")
    e(f"  v_perm_b32 v{r}, v13, v12, s29")
e("  s_cmp_eq_u32 s98, 1"); e("  s_cbranch_scc1 L_FIXR1"); e("  s_branch L_FIXR2")
e('.section .rodata,"a"'); e(".p2align 6"); e(f".amdhsa_kernel {K}")
e("  .amdhsa_next_free_vgpr 200"); e("  .amdhsa_next_free_sgpr 102"); e("  .amdhsa_accum_offset 200")
e("  .amdhsa_group_segment_fixed_size 0"); e("  .amdhsa_kernarg_size 64"); e("  .amdhsa_user_sgpr_count 2")
e("  .amdhsa_user_sgpr_kernarg_segment_ptr 1"); e("  .amdhsa_system_sgpr_workgroup_id_x 1"); e("  .amdhsa_float_denorm_mode_32 3")
e(".end_amdhsa_kernel")
def cut(a, b):
    i = out.index("#MARK " + a); j = out.index("#MARK " + b)
    blk = out[i+1:j]; del out[i:j+1]; return blk
blk = []
if NEAR & 2:
    h = cut("H0", "H1")
    if not NEAR & 1:
        pass
    blk += h
if NEAR & 1: blk = cut("C0", "C1") + blk
i = out.index("#MARK XINIT"); out[i:i+1] = blk
out = [l for l in out if not l.startswith("#MARK")]
if not NEAR: out = [l for l in out if l not in ("L_X2:", "L_C2:")]
open(sys.argv[1], "w").write("\n".join(out) + "\n")
```

```python
import sys
NAME = "standalone__moe_arch_mod__prompt"
S, D, F = 2048, 576, 4608
XB = S*D*2
WB = D*F*2
opts = dict(a.split("=") for a in sys.argv[2:] if "=" in a)
def O(k, d): return int(opts.get(k, d))
STAMP = O("stamp", 0); AMP = opts.get("amp"); FINE = O("fine", 0)
if AMP: STAMP = 1
GS = O("gs", 64); REP = O("rep", 4); RS = 256*GS
LG = {16: 0, 32: 1, 64: 2}[GS]; LR = {1: 0, 2: 1, 4: 2, 8: 3}[REP]; NL = REP*GS//16
assert NL <= 16
WS_E = 0; WS_GRAN = 4096; WS_SLAB = 4096 + REP*RS; WS_SIZE = 1 << 20; WS_STAMP = 1 << 21
N0 = O("n0", 2); W1 = O("w1", 4); W2 = O("w2", 4); WE = O("we", 0); PB = O("pb", 7); RP = O("rp", 0)
HR = O("hr", 4); HT = O("ht", 2); HG = O("hg", 1)
PSL = O("psl", 2); SPIN = O("spin", 200000); RSL = O("rsl", 0)
CFN = {0: "", 1: " sc1", 2: " sc0 sc1"}[O("cf", 0)]; WNT = " nt" if O("wnt", 0) else ""; PNT = " nt" if O("pnt", 0) else ""; GNT = " nt" if O("gnt", 0) else ""; XNT = " nt" if O("xnt", 0) else ""; LATEC = O("latec", 1); FL = {0: "", 1: " sc1", 2: " sc0 sc1", 3: " sc1 nt", 4: " nt"}; HS = FL[O("hs", 1)]; HL = FL[O("hl", 1)]; CW = FL[O("cw", 1)]; CH = FL[O("ch", 1)]; WD4E = O("wd4e", 1); NEAR = O("near", 0); UNG = O("ung", 0); HA = O("ha", 0); HWF = O("hwf", 0); HX = O("hx", 0); EFS = O("efs", 1); LOWP = O("lowp", 1); CPRIO = O("cprio", 0)
NWT = 144; NH = 14
out = []
def e(s="", c=None): out.append(s if c is None else f"{s:<72}; {c}")
def cm(s): out.append("; " + s)
def stamp(i, wait=False):
    if STAMP and (i in (0, 7) or not FINE):
        e(f"  s_memrealtime s[{64+2*i}:{65+2*i}]")
        if wait: e("  s_waitcnt lgkmcnt(0)")
def fs(i, wait=False):
    if FINE:
        e(f"  s_memtime s[{64+2*i}:{65+2*i}]")
        if wait: e("  s_waitcnt lgkmcnt(0)")
def stamp_flush():
    if AMP:
        A, B, KK, WV, WG = map(int, AMP.split(","))
        if O("endw", 0): e("  s_waitcnt vmcnt(0)")
        stamp(7, True)
        e(f"  s_cmp_lg_u32 s2, {WG}"); e("  s_cbranch_scc1 L_AMPX")
        e(f"  s_cmp_lg_u32 s3, {WV}"); e("  s_cbranch_scc1 L_AMPX")
        if A >= 30:
            e("  s_sleep 60"); e("  s_mov_b64 exec, -1"); e("  v_lshlrev_b32 v1, 4, v0"); e("  v_mov_b32 v2, 0x80000000"); e("  v_mov_b32 v3, 0")
            for i in range(18):
                e(f"  s_mov_b32 s92, {0xd0000 + 1024*i}")
                e("  buffer_load_dwordx4 v[24:27], v1, s[16:19], s92 offen sc1"); e("  s_waitcnt vmcnt(0)")
                if A in (30, 31, 32, 35): e("  v_subrev_u32 v24, s64, v24")
                elif A == 33: e("  v_sub_u32 v24, v24, v25")
                else: e("  v_subrev_u32 v24, s64, v25")
                e("  v_lshlrev_b32 v24, 12, v24"); e(f"  v_add_u32 v25, {64*i}, v0"); e("  v_or_b32 v24, v24, v25")
                e("  v_cmp_eq_u32 vcc, s47, v26"); e("  s_nop 1"); e("  v_cndmask_b32 v24, v2, v24, vcc"); e("  v_max_i32 v3, v3, v24" if i else "  v_mov_b32 v3, v24")
            for ctl in ("quad_perm:[1,0,3,2] row_mask:0xf bank_mask:0xf", "quad_perm:[2,3,0,1] row_mask:0xf bank_mask:0xf", "row_ror:4 row_mask:0xf bank_mask:0xf", "row_ror:8 row_mask:0xf bank_mask:0xf",
                        "row_bcast:15 row_mask:0xa bank_mask:0xf", "row_bcast:31 row_mask:0xc bank_mask:0xf"):
                e("  s_nop 1"); e(f"  v_max_i32_dpp v3, v3, v3 {ctl}")
            e("  s_nop 1"); e("  v_readlane_b32 s60, v3, 63")
            if A in (30, 33, 34): e("  s_ashr_i32 s60, s60, 12")
            elif A == 31: e("  s_bfe_u32 s60, s60, 0x30003")
            elif A == 32: e("  s_and_b32 s60, s60, 7")
            else: e("  s_bfe_u32 s60, s60, 0x50006")
            e("  s_memrealtime s[78:79]"); e("  s_waitcnt lgkmcnt(0)")
        else:
            e(f"  s_sub_u32 s60, s{64+2*B}, s{64+2*A}")
        e(f"  s_mul_i32 s60, s60, {KK}")
        e("L_AMP:"); e("  s_memrealtime s[62:63]"); e("  s_waitcnt lgkmcnt(0)"); e("  s_sub_u32 s62, s62, s78")
        e("  s_cmp_lt_u32 s62, s60"); e("  s_cbranch_scc1 L_AMP"); e("L_AMPX:")
    elif STAMP:
        if FINE: e("  s_memtime s[78:79]"); e("  s_waitcnt lgkmcnt(0)")
        else: stamp(7, True)
        e("  s_mov_b64 exec, 1")
        e("  s_lshl_b32 s60, s2, 3"); e("  s_add_u32 s60, s60, s3"); e("  s_lshl_b32 s60, s60, 6")
        e(f"  s_add_u32 s60, s60, {WS_STAMP}"); e("  s_mov_b32 s18, 0x1000000"); e("  v_mov_b32 v1, 0")
        for j in range(4):
            for k in range(4): e(f"  v_mov_b32 v{4+k}, s{64+4*j+k}")
            e(f"  buffer_store_dwordx4 v[4:7], v1, s[16:19], s60 offen offset:{16*j}"); e("  s_nop 1")

hdr = open('cdna_kernels/%s.s.ref' % NAME).read().split('\n')
for l in hdr:
    if l.startswith('; @launch'): break
    e(l)
XIMG = 73728; TAGL = XIMG + 2304; TEX = XIMG + 3072; WRIMG = TEX + 1024; LDS = 83968
e(f"; @launch grid=(256,1,1) block=(320,1,1) lds={LDS}")
DOC = """
One launch, 256 workgroups of 5 waves, one per CU (LDS and VGPR use allow one).
 role 4 (wave 0), every WG : 8 rows of x -> router scores -> local top-2 -> tagged granule in d_ws,
                             later the copy of its rows that were not routed.
 WGs 0..143, roles 0..3    : 32 columns of w_gate / w_up (LDS-DMA, transposing LDS reads, MFMA),
                             SwiGLU, the matching 32 rows of w_down (MFMA), tagged partial sums in d_ws.
 WGs 0..143, role 4        : gathers the 256 granules, global top-2, brings both rows into LDS;
                             72 of them add up the 144 partial sums of 8 columns and write the routed rows.
 WGs 144..255, roles 0..3  : pull weight lines into the L2 that the weight WGs with the same id mod 8
                             are expected to share (speed only, nothing depends on it).
 Hand-offs between WGs are 16-byte pieces that carry a tag, written and read with sc1.
 tag = d_ws[0] + 0x01010101; d_ws[0] is set to the tag at the end, so it differs from launch to launch.
"""
for l in DOC.strip("\n").split("\n"): cm(l)
e('.amdgcn_target "amdgcn-amd-amdhsa--gfx950"'); e(".text")
K = NAME + "_kernel"
e(f".globl {K}"); e(".p2align 8"); e(f".type {K},@function"); e(f"{K}:")
DPPM = "row_mask:0xf bank_mask:0xf"
AF = 12; BF = 48; ACC = 120; WD = 128; AD = 160; XR = 84; WR = 48; R0 = 48
VXW = 192; VA2 = 193; VTAG = 194; DUMC = 196; DUM = 197
QS = 16*9216

def slice_calc():
    e("  s_and_b32 s45, s2, 7"); e("  s_mul_i32 s45, s45, 18"); e("  s_lshr_b32 s44, s2, 3")
    e("  s_add_u32 s45, s45, s44", "slice: neighbours are 8 ids apart")
def setup0():
    e("  v_and_b32 v2, 15, v0"); e("  v_lshrrev_b32 v3, 4, v0")
    e("  v_mul_u32_u24 v4, 9216, v3"); e("  v_lshl_add_u32 v4, v2, 4, v4", "w_down: row 8g, 16-byte chunk c")
    e(f"  s_mul_i32 s34, s45, {32*1152}"); e("  s_lshl_b32 s35, s3, 8"); e("  s_add_u32 s34, s34, s35"); e("  s_add_u32 s35, s34, 4608")
def setup1():
    e("  v_lshrrev_b32 v5, 2, v2"); e("  v_lshl_add_u32 v5, v3, 3, v5"); e("  v_and_b32 v6, 1, v0"); e("  v_lshl_add_u32 v5, v6, 2, v5")
    e("  v_lshlrev_b32 v5, 3, v5"); e("  v_and_b32 v6, 2, v0"); e("  v_lshl_add_u32 v5, v6, 1, v5")
    e(f"  v_add_u32 v5, {TEX}, v5", "exchange table: this lane's (f, token)")
    e("  v_and_b32 v6, 1, v0"); e("  v_cmp_eq_u32 vcc, 1, v6"); e("  v_mov_b32 v6, 0xffff"); e("  v_mov_b32 v7, 0xffff0000")
    e("  v_cndmask_b32 v6, v6, v7, vcc", "half-word mask by lane parity")
    e("  v_lshlrev_b32 v7, 6, v2"); e("  v_lshl_add_u32 v7, v3, 4, v7", "partial-sum piece of this lane")
    e("  s_mul_i32 s36, s45, 4608"); e("  s_lshl_b32 s37, s3, 10"); e("  s_add_u32 s36, s36, s37"); e(f"  s_add_u32 s36, s36, {WS_SLAB}")
    e(f"  v_mov_b32 v{VTAG}, {TAGL}")
    e("  s_mov_b32 s56, 0x07060501"); e("  s_mov_b32 s57, 0x07060502"); e("  s_mov_b32 s58, 0x07060503")
    for j in range(0, 32, 2): e(f"  v_mov_b64 v[{AD+j}:{AD+j+1}], 0")
def wd_load(mp): e(f"  buffer_load_dwordx4 v[{WD+4*mp}:{WD+4*mp+3}], v4, s[12:15], s{34+(mp>>2)} offen offset:{1152*(mp&3)}" + WNT)
ncopy = 0
def copy_stores(fl=""):
    global ncopy
    ncopy += 1
    e("  s_and_b32 s38, s32, 0xffff"); e("  s_and_b32 s39, s33, 0xffff")
    e("  v_cmp_ne_u32 s[52:53], s38, v11"); e("  v_cmp_ne_u32 s[54:55], s39, v11")
    e("  s_and_b64 exec, s[52:53], s[54:55]", "rows that are not routed")
    e("  s_cmp_lg_u64 s[96:97], 0"); e(f"  s_cbranch_scc1 L_FIX{ncopy}"); e(f"L_FIXR{ncopy}:")
    for i in range(9): e(f"  buffer_store_dwordx4 v[{XR+4*i}:{XR+4*i+3}], v10, s[20:23], s28 offen offset:{128*i}{fl}")

if STAMP:
    for i in range(2, 16): e(f"  s_mov_b32 s{64+i}, 0")
stamp(0)
cm("SRDs: x s[4:7], w_r or w_gate/w_up s[8:11], w_down s[12:15], d_ws s[16:19], d_out s[20:23]")
e("  s_load_dwordx2 s[4:5], s[0:1], 0"); e("  s_load_dwordx2 s[8:9], s[0:1], 8"); e("  s_load_dwordx2 s[16:17], s[0:1], 56")
e("  s_load_dwordx4 s[24:27], s[0:1], 16"); e("  s_load_dwordx2 s[12:13], s[0:1], 32"); e("  s_load_dwordx2 s[20:21], s[0:1], 40")
e("  s_getpc_b64 s[28:29]", "read one word of every line of the code: it lands in L2"); e("L_PC:")
e("  v_lshlrev_b32 v2, 7, v0"); e("  v_cmp_gt_u32 vcc, (L_CODE_END-L_PC+127)/128, v0")
e("  s_and_saveexec_b64 s[30:31], vcc"); e("  s_cbranch_execz L_NOPF")
e(f"  global_load_dword v{DUMC}, v2, s[28:29]"); e("L_NOPF:"); e("  s_mov_b64 exec, -1")
e("  v_lshrrev_b32 v1, 6, v0"); e("  v_and_b32 v0, 63, v0"); e("  v_readfirstlane_b32 s3, v1")
e("  s_cmp_ge_u32 s2, 256"); e("  s_cbranch_scc1 L_END")
e("  s_sub_u32 s3, s3, 1", "role: wave 0 -> 4, wave k -> k-1"); e("  s_cselect_b32 s3, 4, s3")
for r, v in ((6, XB), (7, "0x20000"), (11, "0x20000"), (14, WB), (15, "0x20000"), (18, WS_SIZE), (19, "0x20000"), (22, XB), (23, "0x20000")):
    e(f"  s_mov_b32 s{r}, {v}")
if NEAR == 2:
    e(f"  s_mov_b32 s10, {WB}"); e("  s_cmp_eq_u32 s3, 4"); e("  s_cbranch_scc1 L_X1")
    e(f"  s_cmp_ge_u32 s2, {NWT}"); e("  s_cbranch_scc1 L_HELP"); e("  s_branch L_NOTX"); e("L_X1:")
else:
    e("  s_cmp_lg_u32 s3, 4"); e("  s_cbranch_scc1 L_NOTX")
cm("---------------------------------------------------------------- role 4: router scores of 8 rows")
e("  s_setprio 3")
e(f"  s_mov_b32 s10, {D*2}"); e(f"  s_mov_b32 m0, {WRIMG}")
e("  v_lshlrev_b32 v8, 4, v0"); e("  v_and_b32 v1, 0x70, v8"); e("  v_lshrrev_b32 v9, 3, v0")
e("  v_mul_u32_u24 v10, 1152, v9"); e("  v_add_u32 v10, v10, v1", "8 lanes per row"); e("  s_mul_i32 s28, s2, 9216")
e("  s_waitcnt lgkmcnt(0)")
e(f"  s_load_dword s47, s[16:17], {WS_E}")
e("  buffer_load_dwordx4 v8, s[8:11], 0 offen lds", "w_r -> LDS"); e("  s_mov_b64 exec, 0xff")
e("  buffer_load_dwordx4 v8, s[8:11], 0 offen offset:1024 lds"); e("  s_mov_b64 exec, -1")
for i in range(9): e(f"  buffer_load_dwordx4 v[{XR+4*i}:{XR+4*i+3}], v10, s[4:7], s28 offen offset:{128*i}" + XNT)
if NEAR: e("  s_branch L_X2")
e("#MARK XINIT"); e("L_X2:")
e(f"  v_add_u32 v1, {WRIMG}, v1")
e("  s_lshl_b32 s29, s2, 3"); e("  s_sub_u32 s29, 2047, s29"); e("  v_sub_u32 v11, s29, v9", "2047 - row"); e("  s_mov_b32 s30, 0xffff0000")
e(f"  s_and_b32 s29, s2, {REP-1}"); e(f"  s_mul_i32 s27, s29, {RS}"); e(f"  s_add_u32 s27, s27, {WS_GRAN}", "the copy of the granules this WG reads")
for j in range(1, 4): e(f"  s_add_u32 s{47+j}, s27, {64*GS*j}")
e("  s_and_b32 s29, s2, 7"); e("  s_lshl_b32 s29, s29, 5"); e("  s_lshr_b32 s31, s2, 3"); e("  s_add_u32 s29, s29, s31")
e(f"  s_mul_i32 s29, s29, {GS}"); e(f"  s_add_u32 s31, s29, {WS_GRAN}", "own granule")
e(f"  v_mul_u32_u24 v44, {GS}, v0")
for j in range(4): e(f"  v_mov_b32 v{12+j}, 0")
e("  v_bfrev_b32 v22, 1")
e(f"  v_bfe_u32 v21, v0, {LG}, {LR}"); e(f"  v_mul_u32_u24 v21, {RS}, v21"); e(f"  v_and_b32 v19, {GS//16-1}, v0"); e("  v_lshl_add_u32 v21, v19, 4, v21")
e(f"  s_mov_b32 s61, {SPIN}"); e(f"  v_mov_b32 v45, {TAGL}")
e("  s_waitcnt vmcnt(9) lgkmcnt(0)")
for i in range(9): e(f"  ds_read_b128 v[{WR+4*i}:{WR+4*i+3}], v1 offset:{128*i}")
e("  s_add_u32 s47, s47, 0x01010101", "tag of this launch"); e("  v_mov_b32 v18, s47")
for i in range(9):
    e(f"  s_waitcnt vmcnt({8-i}) lgkmcnt({8-i})")
    for j in range(4): e(f"  v_dot2c_f32_bf16 v{12+j}, v{XR+4*i+j}, v{WR+4*i+j}")
e("  s_nop 1")
e("  v_add_f32 v12, v12, v13"); e("  v_add_f32 v14, v14, v15"); e("  v_add_f32 v12, v12, v14")
e("  s_movk_i32 s29, 0x207"); e("  v_cmp_class_f32 s[96:97], v12, s29", "lanes that hold an inf or a NaN")
e(f"  v_add_f32_dpp v12, v12, v12 quad_perm:[1,0,3,2] {DPPM}"); e("  s_nop 1")
e(f"  v_add_f32_dpp v12, v12, v12 quad_perm:[2,3,0,1] {DPPM}"); e("  s_nop 1")
e(f"  v_add_f32_dpp v12, v12, v12 row_half_mirror {DPPM}")
cm("key = order-preserving bf16 score << 16 | 2047 - row; NaN sorts last")
e("  v_cvt_pk_bf16_f32 v13, v12, v12"); e("  v_cmp_u_f32 vcc, v12, v12"); e("  v_ashrrev_i32 v14, 31, v13")
e("  v_bitop3_b32 v13, v13, v14, v22 bitop3:0x1e"); e("  v_cndmask_b32 v13, v13, 0, vcc"); e("  v_and_or_b32 v13, v13, s30, v11")
e("  s_nop 1")
e(f"  v_max_u32_dpp v16, v13, v13 row_ror:8 {DPPM}"); e(f"  v_min_u32_dpp v17, v13, v13 row_ror:8 {DPPM}"); e("  s_nop 0")
for ctl in ("row_bcast:15 row_mask:0xa bank_mask:0xf", "row_bcast:31 row_mask:0xc bank_mask:0xf"):
    e(f"  v_min_u32_dpp v14, v16, v16 {ctl}"); e(f"  v_max_u32_dpp v16, v16, v16 {ctl}")
    e(f"  v_max_u32_dpp v15, v17, v17 {ctl}"); e("  v_max_u32 v17, v14, v15")
e(f"  s_lshl_b64 exec, {hex((1 << NL) - 1)}, 48", f"lanes 48..63 hold the pair: {REP} copies x {GS} bytes")
e("  buffer_store_dwordx4 v[16:19], v21, s[16:19], s31 offen" + HS)
stamp(3)
e(f"  s_cmp_lt_u32 s2, {NWT}"); e("  s_cbranch_scc1 L_XG"); e("  s_barrier", "prefetch WG: let the other waves fill the queue"); e("L_XG:")
e("  ds_write_b32 v45, v18"); e("  s_mov_b64 exec, -1")
slice_calc(); setup0(); setup1()
e(f"  s_cmp_ge_u32 s2, {NWT}"); e("  s_cbranch_scc1 L_XH")
def wd4():
    e("  s_mov_b32 exec_lo, 0x00ff00ff", "columns 512..575 of w_down"); e("  s_mov_b32 exec_hi, 0x00ff00ff")
    for mp in range(8): wd_load(mp)
    e("  s_mov_b64 exec, -1")
if WD4E: wd4()
if RP:
    e("  v_lshlrev_b32 v46, 7, v0"); e(f"  s_mul_i32 s29, s45, {32*1152}")
    for r in range(RP):
        e(f"  buffer_load_dword v{DUM}, v46, s[12:15], s29 offen" + PNT)
        if r < RP-1: e("  s_add_u32 s29, s29, 8192")
e("  s_waitcnt vmcnt(0)")
if O("nored5", 0): stamp(5)
e("L_P1:")
if O("lsl", 0): e(f"  s_sleep {O('lsl', 0)}", "back off before every read of the granules")
b = 48
for j in range(4): e(f"  buffer_load_dwordx4 v[{b+4*j}:{b+3+4*j}], v44, s[16:19], s{27 if j == 0 else 47+j} offen" + HL)
e("  s_waitcnt vmcnt(0)")
e(f"  v_cmp_ne_u32 vcc, s47, v{b+2}"); e(f"  v_cmp_ne_u32 s[32:33], s47, v{b+6}")
e(f"  v_cmp_ne_u32 s[38:39], s47, v{b+10}"); e(f"  v_cmp_ne_u32 s[40:41], s47, v{b+14}")
e("  s_or_b64 vcc, vcc, s[32:33]"); e("  s_or_b64 s[38:39], s[38:39], s[40:41]"); e("  s_or_b64 vcc, vcc, s[38:39]")
e("  s_cbranch_scc0 L_PT")
if not O("lsl", 0): e(f"  s_sleep {PSL}", "some granule is missing: back off and read again")
e("  s_sub_u32 s61, s61, 1"); e("  s_cbranch_scc0 L_P1")
e("  .p2align 3"); e("L_PT:")
def merge(a1, a2, b1, b2, o1, o2, t):
    e(f"  v_min_u32 v{t}, v{a1}, v{b1}"); e(f"  v_max_u32 v{o1}, v{a1}, v{b1}"); e(f"  v_max3_u32 v{o2}, v{t}, v{a2}, v{b2}")
merge(b, b+1, b+4, b+5, 40, 41, 12); merge(b+8, b+9, b+12, b+13, 42, 43, 13); merge(40, 41, 42, 43, 40, 41, 12)
e("  s_nop 0")
for ctl in (f"quad_perm:[1,0,3,2] {DPPM}", f"quad_perm:[2,3,0,1] {DPPM}", f"row_ror:4 {DPPM}", f"row_ror:8 {DPPM}",
            "row_bcast:15 row_mask:0xa bank_mask:0xf", "row_bcast:31 row_mask:0xc bank_mask:0xf"):
    e(f"  v_min_u32_dpp v12, v40, v40 {ctl}"); e(f"  v_max_u32_dpp v40, v40, v40 {ctl}")
    e(f"  v_max_u32_dpp v13, v41, v41 {ctl}"); e("  v_max_u32 v41, v12, v13")
e("  v_cmp_gt_u32 vcc, 8, v0"); e("  v_readlane_b32 s32, v40, 63", "global top-2 keys"); e("  v_readlane_b32 s33, v41, 63")
e(f"  s_cmp_ge_u32 s2, {NWT}"); e("  s_cbranch_scc1 L_XH2")
e("  s_and_b32 s38, s32, 0x7ff"); e("  s_and_b32 s39, s33, 0x7ff"); e("  s_sub_u32 s38, 2047, s38"); e("  s_sub_u32 s39, 2047, s39")
e("  s_mul_i32 s38, s38, 1152"); e("  s_mul_i32 s39, s39, 1152"); e(f"  s_mov_b32 m0, {XIMG}"); e("  s_sub_u32 s40, s39, 128")
e("  buffer_load_dwordx4 v8, s[4:7], s38 offen lds", "both routed rows -> LDS [2][1152 B]")
e("  s_add_u32 s41, s38, 1024"); e("  v_mov_b32 v12, s40"); e("  v_mov_b32 v13, s41"); e("  s_addk_i32 m0, 0x400")
e("  v_cndmask_b32 v12, v12, v13, vcc"); e("  v_add_u32 v12, v12, v8")
e("  buffer_load_dwordx4 v12, s[4:7], 0 offen lds")
e("  s_addk_i32 m0, 0x400"); e("  s_add_u32 s40, s39, 896"); e("  s_mov_b64 exec, 0xffff")
e("  buffer_load_dwordx4 v8, s[4:7], s40 offen lds"); e("  s_mov_b64 exec, -1")
stamp(1)
def final_setup():
    cm("last stage: lane row r = lane>>4 holds token r>>1, column 8u + 2(lane&3) + (r&1)")
    e("  v_cmp_gt_u32 vcc, 32, v0"); e("  v_mov_b32 v28, s33"); e("  v_mov_b32 v29, s32"); e("  v_and_b32 v31, 3, v0")
    e("  v_cndmask_b32 v28, v28, v29, vcc"); e("  v_and_b32 v29, 0xffff, v28"); e("  v_sub_u32 v29, 2047, v29")
    e("  v_mul_u32_u24 v29, 1152, v29"); e("  v_bfe_u32 v30, v0, 4, 1"); e("  v_lshlrev_b32 v30, 1, v30")
    e("  v_lshl_add_u32 v30, v31, 2, v30"); e("  v_add_u32 v29, v29, v30")
    e("  v_not_b32 v32, v28"); e("  v_ashrrev_i32 v32, 31, v32"); e("  v_or_b32 v32, 0x80000000, v32")
    e("  v_xor_b32 v32, v32, v28"); e("  v_and_b32 v32, 0xffff0000, v32", "the bf16 score back from the key"); e("  v_mul_f32 v32, 0xbfb8aa3b, v32")
    e("  v_exp_f32 v32, v32"); e("  v_lshrrev_b32 v33, 5, v0"); e("  v_add_f32 v32, 1.0, v32"); e("  v_rcp_f32 v32, v32")
    e("  v_mul_u32_u24 v33, 1152, v33"); e("  v_cvt_pk_bf16_f32 v32, v32, v32"); e("  v_and_b32 v32, 0xffff0000, v32", "sigmoid, rounded to bf16")
    e("  s_sub_u32 s46, s45, 72", "unit u = slice - 72"); e("  s_lshl_b32 s50, s46, 4"); e(f"  s_add_u32 s51, s50, {XIMG}"); e("  v_add3_u32 v33, v33, v30, s51")
    e("  v_lshrrev_b32 v34, 2, v0"); e("  v_mul_u32_u24 v34, 4608, v34"); e("  v_lshl_add_u32 v34, v31, 4, v34")
    e("  s_lshl_b32 s80, s46, 6"); e(f"  s_add_u32 s80, s80, {WS_SLAB}")
    for t in range(1, 9): e(f"  s_add_u32 s{80+t}, s80, {16*4608*t}")
    e("  s_mov_b32 s41, 0x0c04000c"); e("  s_mov_b32 s42, 0x04020100"); e("  v_mov_b32 v35, 0")
if EFS == 2: final_setup()
e("  s_barrier", "A: the rows are requested")
if not WD4E: wd4()
if EFS == 1: final_setup()
e(f"  s_waitcnt vmcnt({0 if WD4E else 8}) lgkmcnt(0)")
stamp(4, True)
e("  s_barrier", "B: the rows are in LDS")
if LOWP: e("  s_setprio 0")
if not LATEC: copy_stores(CW); e("  s_mov_b64 exec, -1")
if EFS == 0: final_setup()
if LOWP == 2: e("  s_setprio 3")
e("  s_branch L_JOIN")
e("L_XH:"); e("  s_barrier", "the prefetch is done"); e("  s_branch L_P1")
e("L_XH2:"); copy_stores(CH); e("  s_branch L_FIN")
cm("---------------------------------------------------------------- roles 0..3: (matrix, half of K)")
e("#MARK C0"); e("L_NOTX:")
e(f"  s_mov_b32 s10, {WB}")
e(f"  s_cmp_ge_u32 s2, {NWT}"); e("  s_cbranch_scc1 L_HELP")
slice_calc(); setup0()
e("  v_lshrrev_b32 v8, 2, v0"); e("  v_mul_u32_u24 v8, 9216, v8"); e("  v_lshrrev_b32 v9, 4, v0"); e("  v_and_b32 v9, 2, v9")
e("  v_xor_b32 v9, v9, v0"); e("  v_and_b32 v9, 3, v9"); e("  v_lshl_add_u32 v8, v9, 4, v8", "16 rows x 64 B, halves swapped in rows 8..15")
e("  s_and_b32 s28, s3, 1"); e(f"  s_mul_i32 s28, s28, {288*9216}"); e("  s_lshl_b32 s29, s45, 6"); e("  s_add_u32 s28, s28, s29")
e("  s_and_b32 s42, s45, 1", "the two WGs that share the lines start on different rows")
e(f"  s_mul_i32 s29, s42, {N0*QS}"); e(f"  s_add_u32 s46, s28, {2*N0*QS}"); e(f"  s_add_u32 s43, s28, {N0*QS}")
e("  s_sub_u32 s43, s43, s29"); e("  s_add_u32 s28, s28, s29")
e("  s_mul_i32 s30, s3, 18432"); e("  s_mov_b32 m0, s30")
e("  s_cmp_ge_u32 s3, 2"); e("  s_waitcnt lgkmcnt(0)")
e("  s_cselect_b32 s8, s26, s24"); e("  s_cselect_b32 s9, s27, s25")
stamp(1)
ops = [("W", i) for i in range(WE)] + [("D", i) for i in range(18)] + [("W", i) for i in range(WE, 8)]
pos = {op: n for n, op in enumerate(ops)}
nis = 0
def issue():
    global nis
    if nis >= len(ops): return False
    k, i = ops[nis]
    if k == "D":
        if N0 and i == N0: e("  s_mov_b32 s28, s43")
        if N0 and i == 2*N0: e("  s_mov_b32 s28, s46")
        e("  buffer_load_dwordx4 v8, s[8:11], s28 offen lds")
        if i < 17: e("  s_addk_i32 m0, 0x400"); e(f"  s_add_u32 s28, s28, {QS}")
    else: wd_load(i)
    nis += 1
    return True
def vwait(op): e(f"  s_waitcnt vmcnt({nis - pos[op] - 1})")
while nis < WE + min(N0, W1): issue()
if NEAR & 1: e("  s_branch L_C2")
e("#MARK C1"); e("L_C2:")
setup1()
e("  v_lshlrev_b32 v9, 9, v3"); e("  v_bfe_u32 v10, v0, 2, 2"); e("  v_lshl_add_u32 v9, v10, 6, v9"); e("  v_and_b32 v10, 3, v0")
e("  v_lshl_add_u32 v9, v10, 3, v9"); e("  v_and_b32 v10, 1, v3"); e("  v_lshl_add_u32 v9, v10, 5, v9")
e("  v_add_u32 v9, s30, v9", "transposing reads, columns 0..15"); e("  v_xor_b32 v10, 32, v9", "columns 16..31")
e("  v_and_b32 v11, 1, v0"); e("  v_mul_u32_u24 v11, 1152, v11"); e("  v_lshl_add_u32 v11, v3, 4, v11")
e("  s_and_b32 s29, s3, 1"); e("  s_mul_i32 s29, s29, 576"); e(f"  s_add_u32 s29, s29, {XIMG}")
e(f"  s_mul_i32 s31, s42, {32*N0}")
e(f"  v_add_u32 v{VA2}, s29, v11", "x fragments"); e(f"  v_add_u32 v11, s31, v{VA2}"); e(f"  v_subrev_u32 v1, s31, v{VA2}")
e("  s_lshl_b32 s29, s3, 8"); e(f"  s_add_u32 s29, s29, {TEX}"); e(f"  v_lshl_add_u32 v{VXW}, v2, 3, s29")
def trreads(s):
    for hh in range(2):
        for u in range(2):
            r = BF + 8*s + 4*hh + 2*u
            e(f"  ds_read_b64_tr_b16 v[{r}:{r+1}], v{9+hh} offset:{2048*s+256*u}")
def mfmas(s):
    for hh in range(2):
        c = "0" if s == 0 else f"v[{ACC+4*hh}:{ACC+4*hh+3}]"
        r = BF + 8*s + 4*hh
        e(f"  v_mfma_f32_16x16x32_bf16 v[{ACC+4*hh}:{ACC+4*hh+3}], v[{AF+4*s}:{AF+4*s+3}], v[{r}:{r+3}], {c}")
E0 = N0 // 2
if N0 == 0:
    e(f"  s_waitcnt vmcnt({O('dsw', 0)})", "w_down is in; the prefetch is far enough ahead by now")
    stamp(2)
    while nis < WE + W2: issue()
for s in range(PB):
    for h in range(2):
        need = 2*s + h
        def ok():
            if nis >= len(ops) or ops[nis][0] != "D": return False
            i = ops[nis][1]
            return i < need + 1 + W1 if i < N0 else (need >= N0 - 1 and i < need + 1 + W2)
        if ok() or h == 1: vwait(("D", need))
        while ok(): issue()
    if s == 0 and N0: stamp(2)
    trreads(s)
while nis < len(ops) and ops[nis][0] == "D": issue()
stamp(5)
e("  s_barrier", "A")
while issue(): pass
e("  s_waitcnt lgkmcnt(0)"); e("  s_barrier", "B")
stamp(4, True); fs(1, True)
if CPRIO: e(f"  s_setprio {CPRIO}")
order = []
for s in range(9):
    ar = 11 if s < E0 else (1 if s < 2*E0 else VA2)
    e(f"  ds_read_b128 v[{AF+4*s}:{AF+4*s+3}], v{ar} offset:{64*s}"); order.append(f"A{s}")
late = list(range(PB, 9))
for s in range(9):
    if late and late[0] <= s + 1:
        t = late.pop(0); vwait(("D", 2*t+1)); trreads(t); order += [f"T{t}"]*4
    tag = f"A{s}" if s < PB else f"T{s}"
    need = len(order) - 1 - order[::-1].index(tag)
    e(f"  s_waitcnt lgkmcnt({min(15, len(order) - need - 1)})")
    mfmas(s)
stamp(3); fs(2)
e("  s_mov_b64 exec, 0xffff"); e("  s_nop 6")
e(f"  ds_write2_b64 v{VXW}, v[{ACC}:{ACC+1}], v[{ACC+4}:{ACC+5}] offset0:0 offset1:16")
e("  s_mov_b64 exec, -1")
cm("---------------------------------------------------------------- all 5 waves: SwiGLU, 128 columns of w_down each")
e("L_JOIN:")
e("  s_waitcnt lgkmcnt(0)"); fs(3, True); e("  s_barrier", "C: the four partial pre-activations are in LDS"); fs(4)
e("  ds_read2_b32 v[12:13], v5 offset0:0 offset1:64"); e("  ds_read2_b32 v[14:15], v5 offset0:128 offset1:192")
e(f"  ds_read_b32 v23, v{VTAG}")
e("  s_cmp_eq_u32 s3, 4"); e("  s_waitcnt lgkmcnt(0)")
e("  v_add_f32 v12, v12, v13"); e("  v_add_f32 v14, v14, v15")
e("  v_cvt_pk_bf16_f32 v12, v12, v14"); e("  v_lshlrev_b32 v13, 16, v12"); e("  v_mul_f32 v15, 0xbfb8aa3b, v13"); e("  v_exp_f32 v15, v15")
e("  v_and_b32 v14, 0xffff0000, v12"); e("  v_add_f32 v15, 1.0, v15"); e("  v_rcp_f32 v15, v15"); e("  s_nop 0")
e("  v_mul_f32 v13, v13, v15"); e("  v_cvt_pk_bf16_f32 v13, v13, v13"); e("  v_and_b32 v13, 0xffff0000, v13")
e("  v_mul_f32 v13, v13, v14"); e("  v_cvt_pk_bf16_f32 v13, v13, v13", "h = bf16(bf16(silu(a)) * u), in both halves")
fs(5)
e("  s_cbranch_scc1 L_W4"); e("  s_waitcnt vmcnt(0)"); e("L_W4:"); fs(6); e("  s_nop 0" if WD4E else f"  s_waitcnt vmcnt({0 if LATEC else 9})")
e(f"  v_and_b32_dpp v12, v13, v6 quad_perm:[0,0,2,2] {DPPM}"); e(f"  v_and_b32_dpp v16, v13, v6 quad_perm:[1,1,3,3] {DPPM}")
e("  s_nop 0"); e("  .p2align 3")
cm("A = h on a diagonal: D[token, column parity and pair][chunk] sums 4 rows of w_down per MFMA")
for mp in range(8):
    src = 12 if mp < 4 else 16; qq = mp & 3
    for r in range(4):
        n = (4*(r-qq)) % 16
        ctl = "quad_perm:[0,1,2,3]" if n == 0 else f"row_ror:{n}"
        e(f"  v_mov_b32_dpp v{AD+4*mp+r}, v{src} {ctl} row_mask:0xf bank_mask:{hex(1<<r)}")
    if mp >= 1:
        m = mp - 1; c = "0" if m == 0 else f"v[{ACC}:{ACC+3}]"
        e(f"  v_mfma_f32_16x16x32_bf16 v[{ACC}:{ACC+3}], v[{AD+4*m}:{AD+4*m+3}], v[{WD+4*m}:{WD+4*m+3}], {c}")
e("  s_nop 0")
e(f"  v_mfma_f32_16x16x32_bf16 v[{ACC}:{ACC+3}], v[{AD+28}:{AD+31}], v[{WD+28}:{WD+31}], v[{ACC}:{ACC+3}]")
e("  s_cselect_b32 exec_lo, 0x00ff00ff, -1"); e("  s_cselect_b32 exec_hi, 0x00ff00ff, -1"); e("  s_nop 5")
cm("4 sums (top 24 bits each) + tag in 16 bytes")
for j in range(3): e(f"  v_perm_b32 v{20+j}, v{ACC+j}, v{ACC+3}, s{56+j}")
e("  buffer_store_dwordx4 v[20:23], v7, s[16:19], s36 offen" + HS)
GATH = AMP and int(AMP.split(",")[0]) >= 30
if GATH:
    e("  s_memrealtime s[90:91]"); e("  s_waitcnt lgkmcnt(0)")
    GS_ = O("gst", -1); GR_ = O("grole", -1)
    if GS_ >= 0: e(f"  s_mov_b32 s90, s{64+2*GS_}")
    if GR_ == 4: e("  s_cmp_eq_u32 s3, 4"); e("  s_cselect_b32 s90, s90, s64")
    if GR_ == 0: e("  s_cmp_lg_u32 s3, 4"); e("  s_cselect_b32 s90, s90, s64")
    e("  s_mov_b64 exec, 1"); e("  v_mov_b32 v24, s90"); e("  v_mov_b32 v25, s64"); e("  v_mov_b32 v26, v23"); e("  v_mov_b32 v27, 0")
    e("  s_lshl_b32 s92, s2, 3"); e("  s_add_u32 s92, s92, s3"); e("  s_lshl_b32 s92, s92, 4"); e("  s_add_u32 s92, s92, 0xd0000")
    e("  buffer_store_dwordx4 v[24:27], v27, s[16:19], s92 offen sc1")
    e("  s_cmp_eq_u32 s3, 4")
if STAMP:
    e("  s_cbranch_scc1 L_S6"); stamp(6); e("  s_branch L_FIN"); e("L_S6:"); stamp(2)
else: e("  s_cbranch_scc0 L_FIN")
if LATEC and O("cb", 0): e("  s_barrier", "released when the other four waves have ended: their sums are on the way")
if LATEC == 1: e("  s_mov_b64 exec, -1"); copy_stores(CW)
e("  s_cmp_ge_u32 s46, 72"); e(f"  s_cbranch_scc1 {'L_WC' if LATEC == 2 else 'L_FIN'}")
cm("---------------------------------------------------------------- 72 waves: sum over the 144 WGs, write the routed rows")
e("  s_mov_b64 exec, -1"); e("  ds_read_u16_d16_hi v35, v33"); e(f"  s_mov_b32 s61, {SPIN}")
e("  s_waitcnt vmcnt(0)")
stamp(6)
if RSL: e(f"  s_sleep {RSL}")
def rload(t): e(f"  buffer_load_dwordx4 v[{R0+4*t}:{R0+3+4*t}], v34, s[16:19], s{80+t} offen" + HL)
def racc(t):
    r = R0 + 4*t
    e(f"  v_perm_b32 v{r+3}, v{r+1}, v{r}, s41"); e(f"  v_perm_b32 v{r+3}, v{r+2}, v{r+3}, s42")
    if t:
        e(f"  v_pk_add_f32 v[{R0}:{R0+1}], v[{R0}:{R0+1}], v[{r}:{r+1}]"); e(f"  v_pk_add_f32 v[{R0+2}:{R0+3}], v[{R0+2}:{R0+3}], v[{r+2}:{r+3}]")
def rchain(extra, lab):
    for t in range(9):
        if lab: e(f"L_R{t}:")
        e(f"  s_waitcnt vmcnt({8-t+extra})"); e(f"  v_cmp_ne_u32 vcc, s47, v{R0+4*t+3}"); e(f"  s_cbranch_vccnz L_RR{t}")
        if lab: e(f"L_RA{t}:")
        racc(t)
for t in range(9): rload(t)
if LATEC == 2:
    copy_stores(CW); e("  s_mov_b64 exec, -1")
    rchain(9, False)
    e("L_RD:")
else:
    rchain(0, True)
if not O("nored5", 0): stamp(5)
e("  s_nop 1"); e(f"  v_permlane32_swap_b32 v{R0}, v{R0+2}"); e(f"  v_permlane32_swap_b32 v{R0+1}, v{R0+3}")
e(f"  v_add_f32 v{R0}, v{R0}, v{R0+2}"); e(f"  v_add_f32 v{R0+1}, v{R0+1}, v{R0+3}"); e("  s_nop 1")
e(f"  v_permlane16_swap_b32 v{R0}, v{R0+1}"); e(f"  v_add_f32 v{R0}, v{R0}, v{R0+1}"); e("  s_nop 1")
e(f"  v_add_f32_dpp v{R0}, v{R0}, v{R0} row_ror:4 {DPPM}"); e("  s_nop 1"); e(f"  v_add_f32_dpp v{R0}, v{R0}, v{R0} row_ror:8 {DPPM}")
e(f"  v_cvt_pk_bf16_f32 v16, v{R0}, v{R0}"); e("  v_and_b32 v16, 0xffff0000, v16"); e("  v_mul_f32 v16, v16, v32")
e("  v_cvt_pk_bf16_f32 v16, v16, v16"); e("  v_and_b32 v16, 0xffff0000, v16"); e("  s_waitcnt lgkmcnt(0)")
e("  v_add_f32 v16, v16, v35"); e("  v_cvt_pk_bf16_f32 v16, v16, v16")
e("  s_mov_b32 exec_lo, 0x000f000f"); e("  s_mov_b32 exec_hi, 0x000f000f")
e("  buffer_store_short v16, v29, s[20:23], s50 offen" + CFN)
e("  s_cmp_lg_u32 s46, 0"); e("  s_cbranch_scc1 L_FIN")
e("  s_mov_b64 exec, 1", "every reader of d_ws[0] is behind the sums seen here"); e("  v_mov_b32 v16, s47"); e(f"  v_mov_b32 v17, {WS_E}")
e("  buffer_store_dword v16, v17, s[16:19], 0 offen" + CFN)
e("L_FIN:"); stamp_flush(); e("L_END:"); e("  s_endpgm")
if LATEC == 2:
    e("L_WC:"); e("  s_mov_b64 exec, -1"); e("  s_branch L_XH2")
    rchain(0, True); e("  s_branch L_RD")
for t in range(9):
    e(f"L_RR{t}:"); e("  s_sub_u32 s61, s61, 1"); e(f"  s_cbranch_scc1 L_RA{t}")
    for t2 in range(t, 9): rload(t2)
    e(f"  s_branch L_R{t}")
cm("---------------------------------------------------------------- prefetch waves: one word per 128-byte line")
e("#MARK H0"); e("L_HELP:")
e(f"  s_sub_u32 s28, s2, {NWT}"); e("  s_and_b32 s29, s28, 7"); e("  s_lshr_b32 s28, s28, 3")
e("  s_and_b32 s33, s3, 1"); e("  s_mul_i32 s33, s33, 288"); e(f"  s_mul_i32 s32, s28, {HR}"); e("  s_add_u32 s32, s32, s33")
e(f"  s_add_u32 s32, s32, {32*N0}"); e("  s_mul_i32 s32, s32, 9216"); e("  s_mul_i32 s34, s29, 1152"); e("  s_add_u32 s32, s32, s34")
e("  v_mul_u32_u24 v3, 0x1c72, v0"); e("  v_lshrrev_b32 v3, 16, v3", "lane / 9"); e("  v_mul_u32_u24 v4, 9, v3"); e("  v_sub_u32 v4, v0, v4")
e("  v_mul_u32_u24 v3, 9216, v3"); e("  v_lshl_add_u32 v3, v4, 7, v3")
if HA:
    cm("the column block whose lines fill only half of a CU's L1 (byte column 384 mod 1024): all its rows first")
    e("  s_and_b32 s36, s3, 1"); e("  s_lshl1_add_u32 s36, s28, s36"); e(f"  s_mul_i32 s36, s36, {21*9216}")
    e("  s_cmp_ge_u32 s29, 4"); e("  s_addc_u32 s37, s29, 0"); e("  s_lshl_b32 s37, s37, 10"); e("  s_add_u32 s36, s36, s37"); e("  s_add_u32 s36, s36, 384")
    e("  v_cmp_lt_u32 vcc, 20, v0"); e("  v_mul_u32_u24 v5, 9216, v0"); e(f"  v_subrev_u32 v6, {21*9216 - 1024}, v5"); e("  v_cndmask_b32 v5, v5, v6, vcc")
    e("  s_cmp_eq_u32 s29, 3"); e("  s_cselect_b32 s37, 42, 21")
e("  s_lshl2_add_u32 s28, s28, s3")
e(f"  s_mul_i32 s29, s29, {5184*128}")
if RP: e(f"  s_add_u32 s29, s29, {RP*8192}")
e("  v_lshlrev_b32 v2, 7, v0")
nr = -(-(288 - 32*N0) // (NH*HR))
assert nr - HG >= 1
e(f"  s_mov_b32 s30, {nr-HG}")
e("  s_cmp_ge_u32 s3, 2"); e("  s_waitcnt lgkmcnt(0)")
e("  s_cselect_b32 s8, s26, s24"); e("  s_cselect_b32 s9, s27, s25")
if O("tw", 0):
    e("  s_load_dword s40, s[12:13], 0", "first touch of w_down and d_out: address translation only")
    e("  s_load_dword s41, s[20:21], 0")
if HA:
    e("  s_bfm_b64 exec, s37, 0"); e(f"  buffer_load_dword v{DUM}, v5, s[8:11], s36 offen")
e(f"  s_bfm_b64 exec, {9*HR}, 0")
for r in range(HG):
    e(f"  buffer_load_dword v{DUM}, v3, s[8:11], s32 offen" + GNT); e(f"  s_add_u32 s32, s32, {NH*HR*9216}")
CPS = 9 - 2*RP
def wchunk(wait):
    if O("wil", 0):
        e(f"  s_mul_hi_u32 s31, s28, {(2**32 + 17)//18}"); e("  s_mul_i32 s35, s31, 18"); e("  s_sub_u32 s35, s28, s35")
    else:
        e(f"  s_mul_hi_u32 s35, s28, {(2**32 + CPS - 1)//CPS}"); e(f"  s_mul_i32 s31, s35, {CPS}"); e("  s_sub_u32 s31, s28, s31")
    e("  s_mul_i32 s35, s35, 36864"); e("  s_lshl_b32 s31, s31, 12"); e("  s_add_u32 s35, s35, s31"); e("  s_add_u32 s35, s35, s29")
    if wait: e(f"  s_waitcnt vmcnt({HT-1})")
    e(f"  buffer_load_dword v{DUM}, v2, s[12:15], s35 offen" + PNT)
    e("  s_add_u32 s28, s28, 56")
if not UNG: e("  s_barrier")
stamp(1)
if HWF:
    e("  s_bfm_b64 exec, 32, 0")
    for _ in range(HWF): wchunk(False)
    e(f"  s_bfm_b64 exec, {9*HR}, 0")
e("L_HGL:"); e(f"  s_waitcnt vmcnt({HT-1+HX})"); e(f"  buffer_load_dword v{DUM}, v3, s[8:11], s32 offen" + GNT)
e(f"  s_add_u32 s32, s32, {NH*HR*9216}"); e("  s_sub_u32 s30, s30, 1"); e("  s_cmp_lg_u32 s30, 0"); e("  s_cbranch_scc1 L_HGL")
if O("gul", 0): e("  s_waitcnt vmcnt(0)")
stamp(2)
if WE == 4:
    e("  s_bfm_b64 exec, 36, 0")
    e("L_HWL:")
    e("  s_mul_i32 s35, s28, 9216"); e("  s_add_u32 s35, s35, s29"); e("  s_add_u32 s35, s35, 4608")
    e(f"  s_waitcnt vmcnt({HT-1})"); e(f"  buffer_load_dword v{DUM}, v2, s[12:15], s35 offen" + PNT)
    e("  s_add_u32 s28, s28, 56"); e("  s_cmp_lt_u32 s28, 72"); e("  s_cbranch_scc1 L_HWL")
elif WE < 8:
    e("  s_bfm_b64 exec, 32, 0")
    e("L_HWL:")
    wchunk(not O("hwn", 0))
    e(f"  s_cmp_lt_u32 s28, {18*CPS}"); e("  s_cbranch_scc1 L_HWL")
if UNG: e("  s_barrier")
e("  s_waitcnt vmcnt(0)"); e("  s_barrier"); e("  s_branch L_FIN")
e("#MARK H1"); e("L_CODE_END:")
cm("rare path: x + x*0 turns an infinity into a NaN")
for n in range(1, ncopy+1):
    e(f"L_FIX{n}:"); e(f"  s_mov_b32 s98, {n}"); e("  s_branch L_FIX")
e("L_FIX:"); e("  s_mov_b32 s29, 0x07060302")
for j in range(36):
    r = XR + j
    e(f"  v_lshlrev_b32 v12, 16, v{r}"); e(f"  v_and_b32 v13, 0xffff0000, v{r}"); e("  v_fma_f32 v12, v12, 0, v12"); e("  v_fma_f32 v13, v13, 0, v13")
    e(f"  v_perm_b32 v{r}, v13, v12, s29")
e("  s_cmp_eq_u32 s98, 1"); e("  s_cbranch_scc1 L_FIXR1"); e("  s_branch L_FIXR2")
e('.section .rodata,"a"'); e(".p2align 6"); e(f".amdhsa_kernel {K}")
e("  .amdhsa_next_free_vgpr 200"); e("  .amdhsa_next_free_sgpr 102"); e("  .amdhsa_accum_offset 200")
e("  .amdhsa_group_segment_fixed_size 0"); e("  .amdhsa_kernarg_size 64"); e("  .amdhsa_user_sgpr_count 2")
e("  .amdhsa_user_sgpr_kernarg_segment_ptr 1"); e("  .amdhsa_system_sgpr_workgroup_id_x 1"); e("  .amdhsa_float_denorm_mode_32 3")
e(".end_amdhsa_kernel")
def cut(a, b):
    i = out.index("#MARK " + a); j = out.index("#MARK " + b)
    blk = out[i+1:j]; del out[i:j+1]; return blk
blk = []
if NEAR & 2:
    h = cut("H0", "H1")
    if not NEAR & 1:
        pass
    blk += h
if NEAR & 1: blk = cut("C0", "C1") + blk
i = out.index("#MARK XINIT"); out[i:i+1] = blk
out = [l for l in out if not l.startswith("#MARK")]
if not NEAR: out = [l for l in out if l not in ("L_X2:", "L_C2:")]
open(sys.argv[1], "w").write("\n".join(out) + "\n")
```

```python
import sys
NAME = "standalone__moe_arch_mod__prompt"
S, D, F = 2048, 576, 4608
XB = S*D*2
WB = D*F*2
opts = dict(a.split("=") for a in sys.argv[2:] if "=" in a)
def O(k, d): return int(opts.get(k, d))
STAMP = O("stamp", 0); AMP = opts.get("amp"); FINE = O("fine", 0)
if AMP: STAMP = 1
GS = O("gs", 64); REP = O("rep", 4); RS = 256*GS
LG = {16: 0, 32: 1, 64: 2}[GS]; LR = {1: 0, 2: 1, 4: 2, 8: 3}[REP]; NL = REP*GS//16
assert NL <= 16
WS_E = 0; WS_GRAN = 4096; WS_SLAB = 4096 + REP*RS; WS_SIZE = 1 << 20; WS_STAMP = 1 << 21
N0 = O("n0", 2); W1 = O("w1", 4); W2 = O("w2", 4); WE = O("we", 0); PB = O("pb", 7); RP = O("rp", 0)
HR = O("hr", 4); HT = O("ht", 2); HG = O("hg", 1)
PSL = O("psl", 2); SPIN = O("spin", 200000); RSL = O("rsl", 0)
CFN = {0: "", 1: " sc1", 2: " sc0 sc1"}[O("cf", 0)]; WNT = " nt" if O("wnt", 0) else ""; PNT = " nt" if O("pnt", 0) else ""; GNT = " nt" if O("gnt", 0) else ""; XNT = " nt" if O("xnt", 0) else ""; LATEC = O("latec", 1); FL = {0: "", 1: " sc1", 2: " sc0 sc1", 3: " sc1 nt", 4: " nt"}; HS = FL[O("hs", 1)]; HL = FL[O("hl", 1)]; CW = FL[O("cw", 1)]; CH = FL[O("ch", 1)]; WD4E = O("wd4e", 1); NEAR = O("near", 0); UNG = O("ung", 0); HA = O("ha", 0); HWF = O("hwf", 0); HX = O("hx", 0); EFS = O("efs", 1); LOWP = O("lowp", 1); CPRIO = O("cprio", 0)
NWT = 144; NH = 14
out = []
def e(s="", c=None): out.append(s if c is None else f"{s:<72}; {c}")
def cm(s): out.append("; " + s)
def stamp(i, wait=False):
    if STAMP and (i in (0, 7) or not FINE):
        e(f"  s_memrealtime s[{64+2*i}:{65+2*i}]")
        if wait: e("  s_waitcnt lgkmcnt(0)")
def fs(i, wait=False):
    if FINE:
        e(f"  s_memtime s[{64+2*i}:{65+2*i}]")
        if wait: e("  s_waitcnt lgkmcnt(0)")
def stamp_flush():
    if AMP:
        A, B, KK, WV, WG = map(int, AMP.split(","))
        if O("endw", 0): e("  s_waitcnt vmcnt(0)")
        stamp(7, True)
        e(f"  s_cmp_lg_u32 s2, {WG}"); e("  s_cbranch_scc1 L_AMPX")
        e(f"  s_cmp_lg_u32 s3, {WV}"); e("  s_cbranch_scc1 L_AMPX")
        if A >= 30:
            e("  s_sleep 60"); e("  s_mov_b64 exec, -1"); e("  v_lshlrev_b32 v1, 4, v0"); e("  v_mov_b32 v2, 0x80000000"); e("  v_mov_b32 v3, 0")
            for i in range(18):
                e(f"  s_mov_b32 s92, {0xd0000 + 1024*i}")
                e("  buffer_load_dwordx4 v[24:27], v1, s[16:19], s92 offen sc1"); e("  s_waitcnt vmcnt(0)")
                if A in (30, 31, 32, 35): e("  v_subrev_u32 v24, s64, v24")
                elif A == 33: e("  v_sub_u32 v24, v24, v25")
                else: e("  v_subrev_u32 v24, s64, v25")
                e("  v_lshlrev_b32 v24, 12, v24"); e(f"  v_add_u32 v25, {64*i}, v0"); e("  v_or_b32 v24, v24, v25")
                e("  v_cmp_eq_u32 vcc, s47, v26"); e("  s_nop 1"); e("  v_cndmask_b32 v24, v2, v24, vcc"); e("  v_max_i32 v3, v3, v24" if i else "  v_mov_b32 v3, v24")
            for ctl in ("quad_perm:[1,0,3,2] row_mask:0xf bank_mask:0xf", "quad_perm:[2,3,0,1] row_mask:0xf bank_mask:0xf", "row_ror:4 row_mask:0xf bank_mask:0xf", "row_ror:8 row_mask:0xf bank_mask:0xf",
                        "row_bcast:15 row_mask:0xa bank_mask:0xf", "row_bcast:31 row_mask:0xc bank_mask:0xf"):
                e("  s_nop 1"); e(f"  v_max_i32_dpp v3, v3, v3 {ctl}")
            e("  s_nop 1"); e("  v_readlane_b32 s60, v3, 63")
            if A in (30, 33, 34): e("  s_ashr_i32 s60, s60, 12")
            elif A == 31: e("  s_bfe_u32 s60, s60, 0x30003")
            elif A == 32: e("  s_and_b32 s60, s60, 7")
            else: e("  s_bfe_u32 s60, s60, 0x50006")
            e("  s_memrealtime s[78:79]"); e("  s_waitcnt lgkmcnt(0)")
        else:
            e(f"  s_sub_u32 s60, s{64+2*B}, s{64+2*A}")
        e(f"  s_mul_i32 s60, s60, {KK}")
        e("L_AMP:"); e("  s_memrealtime s[62:63]"); e("  s_waitcnt lgkmcnt(0)"); e("  s_sub_u32 s62, s62, s78")
        e("  s_cmp_lt_u32 s62, s60"); e("  s_cbranch_scc1 L_AMP"); e("L_AMPX:")
    elif STAMP:
        if FINE: e("  s_memtime s[78:79]"); e("  s_waitcnt lgkmcnt(0)")
        else: stamp(7, True)
        e("  s_mov_b64 exec, 1")
        e("  s_lshl_b32 s60, s2, 3"); e("  s_add_u32 s60, s60, s3"); e("  s_lshl_b32 s60, s60, 6")
        e(f"  s_add_u32 s60, s60, {WS_STAMP}"); e("  s_mov_b32 s18, 0x1000000"); e("  v_mov_b32 v1, 0")
        for j in range(4):
            for k in range(4): e(f"  v_mov_b32 v{4+k}, s{64+4*j+k}")
            e(f"  buffer_store_dwordx4 v[4:7], v1, s[16:19], s60 offen offset:{16*j}"); e("  s_nop 1")

hdr = open('cdna_kernels/%s.s.ref' % NAME).read().split('\n')
for l in hdr:
    if l.startswith('; @launch'): break
    e(l)
XIMG = 73728; TAGL = XIMG + 2304; TEX = XIMG + 3072; WRIMG = TEX + 1024; LDS = 83968
e(f"; @launch grid=(256,1,1) block=(320,1,1) lds={LDS}")
DOC = """
One launch, 256 workgroups of 5 waves, one per CU (LDS and VGPR use allow one).
 role 4 (wave 0), every WG : 8 rows of x -> router scores -> local top-2 -> tagged granule in d_ws,
                             later the copy of its rows that were not routed.
 WGs 0..143, roles 0..3    : 32 columns of w_gate / w_up (LDS-DMA, transposing LDS reads, MFMA),
                             SwiGLU, the matching 32 rows of w_down (MFMA), tagged partial sums in d_ws.
 WGs 0..143, role 4        : gathers the 256 granules, global top-2, brings both rows into LDS;
                             72 of them add up the 144 partial sums of 8 columns and write the routed rows.
 WGs 144..255, roles 0..3  : pull weight lines into the L2 that the weight WGs with the same id mod 8
                             are expected to share (speed only, nothing depends on it).
 Hand-offs between WGs are 16-byte pieces that carry a tag, written and read with sc1.
 tag = d_ws[0] + 0x01010101; d_ws[0] is set to the tag at the end, so it differs from launch to launch.
"""
for l in DOC.strip("\n").split("\n"): cm(l)
e('.amdgcn_target "amdgcn-amd-amdhsa--gfx950"'); e(".text")
K = NAME + "_kernel"
e(f".globl {K}"); e(".p2align 8"); e(f".type {K},@function"); e(f"{K}:")
DPPM = "row_mask:0xf bank_mask:0xf"
AF = 12; BF = 48; ACC = 120; WD = 128; AD = 160; XR = 84; WR = 48; R0 = 48
VXW = 192; VA2 = 193; VTAG = 194; DUMC = 196; DUM = 197
QS = 16*9216

def slice_calc():
    e("  s_and_b32 s45, s2, 7"); e("  s_mul_i32 s45, s45, 18"); e("  s_lshr_b32 s44, s2, 3")
    e("  s_add_u32 s45, s45, s44", "slice: neighbours are 8 ids apart")
def setup0():
    e("  v_and_b32 v2, 15, v0"); e("  v_lshrrev_b32 v3, 4, v0")
    e("  v_mul_u32_u24 v4, 9216, v3"); e("  v_lshl_add_u32 v4, v2, 4, v4", "w_down: row 8g, 16-byte chunk c")
    e(f"  s_mul_i32 s34, s45, {32*1152}"); e("  s_lshl_b32 s35, s3, 8"); e("  s_add_u32 s34, s34, s35"); e("  s_add_u32 s35, s34, 4608")
def setup1():
    e("  v_lshrrev_b32 v5, 2, v2"); e("  v_lshl_add_u32 v5, v3, 3, v5"); e("  v_and_b32 v6, 1, v0"); e("  v_lshl_add_u32 v5, v6, 2, v5")
    e("  v_lshlrev_b32 v5, 3, v5"); e("  v_and_b32 v6, 2, v0"); e("  v_lshl_add_u32 v5, v6, 1, v5")
    e(f"  v_add_u32 v5, {TEX}, v5", "exchange table: this lane's (f, token)")
    e("  v_and_b32 v6, 1, v0"); e("  v_cmp_eq_u32 vcc, 1, v6"); e("  v_mov_b32 v6, 0xffff"); e("  v_mov_b32 v7, 0xffff0000")
    e("  v_cndmask_b32 v6, v6, v7, vcc", "half-word mask by lane parity")
    e("  v_lshlrev_b32 v7, 6, v2"); e("  v_lshl_add_u32 v7, v3, 4, v7", "partial-sum piece of this lane")
    e("  s_mul_i32 s36, s45, 4608"); e("  s_lshl_b32 s37, s3, 10"); e("  s_add_u32 s36, s36, s37"); e(f"  s_add_u32 s36, s36, {WS_SLAB}")
    e(f"  v_mov_b32 v{VTAG}, {TAGL}")
    e("  s_mov_b32 s56, 0x07060501"); e("  s_mov_b32 s57, 0x07060502"); e("  s_mov_b32 s58, 0x07060503")
    for j in range(0, 32, 2): e(f"  v_mov_b64 v[{AD+j}:{AD+j+1}], 0")
def wd_load(mp): e(f"  buffer_load_dwordx4 v[{WD+4*mp}:{WD+4*mp+3}], v4, s[12:15], s{34+(mp>>2)} offen offset:{1152*(mp&3)}" + WNT)
ncopy = 0
def copy_stores(fl=""):
    global ncopy
    ncopy += 1
    e("  s_and_b32 s38, s32, 0xffff"); e("  s_and_b32 s39, s33, 0xffff")
    e("  v_cmp_ne_u32 s[52:53], s38, v11"); e("  v_cmp_ne_u32 s[54:55], s39, v11")
    e("  s_and_b64 exec, s[52:53], s[54:55]", "rows that are not routed")
    e("  s_cmp_lg_u64 s[96:97], 0"); e(f"  s_cbranch_scc1 L_FIX{ncopy}"); e(f"L_FIXR{ncopy}:")
    for i in range(9): e(f"  buffer_store_dwordx4 v[{XR+4*i}:{XR+4*i+3}], v10, s[20:23], s28 offen offset:{128*i}{fl}")

if STAMP:
    for i in range(2, 16): e(f"  s_mov_b32 s{64+i}, 0")
stamp(0)
cm("SRDs: x s[4:7], w_r or w_gate/w_up s[8:11], w_down s[12:15], d_ws s[16:19], d_out s[20:23]")
e("  s_load_dwordx2 s[4:5], s[0:1], 0"); e("  s_load_dwordx2 s[8:9], s[0:1], 8"); e("  s_load_dwordx2 s[16:17], s[0:1], 56")
e("  s_load_dwordx4 s[24:27], s[0:1], 16"); e("  s_load_dwordx2 s[12:13], s[0:1], 32"); e("  s_load_dwordx2 s[20:21], s[0:1], 40")
e("  s_getpc_b64 s[28:29]", "read one word of every line of the code: it lands in L2"); e("L_PC:")
e("  v_lshlrev_b32 v2, 7, v0"); e("  v_cmp_gt_u32 vcc, (L_CODE_END-L_PC+127)/128, v0")
e("  s_and_saveexec_b64 s[30:31], vcc"); e("  s_cbranch_execz L_NOPF")
e(f"  global_load_dword v{DUMC}, v2, s[28:29]"); e("L_NOPF:"); e("  s_mov_b64 exec, -1")
e("  v_lshrrev_b32 v1, 6, v0"); e("  v_and_b32 v0, 63, v0"); e("  v_readfirstlane_b32 s3, v1")
e("  s_cmp_ge_u32 s2, 256"); e("  s_cbranch_scc1 L_END")
e("  s_sub_u32 s3, s3, 1", "role: wave 0 -> 4, wave k -> k-1"); e("  s_cselect_b32 s3, 4, s3")
for r, v in ((6, XB), (7, "0x20000"), (11, "0x20000"), (14, WB), (15, "0x20000"), (18, WS_SIZE), (19, "0x20000"), (22, XB), (23, "0x20000")):
    e(f"  s_mov_b32 s{r}, {v}")
if NEAR == 2:
    e(f"  s_mov_b32 s10, {WB}"); e("  s_cmp_eq_u32 s3, 4"); e("  s_cbranch_scc1 L_X1")
    e(f"  s_cmp_ge_u32 s2, {NWT}"); e("  s_cbranch_scc1 L_HELP"); e("  s_branch L_NOTX"); e("L_X1:")
else:
    e("  s_cmp_lg_u32 s3, 4"); e("  s_cbranch_scc1 L_NOTX")
cm("---------------------------------------------------------------- role 4: router scores of 8 rows")
e("  s_setprio 3")
e(f"  s_mov_b32 s10, {D*2}"); e(f"  s_mov_b32 m0, {WRIMG}")
e("  v_lshlrev_b32 v8, 4, v0"); e("  v_and_b32 v1, 0x70, v8"); e("  v_lshrrev_b32 v9, 3, v0")
e("  v_mul_u32_u24 v10, 1152, v9"); e("  v_add_u32 v10, v10, v1", "8 lanes per row"); e("  s_mul_i32 s28, s2, 9216")
e("  s_waitcnt lgkmcnt(0)")
e(f"  s_load_dword s47, s[16:17], {WS_E}")
e("  buffer_load_dwordx4 v8, s[8:11], 0 offen lds", "w_r -> LDS"); e("  s_mov_b64 exec, 0xff")
e("  buffer_load_dwordx4 v8, s[8:11], 0 offen offset:1024 lds"); e("  s_mov_b64 exec, -1")
for i in range(9): e(f"  buffer_load_dwordx4 v[{XR+4*i}:{XR+4*i+3}], v10, s[4:7], s28 offen offset:{128*i}" + XNT)
if NEAR: e("  s_branch L_X2")
e("#MARK XINIT"); e("L_X2:")
e(f"  v_add_u32 v1, {WRIMG}, v1")
e("  s_lshl_b32 s29, s2, 3"); e("  s_sub_u32 s29, 2047, s29"); e("  v_sub_u32 v11, s29, v9", "2047 - row"); e("  s_mov_b32 s30, 0xffff0000")
e(f"  s_and_b32 s29, s2, {REP-1}"); e(f"  s_mul_i32 s27, s29, {RS}"); e(f"  s_add_u32 s27, s27, {WS_GRAN}", "the copy of the granules this WG reads")
for j in range(1, 4): e(f"  s_add_u32 s{47+j}, s27, {64*GS*j}")
e("  s_and_b32 s29, s2, 7"); e("  s_lshl_b32 s29, s29, 5"); e("  s_lshr_b32 s31, s2, 3"); e("  s_add_u32 s29, s29, s31")
e(f"  s_mul_i32 s29, s29, {GS}"); e(f"  s_add_u32 s31, s29, {WS_GRAN}", "own granule")
e(f"  v_mul_u32_u24 v44, {GS}, v0")
for j in range(4): e(f"  v_mov_b32 v{12+j}, 0")
e("  v_bfrev_b32 v22, 1")
e(f"  v_bfe_u32 v21, v0, {LG}, {LR}"); e(f"  v_mul_u32_u24 v21, {RS}, v21"); e(f"  v_and_b32 v19, {GS//16-1}, v0"); e("  v_lshl_add_u32 v21, v19, 4, v21")
e(f"  s_mov_b32 s61, {SPIN}"); e(f"  v_mov_b32 v45, {TAGL}")
e("  s_waitcnt vmcnt(9) lgkmcnt(0)")
for i in range(9): e(f"  ds_read_b128 v[{WR+4*i}:{WR+4*i+3}], v1 offset:{128*i}")
e("  s_add_u32 s47, s47, 0x01010101", "tag of this launch"); e("  v_mov_b32 v18, s47")
for i in range(9):
    e(f"  s_waitcnt vmcnt({8-i}) lgkmcnt({8-i})")
    for j in range(4): e(f"  v_dot2c_f32_bf16 v{12+j}, v{XR+4*i+j}, v{WR+4*i+j}")
e("  s_nop 1")
e("  v_add_f32 v12, v12, v13"); e("  v_add_f32 v14, v14, v15"); e("  v_add_f32 v12, v12, v14")
e("  s_movk_i32 s29, 0x207"); e("  v_cmp_class_f32 s[96:97], v12, s29", "lanes that hold an inf or a NaN")
e(f"  v_add_f32_dpp v12, v12, v12 quad_perm:[1,0,3,2] {DPPM}"); e("  s_nop 1")
e(f"  v_add_f32_dpp v12, v12, v12 quad_perm:[2,3,0,1] {DPPM}"); e("  s_nop 1")
e(f"  v_add_f32_dpp v12, v12, v12 row_half_mirror {DPPM}")
cm("key = order-preserving bf16 score << 16 | 2047 - row; NaN sorts last")
e("  v_cvt_pk_bf16_f32 v13, v12, v12"); e("  v_cmp_u_f32 vcc, v12, v12"); e("  v_ashrrev_i32 v14, 31, v13")
e("  v_bitop3_b32 v13, v13, v14, v22 bitop3:0x1e"); e("  v_cndmask_b32 v13, v13, 0, vcc"); e("  v_and_or_b32 v13, v13, s30, v11")
e("  s_nop 1")
e(f"  v_max_u32_dpp v16, v13, v13 row_ror:8 {DPPM}"); e(f"  v_min_u32_dpp v17, v13, v13 row_ror:8 {DPPM}"); e("  s_nop 0")
for ctl in ("row_bcast:15 row_mask:0xa bank_mask:0xf", "row_bcast:31 row_mask:0xc bank_mask:0xf"):
    e(f"  v_min_u32_dpp v14, v16, v16 {ctl}"); e(f"  v_max_u32_dpp v16, v16, v16 {ctl}")
    e(f"  v_max_u32_dpp v15, v17, v17 {ctl}"); e("  v_max_u32 v17, v14, v15")
e(f"  s_lshl_b64 exec, {hex((1 << NL) - 1)}, 48", f"lanes 48..63 hold the pair: {REP} copies x {GS} bytes")
e("  buffer_store_dwordx4 v[16:19], v21, s[16:19], s31 offen" + HS)
stamp(3)
e(f"  s_cmp_lt_u32 s2, {NWT}"); e("  s_cbranch_scc1 L_XG"); e("  s_barrier", "prefetch WG: let the other waves fill the queue"); e("L_XG:")
e("  ds_write_b32 v45, v18"); e("  s_mov_b64 exec, -1")
slice_calc(); setup0(); setup1()
e(f"  s_cmp_ge_u32 s2, {NWT}"); e("  s_cbranch_scc1 L_XH")
def wd4():
    e("  s_mov_b32 exec_lo, 0x00ff00ff", "columns 512..575 of w_down"); e("  s_mov_b32 exec_hi, 0x00ff00ff")
    for mp in range(8): wd_load(mp)
    e("  s_mov_b64 exec, -1")
if WD4E: wd4()
if RP:
    e("  v_lshlrev_b32 v46, 7, v0"); e(f"  s_mul_i32 s29, s45, {32*1152}")
    for r in range(RP):
        e(f"  buffer_load_dword v{DUM}, v46, s[12:15], s29 offen" + PNT)
        if r < RP-1: e("  s_add_u32 s29, s29, 8192")
e("  s_waitcnt vmcnt(0)")
if O("nored5", 0): stamp(5)
e("L_P1:")
if O("lsl", 0): e(f"  s_sleep {O('lsl', 0)}", "back off before every read of the granules")
b = 48
for j in range(4): e(f"  buffer_load_dwordx4 v[{b+4*j}:{b+3+4*j}], v44, s[16:19], s{27 if j == 0 else 47+j} offen" + HL)
e("  s_waitcnt vmcnt(0)")
e(f"  v_cmp_ne_u32 vcc, s47, v{b+2}"); e(f"  v_cmp_ne_u32 s[32:33], s47, v{b+6}")
e(f"  v_cmp_ne_u32 s[38:39], s47, v{b+10}"); e(f"  v_cmp_ne_u32 s[40:41], s47, v{b+14}")
e("  s_or_b64 vcc, vcc, s[32:33]"); e("  s_or_b64 s[38:39], s[38:39], s[40:41]"); e("  s_or_b64 vcc, vcc, s[38:39]")
e("  s_cbranch_scc0 L_PT")
if not O("lsl", 0): e(f"  s_sleep {PSL}", "some granule is missing: back off and read again")
e("  s_sub_u32 s61, s61, 1"); e("  s_cbranch_scc0 L_P1")
e("  .p2align 3"); e("L_PT:")
def merge(a1, a2, b1, b2, o1, o2, t):
    e(f"  v_min_u32 v{t}, v{a1}, v{b1}"); e(f"  v_max_u32 v{o1}, v{a1}, v{b1}"); e(f"  v_max3_u32 v{o2}, v{t}, v{a2}, v{b2}")
merge(b, b+1, b+4, b+5, 40, 41, 12); merge(b+8, b+9, b+12, b+13, 42, 43, 13); merge(40, 41, 42, 43, 40, 41, 12)
e("  s_nop 0")
for ctl in (f"quad_perm:[1,0,3,2] {DPPM}", f"quad_perm:[2,3,0,1] {DPPM}", f"row_ror:4 {DPPM}", f"row_ror:8 {DPPM}",
            "row_bcast:15 row_mask:0xa bank_mask:0xf", "row_bcast:31 row_mask:0xc bank_mask:0xf"):
    e(f"  v_min_u32_dpp v12, v40, v40 {ctl}"); e(f"  v_max_u32_dpp v40, v40, v40 {ctl}")
    e(f"  v_max_u32_dpp v13, v41, v41 {ctl}"); e("  v_max_u32 v41, v12, v13")
e("  v_cmp_gt_u32 vcc, 8, v0"); e("  v_readlane_b32 s32, v40, 63", "global top-2 keys"); e("  v_readlane_b32 s33, v41, 63")
e(f"  s_cmp_ge_u32 s2, {NWT}"); e("  s_cbranch_scc1 L_XH2")
e("  s_and_b32 s38, s32, 0x7ff"); e("  s_and_b32 s39, s33, 0x7ff"); e("  s_sub_u32 s38, 2047, s38"); e("  s_sub_u32 s39, 2047, s39")
e("  s_mul_i32 s38, s38, 1152"); e("  s_mul_i32 s39, s39, 1152"); e(f"  s_mov_b32 m0, {XIMG}"); e("  s_sub_u32 s40, s39, 128")
e("  buffer_load_dwordx4 v8, s[4:7], s38 offen lds", "both routed rows -> LDS [2][1152 B]")
e("  s_add_u32 s41, s38, 1024"); e("  v_mov_b32 v12, s40"); e("  v_mov_b32 v13, s41"); e("  s_addk_i32 m0, 0x400")
e("  v_cndmask_b32 v12, v12, v13, vcc"); e("  v_add_u32 v12, v12, v8")
e("  buffer_load_dwordx4 v12, s[4:7], 0 offen lds")
e("  s_addk_i32 m0, 0x400"); e("  s_add_u32 s40, s39, 896"); e("  s_mov_b64 exec, 0xffff")
e("  buffer_load_dwordx4 v8, s[4:7], s40 offen lds"); e("  s_mov_b64 exec, -1")
stamp(1)
def final_setup():
    cm("last stage: lane row r = lane>>4 holds token r>>1, column 8u + 2(lane&3) + (r&1)")
    e("  v_cmp_gt_u32 vcc, 32, v0"); e("  v_mov_b32 v28, s33"); e("  v_mov_b32 v29, s32"); e("  v_and_b32 v31, 3, v0")
    e("  v_cndmask_b32 v28, v28, v29, vcc"); e("  v_and_b32 v29, 0xffff, v28"); e("  v_sub_u32 v29, 2047, v29")
    e("  v_mul_u32_u24 v29, 1152, v29"); e("  v_bfe_u32 v30, v0, 4, 1"); e("  v_lshlrev_b32 v30, 1, v30")
    e("  v_lshl_add_u32 v30, v31, 2, v30"); e("  v_add_u32 v29, v29, v30")
    e("  v_not_b32 v32, v28"); e("  v_ashrrev_i32 v32, 31, v32"); e("  v_or_b32 v32, 0x80000000, v32")
    e("  v_xor_b32 v32, v32, v28"); e("  v_and_b32 v32, 0xffff0000, v32", "the bf16 score back from the key"); e("  v_mul_f32 v32, 0xbfb8aa3b, v32")
    e("  v_exp_f32 v32, v32"); e("  v_lshrrev_b32 v33, 5, v0"); e("  v_add_f32 v32, 1.0, v32"); e("  v_rcp_f32 v32, v32")
    e("  v_mul_u32_u24 v33, 1152, v33"); e("  v_cvt_pk_bf16_f32 v32, v32, v32"); e("  v_and_b32 v32, 0xffff0000, v32", "sigmoid, rounded to bf16")
    e("  s_sub_u32 s46, s45, 72", "unit u = slice - 72"); e("  s_lshl_b32 s50, s46, 4"); e(f"  s_add_u32 s51, s50, {XIMG}"); e("  v_add3_u32 v33, v33, v30, s51")
    e("  v_lshrrev_b32 v34, 2, v0"); e("  v_mul_u32_u24 v34, 4608, v34"); e("  v_lshl_add_u32 v34, v31, 4, v34")
    e("  s_lshl_b32 s80, s46, 6"); e(f"  s_add_u32 s80, s80, {WS_SLAB}")
    for t in range(1, 9): e(f"  s_add_u32 s{80+t}, s80, {16*4608*t}")
    e("  s_mov_b32 s41, 0x0c04000c"); e("  s_mov_b32 s42, 0x04020100"); e("  v_mov_b32 v35, 0")
if EFS == 2: final_setup()
e("  s_barrier", "A: the rows are requested")
if not WD4E: wd4()
if EFS == 1: final_setup()
e(f"  s_waitcnt vmcnt({0 if WD4E else 8}) lgkmcnt(0)")
stamp(4, True)
e("  s_barrier", "B: the rows are in LDS")
if LOWP: e("  s_setprio 0")
if not LATEC: copy_stores(CW); e("  s_mov_b64 exec, -1")
if EFS == 0: final_setup()
if LOWP == 2: e("  s_setprio 3")
e("  s_branch L_JOIN")
e("L_XH:"); e("  s_barrier", "the prefetch is done"); e("  s_branch L_P1")
e("L_XH2:"); copy_stores(CH); e("  s_branch L_FIN")
cm("---------------------------------------------------------------- roles 0..3: (matrix, half of K)")
e("#MARK C0"); e("L_NOTX:")
e(f"  s_mov_b32 s10, {WB}")
e(f"  s_cmp_ge_u32 s2, {NWT}"); e("  s_cbranch_scc1 L_HELP")
slice_calc(); setup0()
e("  v_lshrrev_b32 v8, 2, v0"); e("  v_mul_u32_u24 v8, 9216, v8"); e("  v_lshrrev_b32 v9, 4, v0"); e("  v_and_b32 v9, 2, v9")
e("  v_xor_b32 v9, v9, v0"); e("  v_and_b32 v9, 3, v9"); e("  v_lshl_add_u32 v8, v9, 4, v8", "16 rows x 64 B, halves swapped in rows 8..15")
e("  s_and_b32 s28, s3, 1"); e(f"  s_mul_i32 s28, s28, {288*9216}"); e("  s_lshl_b32 s29, s45, 6"); e("  s_add_u32 s28, s28, s29")
e("  s_and_b32 s42, s45, 1", "the two WGs that share the lines start on different rows")
e(f"  s_mul_i32 s29, s42, {N0*QS}"); e(f"  s_add_u32 s46, s28, {2*N0*QS}"); e(f"  s_add_u32 s43, s28, {N0*QS}")
e("  s_sub_u32 s43, s43, s29"); e("  s_add_u32 s28, s28, s29")
e("  s_mul_i32 s30, s3, 18432"); e("  s_mov_b32 m0, s30")
e("  s_cmp_ge_u32 s3, 2"); e("  s_waitcnt lgkmcnt(0)")
e("  s_cselect_b32 s8, s26, s24"); e("  s_cselect_b32 s9, s27, s25")
stamp(1)
ops = [("W", i) for i in range(WE)] + [("D", i) for i in range(18)] + [("W", i) for i in range(WE, 8)]
pos = {op: n for n, op in enumerate(ops)}
nis = 0
def issue():
    global nis
    if nis >= len(ops): return False
    k, i = ops[nis]
    if k == "D":
        if N0 and i == N0: e("  s_mov_b32 s28, s43")
        if N0 and i == 2*N0: e("  s_mov_b32 s28, s46")
        e("  buffer_load_dwordx4 v8, s[8:11], s28 offen lds")
        if i < 17: e("  s_addk_i32 m0, 0x400"); e(f"  s_add_u32 s28, s28, {QS}")
    else: wd_load(i)
    nis += 1
    return True
def vwait(op): e(f"  s_waitcnt vmcnt({nis - pos[op] - 1})")
while nis < WE + min(N0, W1): issue()
if NEAR & 1: e("  s_branch L_C2")
e("#MARK C1"); e("L_C2:")
setup1()
e("  v_lshlrev_b32 v9, 9, v3"); e("  v_bfe_u32 v10, v0, 2, 2"); e("  v_lshl_add_u32 v9, v10, 6, v9"); e("  v_and_b32 v10, 3, v0")
e("  v_lshl_add_u32 v9, v10, 3, v9"); e("  v_and_b32 v10, 1, v3"); e("  v_lshl_add_u32 v9, v10, 5, v9")
e("  v_add_u32 v9, s30, v9", "transposing reads, columns 0..15"); e("  v_xor_b32 v10, 32, v9", "columns 16..31")
e("  v_and_b32 v11, 1, v0"); e("  v_mul_u32_u24 v11, 1152, v11"); e("  v_lshl_add_u32 v11, v3, 4, v11")
e("  s_and_b32 s29, s3, 1"); e("  s_mul_i32 s29, s29, 576"); e(f"  s_add_u32 s29, s29, {XIMG}")
e(f"  s_mul_i32 s31, s42, {32*N0}")
e(f"  v_add_u32 v{VA2}, s29, v11", "x fragments"); e(f"  v_add_u32 v11, s31, v{VA2}"); e(f"  v_subrev_u32 v1, s31, v{VA2}")
e("  s_lshl_b32 s29, s3, 8"); e(f"  s_add_u32 s29, s29, {TEX}"); e(f"  v_lshl_add_u32 v{VXW}, v2, 3, s29")
def trreads(s):
    for hh in range(2):
        for u in range(2):
            r = BF + 8*s + 4*hh + 2*u
            e(f"  ds_read_b64_tr_b16 v[{r}:{r+1}], v{9+hh} offset:{2048*s+256*u}")
def mfmas(s):
    for hh in range(2):
        c = "0" if s == 0 else f"v[{ACC+4*hh}:{ACC+4*hh+3}]"
        r = BF + 8*s + 4*hh
        e(f"  v_mfma_f32_16x16x32_bf16 v[{ACC+4*hh}:{ACC+4*hh+3}], v[{AF+4*s}:{AF+4*s+3}], v[{r}:{r+3}], {c}")
E0 = N0 // 2
if N0 == 0:
    e(f"  s_waitcnt vmcnt({O('dsw', 0)})", "w_down is in; the prefetch is far enough ahead by now")
    stamp(2)
    while nis < WE + W2: issue()
for s in range(PB):
    for h in range(2):
        need = 2*s + h
        def ok():
            if nis >= len(ops) or ops[nis][0] != "D": return False
            i = ops[nis][1]
            return i < need + 1 + W1 if i < N0 else (need >= N0 - 1 and i < need + 1 + W2)
        if ok() or h == 1: vwait(("D", need))
        while ok(): issue()
    if s == 0 and N0: stamp(2)
    trreads(s)
while nis < len(ops) and ops[nis][0] == "D": issue()
stamp(5)
e("  s_barrier", "A")
while issue(): pass
e("  s_waitcnt lgkmcnt(0)"); e("  s_barrier", "B")
stamp(4, True); fs(1, True)
if CPRIO: e(f"  s_setprio {CPRIO}")
order = []
for s in range(9):
    ar = 11 if s < E0 else (1 if s < 2*E0 else VA2)
    e(f"  ds_read_b128 v[{AF+4*s}:{AF+4*s+3}], v{ar} offset:{64*s}"); order.append(f"A{s}")
late = list(range(PB, 9))
for s in range(9):
    if late and late[0] <= s + 1:
        t = late.pop(0); vwait(("D", 2*t+1)); trreads(t); order += [f"T{t}"]*4
    tag = f"A{s}" if s < PB else f"T{s}"
    need = len(order) - 1 - order[::-1].index(tag)
    e(f"  s_waitcnt lgkmcnt({min(15, len(order) - need - 1)})")
    mfmas(s)
stamp(3); fs(2)
e("  s_mov_b64 exec, 0xffff"); e("  s_nop 6")
e(f"  ds_write2_b64 v{VXW}, v[{ACC}:{ACC+1}], v[{ACC+4}:{ACC+5}] offset0:0 offset1:16")
e("  s_mov_b64 exec, -1")
cm("---------------------------------------------------------------- all 5 waves: SwiGLU, 128 columns of w_down each")
e("L_JOIN:")
e("  s_waitcnt lgkmcnt(0)"); fs(3, True); e("  s_barrier", "C: the four partial pre-activations are in LDS"); fs(4)
if O("gst", -1) == 21: e("  s_memrealtime s[94:95]")
e("  ds_read2_b32 v[12:13], v5 offset0:0 offset1:64"); e("  ds_read2_b32 v[14:15], v5 offset0:128 offset1:192")
e(f"  ds_read_b32 v23, v{VTAG}")
e("  s_cmp_eq_u32 s3, 4"); e("  s_waitcnt lgkmcnt(0)")
e("  v_add_f32 v12, v12, v13"); e("  v_add_f32 v14, v14, v15")
e("  v_cvt_pk_bf16_f32 v12, v12, v14"); e("  v_lshlrev_b32 v13, 16, v12"); e("  v_mul_f32 v15, 0xbfb8aa3b, v13"); e("  v_exp_f32 v15, v15")
e("  v_and_b32 v14, 0xffff0000, v12"); e("  v_add_f32 v15, 1.0, v15"); e("  v_rcp_f32 v15, v15"); e("  s_nop 0")
e("  v_mul_f32 v13, v13, v15"); e("  v_cvt_pk_bf16_f32 v13, v13, v13"); e("  v_and_b32 v13, 0xffff0000, v13")
e("  v_mul_f32 v13, v13, v14"); e("  v_cvt_pk_bf16_f32 v13, v13, v13", "h = bf16(bf16(silu(a)) * u), in both halves")
fs(5)
if O("gst", -1) == 20: e("  s_memrealtime s[92:93]")
e("  s_cbranch_scc1 L_W4"); e("  s_waitcnt vmcnt(0)"); e("L_W4:")
if O("gst", -1) in (20, 23): e("  s_memrealtime s[94:95]"); fs(6); e("  s_nop 0" if WD4E else f"  s_waitcnt vmcnt({0 if LATEC else 9})")
e(f"  v_and_b32_dpp v12, v13, v6 quad_perm:[0,0,2,2] {DPPM}"); e(f"  v_and_b32_dpp v16, v13, v6 quad_perm:[1,1,3,3] {DPPM}")
e("  s_nop 0"); e("  .p2align 3")
cm("A = h on a diagonal: D[token, column parity and pair][chunk] sums 4 rows of w_down per MFMA")
for mp in range(8):
    src = 12 if mp < 4 else 16; qq = mp & 3
    for r in range(4):
        n = (4*(r-qq)) % 16
        ctl = "quad_perm:[0,1,2,3]" if n == 0 else f"row_ror:{n}"
        e(f"  v_mov_b32_dpp v{AD+4*mp+r}, v{src} {ctl} row_mask:0xf bank_mask:{hex(1<<r)}")
    if mp >= 1:
        m = mp - 1; c = "0" if m == 0 else f"v[{ACC}:{ACC+3}]"
        e(f"  v_mfma_f32_16x16x32_bf16 v[{ACC}:{ACC+3}], v[{AD+4*m}:{AD+4*m+3}], v[{WD+4*m}:{WD+4*m+3}], {c}")
e("  s_nop 0")
e(f"  v_mfma_f32_16x16x32_bf16 v[{ACC}:{ACC+3}], v[{AD+28}:{AD+31}], v[{WD+28}:{WD+31}], v[{ACC}:{ACC+3}]")
e("  s_cselect_b32 exec_lo, 0x00ff00ff, -1"); e("  s_cselect_b32 exec_hi, 0x00ff00ff, -1"); e("  s_nop 5")
cm("4 sums (top 24 bits each) + tag in 16 bytes")
for j in range(3): e(f"  v_perm_b32 v{20+j}, v{ACC+j}, v{ACC+3}, s{56+j}")
if O("gst", -1) == 22: e("  s_memrealtime s[94:95]")
e("  buffer_store_dwordx4 v[20:23], v7, s[16:19], s36 offen" + HS)
GATH = AMP and int(AMP.split(",")[0]) >= 30
if GATH:
    e("  s_memrealtime s[90:91]"); e("  s_waitcnt lgkmcnt(0)")
    GS_ = O("gst", -1); GR_ = O("grole", -1)
    if GS_ == 20: e("  s_sub_u32 s90, s94, s92"); e("  s_add_u32 s90, s90, s64")
    elif GS_ >= 21: e("  s_mov_b32 s90, s94")
    elif GS_ >= 0: e(f"  s_mov_b32 s90, s{64+2*GS_}")
    if GR_ == 4: e("  s_cmp_eq_u32 s3, 4"); e("  s_cselect_b32 s90, s90, s64")
    if GR_ == 0: e("  s_cmp_lg_u32 s3, 4"); e("  s_cselect_b32 s90, s90, s64")
    e("  s_mov_b64 exec, 1"); e("  v_mov_b32 v24, s90"); e("  v_mov_b32 v25, s64"); e("  v_mov_b32 v26, v23"); e("  v_mov_b32 v27, 0")
    e("  s_lshl_b32 s92, s2, 3"); e("  s_add_u32 s92, s92, s3"); e("  s_lshl_b32 s92, s92, 4"); e("  s_add_u32 s92, s92, 0xd0000")
    e("  buffer_store_dwordx4 v[24:27], v27, s[16:19], s92 offen sc1")
    e("  s_cmp_eq_u32 s3, 4")
if STAMP:
    e("  s_cbranch_scc1 L_S6"); stamp(6); e("  s_branch L_FIN"); e("L_S6:"); stamp(2)
else: e("  s_cbranch_scc0 L_FIN")
if LATEC and O("cb", 0): e("  s_barrier", "released when the other four waves have ended: their sums are on the way")
if LATEC == 1: e("  s_mov_b64 exec, -1"); copy_stores(CW)
e("  s_cmp_ge_u32 s46, 72"); e(f"  s_cbranch_scc1 {'L_WC' if LATEC == 2 else 'L_FIN'}")
cm("---------------------------------------------------------------- 72 waves: sum over the 144 WGs, write the routed rows")
e("  s_mov_b64 exec, -1"); e("  ds_read_u16_d16_hi v35, v33"); e(f"  s_mov_b32 s61, {SPIN}")
e("  s_waitcnt vmcnt(0)")
stamp(6)
if RSL: e(f"  s_sleep {RSL}")
def rload(t): e(f"  buffer_load_dwordx4 v[{R0+4*t}:{R0+3+4*t}], v34, s[16:19], s{80+t} offen" + HL)
def racc(t):
    r = R0 + 4*t
    e(f"  v_perm_b32 v{r+3}, v{r+1}, v{r}, s41"); e(f"  v_perm_b32 v{r+3}, v{r+2}, v{r+3}, s42")
    if t:
        e(f"  v_pk_add_f32 v[{R0}:{R0+1}], v[{R0}:{R0+1}], v[{r}:{r+1}]"); e(f"  v_pk_add_f32 v[{R0+2}:{R0+3}], v[{R0+2}:{R0+3}], v[{r+2}:{r+3}]")
def rchain(extra, lab):
    for t in range(9):
        if lab: e(f"L_R{t}:")
        e(f"  s_waitcnt vmcnt({8-t+extra})"); e(f"  v_cmp_ne_u32 vcc, s47, v{R0+4*t+3}"); e(f"  s_cbranch_vccnz L_RR{t}")
        if lab: e(f"L_RA{t}:")
        racc(t)
for t in range(9): rload(t)
if LATEC == 2:
    copy_stores(CW); e("  s_mov_b64 exec, -1")
    rchain(9, False)
    e("L_RD:")
else:
    rchain(0, True)
if not O("nored5", 0): stamp(5)
e("  s_nop 1"); e(f"  v_permlane32_swap_b32 v{R0}, v{R0+2}"); e(f"  v_permlane32_swap_b32 v{R0+1}, v{R0+3}")
e(f"  v_add_f32 v{R0}, v{R0}, v{R0+2}"); e(f"  v_add_f32 v{R0+1}, v{R0+1}, v{R0+3}"); e("  s_nop 1")
e(f"  v_permlane16_swap_b32 v{R0}, v{R0+1}"); e(f"  v_add_f32 v{R0}, v{R0}, v{R0+1}"); e("  s_nop 1")
e(f"  v_add_f32_dpp v{R0}, v{R0}, v{R0} row_ror:4 {DPPM}"); e("  s_nop 1"); e(f"  v_add_f32_dpp v{R0}, v{R0}, v{R0} row_ror:8 {DPPM}")
e(f"  v_cvt_pk_bf16_f32 v16, v{R0}, v{R0}"); e("  v_and_b32 v16, 0xffff0000, v16"); e("  v_mul_f32 v16, v16, v32")
e("  v_cvt_pk_bf16_f32 v16, v16, v16"); e("  v_and_b32 v16, 0xffff0000, v16"); e("  s_waitcnt lgkmcnt(0)")
e("  v_add_f32 v16, v16, v35"); e("  v_cvt_pk_bf16_f32 v16, v16, v16")
e("  s_mov_b32 exec_lo, 0x000f000f"); e("  s_mov_b32 exec_hi, 0x000f000f")
e("  buffer_store_short v16, v29, s[20:23], s50 offen" + CFN)
e("  s_cmp_lg_u32 s46, 0"); e("  s_cbranch_scc1 L_FIN")
e("  s_mov_b64 exec, 1", "every reader of d_ws[0] is behind the sums seen here"); e("  v_mov_b32 v16, s47"); e(f"  v_mov_b32 v17, {WS_E}")
e("  buffer_store_dword v16, v17, s[16:19], 0 offen" + CFN)
e("L_FIN:"); stamp_flush(); e("L_END:"); e("  s_endpgm")
if LATEC == 2:
    e("L_WC:"); e("  s_mov_b64 exec, -1"); e("  s_branch L_XH2")
    rchain(0, True); e("  s_branch L_RD")
for t in range(9):
    e(f"L_RR{t}:"); e("  s_sub_u32 s61, s61, 1"); e(f"  s_cbranch_scc1 L_RA{t}")
    for t2 in range(t, 9): rload(t2)
    e(f"  s_branch L_R{t}")
cm("---------------------------------------------------------------- prefetch waves: one word per 128-byte line")
e("#MARK H0"); e("L_HELP:")
e(f"  s_sub_u32 s28, s2, {NWT}"); e("  s_and_b32 s29, s28, 7"); e("  s_lshr_b32 s28, s28, 3")
e("  s_and_b32 s33, s3, 1"); e("  s_mul_i32 s33, s33, 288"); e(f"  s_mul_i32 s32, s28, {HR}"); e("  s_add_u32 s32, s32, s33")
e(f"  s_add_u32 s32, s32, {32*N0}"); e("  s_mul_i32 s32, s32, 9216"); e("  s_mul_i32 s34, s29, 1152"); e("  s_add_u32 s32, s32, s34")
e("  v_mul_u32_u24 v3, 0x1c72, v0"); e("  v_lshrrev_b32 v3, 16, v3", "lane / 9"); e("  v_mul_u32_u24 v4, 9, v3"); e("  v_sub_u32 v4, v0, v4")
e("  v_mul_u32_u24 v3, 9216, v3"); e("  v_lshl_add_u32 v3, v4, 7, v3")
if HA:
    cm("the column block whose lines fill only half of a CU's L1 (byte column 384 mod 1024): all its rows first")
    e("  s_and_b32 s36, s3, 1"); e("  s_lshl1_add_u32 s36, s28, s36"); e(f"  s_mul_i32 s36, s36, {21*9216}")
    e("  s_cmp_ge_u32 s29, 4"); e("  s_addc_u32 s37, s29, 0"); e("  s_lshl_b32 s37, s37, 10"); e("  s_add_u32 s36, s36, s37"); e("  s_add_u32 s36, s36, 384")
    e("  v_cmp_lt_u32 vcc, 20, v0"); e("  v_mul_u32_u24 v5, 9216, v0"); e(f"  v_subrev_u32 v6, {21*9216 - 1024}, v5"); e("  v_cndmask_b32 v5, v5, v6, vcc")
    e("  s_cmp_eq_u32 s29, 3"); e("  s_cselect_b32 s37, 42, 21")
e("  s_lshl2_add_u32 s28, s28, s3")
e(f"  s_mul_i32 s29, s29, {5184*128}")
if RP: e(f"  s_add_u32 s29, s29, {RP*8192}")
e("  v_lshlrev_b32 v2, 7, v0")
nr = -(-(288 - 32*N0) // (NH*HR))
assert nr - HG >= 1
e(f"  s_mov_b32 s30, {nr-HG}")
e("  s_cmp_ge_u32 s3, 2"); e("  s_waitcnt lgkmcnt(0)")
e("  s_cselect_b32 s8, s26, s24"); e("  s_cselect_b32 s9, s27, s25")
if O("tw", 0):
    e("  s_load_dword s40, s[12:13], 0", "first touch of w_down and d_out: address translation only")
    e("  s_load_dword s41, s[20:21], 0")
if HA:
    e("  s_bfm_b64 exec, s37, 0"); e(f"  buffer_load_dword v{DUM}, v5, s[8:11], s36 offen")
e(f"  s_bfm_b64 exec, {9*HR}, 0")
for r in range(HG):
    e(f"  buffer_load_dword v{DUM}, v3, s[8:11], s32 offen" + GNT); e(f"  s_add_u32 s32, s32, {NH*HR*9216}")
CPS = 9 - 2*RP
def wchunk(wait):
    if O("wil", 0):
        e(f"  s_mul_hi_u32 s31, s28, {(2**32 + 17)//18}"); e("  s_mul_i32 s35, s31, 18"); e("  s_sub_u32 s35, s28, s35")
    else:
        e(f"  s_mul_hi_u32 s35, s28, {(2**32 + CPS - 1)//CPS}"); e(f"  s_mul_i32 s31, s35, {CPS}"); e("  s_sub_u32 s31, s28, s31")
    e("  s_mul_i32 s35, s35, 36864"); e("  s_lshl_b32 s31, s31, 12"); e("  s_add_u32 s35, s35, s31"); e("  s_add_u32 s35, s35, s29")
    if wait: e(f"  s_waitcnt vmcnt({HT-1})")
    e(f"  buffer_load_dword v{DUM}, v2, s[12:15], s35 offen" + PNT)
    e("  s_add_u32 s28, s28, 56")
if not UNG: e("  s_barrier")
stamp(1)
if HWF:
    e("  s_bfm_b64 exec, 32, 0")
    for _ in range(HWF): wchunk(False)
    e(f"  s_bfm_b64 exec, {9*HR}, 0")
e("L_HGL:"); e(f"  s_waitcnt vmcnt({HT-1+HX})"); e(f"  buffer_load_dword v{DUM}, v3, s[8:11], s32 offen" + GNT)
e(f"  s_add_u32 s32, s32, {NH*HR*9216}"); e("  s_sub_u32 s30, s30, 1"); e("  s_cmp_lg_u32 s30, 0"); e("  s_cbranch_scc1 L_HGL")
if O("gul", 0): e("  s_waitcnt vmcnt(0)")
stamp(2)
if WE == 4:
    e("  s_bfm_b64 exec, 36, 0")
    e("L_HWL:")
    e("  s_mul_i32 s35, s28, 9216"); e("  s_add_u32 s35, s35, s29"); e("  s_add_u32 s35, s35, 4608")
    e(f"  s_waitcnt vmcnt({HT-1})"); e(f"  buffer_load_dword v{DUM}, v2, s[12:15], s35 offen" + PNT)
    e("  s_add_u32 s28, s28, 56"); e("  s_cmp_lt_u32 s28, 72"); e("  s_cbranch_scc1 L_HWL")
elif WE < 8:
    e("  s_bfm_b64 exec, 32, 0")
    e("L_HWL:")
    wchunk(not O("hwn", 0))
    e(f"  s_cmp_lt_u32 s28, {18*CPS}"); e("  s_cbranch_scc1 L_HWL")
if UNG: e("  s_barrier")
e("  s_waitcnt vmcnt(0)"); e("  s_barrier"); e("  s_branch L_FIN")
e("#MARK H1"); e("L_CODE_END:")
cm("rare path: x + x*0 turns an infinity into a NaN")
for n in range(1, ncopy+1):
    e(f"L_FIX{n}:"); e(f"  s_mov_b32 s98, {n}"); e("  s_branch L_FIX")
e("L_FIX:"); e("  s_mov_b32 s29, 0x07060302")
for j in range(36):
    r = XR + j
    e(f"  v_lshlrev_b32 v12, 16, v{r}"); e(f"  v_and_b32 v13, 0xffff0000, v{r}"); e("  v_fma_f32 v12, v12, 0, v12"); e("  v_fma_f32 v13, v13, 0, v13")
    e(f"  v_perm_b32 v{r}, v13, v12, s29")
e("  s_cmp_eq_u32 s98, 1"); e("  s_cbranch_scc1 L_FIXR1"); e("  s_branch L_FIXR2")
e('.section .rodata,"a"'); e(".p2align 6"); e(f".amdhsa_kernel {K}")
e("  .amdhsa_next_free_vgpr 200"); e("  .amdhsa_next_free_sgpr 102"); e("  .amdhsa_accum_offset 200")
e("  .amdhsa_group_segment_fixed_size 0"); e("  .amdhsa_kernarg_size 64"); e("  .amdhsa_user_sgpr_count 2")
e("  .amdhsa_user_sgpr_kernarg_segment_ptr 1"); e("  .amdhsa_system_sgpr_workgroup_id_x 1"); e("  .amdhsa_float_denorm_mode_32 3")
e(".end_amdhsa_kernel")
def cut(a, b):
    i = out.index("#MARK " + a); j = out.index("#MARK " + b)
    blk = out[i+1:j]; del out[i:j+1]; return blk
blk = []
if NEAR & 2:
    h = cut("H0", "H1")
    if not NEAR & 1:
        pass
    blk += h
if NEAR & 1: blk = cut("C0", "C1") + blk
i = out.index("#MARK XINIT"); out[i:i+1] = blk
out = [l for l in out if not l.startswith("#MARK")]
if not NEAR: out = [l for l in out if l not in ("L_X2:", "L_C2:")]
open(sys.argv[1], "w").write("\n".join(out) + "\n")
```

```python
import sys
NAME = "standalone__moe_arch_mod__prompt"
S, D, F = 2048, 576, 4608
XB = S*D*2
WB = D*F*2
opts = dict(a.split("=") for a in sys.argv[2:] if "=" in a)
def O(k, d): return int(opts.get(k, d))
STAMP = O("stamp", 0); AMP = opts.get("amp"); FINE = O("fine", 0)
if AMP: STAMP = 1
GS = O("gs", 64); REP = O("rep", 4); RS = 256*GS
LG = {16: 0, 32: 1, 64: 2}[GS]; LR = {1: 0, 2: 1, 4: 2, 8: 3}[REP]; NL = REP*GS//16
assert NL <= 16
WS_E = 0; WS_GRAN = 4096; WS_SLAB = 4096 + REP*RS; WS_SIZE = 1 << 20; WS_STAMP = 1 << 21
N0 = O("n0", 2); W1 = O("w1", 4); W2 = O("w2", 4); WE = O("we", 0); PB = O("pb", 7); RP = O("rp", 0)
HR = O("hr", 4); HT = O("ht", 2); HG = O("hg", 1)
PSL = O("psl", 2); SPIN = O("spin", 200000); RSL = O("rsl", 0)
CFN = {0: "", 1: " sc1", 2: " sc0 sc1"}[O("cf", 0)]; WNT = " nt" if O("wnt", 0) else ""; PNT = " nt" if O("pnt", 0) else ""; GNT = " nt" if O("gnt", 0) else ""; XNT = " nt" if O("xnt", 0) else ""; LATEC = O("latec", 1); FL = {0: "", 1: " sc1", 2: " sc0 sc1", 3: " sc1 nt", 4: " nt"}; HS = FL[O("hs", 1)]; HL = FL[O("hl", 1)]; CW = FL[O("cw", 1)]; CH = FL[O("ch", 1)]; WD4E = O("wd4e", 1); BAR0 = O("bar0", 0); C3 = O("c3", 0); NEAR = O("near", 0); UNG = O("ung", 0); HA = O("ha", 0); HWF = O("hwf", 0); HX = O("hx", 0); EFS = O("efs", 1); LOWP = O("lowp", 1); CPRIO = O("cprio", 0)
NWT = 144; NH = 14
out = []
def e(s="", c=None): out.append(s if c is None else f"{s:<72}; {c}")
def cm(s): out.append("; " + s)
def stamp(i, wait=False):
    if STAMP and (i in (0, 7) or not FINE):
        e(f"  s_memrealtime s[{64+2*i}:{65+2*i}]")
        if wait: e("  s_waitcnt lgkmcnt(0)")
def fs(i, wait=False):
    if FINE:
        e(f"  s_memtime s[{64+2*i}:{65+2*i}]")
        if wait: e("  s_waitcnt lgkmcnt(0)")
def stamp_flush():
    if AMP:
        A, B, KK, WV, WG = map(int, AMP.split(","))
        if O("endw", 0): e("  s_waitcnt vmcnt(0)")
        stamp(7, True)
        e(f"  s_cmp_lg_u32 s2, {WG}"); e("  s_cbranch_scc1 L_AMPX")
        e(f"  s_cmp_lg_u32 s3, {WV}"); e("  s_cbranch_scc1 L_AMPX")
        if A >= 30:
            e("  s_sleep 60"); e("  s_mov_b64 exec, -1"); e("  v_lshlrev_b32 v1, 4, v0"); e("  v_mov_b32 v2, 0x80000000"); e("  v_mov_b32 v3, 0")
            for i in range(18):
                e(f"  s_mov_b32 s92, {0xd0000 + 1024*i}")
                e("  buffer_load_dwordx4 v[24:27], v1, s[16:19], s92 offen sc1"); e("  s_waitcnt vmcnt(0)")
                if A in (30, 31, 32, 35): e("  v_subrev_u32 v24, s64, v24")
                elif A == 33: e("  v_sub_u32 v24, v24, v25")
                else: e("  v_subrev_u32 v24, s64, v25")
                e("  v_lshlrev_b32 v24, 12, v24"); e(f"  v_add_u32 v25, {64*i}, v0"); e("  v_or_b32 v24, v24, v25")
                e("  v_cmp_eq_u32 vcc, s47, v26"); e("  s_nop 1"); e("  v_cndmask_b32 v24, v2, v24, vcc"); e("  v_max_i32 v3, v3, v24" if i else "  v_mov_b32 v3, v24")
            for ctl in ("quad_perm:[1,0,3,2] row_mask:0xf bank_mask:0xf", "quad_perm:[2,3,0,1] row_mask:0xf bank_mask:0xf", "row_ror:4 row_mask:0xf bank_mask:0xf", "row_ror:8 row_mask:0xf bank_mask:0xf",
                        "row_bcast:15 row_mask:0xa bank_mask:0xf", "row_bcast:31 row_mask:0xc bank_mask:0xf"):
                e("  s_nop 1"); e(f"  v_max_i32_dpp v3, v3, v3 {ctl}")
            e("  s_nop 1"); e("  v_readlane_b32 s60, v3, 63")
            if A in (30, 33, 34): e("  s_ashr_i32 s60, s60, 12")
            elif A == 31: e("  s_bfe_u32 s60, s60, 0x30003")
            elif A == 32: e("  s_and_b32 s60, s60, 7")
            else: e("  s_bfe_u32 s60, s60, 0x50006")
            e("  s_memrealtime s[78:79]"); e("  s_waitcnt lgkmcnt(0)")
        else:
            e(f"  s_sub_u32 s60, s{64+2*B}, s{64+2*A}")
        e(f"  s_mul_i32 s60, s60, {KK}")
        e("L_AMP:"); e("  s_memrealtime s[62:63]"); e("  s_waitcnt lgkmcnt(0)"); e("  s_sub_u32 s62, s62, s78")
        e("  s_cmp_lt_u32 s62, s60"); e("  s_cbranch_scc1 L_AMP"); e("L_AMPX:")
    elif STAMP:
        if FINE: e("  s_memtime s[78:79]"); e("  s_waitcnt lgkmcnt(0)")
        else: stamp(7, True)
        e("  s_mov_b64 exec, 1")
        e("  s_lshl_b32 s60, s2, 3"); e("  s_add_u32 s60, s60, s3"); e("  s_lshl_b32 s60, s60, 6")
        e(f"  s_add_u32 s60, s60, {WS_STAMP}"); e("  s_mov_b32 s18, 0x1000000"); e("  v_mov_b32 v1, 0")
        for j in range(4):
            for k in range(4): e(f"  v_mov_b32 v{4+k}, s{64+4*j+k}")
            e(f"  buffer_store_dwordx4 v[4:7], v1, s[16:19], s60 offen offset:{16*j}"); e("  s_nop 1")

hdr = open('cdna_kernels/%s.s.ref' % NAME).read().split('\n')
for l in hdr:
    if l.startswith('; @launch'): break
    e(l)
XIMG = 73728; TAGL = XIMG + 2304; TEX = XIMG + 3072; WRIMG = TEX + 1024; LDS = 83968
e(f"; @launch grid=(256,1,1) block=(320,1,1) lds={LDS}")
DOC = """
One launch, 256 workgroups of 5 waves, one per CU (LDS and VGPR use allow one).
 role 4 (wave 0), every WG : 8 rows of x -> router scores -> local top-2 -> tagged granule in d_ws,
                             later the copy of its rows that were not routed.
 WGs 0..143, roles 0..3    : 32 columns of w_gate / w_up (LDS-DMA, transposing LDS reads, MFMA),
                             SwiGLU, the matching 32 rows of w_down (MFMA), tagged partial sums in d_ws.
 WGs 0..143, role 4        : gathers the 256 granules, global top-2, brings both rows into LDS;
                             72 of them add up the 144 partial sums of 8 columns and write the routed rows.
 WGs 144..255, roles 0..3  : pull weight lines into the L2 that the weight WGs with the same id mod 8
                             are expected to share (speed only, nothing depends on it).
 Hand-offs between WGs are 16-byte pieces that carry a tag, written and read with sc1.
 tag = d_ws[0] + 0x01010101; d_ws[0] is set to the tag at the end, so it differs from launch to launch.
"""
for l in DOC.strip("\n").split("\n"): cm(l)
e('.amdgcn_target "amdgcn-amd-amdhsa--gfx950"'); e(".text")
K = NAME + "_kernel"
e(f".globl {K}"); e(".p2align 8"); e(f".type {K},@function"); e(f"{K}:")
DPPM = "row_mask:0xf bank_mask:0xf"
AF = 12; BF = 48; ACC = 120; WD = 128; AD = 160; XR = 84; WR = 48; R0 = 48
VXW = 192; VA2 = 193; VTAG = 194; DUMC = 196; DUM = 197
QS = 16*9216

def slice_calc():
    e("  s_and_b32 s45, s2, 7"); e("  s_mul_i32 s45, s45, 18"); e("  s_lshr_b32 s44, s2, 3")
    e("  s_add_u32 s45, s45, s44", "slice: neighbours are 8 ids apart")
def setup0():
    e("  v_and_b32 v2, 15, v0"); e("  v_lshrrev_b32 v3, 4, v0")
    e("  v_mul_u32_u24 v4, 9216, v3"); e("  v_lshl_add_u32 v4, v2, 4, v4", "w_down: row 8g, 16-byte chunk c")
    e(f"  s_mul_i32 s34, s45, {32*1152}"); e("  s_lshl_b32 s35, s3, 8"); e("  s_add_u32 s34, s34, s35"); e("  s_add_u32 s35, s34, 4608")
def setup1():
    e("  v_lshrrev_b32 v5, 2, v2"); e("  v_lshl_add_u32 v5, v3, 3, v5"); e("  v_and_b32 v6, 1, v0"); e("  v_lshl_add_u32 v5, v6, 2, v5")
    e("  v_lshlrev_b32 v5, 3, v5"); e("  v_and_b32 v6, 2, v0"); e("  v_lshl_add_u32 v5, v6, 1, v5")
    e(f"  v_add_u32 v5, {TEX}, v5", "exchange table: this lane's (f, token)")
    e("  v_and_b32 v6, 1, v0"); e("  v_cmp_eq_u32 vcc, 1, v6"); e("  v_mov_b32 v6, 0xffff"); e("  v_mov_b32 v7, 0xffff0000")
    e("  v_cndmask_b32 v6, v6, v7, vcc", "half-word mask by lane parity")
    e("  v_lshlrev_b32 v7, 6, v2"); e("  v_lshl_add_u32 v7, v3, 4, v7", "partial-sum piece of this lane")
    e("  s_mul_i32 s36, s45, 4608"); e("  s_lshl_b32 s37, s3, 10"); e("  s_add_u32 s36, s36, s37"); e(f"  s_add_u32 s36, s36, {WS_SLAB}")
    e(f"  v_mov_b32 v{VTAG}, {TAGL}")
    e("  s_mov_b32 s56, 0x07060501"); e("  s_mov_b32 s57, 0x07060502"); e("  s_mov_b32 s58, 0x07060503")
    for j in range(0, 32, 2): e(f"  v_mov_b64 v[{AD+j}:{AD+j+1}], 0")
def wd_load(mp): e(f"  buffer_load_dwordx4 v[{WD+4*mp}:{WD+4*mp+3}], v4, s[12:15], s{34+(mp>>2)} offen offset:{1152*(mp&3)}" + WNT)
ncopy = 0
def copy_stores(fl=""):
    global ncopy
    ncopy += 1
    e("  s_and_b32 s38, s32, 0xffff"); e("  s_and_b32 s39, s33, 0xffff")
    e("  v_cmp_ne_u32 s[52:53], s38, v11"); e("  v_cmp_ne_u32 s[54:55], s39, v11")
    e("  s_and_b64 exec, s[52:53], s[54:55]", "rows that are not routed")
    e("  s_cmp_lg_u64 s[96:97], 0"); e(f"  s_cbranch_scc1 L_FIX{ncopy}"); e(f"L_FIXR{ncopy}:")
    for i in range(9): e(f"  buffer_store_dwordx4 v[{XR+4*i}:{XR+4*i+3}], v10, s[20:23], s28 offen offset:{128*i}{fl}")

if STAMP:
    for i in range(2, 16): e(f"  s_mov_b32 s{64+i}, 0")
stamp(0)
cm("SRDs: x s[4:7], w_r or w_gate/w_up s[8:11], w_down s[12:15], d_ws s[16:19], d_out s[20:23]")
e("  s_load_dwordx2 s[4:5], s[0:1], 0"); e("  s_load_dwordx2 s[8:9], s[0:1], 8"); e("  s_load_dwordx2 s[16:17], s[0:1], 56")
e("  s_load_dwordx4 s[24:27], s[0:1], 16"); e("  s_load_dwordx2 s[12:13], s[0:1], 32"); e("  s_load_dwordx2 s[20:21], s[0:1], 40")
e("  s_getpc_b64 s[28:29]", "read one word of every line of the code: it lands in L2"); e("L_PC:")
e("  v_lshlrev_b32 v2, 7, v0"); e("  v_cmp_gt_u32 vcc, (L_CODE_END-L_PC+127)/128, v0")
e("  s_and_saveexec_b64 s[30:31], vcc"); e("  s_cbranch_execz L_NOPF")
e(f"  global_load_dword v{DUMC}, v2, s[28:29]"); e("L_NOPF:"); e("  s_mov_b64 exec, -1")
e("  v_lshrrev_b32 v1, 6, v0"); e("  v_and_b32 v0, 63, v0"); e("  v_readfirstlane_b32 s3, v1")
e("  s_cmp_ge_u32 s2, 256"); e("  s_cbranch_scc1 L_END")
e("  s_sub_u32 s3, s3, 1", "role: wave 0 -> 4, wave k -> k-1"); e("  s_cselect_b32 s3, 4, s3")
for r, v in ((6, XB), (7, "0x20000"), (11, "0x20000"), (14, WB), (15, "0x20000"), (18, WS_SIZE), (19, "0x20000"), (22, XB), (23, "0x20000")):
    e(f"  s_mov_b32 s{r}, {v}")
if NEAR == 2:
    e(f"  s_mov_b32 s10, {WB}"); e("  s_cmp_eq_u32 s3, 4"); e("  s_cbranch_scc1 L_X1")
    e(f"  s_cmp_ge_u32 s2, {NWT}"); e("  s_cbranch_scc1 L_HELP"); e("  s_branch L_NOTX"); e("L_X1:")
else:
    e("  s_cmp_lg_u32 s3, 4"); e("  s_cbranch_scc1 L_NOTX")
cm("---------------------------------------------------------------- role 4: router scores of 8 rows")
e("  s_setprio 3")
e(f"  s_mov_b32 s10, {D*2}"); e(f"  s_mov_b32 m0, {WRIMG}")
e("  v_lshlrev_b32 v8, 4, v0"); e("  v_and_b32 v1, 0x70, v8"); e("  v_lshrrev_b32 v9, 3, v0")
e("  v_mul_u32_u24 v10, 1152, v9"); e("  v_add_u32 v10, v10, v1", "8 lanes per row"); e("  s_mul_i32 s28, s2, 9216")
e("  s_waitcnt lgkmcnt(0)")
e(f"  s_load_dword s47, s[16:17], {WS_E}")
e("  buffer_load_dwordx4 v8, s[8:11], 0 offen lds", "w_r -> LDS"); e("  s_mov_b64 exec, 0xff")
e("  buffer_load_dwordx4 v8, s[8:11], 0 offen offset:1024 lds"); e("  s_mov_b64 exec, -1")
for i in range(9): e(f"  buffer_load_dwordx4 v[{XR+4*i}:{XR+4*i+3}], v10, s[4:7], s28 offen offset:{128*i}" + XNT)
if BAR0: e("  s_barrier", "x goes first in this CU's queue")
if NEAR: e("  s_branch L_X2")
e("#MARK XINIT"); e("L_X2:")
e(f"  v_add_u32 v1, {WRIMG}, v1")
e("  s_lshl_b32 s29, s2, 3"); e("  s_sub_u32 s29, 2047, s29"); e("  v_sub_u32 v11, s29, v9", "2047 - row"); e("  s_mov_b32 s30, 0xffff0000")
e(f"  s_and_b32 s29, s2, {REP-1}"); e(f"  s_mul_i32 s27, s29, {RS}"); e(f"  s_add_u32 s27, s27, {WS_GRAN}", "the copy of the granules this WG reads")
for j in range(1, 4): e(f"  s_add_u32 s{47+j}, s27, {64*GS*j}")
e("  s_and_b32 s29, s2, 7"); e("  s_lshl_b32 s29, s29, 5"); e("  s_lshr_b32 s31, s2, 3"); e("  s_add_u32 s29, s29, s31")
e(f"  s_mul_i32 s29, s29, {GS}"); e(f"  s_add_u32 s31, s29, {WS_GRAN}", "own granule")
e(f"  v_mul_u32_u24 v44, {GS}, v0")
for j in range(4): e(f"  v_mov_b32 v{12+j}, 0")
e("  v_bfrev_b32 v22, 1")
e(f"  v_bfe_u32 v21, v0, {LG}, {LR}"); e(f"  v_mul_u32_u24 v21, {RS}, v21"); e(f"  v_and_b32 v19, {GS//16-1}, v0"); e("  v_lshl_add_u32 v21, v19, 4, v21")
e(f"  s_mov_b32 s61, {SPIN}"); e(f"  v_mov_b32 v45, {TAGL}")
e("  s_waitcnt vmcnt(9) lgkmcnt(0)")
for i in range(9): e(f"  ds_read_b128 v[{WR+4*i}:{WR+4*i+3}], v1 offset:{128*i}")
e("  s_add_u32 s47, s47, 0x01010101", "tag of this launch"); e("  v_mov_b32 v18, s47")
for i in range(9):
    e(f"  s_waitcnt vmcnt({8-i}) lgkmcnt({8-i})")
    for j in range(4): e(f"  v_dot2c_f32_bf16 v{12+j}, v{XR+4*i+j}, v{WR+4*i+j}")
e("  s_nop 1")
e("  v_add_f32 v12, v12, v13"); e("  v_add_f32 v14, v14, v15"); e("  v_add_f32 v12, v12, v14")
e("  s_movk_i32 s29, 0x207"); e("  v_cmp_class_f32 s[96:97], v12, s29", "lanes that hold an inf or a NaN")
e(f"  v_add_f32_dpp v12, v12, v12 quad_perm:[1,0,3,2] {DPPM}"); e("  s_nop 1")
e(f"  v_add_f32_dpp v12, v12, v12 quad_perm:[2,3,0,1] {DPPM}"); e("  s_nop 1")
e(f"  v_add_f32_dpp v12, v12, v12 row_half_mirror {DPPM}")
cm("key = order-preserving bf16 score << 16 | 2047 - row; NaN sorts last")
e("  v_cvt_pk_bf16_f32 v13, v12, v12"); e("  v_cmp_u_f32 vcc, v12, v12"); e("  v_ashrrev_i32 v14, 31, v13")
e("  v_bitop3_b32 v13, v13, v14, v22 bitop3:0x1e"); e("  v_cndmask_b32 v13, v13, 0, vcc"); e("  v_and_or_b32 v13, v13, s30, v11")
e("  s_nop 1")
e(f"  v_max_u32_dpp v16, v13, v13 row_ror:8 {DPPM}"); e(f"  v_min_u32_dpp v17, v13, v13 row_ror:8 {DPPM}"); e("  s_nop 0")
for ctl in ("row_bcast:15 row_mask:0xa bank_mask:0xf", "row_bcast:31 row_mask:0xc bank_mask:0xf"):
    e(f"  v_min_u32_dpp v14, v16, v16 {ctl}"); e(f"  v_max_u32_dpp v16, v16, v16 {ctl}")
    e(f"  v_max_u32_dpp v15, v17, v17 {ctl}"); e("  v_max_u32 v17, v14, v15")
e(f"  s_lshl_b64 exec, {hex((1 << NL) - 1)}, 48", f"lanes 48..63 hold the pair: {REP} copies x {GS} bytes")
e("  buffer_store_dwordx4 v[16:19], v21, s[16:19], s31 offen" + HS)
stamp(3)
e(f"  s_cmp_lt_u32 s2, {NWT}"); e("  s_cbranch_scc1 L_XG"); e("  s_barrier", "prefetch WG: let the other waves fill the queue"); e("L_XG:")
e("  ds_write_b32 v45, v18"); e("  s_mov_b64 exec, -1")
slice_calc(); setup0(); setup1()
e(f"  s_cmp_ge_u32 s2, {NWT}"); e("  s_cbranch_scc1 L_XH")
def wd4():
    e("  s_mov_b32 exec_lo, 0x00ff00ff", "columns 512..575 of w_down"); e("  s_mov_b32 exec_hi, 0x00ff00ff")
    for mp in range(8): wd_load(mp)
    e("  s_mov_b64 exec, -1")
if WD4E: wd4()
if RP:
    e("  v_lshlrev_b32 v46, 7, v0"); e(f"  s_mul_i32 s29, s45, {32*1152}")
    for r in range(RP):
        e(f"  buffer_load_dword v{DUM}, v46, s[12:15], s29 offen" + PNT)
        if r < RP-1: e("  s_add_u32 s29, s29, 8192")
e("  s_waitcnt vmcnt(0)")
if O("nored5", 0): stamp(5)
e("L_P1:")
if O("lsl", 0): e(f"  s_sleep {O('lsl', 0)}", "back off before every read of the granules")
b = 48
for j in range(4): e(f"  buffer_load_dwordx4 v[{b+4*j}:{b+3+4*j}], v44, s[16:19], s{27 if j == 0 else 47+j} offen" + HL)
e("  s_waitcnt vmcnt(0)")
e(f"  v_cmp_ne_u32 vcc, s47, v{b+2}"); e(f"  v_cmp_ne_u32 s[32:33], s47, v{b+6}")
e(f"  v_cmp_ne_u32 s[38:39], s47, v{b+10}"); e(f"  v_cmp_ne_u32 s[40:41], s47, v{b+14}")
e("  s_or_b64 vcc, vcc, s[32:33]"); e("  s_or_b64 s[38:39], s[38:39], s[40:41]"); e("  s_or_b64 vcc, vcc, s[38:39]")
e("  s_cbranch_scc0 L_PT")
if not O("lsl", 0): e(f"  s_sleep {PSL}", "some granule is missing: back off and read again")
e("  s_sub_u32 s61, s61, 1"); e("  s_cbranch_scc0 L_P1")
e("  .p2align 3"); e("L_PT:")
def merge(a1, a2, b1, b2, o1, o2, t):
    e(f"  v_min_u32 v{t}, v{a1}, v{b1}"); e(f"  v_max_u32 v{o1}, v{a1}, v{b1}"); e(f"  v_max3_u32 v{o2}, v{t}, v{a2}, v{b2}")
merge(b, b+1, b+4, b+5, 40, 41, 12); merge(b+8, b+9, b+12, b+13, 42, 43, 13); merge(40, 41, 42, 43, 40, 41, 12)
e("  s_nop 0")
for ctl in (f"quad_perm:[1,0,3,2] {DPPM}", f"quad_perm:[2,3,0,1] {DPPM}", f"row_ror:4 {DPPM}", f"row_ror:8 {DPPM}",
            "row_bcast:15 row_mask:0xa bank_mask:0xf", "row_bcast:31 row_mask:0xc bank_mask:0xf"):
    e(f"  v_min_u32_dpp v12, v40, v40 {ctl}"); e(f"  v_max_u32_dpp v40, v40, v40 {ctl}")
    e(f"  v_max_u32_dpp v13, v41, v41 {ctl}"); e("  v_max_u32 v41, v12, v13")
e("  v_cmp_gt_u32 vcc, 8, v0"); e("  v_readlane_b32 s32, v40, 63", "global top-2 keys"); e("  v_readlane_b32 s33, v41, 63")
e(f"  s_cmp_ge_u32 s2, {NWT}"); e("  s_cbranch_scc1 L_XH2")
e("  s_and_b32 s38, s32, 0x7ff"); e("  s_and_b32 s39, s33, 0x7ff"); e("  s_sub_u32 s38, 2047, s38"); e("  s_sub_u32 s39, 2047, s39")
e("  s_mul_i32 s38, s38, 1152"); e("  s_mul_i32 s39, s39, 1152"); e(f"  s_mov_b32 m0, {XIMG}"); e("  s_sub_u32 s40, s39, 128")
e("  buffer_load_dwordx4 v8, s[4:7], s38 offen lds", "both routed rows -> LDS [2][1152 B]")
e("  s_add_u32 s41, s38, 1024"); e("  v_mov_b32 v12, s40"); e("  v_mov_b32 v13, s41"); e("  s_addk_i32 m0, 0x400")
e("  v_cndmask_b32 v12, v12, v13, vcc"); e("  v_add_u32 v12, v12, v8")
e("  buffer_load_dwordx4 v12, s[4:7], 0 offen lds")
e("  s_addk_i32 m0, 0x400"); e("  s_add_u32 s40, s39, 896"); e("  s_mov_b64 exec, 0xffff")
e("  buffer_load_dwordx4 v8, s[4:7], s40 offen lds"); e("  s_mov_b64 exec, -1")
stamp(1)
def final_setup():
    cm("last stage: lane row r = lane>>4 holds token r>>1, column 8u + 2(lane&3) + (r&1)")
    e("  v_cmp_gt_u32 vcc, 32, v0"); e("  v_mov_b32 v28, s33"); e("  v_mov_b32 v29, s32"); e("  v_and_b32 v31, 3, v0")
    e("  v_cndmask_b32 v28, v28, v29, vcc"); e("  v_and_b32 v29, 0xffff, v28"); e("  v_sub_u32 v29, 2047, v29")
    e("  v_mul_u32_u24 v29, 1152, v29"); e("  v_bfe_u32 v30, v0, 4, 1"); e("  v_lshlrev_b32 v30, 1, v30")
    e("  v_lshl_add_u32 v30, v31, 2, v30"); e("  v_add_u32 v29, v29, v30")
    e("  v_not_b32 v32, v28"); e("  v_ashrrev_i32 v32, 31, v32"); e("  v_or_b32 v32, 0x80000000, v32")
    e("  v_xor_b32 v32, v32, v28"); e("  v_and_b32 v32, 0xffff0000, v32", "the bf16 score back from the key"); e("  v_mul_f32 v32, 0xbfb8aa3b, v32")
    e("  v_exp_f32 v32, v32"); e("  v_lshrrev_b32 v33, 5, v0"); e("  v_add_f32 v32, 1.0, v32"); e("  v_rcp_f32 v32, v32")
    e("  v_mul_u32_u24 v33, 1152, v33"); e("  v_cvt_pk_bf16_f32 v32, v32, v32"); e("  v_and_b32 v32, 0xffff0000, v32", "sigmoid, rounded to bf16")
    e("  s_sub_u32 s46, s45, 72", "unit u = slice - 72"); e("  s_lshl_b32 s50, s46, 4"); e(f"  s_add_u32 s51, s50, {XIMG}"); e("  v_add3_u32 v33, v33, v30, s51")
    e("  v_lshrrev_b32 v34, 2, v0"); e("  v_mul_u32_u24 v34, 4608, v34"); e("  v_lshl_add_u32 v34, v31, 4, v34")
    e("  s_lshl_b32 s80, s46, 6"); e(f"  s_add_u32 s80, s80, {WS_SLAB}")
    for t in range(1, 9): e(f"  s_add_u32 s{80+t}, s80, {16*4608*t}")
    e("  s_mov_b32 s41, 0x0c04000c"); e("  s_mov_b32 s42, 0x04020100"); e("  v_mov_b32 v35, 0")
if EFS == 2: final_setup()
e("  s_barrier", "A: the rows are requested")
if not WD4E: wd4()
if EFS == 1: final_setup()
e(f"  s_waitcnt vmcnt({0 if WD4E else 8}) lgkmcnt(0)")
stamp(4, True)
e("  s_barrier", "B: the rows are in LDS")
if LOWP: e("  s_setprio 0")
if not LATEC: copy_stores(CW); e("  s_mov_b64 exec, -1")
if EFS == 0: final_setup()
if LOWP == 2: e("  s_setprio 3")
e("  s_branch L_JOIN")
e("L_XH:"); e("  s_barrier", "the prefetch is done"); e("  s_branch L_P1")
e("L_XH2:"); copy_stores(CH); e("  s_branch L_FIN")
cm("---------------------------------------------------------------- roles 0..3: (matrix, half of K)")
e("#MARK C0"); e("L_NOTX:")
e(f"  s_mov_b32 s10, {WB}")
e(f"  s_cmp_ge_u32 s2, {NWT}"); e("  s_cbranch_scc1 L_HELP")
slice_calc(); setup0()
e("  v_lshrrev_b32 v8, 2, v0"); e("  v_mul_u32_u24 v8, 9216, v8"); e("  v_lshrrev_b32 v9, 4, v0"); e("  v_and_b32 v9, 2, v9")
e("  v_xor_b32 v9, v9, v0"); e("  v_and_b32 v9, 3, v9"); e("  v_lshl_add_u32 v8, v9, 4, v8", "16 rows x 64 B, halves swapped in rows 8..15")
e("  s_and_b32 s28, s3, 1"); e(f"  s_mul_i32 s28, s28, {288*9216}"); e("  s_lshl_b32 s29, s45, 6"); e("  s_add_u32 s28, s28, s29")
e("  s_and_b32 s42, s45, 1", "the two WGs that share the lines start on different rows")
e(f"  s_mul_i32 s29, s42, {N0*QS}"); e(f"  s_add_u32 s46, s28, {2*N0*QS}"); e(f"  s_add_u32 s43, s28, {N0*QS}")
e("  s_sub_u32 s43, s43, s29"); e("  s_add_u32 s28, s28, s29")
e("  s_mul_i32 s30, s3, 18432"); e("  s_mov_b32 m0, s30")
e("  s_cmp_ge_u32 s3, 2"); e("  s_waitcnt lgkmcnt(0)")
e("  s_cselect_b32 s8, s26, s24"); e("  s_cselect_b32 s9, s27, s25")
stamp(1)
ops = [("W", i) for i in range(WE)] + [("D", i) for i in range(18)] + [("W", i) for i in range(WE, 8)]
pos = {op: n for n, op in enumerate(ops)}
nis = 0
def issue():
    global nis
    if nis >= len(ops): return False
    k, i = ops[nis]
    if k == "D":
        if N0 and i == N0: e("  s_mov_b32 s28, s43")
        if N0 and i == 2*N0: e("  s_mov_b32 s28, s46")
        e("  buffer_load_dwordx4 v8, s[8:11], s28 offen lds")
        if i < 17: e("  s_addk_i32 m0, 0x400"); e(f"  s_add_u32 s28, s28, {QS}")
    else: wd_load(i)
    nis += 1
    return True
def vwait(op): e(f"  s_waitcnt vmcnt({nis - pos[op] - 1})")
if BAR0: e("  s_barrier")
while nis < WE + min(N0, W1):
    if C3 and nis == WE + 2:
        e("  s_and_b32 s29, s45, 14"); e("  s_cmp_lg_u32 s29, 6"); e("  s_cbranch_scc1 L_NC3")
        e("  s_waitcnt vmcnt(1)", "these columns fill only half of the L1"); e("L_NC3:")
    issue()
if NEAR & 1: e("  s_branch L_C2")
e("#MARK C1"); e("L_C2:")
setup1()
e("  v_lshlrev_b32 v9, 9, v3"); e("  v_bfe_u32 v10, v0, 2, 2"); e("  v_lshl_add_u32 v9, v10, 6, v9"); e("  v_and_b32 v10, 3, v0")
e("  v_lshl_add_u32 v9, v10, 3, v9"); e("  v_and_b32 v10, 1, v3"); e("  v_lshl_add_u32 v9, v10, 5, v9")
e("  v_add_u32 v9, s30, v9", "transposing reads, columns 0..15"); e("  v_xor_b32 v10, 32, v9", "columns 16..31")
e("  v_and_b32 v11, 1, v0"); e("  v_mul_u32_u24 v11, 1152, v11"); e("  v_lshl_add_u32 v11, v3, 4, v11")
e("  s_and_b32 s29, s3, 1"); e("  s_mul_i32 s29, s29, 576"); e(f"  s_add_u32 s29, s29, {XIMG}")
e(f"  s_mul_i32 s31, s42, {32*N0}")
e(f"  v_add_u32 v{VA2}, s29, v11", "x fragments"); e(f"  v_add_u32 v11, s31, v{VA2}"); e(f"  v_subrev_u32 v1, s31, v{VA2}")
e("  s_lshl_b32 s29, s3, 8"); e(f"  s_add_u32 s29, s29, {TEX}"); e(f"  v_lshl_add_u32 v{VXW}, v2, 3, s29")
def trreads(s):
    for hh in range(2):
        for u in range(2):
            r = BF + 8*s + 4*hh + 2*u
            e(f"  ds_read_b64_tr_b16 v[{r}:{r+1}], v{9+hh} offset:{2048*s+256*u}")
def mfmas(s):
    for hh in range(2):
        c = "0" if s == 0 else f"v[{ACC+4*hh}:{ACC+4*hh+3}]"
        r = BF + 8*s + 4*hh
        e(f"  v_mfma_f32_16x16x32_bf16 v[{ACC+4*hh}:{ACC+4*hh+3}], v[{AF+4*s}:{AF+4*s+3}], v[{r}:{r+3}], {c}")
E0 = N0 // 2
if N0 == 0:
    e(f"  s_waitcnt vmcnt({O('dsw', 0)})", "w_down is in; the prefetch is far enough ahead by now")
    stamp(2)
    while nis < WE + W2: issue()
for s in range(PB):
    for h in range(2):
        need = 2*s + h
        def ok():
            if nis >= len(ops) or ops[nis][0] != "D": return False
            i = ops[nis][1]
            return i < need + 1 + W1 if i < N0 else (need >= N0 - 1 and i < need + 1 + W2)
        if ok() or h == 1: vwait(("D", need))
        while ok(): issue()
    if s == 0 and N0: stamp(2)
    trreads(s)
while nis < len(ops) and ops[nis][0] == "D": issue()
stamp(5)
e("  s_barrier", "A")
while issue(): pass
e("  s_waitcnt lgkmcnt(0)"); e("  s_barrier", "B")
stamp(4, True); fs(1, True)
if CPRIO: e(f"  s_setprio {CPRIO}")
order = []
for s in range(9):
    ar = 11 if s < E0 else (1 if s < 2*E0 else VA2)
    e(f"  ds_read_b128 v[{AF+4*s}:{AF+4*s+3}], v{ar} offset:{64*s}"); order.append(f"A{s}")
late = list(range(PB, 9))
for s in range(9):
    if late and late[0] <= s + 1:
        t = late.pop(0); vwait(("D", 2*t+1)); trreads(t); order += [f"T{t}"]*4
    tag = f"A{s}" if s < PB else f"T{s}"
    need = len(order) - 1 - order[::-1].index(tag)
    e(f"  s_waitcnt lgkmcnt({min(15, len(order) - need - 1)})")
    mfmas(s)
stamp(3); fs(2)
e("  s_mov_b64 exec, 0xffff"); e("  s_nop 6")
e(f"  ds_write2_b64 v{VXW}, v[{ACC}:{ACC+1}], v[{ACC+4}:{ACC+5}] offset0:0 offset1:16")
e("  s_mov_b64 exec, -1")
cm("---------------------------------------------------------------- all 5 waves: SwiGLU, 128 columns of w_down each")
e("L_JOIN:")
e("  s_waitcnt lgkmcnt(0)"); fs(3, True); e("  s_barrier", "C: the four partial pre-activations are in LDS"); fs(4)
if O("gst", -1) == 21: e("  s_memrealtime s[94:95]")
e("  ds_read2_b32 v[12:13], v5 offset0:0 offset1:64"); e("  ds_read2_b32 v[14:15], v5 offset0:128 offset1:192")
e(f"  ds_read_b32 v23, v{VTAG}")
e("  s_cmp_eq_u32 s3, 4"); e("  s_waitcnt lgkmcnt(0)")
e("  v_add_f32 v12, v12, v13"); e("  v_add_f32 v14, v14, v15")
e("  v_cvt_pk_bf16_f32 v12, v12, v14"); e("  v_lshlrev_b32 v13, 16, v12"); e("  v_mul_f32 v15, 0xbfb8aa3b, v13"); e("  v_exp_f32 v15, v15")
e("  v_and_b32 v14, 0xffff0000, v12"); e("  v_add_f32 v15, 1.0, v15"); e("  v_rcp_f32 v15, v15"); e("  s_nop 0")
e("  v_mul_f32 v13, v13, v15"); e("  v_cvt_pk_bf16_f32 v13, v13, v13"); e("  v_and_b32 v13, 0xffff0000, v13")
e("  v_mul_f32 v13, v13, v14"); e("  v_cvt_pk_bf16_f32 v13, v13, v13", "h = bf16(bf16(silu(a)) * u), in both halves")
fs(5)
if O("gst", -1) == 20: e("  s_memrealtime s[92:93]")
e("  s_cbranch_scc1 L_W4"); e("  s_waitcnt vmcnt(0)"); e("L_W4:")
if O("gst", -1) in (20, 23): e("  s_memrealtime s[94:95]"); fs(6); e("  s_nop 0" if WD4E else f"  s_waitcnt vmcnt({0 if LATEC else 9})")
e(f"  v_and_b32_dpp v12, v13, v6 quad_perm:[0,0,2,2] {DPPM}"); e(f"  v_and_b32_dpp v16, v13, v6 quad_perm:[1,1,3,3] {DPPM}")
e("  s_nop 0"); e("  .p2align 3")
cm("A = h on a diagonal: D[token, column parity and pair][chunk] sums 4 rows of w_down per MFMA")
for mp in range(8):
    src = 12 if mp < 4 else 16; qq = mp & 3
    for r in range(4):
        n = (4*(r-qq)) % 16
        ctl = "quad_perm:[0,1,2,3]" if n == 0 else f"row_ror:{n}"
        e(f"  v_mov_b32_dpp v{AD+4*mp+r}, v{src} {ctl} row_mask:0xf bank_mask:{hex(1<<r)}")
    if mp >= 1:
        m = mp - 1; c = "0" if m == 0 else f"v[{ACC}:{ACC+3}]"
        e(f"  v_mfma_f32_16x16x32_bf16 v[{ACC}:{ACC+3}], v[{AD+4*m}:{AD+4*m+3}], v[{WD+4*m}:{WD+4*m+3}], {c}")
e("  s_nop 0")
e(f"  v_mfma_f32_16x16x32_bf16 v[{ACC}:{ACC+3}], v[{AD+28}:{AD+31}], v[{WD+28}:{WD+31}], v[{ACC}:{ACC+3}]")
e("  s_cselect_b32 exec_lo, 0x00ff00ff, -1"); e("  s_cselect_b32 exec_hi, 0x00ff00ff, -1"); e("  s_nop 5")
cm("4 sums (top 24 bits each) + tag in 16 bytes")
for j in range(3): e(f"  v_perm_b32 v{20+j}, v{ACC+j}, v{ACC+3}, s{56+j}")
if O("gst", -1) == 22: e("  s_memrealtime s[94:95]")
e("  buffer_store_dwordx4 v[20:23], v7, s[16:19], s36 offen" + HS)
GATH = AMP and int(AMP.split(",")[0]) >= 30
if GATH:
    e("  s_memrealtime s[90:91]"); e("  s_waitcnt lgkmcnt(0)")
    GS_ = O("gst", -1); GR_ = O("grole", -1)
    if GS_ == 20: e("  s_sub_u32 s90, s94, s92"); e("  s_add_u32 s90, s90, s64")
    elif GS_ >= 21: e("  s_mov_b32 s90, s94")
    elif GS_ >= 0: e(f"  s_mov_b32 s90, s{64+2*GS_}")
    if GR_ == 4: e("  s_cmp_eq_u32 s3, 4"); e("  s_cselect_b32 s90, s90, s64")
    if GR_ == 0: e("  s_cmp_lg_u32 s3, 4"); e("  s_cselect_b32 s90, s90, s64")
    e("  s_mov_b64 exec, 1"); e("  v_mov_b32 v24, s90"); e("  v_mov_b32 v25, s64"); e("  v_mov_b32 v26, v23"); e("  v_mov_b32 v27, 0")
    e("  s_lshl_b32 s92, s2, 3"); e("  s_add_u32 s92, s92, s3"); e("  s_lshl_b32 s92, s92, 4"); e("  s_add_u32 s92, s92, 0xd0000")
    e("  buffer_store_dwordx4 v[24:27], v27, s[16:19], s92 offen sc1")
    e("  s_cmp_eq_u32 s3, 4")
if STAMP:
    e("  s_cbranch_scc1 L_S6"); stamp(6); e("  s_branch L_FIN"); e("L_S6:"); stamp(2)
else: e("  s_cbranch_scc0 L_FIN")
if LATEC and O("cb", 0): e("  s_barrier", "released when the other four waves have ended: their sums are on the way")
if LATEC == 1: e("  s_mov_b64 exec, -1"); copy_stores(CW)
e("  s_cmp_ge_u32 s46, 72"); e(f"  s_cbranch_scc1 {'L_WC' if LATEC == 2 else 'L_FIN'}")
cm("---------------------------------------------------------------- 72 waves: sum over the 144 WGs, write the routed rows")
e("  s_mov_b64 exec, -1"); e("  ds_read_u16_d16_hi v35, v33"); e(f"  s_mov_b32 s61, {SPIN}")
e("  s_waitcnt vmcnt(0)")
stamp(6)
if RSL: e(f"  s_sleep {RSL}")
def rload(t): e(f"  buffer_load_dwordx4 v[{R0+4*t}:{R0+3+4*t}], v34, s[16:19], s{80+t} offen" + HL)
def racc(t):
    r = R0 + 4*t
    e(f"  v_perm_b32 v{r+3}, v{r+1}, v{r}, s41"); e(f"  v_perm_b32 v{r+3}, v{r+2}, v{r+3}, s42")
    if t:
        e(f"  v_pk_add_f32 v[{R0}:{R0+1}], v[{R0}:{R0+1}], v[{r}:{r+1}]"); e(f"  v_pk_add_f32 v[{R0+2}:{R0+3}], v[{R0+2}:{R0+3}], v[{r+2}:{r+3}]")
def rchain(extra, lab):
    for t in range(9):
        if lab: e(f"L_R{t}:")
        e(f"  s_waitcnt vmcnt({8-t+extra})"); e(f"  v_cmp_ne_u32 vcc, s47, v{R0+4*t+3}"); e(f"  s_cbranch_vccnz L_RR{t}")
        if lab: e(f"L_RA{t}:")
        racc(t)
for t in range(9): rload(t)
if LATEC == 2:
    copy_stores(CW); e("  s_mov_b64 exec, -1")
    rchain(9, False)
    e("L_RD:")
else:
    rchain(0, True)
if not O("nored5", 0): stamp(5)
e("  s_nop 1"); e(f"  v_permlane32_swap_b32 v{R0}, v{R0+2}"); e(f"  v_permlane32_swap_b32 v{R0+1}, v{R0+3}")
e(f"  v_add_f32 v{R0}, v{R0}, v{R0+2}"); e(f"  v_add_f32 v{R0+1}, v{R0+1}, v{R0+3}"); e("  s_nop 1")
e(f"  v_permlane16_swap_b32 v{R0}, v{R0+1}"); e(f"  v_add_f32 v{R0}, v{R0}, v{R0+1}"); e("  s_nop 1")
e(f"  v_add_f32_dpp v{R0}, v{R0}, v{R0} row_ror:4 {DPPM}"); e("  s_nop 1"); e(f"  v_add_f32_dpp v{R0}, v{R0}, v{R0} row_ror:8 {DPPM}")
e(f"  v_cvt_pk_bf16_f32 v16, v{R0}, v{R0}"); e("  v_and_b32 v16, 0xffff0000, v16"); e("  v_mul_f32 v16, v16, v32")
e("  v_cvt_pk_bf16_f32 v16, v16, v16"); e("  v_and_b32 v16, 0xffff0000, v16"); e("  s_waitcnt lgkmcnt(0)")
e("  v_add_f32 v16, v16, v35"); e("  v_cvt_pk_bf16_f32 v16, v16, v16")
e("  s_mov_b32 exec_lo, 0x000f000f"); e("  s_mov_b32 exec_hi, 0x000f000f")
e("  buffer_store_short v16, v29, s[20:23], s50 offen" + CFN)
e("  s_cmp_lg_u32 s46, 0"); e("  s_cbranch_scc1 L_FIN")
e("  s_mov_b64 exec, 1", "every reader of d_ws[0] is behind the sums seen here"); e("  v_mov_b32 v16, s47"); e(f"  v_mov_b32 v17, {WS_E}")
e("  buffer_store_dword v16, v17, s[16:19], 0 offen" + CFN)
e("L_FIN:"); stamp_flush(); e("L_END:"); e("  s_endpgm")
if LATEC == 2:
    e("L_WC:"); e("  s_mov_b64 exec, -1"); e("  s_branch L_XH2")
    rchain(0, True); e("  s_branch L_RD")
for t in range(9):
    e(f"L_RR{t}:"); e("  s_sub_u32 s61, s61, 1"); e(f"  s_cbranch_scc1 L_RA{t}")
    for t2 in range(t, 9): rload(t2)
    e(f"  s_branch L_R{t}")
cm("---------------------------------------------------------------- prefetch waves: one word per 128-byte line")
e("#MARK H0"); e("L_HELP:")
e(f"  s_sub_u32 s28, s2, {NWT}"); e("  s_and_b32 s29, s28, 7"); e("  s_lshr_b32 s28, s28, 3")
e("  s_and_b32 s33, s3, 1"); e("  s_mul_i32 s33, s33, 288"); e(f"  s_mul_i32 s32, s28, {HR}"); e("  s_add_u32 s32, s32, s33")
e(f"  s_add_u32 s32, s32, {32*N0}"); e("  s_mul_i32 s32, s32, 9216"); e("  s_mul_i32 s34, s29, 1152"); e("  s_add_u32 s32, s32, s34")
e("  v_mul_u32_u24 v3, 0x1c72, v0"); e("  v_lshrrev_b32 v3, 16, v3", "lane / 9"); e("  v_mul_u32_u24 v4, 9, v3"); e("  v_sub_u32 v4, v0, v4")
e("  v_mul_u32_u24 v3, 9216, v3"); e("  v_lshl_add_u32 v3, v4, 7, v3")
if HA:
    cm("the column block whose lines fill only half of a CU's L1 (byte column 384 mod 1024): all its rows first")
    e("  s_and_b32 s36, s3, 1"); e("  s_lshl1_add_u32 s36, s28, s36"); e(f"  s_mul_i32 s36, s36, {21*9216}")
    e("  s_cmp_ge_u32 s29, 4"); e("  s_addc_u32 s37, s29, 0"); e("  s_lshl_b32 s37, s37, 10"); e("  s_add_u32 s36, s36, s37"); e("  s_add_u32 s36, s36, 384")
    e("  v_cmp_lt_u32 vcc, 20, v0"); e("  v_mul_u32_u24 v5, 9216, v0"); e(f"  v_subrev_u32 v6, {21*9216 - 1024}, v5"); e("  v_cndmask_b32 v5, v5, v6, vcc")
    e("  s_cmp_eq_u32 s29, 3"); e("  s_cselect_b32 s37, 42, 21")
e("  s_lshl2_add_u32 s28, s28, s3")
e(f"  s_mul_i32 s29, s29, {5184*128}")
if RP: e(f"  s_add_u32 s29, s29, {RP*8192}")
e("  v_lshlrev_b32 v2, 7, v0")
nr = -(-(288 - 32*N0) // (NH*HR))
assert nr - HG >= 1
e(f"  s_mov_b32 s30, {nr-HG}")
e("  s_cmp_ge_u32 s3, 2"); e("  s_waitcnt lgkmcnt(0)")
e("  s_cselect_b32 s8, s26, s24"); e("  s_cselect_b32 s9, s27, s25")
if O("tw", 0):
    e("  s_load_dword s40, s[12:13], 0", "first touch of w_down and d_out: address translation only")
    e("  s_load_dword s41, s[20:21], 0")
if BAR0: e("  s_barrier")
if HA:
    e("  s_bfm_b64 exec, s37, 0"); e(f"  buffer_load_dword v{DUM}, v5, s[8:11], s36 offen")
e(f"  s_bfm_b64 exec, {9*HR}, 0")
for r in range(HG):
    e(f"  buffer_load_dword v{DUM}, v3, s[8:11], s32 offen" + GNT); e(f"  s_add_u32 s32, s32, {NH*HR*9216}")
CPS = 9 - 2*RP
def wchunk(wait):
    if O("wil", 0):
        e(f"  s_mul_hi_u32 s31, s28, {(2**32 + 17)//18}"); e("  s_mul_i32 s35, s31, 18"); e("  s_sub_u32 s35, s28, s35")
    else:
        e(f"  s_mul_hi_u32 s35, s28, {(2**32 + CPS - 1)//CPS}"); e(f"  s_mul_i32 s31, s35, {CPS}"); e("  s_sub_u32 s31, s28, s31")
    e("  s_mul_i32 s35, s35, 36864"); e("  s_lshl_b32 s31, s31, 12"); e("  s_add_u32 s35, s35, s31"); e("  s_add_u32 s35, s35, s29")
    if wait: e(f"  s_waitcnt vmcnt({HT-1})")
    e(f"  buffer_load_dword v{DUM}, v2, s[12:15], s35 offen" + PNT)
    e("  s_add_u32 s28, s28, 56")
if not UNG: e("  s_barrier")
stamp(1)
if HWF:
    e("  s_bfm_b64 exec, 32, 0")
    for _ in range(HWF): wchunk(False)
    e(f"  s_bfm_b64 exec, {9*HR}, 0")
e("L_HGL:"); e(f"  s_waitcnt vmcnt({HT-1+HX})"); e(f"  buffer_load_dword v{DUM}, v3, s[8:11], s32 offen" + GNT)
e(f"  s_add_u32 s32, s32, {NH*HR*9216}"); e("  s_sub_u32 s30, s30, 1"); e("  s_cmp_lg_u32 s30, 0"); e("  s_cbranch_scc1 L_HGL")
if O("gul", 0): e("  s_waitcnt vmcnt(0)")
stamp(2)
if WE == 4:
    e("  s_bfm_b64 exec, 36, 0")
    e("L_HWL:")
    e("  s_mul_i32 s35, s28, 9216"); e("  s_add_u32 s35, s35, s29"); e("  s_add_u32 s35, s35, 4608")
    e(f"  s_waitcnt vmcnt({HT-1})"); e(f"  buffer_load_dword v{DUM}, v2, s[12:15], s35 offen" + PNT)
    e("  s_add_u32 s28, s28, 56"); e("  s_cmp_lt_u32 s28, 72"); e("  s_cbranch_scc1 L_HWL")
elif WE < 8:
    e("  s_bfm_b64 exec, 32, 0")
    e("L_HWL:")
    wchunk(not O("hwn", 0))
    e(f"  s_cmp_lt_u32 s28, {18*CPS}"); e("  s_cbranch_scc1 L_HWL")
if UNG: e("  s_barrier")
e("  s_waitcnt vmcnt(0)"); e("  s_barrier"); e("  s_branch L_FIN")
e("#MARK H1"); e("L_CODE_END:")
cm("rare path: x + x*0 turns an infinity into a NaN")
for n in range(1, ncopy+1):
    e(f"L_FIX{n}:"); e(f"  s_mov_b32 s98, {n}"); e("  s_branch L_FIX")
e("L_FIX:"); e("  s_mov_b32 s29, 0x07060302")
for j in range(36):
    r = XR + j
    e(f"  v_lshlrev_b32 v12, 16, v{r}"); e(f"  v_and_b32 v13, 0xffff0000, v{r}"); e("  v_fma_f32 v12, v12, 0, v12"); e("  v_fma_f32 v13, v13, 0, v13")
    e(f"  v_perm_b32 v{r}, v13, v12, s29")
e("  s_cmp_eq_u32 s98, 1"); e("  s_cbranch_scc1 L_FIXR1"); e("  s_branch L_FIXR2")
e('.section .rodata,"a"'); e(".p2align 6"); e(f".amdhsa_kernel {K}")
e("  .amdhsa_next_free_vgpr 200"); e("  .amdhsa_next_free_sgpr 102"); e("  .amdhsa_accum_offset 200")
e("  .amdhsa_group_segment_fixed_size 0"); e("  .amdhsa_kernarg_size 64"); e("  .amdhsa_user_sgpr_count 2")
e("  .amdhsa_user_sgpr_kernarg_segment_ptr 1"); e("  .amdhsa_system_sgpr_workgroup_id_x 1"); e("  .amdhsa_float_denorm_mode_32 3")
e(".end_amdhsa_kernel")
def cut(a, b):
    i = out.index("#MARK " + a); j = out.index("#MARK " + b)
    blk = out[i+1:j]; del out[i:j+1]; return blk
blk = []
if NEAR & 2:
    h = cut("H0", "H1")
    if not NEAR & 1:
        pass
    blk += h
if NEAR & 1: blk = cut("C0", "C1") + blk
i = out.index("#MARK XINIT"); out[i:i+1] = blk
out = [l for l in out if not l.startswith("#MARK")]
if not NEAR: out = [l for l in out if l not in ("L_X2:", "L_C2:")]
open(sys.argv[1], "w").write("\n".join(out) + "\n")
```

```python
import sys
NAME = "standalone__moe_arch_mod__prompt"
S, D, F = 2048, 576, 4608
XB = S*D*2
WB = D*F*2
opts = dict(a.split("=") for a in sys.argv[2:] if "=" in a)
def O(k, d): return int(opts.get(k, d))
STAMP = O("stamp", 0); AMP = opts.get("amp"); FINE = O("fine", 0)
if AMP: STAMP = 1
GS = O("gs", 64); REP = O("rep", 4); RS = 256*GS
LG = {16: 0, 32: 1, 64: 2}[GS]; LR = {1: 0, 2: 1, 4: 2, 8: 3}[REP]; NL = REP*GS//16
assert NL <= 16
WS_E = 0; WS_GRAN = 4096; WS_SLAB = 4096 + REP*RS; WS_SIZE = 1 << 20; WS_STAMP = 1 << 21
N0 = O("n0", 2); W1 = O("w1", 4); W2 = O("w2", 4); WE = O("we", 0); PB = O("pb", 7); RP = O("rp", 0)
HR = O("hr", 4); HT = O("ht", 2); HG = O("hg", 1)
PSL = O("psl", 2); SPIN = O("spin", 200000); RSL = O("rsl", 0)
CFN = {0: "", 1: " sc1", 2: " sc0 sc1"}[O("cf", 0)]; WNT = " nt" if O("wnt", 0) else ""; PNT = " nt" if O("pnt", 0) else ""; GNT = " nt" if O("gnt", 0) else ""; XNT = " nt" if O("xnt", 0) else ""; LATEC = O("latec", 1); FL = {0: "", 1: " sc1", 2: " sc0 sc1", 3: " sc1 nt", 4: " nt"}; HS = FL[O("hs", 1)]; HL = FL[O("hl", 1)]; CW = FL[O("cw", 1)]; CH = FL[O("ch", 1)]; WD4E = O("wd4e", 1); BAR0 = O("bar0", 0); C3 = O("c3", 0); NEAR = O("near", 0); UNG = O("ung", 0); HA = O("ha", 0); HWF = O("hwf", 0); HX = O("hx", 0); EFS = O("efs", 1); LOWP = O("lowp", 1); CPRIO = O("cprio", 0)
NWT = 144; NH = 14
out = []
def e(s="", c=None): out.append(s if c is None else f"{s:<72}; {c}")
def cm(s): out.append("; " + s)
def stamp(i, wait=False):
    if STAMP and (i in (0, 7) or not (FINE or (AMP and int(AMP.split(",")[0]) >= 40))):
        e(f"  s_memrealtime s[{64+2*i}:{65+2*i}]")
        if wait: e("  s_waitcnt lgkmcnt(0)")
def fs(i, wait=False):
    if FINE:
        e(f"  s_memtime s[{64+2*i}:{65+2*i}]")
        if wait: e("  s_waitcnt lgkmcnt(0)")
def stamp_flush():
    if AMP:
        A, B, KK, WV, WG = map(int, AMP.split(","))
        if A >= 40:
            e("  s_cmp_lg_u32 s3, 4"); e("  s_cbranch_scc1 L_AMPX")
            e("  s_waitcnt vmcnt(0)"); stamp(7, True)
            e("  s_mov_b64 exec, 1"); e("  v_mov_b32 v24, s78"); e("  v_mov_b32 v25, s64"); e("  v_mov_b32 v26, s47"); e("  v_mov_b32 v27, 0")
            e("  s_lshl_b32 s92, s2, 4"); e("  s_add_u32 s92, s92, 0xe0000")
            e("  buffer_store_dwordx4 v[24:27], v27, s[16:19], s92 offen sc1")
            e(f"  s_cmp_lg_u32 s2, {WG}"); e("  s_cbranch_scc1 L_AMPX")
            e("  s_sleep 100"); e("  s_mov_b64 exec, -1"); e("  v_lshlrev_b32 v1, 4, v0")
            for i in range(4):
                e(f"  s_mov_b32 s92, {0xe0000 + 1024*i}")
                e(f"  buffer_load_dwordx4 v[{24+4*i}:{27+4*i}], v1, s[16:19], s92 offen sc1")
            e("  s_waitcnt vmcnt(0)")
            for i in range(4):
                e(f"  v_subrev_u32 v{24+4*i}, s64, v{24+4*i}"); e(f"  v_subrev_u32 v{25+4*i}, s64, v{25+4*i}")
            for col, dst in ((24, 60), (25, 61)):
                e(f"  v_max3_i32 v3, v{col}, v{col+4}, v{col+8}"); e(f"  v_max_i32 v3, v3, v{col+12}")
                for ctl in ("quad_perm:[1,0,3,2] row_mask:0xf bank_mask:0xf", "quad_perm:[2,3,0,1] row_mask:0xf bank_mask:0xf", "row_ror:4 row_mask:0xf bank_mask:0xf", "row_ror:8 row_mask:0xf bank_mask:0xf",
                            "row_bcast:15 row_mask:0xa bank_mask:0xf", "row_bcast:31 row_mask:0xc bank_mask:0xf"):
                    e("  s_nop 1"); e(f"  v_max_i32_dpp v3, v3, v3 {ctl}")
                e("  s_nop 1"); e(f"  v_readlane_b32 s{dst}, v3, 63")
            if A == 40: e("  s_sub_u32 s60, s60, s61")
            e("  s_memrealtime s[78:79]"); e("  s_waitcnt lgkmcnt(0)")
            e(f"  s_mul_i32 s60, s60, {KK}")
            e("L_AMP:"); e("  s_memrealtime s[62:63]"); e("  s_waitcnt lgkmcnt(0)"); e("  s_sub_u32 s62, s62, s78")
            e("  s_cmp_lt_u32 s62, s60"); e("  s_cbranch_scc1 L_AMP"); e("L_AMPX:")
            return
        if O("endw", 0): e("  s_waitcnt vmcnt(0)")
        stamp(7, True)
        e(f"  s_cmp_lg_u32 s2, {WG}"); e("  s_cbranch_scc1 L_AMPX")
        e(f"  s_cmp_lg_u32 s3, {WV}"); e("  s_cbranch_scc1 L_AMPX")
        if A >= 30:
            e("  s_sleep 60"); e("  s_mov_b64 exec, -1"); e("  v_lshlrev_b32 v1, 4, v0"); e("  v_mov_b32 v2, 0x80000000"); e("  v_mov_b32 v3, 0")
            for i in range(18):
                e(f"  s_mov_b32 s92, {0xd0000 + 1024*i}")
                e("  buffer_load_dwordx4 v[24:27], v1, s[16:19], s92 offen sc1"); e("  s_waitcnt vmcnt(0)")
                if A in (30, 31, 32, 35): e("  v_subrev_u32 v24, s64, v24")
                elif A == 33: e("  v_sub_u32 v24, v24, v25")
                else: e("  v_subrev_u32 v24, s64, v25")
                e("  v_lshlrev_b32 v24, 12, v24"); e(f"  v_add_u32 v25, {64*i}, v0"); e("  v_or_b32 v24, v24, v25")
                e("  v_cmp_eq_u32 vcc, s47, v26"); e("  s_nop 1"); e("  v_cndmask_b32 v24, v2, v24, vcc"); e("  v_max_i32 v3, v3, v24" if i else "  v_mov_b32 v3, v24")
            for ctl in ("quad_perm:[1,0,3,2] row_mask:0xf bank_mask:0xf", "quad_perm:[2,3,0,1] row_mask:0xf bank_mask:0xf", "row_ror:4 row_mask:0xf bank_mask:0xf", "row_ror:8 row_mask:0xf bank_mask:0xf",
                        "row_bcast:15 row_mask:0xa bank_mask:0xf", "row_bcast:31 row_mask:0xc bank_mask:0xf"):
                e("  s_nop 1"); e(f"  v_max_i32_dpp v3, v3, v3 {ctl}")
            e("  s_nop 1"); e("  v_readlane_b32 s60, v3, 63")
            if A in (30, 33, 34): e("  s_ashr_i32 s60, s60, 12")
            elif A == 31: e("  s_bfe_u32 s60, s60, 0x30003")
            elif A == 32: e("  s_and_b32 s60, s60, 7")
            else: e("  s_bfe_u32 s60, s60, 0x50006")
            e("  s_memrealtime s[78:79]"); e("  s_waitcnt lgkmcnt(0)")
        else:
            e(f"  s_sub_u32 s60, s{64+2*B}, s{64+2*A}")
        e(f"  s_mul_i32 s60, s60, {KK}")
        e("L_AMP:"); e("  s_memrealtime s[62:63]"); e("  s_waitcnt lgkmcnt(0)"); e("  s_sub_u32 s62, s62, s78")
        e("  s_cmp_lt_u32 s62, s60"); e("  s_cbranch_scc1 L_AMP"); e("L_AMPX:")
    elif STAMP:
        if FINE: e("  s_memtime s[78:79]"); e("  s_waitcnt lgkmcnt(0)")
        else: stamp(7, True)
        e("  s_mov_b64 exec, 1")
        e("  s_lshl_b32 s60, s2, 3"); e("  s_add_u32 s60, s60, s3"); e("  s_lshl_b32 s60, s60, 6")
        e(f"  s_add_u32 s60, s60, {WS_STAMP}"); e("  s_mov_b32 s18, 0x1000000"); e("  v_mov_b32 v1, 0")
        for j in range(4):
            for k in range(4): e(f"  v_mov_b32 v{4+k}, s{64+4*j+k}")
            e(f"  buffer_store_dwordx4 v[4:7], v1, s[16:19], s60 offen offset:{16*j}"); e("  s_nop 1")

hdr = open('cdna_kernels/%s.s.ref' % NAME).read().split('\n')
for l in hdr:
    if l.startswith('; @launch'): break
    e(l)
XIMG = 73728; TAGL = XIMG + 2304; TEX = XIMG + 3072; WRIMG = TEX + 1024; LDS = 83968
e(f"; @launch grid=(256,1,1) block=(320,1,1) lds={LDS}")
DOC = """
One launch, 256 workgroups of 5 waves, one per CU (LDS and VGPR use allow one).
 role 4 (wave 0), every WG : 8 rows of x -> router scores -> local top-2 -> tagged granule in d_ws,
                             later the copy of its rows that were not routed.
 WGs 0..143, roles 0..3    : 32 columns of w_gate / w_up (LDS-DMA, transposing LDS reads, MFMA),
                             SwiGLU, the matching 32 rows of w_down (MFMA), tagged partial sums in d_ws.
 WGs 0..143, role 4        : gathers the 256 granules, global top-2, brings both rows into LDS;
                             72 of them add up the 144 partial sums of 8 columns and write the routed rows.
 WGs 144..255, roles 0..3  : pull weight lines into the L2 that the weight WGs with the same id mod 8
                             are expected to share (speed only, nothing depends on it).
 Hand-offs between WGs are 16-byte pieces that carry a tag, written and read with sc1.
 tag = d_ws[0] + 0x01010101; d_ws[0] is set to the tag at the end, so it differs from launch to launch.
"""
for l in DOC.strip("\n").split("\n"): cm(l)
e('.amdgcn_target "amdgcn-amd-amdhsa--gfx950"'); e(".text")
K = NAME + "_kernel"
e(f".globl {K}"); e(".p2align 8"); e(f".type {K},@function"); e(f"{K}:")
DPPM = "row_mask:0xf bank_mask:0xf"
AF = 12; BF = 48; ACC = 120; WD = 128; AD = 160; XR = 84; WR = 48; R0 = 48
VXW = 192; VA2 = 193; VTAG = 194; DUMC = 196; DUM = 197
QS = 16*9216

def slice_calc():
    e("  s_and_b32 s45, s2, 7"); e("  s_mul_i32 s45, s45, 18"); e("  s_lshr_b32 s44, s2, 3")
    e("  s_add_u32 s45, s45, s44", "slice: neighbours are 8 ids apart")
def setup0():
    e("  v_and_b32 v2, 15, v0"); e("  v_lshrrev_b32 v3, 4, v0")
    e("  v_mul_u32_u24 v4, 9216, v3"); e("  v_lshl_add_u32 v4, v2, 4, v4", "w_down: row 8g, 16-byte chunk c")
    e(f"  s_mul_i32 s34, s45, {32*1152}"); e("  s_lshl_b32 s35, s3, 8"); e("  s_add_u32 s34, s34, s35"); e("  s_add_u32 s35, s34, 4608")
def setup1():
    e("  v_lshrrev_b32 v5, 2, v2"); e("  v_lshl_add_u32 v5, v3, 3, v5"); e("  v_and_b32 v6, 1, v0"); e("  v_lshl_add_u32 v5, v6, 2, v5")
    e("  v_lshlrev_b32 v5, 3, v5"); e("  v_and_b32 v6, 2, v0"); e("  v_lshl_add_u32 v5, v6, 1, v5")
    e(f"  v_add_u32 v5, {TEX}, v5", "exchange table: this lane's (f, token)")
    e("  v_and_b32 v6, 1, v0"); e("  v_cmp_eq_u32 vcc, 1, v6"); e("  v_mov_b32 v6, 0xffff"); e("  v_mov_b32 v7, 0xffff0000")
    e("  v_cndmask_b32 v6, v6, v7, vcc", "half-word mask by lane parity")
    e("  v_lshlrev_b32 v7, 6, v2"); e("  v_lshl_add_u32 v7, v3, 4, v7", "partial-sum piece of this lane")
    e("  s_mul_i32 s36, s45, 4608"); e("  s_lshl_b32 s37, s3, 10"); e("  s_add_u32 s36, s36, s37"); e(f"  s_add_u32 s36, s36, {WS_SLAB}")
    e(f"  v_mov_b32 v{VTAG}, {TAGL}")
    e("  s_mov_b32 s56, 0x07060501"); e("  s_mov_b32 s57, 0x07060502"); e("  s_mov_b32 s58, 0x07060503")
    for j in range(0, 32, 2): e(f"  v_mov_b64 v[{AD+j}:{AD+j+1}], 0")
def wd_load(mp): e(f"  buffer_load_dwordx4 v[{WD+4*mp}:{WD+4*mp+3}], v4, s[12:15], s{34+(mp>>2)} offen offset:{1152*(mp&3)}" + WNT)
ncopy = 0
def copy_stores(fl=""):
    global ncopy
    ncopy += 1
    e("  s_and_b32 s38, s32, 0xffff"); e("  s_and_b32 s39, s33, 0xffff")
    e("  v_cmp_ne_u32 s[52:53], s38, v11"); e("  v_cmp_ne_u32 s[54:55], s39, v11")
    e("  s_and_b64 exec, s[52:53], s[54:55]", "rows that are not routed")
    e("  s_cmp_lg_u64 s[96:97], 0"); e(f"  s_cbranch_scc1 L_FIX{ncopy}"); e(f"L_FIXR{ncopy}:")
    for i in range(9): e(f"  buffer_store_dwordx4 v[{XR+4*i}:{XR+4*i+3}], v10, s[20:23], s28 offen offset:{128*i}{fl}")

if STAMP:
    for i in range(2, 16): e(f"  s_mov_b32 s{64+i}, 0")
stamp(0)
cm("SRDs: x s[4:7], w_r or w_gate/w_up s[8:11], w_down s[12:15], d_ws s[16:19], d_out s[20:23]")
e("  s_load_dwordx2 s[4:5], s[0:1], 0"); e("  s_load_dwordx2 s[8:9], s[0:1], 8"); e("  s_load_dwordx2 s[16:17], s[0:1], 56")
e("  s_load_dwordx4 s[24:27], s[0:1], 16"); e("  s_load_dwordx2 s[12:13], s[0:1], 32"); e("  s_load_dwordx2 s[20:21], s[0:1], 40")
e("  s_getpc_b64 s[28:29]", "read one word of every line of the code: it lands in L2"); e("L_PC:")
e("  v_lshlrev_b32 v2, 7, v0"); e("  v_cmp_gt_u32 vcc, (L_CODE_END-L_PC+127)/128, v0")
e("  s_and_saveexec_b64 s[30:31], vcc"); e("  s_cbranch_execz L_NOPF")
e(f"  global_load_dword v{DUMC}, v2, s[28:29]"); e("L_NOPF:"); e("  s_mov_b64 exec, -1")
e("  v_lshrrev_b32 v1, 6, v0"); e("  v_and_b32 v0, 63, v0"); e("  v_readfirstlane_b32 s3, v1")
e("  s_cmp_ge_u32 s2, 256"); e("  s_cbranch_scc1 L_END")
e("  s_sub_u32 s3, s3, 1", "role: wave 0 -> 4, wave k -> k-1"); e("  s_cselect_b32 s3, 4, s3")
for r, v in ((6, XB), (7, "0x20000"), (11, "0x20000"), (14, WB), (15, "0x20000"), (18, WS_SIZE), (19, "0x20000"), (22, XB), (23, "0x20000")):
    e(f"  s_mov_b32 s{r}, {v}")
if NEAR == 2:
    e(f"  s_mov_b32 s10, {WB}"); e("  s_cmp_eq_u32 s3, 4"); e("  s_cbranch_scc1 L_X1")
    e(f"  s_cmp_ge_u32 s2, {NWT}"); e("  s_cbranch_scc1 L_HELP"); e("  s_branch L_NOTX"); e("L_X1:")
else:
    e("  s_cmp_lg_u32 s3, 4"); e("  s_cbranch_scc1 L_NOTX")
cm("---------------------------------------------------------------- role 4: router scores of 8 rows")
e("  s_setprio 3")
e(f"  s_mov_b32 s10, {D*2}"); e(f"  s_mov_b32 m0, {WRIMG}")
e("  v_lshlrev_b32 v8, 4, v0"); e("  v_and_b32 v1, 0x70, v8"); e("  v_lshrrev_b32 v9, 3, v0")
e("  v_mul_u32_u24 v10, 1152, v9"); e("  v_add_u32 v10, v10, v1", "8 lanes per row"); e("  s_mul_i32 s28, s2, 9216")
e("  s_waitcnt lgkmcnt(0)")
e(f"  s_load_dword s47, s[16:17], {WS_E}")
e("  buffer_load_dwordx4 v8, s[8:11], 0 offen lds", "w_r -> LDS"); e("  s_mov_b64 exec, 0xff")
e("  buffer_load_dwordx4 v8, s[8:11], 0 offen offset:1024 lds"); e("  s_mov_b64 exec, -1")
for i in range(9): e(f"  buffer_load_dwordx4 v[{XR+4*i}:{XR+4*i+3}], v10, s[4:7], s28 offen offset:{128*i}" + XNT)
if BAR0: e("  s_barrier", "x goes first in this CU's queue")
if NEAR: e("  s_branch L_X2")
e("#MARK XINIT"); e("L_X2:")
e(f"  v_add_u32 v1, {WRIMG}, v1")
e("  s_lshl_b32 s29, s2, 3"); e("  s_sub_u32 s29, 2047, s29"); e("  v_sub_u32 v11, s29, v9", "2047 - row"); e("  s_mov_b32 s30, 0xffff0000")
e(f"  s_and_b32 s29, s2, {REP-1}"); e(f"  s_mul_i32 s27, s29, {RS}"); e(f"  s_add_u32 s27, s27, {WS_GRAN}", "the copy of the granules this WG reads")
for j in range(1, 4): e(f"  s_add_u32 s{47+j}, s27, {64*GS*j}")
e("  s_and_b32 s29, s2, 7"); e("  s_lshl_b32 s29, s29, 5"); e("  s_lshr_b32 s31, s2, 3"); e("  s_add_u32 s29, s29, s31")
e(f"  s_mul_i32 s29, s29, {GS}"); e(f"  s_add_u32 s31, s29, {WS_GRAN}", "own granule")
e(f"  v_mul_u32_u24 v44, {GS}, v0")
for j in range(4): e(f"  v_mov_b32 v{12+j}, 0")
e("  v_bfrev_b32 v22, 1")
e(f"  v_bfe_u32 v21, v0, {LG}, {LR}"); e(f"  v_mul_u32_u24 v21, {RS}, v21"); e(f"  v_and_b32 v19, {GS//16-1}, v0"); e("  v_lshl_add_u32 v21, v19, 4, v21")
e(f"  s_mov_b32 s61, {SPIN}"); e(f"  v_mov_b32 v45, {TAGL}")
e("  s_waitcnt vmcnt(9) lgkmcnt(0)")
for i in range(9): e(f"  ds_read_b128 v[{WR+4*i}:{WR+4*i+3}], v1 offset:{128*i}")
e("  s_add_u32 s47, s47, 0x01010101", "tag of this launch"); e("  v_mov_b32 v18, s47")
for i in range(9):
    e(f"  s_waitcnt vmcnt({8-i}) lgkmcnt({8-i})")
    for j in range(4): e(f"  v_dot2c_f32_bf16 v{12+j}, v{XR+4*i+j}, v{WR+4*i+j}")
e("  s_nop 1")
e("  v_add_f32 v12, v12, v13"); e("  v_add_f32 v14, v14, v15"); e("  v_add_f32 v12, v12, v14")
e("  s_movk_i32 s29, 0x207"); e("  v_cmp_class_f32 s[96:97], v12, s29", "lanes that hold an inf or a NaN")
e(f"  v_add_f32_dpp v12, v12, v12 quad_perm:[1,0,3,2] {DPPM}"); e("  s_nop 1")
e(f"  v_add_f32_dpp v12, v12, v12 quad_perm:[2,3,0,1] {DPPM}"); e("  s_nop 1")
e(f"  v_add_f32_dpp v12, v12, v12 row_half_mirror {DPPM}")
cm("key = order-preserving bf16 score << 16 | 2047 - row; NaN sorts last")
e("  v_cvt_pk_bf16_f32 v13, v12, v12"); e("  v_cmp_u_f32 vcc, v12, v12"); e("  v_ashrrev_i32 v14, 31, v13")
e("  v_bitop3_b32 v13, v13, v14, v22 bitop3:0x1e"); e("  v_cndmask_b32 v13, v13, 0, vcc"); e("  v_and_or_b32 v13, v13, s30, v11")
e("  s_nop 1")
e(f"  v_max_u32_dpp v16, v13, v13 row_ror:8 {DPPM}"); e(f"  v_min_u32_dpp v17, v13, v13 row_ror:8 {DPPM}"); e("  s_nop 0")
for ctl in ("row_bcast:15 row_mask:0xa bank_mask:0xf", "row_bcast:31 row_mask:0xc bank_mask:0xf"):
    e(f"  v_min_u32_dpp v14, v16, v16 {ctl}"); e(f"  v_max_u32_dpp v16, v16, v16 {ctl}")
    e(f"  v_max_u32_dpp v15, v17, v17 {ctl}"); e("  v_max_u32 v17, v14, v15")
e(f"  s_lshl_b64 exec, {hex((1 << NL) - 1)}, 48", f"lanes 48..63 hold the pair: {REP} copies x {GS} bytes")
e("  buffer_store_dwordx4 v[16:19], v21, s[16:19], s31 offen" + HS)
stamp(3)
e(f"  s_cmp_lt_u32 s2, {NWT}"); e("  s_cbranch_scc1 L_XG"); e("  s_barrier", "prefetch WG: let the other waves fill the queue"); e("L_XG:")
e("  ds_write_b32 v45, v18"); e("  s_mov_b64 exec, -1")
slice_calc(); setup0(); setup1()
e(f"  s_cmp_ge_u32 s2, {NWT}"); e("  s_cbranch_scc1 L_XH")
def wd4():
    e("  s_mov_b32 exec_lo, 0x00ff00ff", "columns 512..575 of w_down"); e("  s_mov_b32 exec_hi, 0x00ff00ff")
    for mp in range(8): wd_load(mp)
    e("  s_mov_b64 exec, -1")
if WD4E: wd4()
if RP:
    e("  v_lshlrev_b32 v46, 7, v0"); e(f"  s_mul_i32 s29, s45, {32*1152}")
    for r in range(RP):
        e(f"  buffer_load_dword v{DUM}, v46, s[12:15], s29 offen" + PNT)
        if r < RP-1: e("  s_add_u32 s29, s29, 8192")
e("  s_waitcnt vmcnt(0)")
if O("nored5", 0): stamp(5)
e("L_P1:")
if O("lsl", 0): e(f"  s_sleep {O('lsl', 0)}", "back off before every read of the granules")
b = 48
for j in range(4): e(f"  buffer_load_dwordx4 v[{b+4*j}:{b+3+4*j}], v44, s[16:19], s{27 if j == 0 else 47+j} offen" + HL)
e("  s_waitcnt vmcnt(0)")
e(f"  v_cmp_ne_u32 vcc, s47, v{b+2}"); e(f"  v_cmp_ne_u32 s[32:33], s47, v{b+6}")
e(f"  v_cmp_ne_u32 s[38:39], s47, v{b+10}"); e(f"  v_cmp_ne_u32 s[40:41], s47, v{b+14}")
e("  s_or_b64 vcc, vcc, s[32:33]"); e("  s_or_b64 s[38:39], s[38:39], s[40:41]"); e("  s_or_b64 vcc, vcc, s[38:39]")
e("  s_cbranch_scc0 L_PT")
if not O("lsl", 0): e(f"  s_sleep {PSL}", "some granule is missing: back off and read again")
e("  s_sub_u32 s61, s61, 1"); e("  s_cbranch_scc0 L_P1")
e("  .p2align 3"); e("L_PT:")
def merge(a1, a2, b1, b2, o1, o2, t):
    e(f"  v_min_u32 v{t}, v{a1}, v{b1}"); e(f"  v_max_u32 v{o1}, v{a1}, v{b1}"); e(f"  v_max3_u32 v{o2}, v{t}, v{a2}, v{b2}")
merge(b, b+1, b+4, b+5, 40, 41, 12); merge(b+8, b+9, b+12, b+13, 42, 43, 13); merge(40, 41, 42, 43, 40, 41, 12)
e("  s_nop 0")
for ctl in (f"quad_perm:[1,0,3,2] {DPPM}", f"quad_perm:[2,3,0,1] {DPPM}", f"row_ror:4 {DPPM}", f"row_ror:8 {DPPM}",
            "row_bcast:15 row_mask:0xa bank_mask:0xf", "row_bcast:31 row_mask:0xc bank_mask:0xf"):
    e(f"  v_min_u32_dpp v12, v40, v40 {ctl}"); e(f"  v_max_u32_dpp v40, v40, v40 {ctl}")
    e(f"  v_max_u32_dpp v13, v41, v41 {ctl}"); e("  v_max_u32 v41, v12, v13")
e("  v_cmp_gt_u32 vcc, 8, v0"); e("  v_readlane_b32 s32, v40, 63", "global top-2 keys"); e("  v_readlane_b32 s33, v41, 63")
e(f"  s_cmp_ge_u32 s2, {NWT}"); e("  s_cbranch_scc1 L_XH2")
e("  s_and_b32 s38, s32, 0x7ff"); e("  s_and_b32 s39, s33, 0x7ff"); e("  s_sub_u32 s38, 2047, s38"); e("  s_sub_u32 s39, 2047, s39")
e("  s_mul_i32 s38, s38, 1152"); e("  s_mul_i32 s39, s39, 1152"); e(f"  s_mov_b32 m0, {XIMG}"); e("  s_sub_u32 s40, s39, 128")
e("  buffer_load_dwordx4 v8, s[4:7], s38 offen lds", "both routed rows -> LDS [2][1152 B]")
e("  s_add_u32 s41, s38, 1024"); e("  v_mov_b32 v12, s40"); e("  v_mov_b32 v13, s41"); e("  s_addk_i32 m0, 0x400")
e("  v_cndmask_b32 v12, v12, v13, vcc"); e("  v_add_u32 v12, v12, v8")
e("  buffer_load_dwordx4 v12, s[4:7], 0 offen lds")
e("  s_addk_i32 m0, 0x400"); e("  s_add_u32 s40, s39, 896"); e("  s_mov_b64 exec, 0xffff")
e("  buffer_load_dwordx4 v8, s[4:7], s40 offen lds"); e("  s_mov_b64 exec, -1")
stamp(1)
def final_setup():
    cm("last stage: lane row r = lane>>4 holds token r>>1, column 8u + 2(lane&3) + (r&1)")
    e("  v_cmp_gt_u32 vcc, 32, v0"); e("  v_mov_b32 v28, s33"); e("  v_mov_b32 v29, s32"); e("  v_and_b32 v31, 3, v0")
    e("  v_cndmask_b32 v28, v28, v29, vcc"); e("  v_and_b32 v29, 0xffff, v28"); e("  v_sub_u32 v29, 2047, v29")
    e("  v_mul_u32_u24 v29, 1152, v29"); e("  v_bfe_u32 v30, v0, 4, 1"); e("  v_lshlrev_b32 v30, 1, v30")
    e("  v_lshl_add_u32 v30, v31, 2, v30"); e("  v_add_u32 v29, v29, v30")
    e("  v_not_b32 v32, v28"); e("  v_ashrrev_i32 v32, 31, v32"); e("  v_or_b32 v32, 0x80000000, v32")
    e("  v_xor_b32 v32, v32, v28"); e("  v_and_b32 v32, 0xffff0000, v32", "the bf16 score back from the key"); e("  v_mul_f32 v32, 0xbfb8aa3b, v32")
    e("  v_exp_f32 v32, v32"); e("  v_lshrrev_b32 v33, 5, v0"); e("  v_add_f32 v32, 1.0, v32"); e("  v_rcp_f32 v32, v32")
    e("  v_mul_u32_u24 v33, 1152, v33"); e("  v_cvt_pk_bf16_f32 v32, v32, v32"); e("  v_and_b32 v32, 0xffff0000, v32", "sigmoid, rounded to bf16")
    e("  s_sub_u32 s46, s45, 72", "unit u = slice - 72"); e("  s_lshl_b32 s50, s46, 4"); e(f"  s_add_u32 s51, s50, {XIMG}"); e("  v_add3_u32 v33, v33, v30, s51")
    e("  v_lshrrev_b32 v34, 2, v0"); e("  v_mul_u32_u24 v34, 4608, v34"); e("  v_lshl_add_u32 v34, v31, 4, v34")
    e("  s_lshl_b32 s80, s46, 6"); e(f"  s_add_u32 s80, s80, {WS_SLAB}")
    for t in range(1, 9): e(f"  s_add_u32 s{80+t}, s80, {16*4608*t}")
    e("  s_mov_b32 s41, 0x0c04000c"); e("  s_mov_b32 s42, 0x04020100"); e("  v_mov_b32 v35, 0")
if EFS == 2: final_setup()
e("  s_barrier", "A: the rows are requested")
if not WD4E: wd4()
if EFS == 1: final_setup()
e(f"  s_waitcnt vmcnt({0 if WD4E else 8}) lgkmcnt(0)")
stamp(4, True)
e("  s_barrier", "B: the rows are in LDS")
if LOWP: e("  s_setprio 0")
if not LATEC: copy_stores(CW); e("  s_mov_b64 exec, -1")
if EFS == 0: final_setup()
if LOWP == 2: e("  s_setprio 3")
e("  s_branch L_JOIN")
e("L_XH:"); e("  s_barrier", "the prefetch is done"); e("  s_branch L_P1")
e("L_XH2:"); copy_stores(CH); e("  s_branch L_FIN")
cm("---------------------------------------------------------------- roles 0..3: (matrix, half of K)")
e("#MARK C0"); e("L_NOTX:")
e(f"  s_mov_b32 s10, {WB}")
e(f"  s_cmp_ge_u32 s2, {NWT}"); e("  s_cbranch_scc1 L_HELP")
slice_calc(); setup0()
e("  v_lshrrev_b32 v8, 2, v0"); e("  v_mul_u32_u24 v8, 9216, v8"); e("  v_lshrrev_b32 v9, 4, v0"); e("  v_and_b32 v9, 2, v9")
e("  v_xor_b32 v9, v9, v0"); e("  v_and_b32 v9, 3, v9"); e("  v_lshl_add_u32 v8, v9, 4, v8", "16 rows x 64 B, halves swapped in rows 8..15")
e("  s_and_b32 s28, s3, 1"); e(f"  s_mul_i32 s28, s28, {288*9216}"); e("  s_lshl_b32 s29, s45, 6"); e("  s_add_u32 s28, s28, s29")
e("  s_and_b32 s42, s45, 1", "the two WGs that share the lines start on different rows")
e(f"  s_mul_i32 s29, s42, {N0*QS}"); e(f"  s_add_u32 s46, s28, {2*N0*QS}"); e(f"  s_add_u32 s43, s28, {N0*QS}")
e("  s_sub_u32 s43, s43, s29"); e("  s_add_u32 s28, s28, s29")
e("  s_mul_i32 s30, s3, 18432"); e("  s_mov_b32 m0, s30")
e("  s_cmp_ge_u32 s3, 2"); e("  s_waitcnt lgkmcnt(0)")
e("  s_cselect_b32 s8, s26, s24"); e("  s_cselect_b32 s9, s27, s25")
stamp(1)
ops = [("W", i) for i in range(WE)] + [("D", i) for i in range(18)] + [("W", i) for i in range(WE, 8)]
pos = {op: n for n, op in enumerate(ops)}
nis = 0
def issue():
    global nis
    if nis >= len(ops): return False
    k, i = ops[nis]
    if k == "D":
        if N0 and i == N0: e("  s_mov_b32 s28, s43")
        if N0 and i == 2*N0: e("  s_mov_b32 s28, s46")
        e("  buffer_load_dwordx4 v8, s[8:11], s28 offen lds")
        if i < 17: e("  s_addk_i32 m0, 0x400"); e(f"  s_add_u32 s28, s28, {QS}")
    else: wd_load(i)
    nis += 1
    return True
def vwait(op): e(f"  s_waitcnt vmcnt({nis - pos[op] - 1})")
if BAR0: e("  s_barrier")
while nis < WE + min(N0, W1):
    if C3 and nis == WE + 2:
        e("  s_and_b32 s29, s45, 14"); e("  s_cmp_lg_u32 s29, 6"); e("  s_cbranch_scc1 L_NC3")
        e("  s_waitcnt vmcnt(1)", "these columns fill only half of the L1"); e("L_NC3:")
    issue()
if NEAR & 1: e("  s_branch L_C2")
e("#MARK C1"); e("L_C2:")
setup1()
e("  v_lshlrev_b32 v9, 9, v3"); e("  v_bfe_u32 v10, v0, 2, 2"); e("  v_lshl_add_u32 v9, v10, 6, v9"); e("  v_and_b32 v10, 3, v0")
e("  v_lshl_add_u32 v9, v10, 3, v9"); e("  v_and_b32 v10, 1, v3"); e("  v_lshl_add_u32 v9, v10, 5, v9")
e("  v_add_u32 v9, s30, v9", "transposing reads, columns 0..15"); e("  v_xor_b32 v10, 32, v9", "columns 16..31")
e("  v_and_b32 v11, 1, v0"); e("  v_mul_u32_u24 v11, 1152, v11"); e("  v_lshl_add_u32 v11, v3, 4, v11")
e("  s_and_b32 s29, s3, 1"); e("  s_mul_i32 s29, s29, 576"); e(f"  s_add_u32 s29, s29, {XIMG}")
e(f"  s_mul_i32 s31, s42, {32*N0}")
e(f"  v_add_u32 v{VA2}, s29, v11", "x fragments"); e(f"  v_add_u32 v11, s31, v{VA2}"); e(f"  v_subrev_u32 v1, s31, v{VA2}")
e("  s_lshl_b32 s29, s3, 8"); e(f"  s_add_u32 s29, s29, {TEX}"); e(f"  v_lshl_add_u32 v{VXW}, v2, 3, s29")
def trreads(s):
    for hh in range(2):
        for u in range(2):
            r = BF + 8*s + 4*hh + 2*u
            e(f"  ds_read_b64_tr_b16 v[{r}:{r+1}], v{9+hh} offset:{2048*s+256*u}")
def mfmas(s):
    for hh in range(2):
        c = "0" if s == 0 else f"v[{ACC+4*hh}:{ACC+4*hh+3}]"
        r = BF + 8*s + 4*hh
        e(f"  v_mfma_f32_16x16x32_bf16 v[{ACC+4*hh}:{ACC+4*hh+3}], v[{AF+4*s}:{AF+4*s+3}], v[{r}:{r+3}], {c}")
E0 = N0 // 2
if N0 == 0:
    e(f"  s_waitcnt vmcnt({O('dsw', 0)})", "w_down is in; the prefetch is far enough ahead by now")
    stamp(2)
    while nis < WE + W2: issue()
for s in range(PB):
    for h in range(2):
        need = 2*s + h
        def ok():
            if nis >= len(ops) or ops[nis][0] != "D": return False
            i = ops[nis][1]
            return i < need + 1 + W1 if i < N0 else (need >= N0 - 1 and i < need + 1 + W2)
        if ok() or h == 1: vwait(("D", need))
        while ok(): issue()
    if s == 0 and N0: stamp(2)
    trreads(s)
while nis < len(ops) and ops[nis][0] == "D": issue()
stamp(5)
e("  s_barrier", "A")
while issue(): pass
e("  s_waitcnt lgkmcnt(0)"); e("  s_barrier", "B")
stamp(4, True); fs(1, True)
if CPRIO: e(f"  s_setprio {CPRIO}")
order = []
for s in range(9):
    ar = 11 if s < E0 else (1 if s < 2*E0 else VA2)
    e(f"  ds_read_b128 v[{AF+4*s}:{AF+4*s+3}], v{ar} offset:{64*s}"); order.append(f"A{s}")
late = list(range(PB, 9))
for s in range(9):
    if late and late[0] <= s + 1:
        t = late.pop(0); vwait(("D", 2*t+1)); trreads(t); order += [f"T{t}"]*4
    tag = f"A{s}" if s < PB else f"T{s}"
    need = len(order) - 1 - order[::-1].index(tag)
    e(f"  s_waitcnt lgkmcnt({min(15, len(order) - need - 1)})")
    mfmas(s)
stamp(3); fs(2)
e("  s_mov_b64 exec, 0xffff"); e("  s_nop 6")
e(f"  ds_write2_b64 v{VXW}, v[{ACC}:{ACC+1}], v[{ACC+4}:{ACC+5}] offset0:0 offset1:16")
e("  s_mov_b64 exec, -1")
cm("---------------------------------------------------------------- all 5 waves: SwiGLU, 128 columns of w_down each")
e("L_JOIN:")
e("  s_waitcnt lgkmcnt(0)"); fs(3, True); e("  s_barrier", "C: the four partial pre-activations are in LDS"); fs(4)
if O("gst", -1) == 21: e("  s_memrealtime s[94:95]")
e("  ds_read2_b32 v[12:13], v5 offset0:0 offset1:64"); e("  ds_read2_b32 v[14:15], v5 offset0:128 offset1:192")
e(f"  ds_read_b32 v23, v{VTAG}")
e("  s_cmp_eq_u32 s3, 4"); e("  s_waitcnt lgkmcnt(0)")
e("  v_add_f32 v12, v12, v13"); e("  v_add_f32 v14, v14, v15")
e("  v_cvt_pk_bf16_f32 v12, v12, v14"); e("  v_lshlrev_b32 v13, 16, v12"); e("  v_mul_f32 v15, 0xbfb8aa3b, v13"); e("  v_exp_f32 v15, v15")
e("  v_and_b32 v14, 0xffff0000, v12"); e("  v_add_f32 v15, 1.0, v15"); e("  v_rcp_f32 v15, v15"); e("  s_nop 0")
e("  v_mul_f32 v13, v13, v15"); e("  v_cvt_pk_bf16_f32 v13, v13, v13"); e("  v_and_b32 v13, 0xffff0000, v13")
e("  v_mul_f32 v13, v13, v14"); e("  v_cvt_pk_bf16_f32 v13, v13, v13", "h = bf16(bf16(silu(a)) * u), in both halves")
fs(5)
if O("gst", -1) == 20: e("  s_memrealtime s[92:93]")
e("  s_cbranch_scc1 L_W4"); e("  s_waitcnt vmcnt(0)"); e("L_W4:")
if O("gst", -1) in (20, 23): e("  s_memrealtime s[94:95]"); fs(6); e("  s_nop 0" if WD4E else f"  s_waitcnt vmcnt({0 if LATEC else 9})")
e(f"  v_and_b32_dpp v12, v13, v6 quad_perm:[0,0,2,2] {DPPM}"); e(f"  v_and_b32_dpp v16, v13, v6 quad_perm:[1,1,3,3] {DPPM}")
e("  s_nop 0"); e("  .p2align 3")
cm("A = h on a diagonal: D[token, column parity and pair][chunk] sums 4 rows of w_down per MFMA")
for mp in range(8):
    src = 12 if mp < 4 else 16; qq = mp & 3
    for r in range(4):
        n = (4*(r-qq)) % 16
        ctl = "quad_perm:[0,1,2,3]" if n == 0 else f"row_ror:{n}"
        e(f"  v_mov_b32_dpp v{AD+4*mp+r}, v{src} {ctl} row_mask:0xf bank_mask:{hex(1<<r)}")
    if mp >= 1:
        m = mp - 1; c = "0" if m == 0 else f"v[{ACC}:{ACC+3}]"
        e(f"  v_mfma_f32_16x16x32_bf16 v[{ACC}:{ACC+3}], v[{AD+4*m}:{AD+4*m+3}], v[{WD+4*m}:{WD+4*m+3}], {c}")
e("  s_nop 0")
e(f"  v_mfma_f32_16x16x32_bf16 v[{ACC}:{ACC+3}], v[{AD+28}:{AD+31}], v[{WD+28}:{WD+31}], v[{ACC}:{ACC+3}]")
e("  s_cselect_b32 exec_lo, 0x00ff00ff, -1"); e("  s_cselect_b32 exec_hi, 0x00ff00ff, -1"); e("  s_nop 5")
cm("4 sums (top 24 bits each) + tag in 16 bytes")
for j in range(3): e(f"  v_perm_b32 v{20+j}, v{ACC+j}, v{ACC+3}, s{56+j}")
if O("gst", -1) == 22: e("  s_memrealtime s[94:95]")
e("  buffer_store_dwordx4 v[20:23], v7, s[16:19], s36 offen" + HS)
GATH = AMP and 30 <= int(AMP.split(",")[0]) < 40
if GATH:
    e("  s_memrealtime s[90:91]"); e("  s_waitcnt lgkmcnt(0)")
    GS_ = O("gst", -1); GR_ = O("grole", -1)
    if GS_ == 20: e("  s_sub_u32 s90, s94, s92"); e("  s_add_u32 s90, s90, s64")
    elif GS_ >= 21: e("  s_mov_b32 s90, s94")
    elif GS_ >= 0: e(f"  s_mov_b32 s90, s{64+2*GS_}")
    if GR_ == 4: e("  s_cmp_eq_u32 s3, 4"); e("  s_cselect_b32 s90, s90, s64")
    if GR_ == 0: e("  s_cmp_lg_u32 s3, 4"); e("  s_cselect_b32 s90, s90, s64")
    e("  s_mov_b64 exec, 1"); e("  v_mov_b32 v24, s90"); e("  v_mov_b32 v25, s64"); e("  v_mov_b32 v26, v23"); e("  v_mov_b32 v27, 0")
    e("  s_lshl_b32 s92, s2, 3"); e("  s_add_u32 s92, s92, s3"); e("  s_lshl_b32 s92, s92, 4"); e("  s_add_u32 s92, s92, 0xd0000")
    e("  buffer_store_dwordx4 v[24:27], v27, s[16:19], s92 offen sc1")
    e("  s_cmp_eq_u32 s3, 4")
if STAMP:
    e("  s_cbranch_scc1 L_S6"); stamp(6); e("  s_branch L_FIN"); e("L_S6:"); stamp(2)
else: e("  s_cbranch_scc0 L_FIN")
if LATEC and O("cb", 0): e("  s_barrier", "released when the other four waves have ended: their sums are on the way")
if LATEC == 1: e("  s_mov_b64 exec, -1"); copy_stores(CW)
e("  s_cmp_ge_u32 s46, 72"); e(f"  s_cbranch_scc1 {'L_WC' if LATEC == 2 else 'L_FIN'}")
cm("---------------------------------------------------------------- 72 waves: sum over the 144 WGs, write the routed rows")
e("  s_mov_b64 exec, -1"); e("  ds_read_u16_d16_hi v35, v33"); e(f"  s_mov_b32 s61, {SPIN}")
e("  s_waitcnt vmcnt(0)")
stamp(6)
if RSL: e(f"  s_sleep {RSL}")
def rload(t): e(f"  buffer_load_dwordx4 v[{R0+4*t}:{R0+3+4*t}], v34, s[16:19], s{80+t} offen" + HL)
def racc(t):
    r = R0 + 4*t
    e(f"  v_perm_b32 v{r+3}, v{r+1}, v{r}, s41"); e(f"  v_perm_b32 v{r+3}, v{r+2}, v{r+3}, s42")
    if t:
        e(f"  v_pk_add_f32 v[{R0}:{R0+1}], v[{R0}:{R0+1}], v[{r}:{r+1}]"); e(f"  v_pk_add_f32 v[{R0+2}:{R0+3}], v[{R0+2}:{R0+3}], v[{r+2}:{r+3}]")
def rchain(extra, lab):
    for t in range(9):
        if lab: e(f"L_R{t}:")
        e(f"  s_waitcnt vmcnt({8-t+extra})"); e(f"  v_cmp_ne_u32 vcc, s47, v{R0+4*t+3}"); e(f"  s_cbranch_vccnz L_RR{t}")
        if lab: e(f"L_RA{t}:")
        racc(t)
for t in range(9): rload(t)
if LATEC == 2:
    copy_stores(CW); e("  s_mov_b64 exec, -1")
    rchain(9, False)
    e("L_RD:")
else:
    rchain(0, True)
if not O("nored5", 0): stamp(5)
e("  s_nop 1"); e(f"  v_permlane32_swap_b32 v{R0}, v{R0+2}"); e(f"  v_permlane32_swap_b32 v{R0+1}, v{R0+3}")
e(f"  v_add_f32 v{R0}, v{R0}, v{R0+2}"); e(f"  v_add_f32 v{R0+1}, v{R0+1}, v{R0+3}"); e("  s_nop 1")
e(f"  v_permlane16_swap_b32 v{R0}, v{R0+1}"); e(f"  v_add_f32 v{R0}, v{R0}, v{R0+1}"); e("  s_nop 1")
e(f"  v_add_f32_dpp v{R0}, v{R0}, v{R0} row_ror:4 {DPPM}"); e("  s_nop 1"); e(f"  v_add_f32_dpp v{R0}, v{R0}, v{R0} row_ror:8 {DPPM}")
e(f"  v_cvt_pk_bf16_f32 v16, v{R0}, v{R0}"); e("  v_and_b32 v16, 0xffff0000, v16"); e("  v_mul_f32 v16, v16, v32")
e("  v_cvt_pk_bf16_f32 v16, v16, v16"); e("  v_and_b32 v16, 0xffff0000, v16"); e("  s_waitcnt lgkmcnt(0)")
e("  v_add_f32 v16, v16, v35"); e("  v_cvt_pk_bf16_f32 v16, v16, v16")
e("  s_mov_b32 exec_lo, 0x000f000f"); e("  s_mov_b32 exec_hi, 0x000f000f")
e("  buffer_store_short v16, v29, s[20:23], s50 offen" + CFN)
e("  s_cmp_lg_u32 s46, 0"); e("  s_cbranch_scc1 L_FIN")
e("  s_mov_b64 exec, 1", "every reader of d_ws[0] is behind the sums seen here"); e("  v_mov_b32 v16, s47"); e(f"  v_mov_b32 v17, {WS_E}")
e("  buffer_store_dword v16, v17, s[16:19], 0 offen" + CFN)
e("L_FIN:"); stamp_flush(); e("L_END:"); e("  s_endpgm")
if LATEC == 2:
    e("L_WC:"); e("  s_mov_b64 exec, -1"); e("  s_branch L_XH2")
    rchain(0, True); e("  s_branch L_RD")
for t in range(9):
    e(f"L_RR{t}:"); e("  s_sub_u32 s61, s61, 1"); e(f"  s_cbranch_scc1 L_RA{t}")
    for t2 in range(t, 9): rload(t2)
    e(f"  s_branch L_R{t}")
cm("---------------------------------------------------------------- prefetch waves: one word per 128-byte line")
e("#MARK H0"); e("L_HELP:")
e(f"  s_sub_u32 s28, s2, {NWT}"); e("  s_and_b32 s29, s28, 7"); e("  s_lshr_b32 s28, s28, 3")
e("  s_and_b32 s33, s3, 1"); e("  s_mul_i32 s33, s33, 288"); e(f"  s_mul_i32 s32, s28, {HR}"); e("  s_add_u32 s32, s32, s33")
e(f"  s_add_u32 s32, s32, {32*N0}"); e("  s_mul_i32 s32, s32, 9216"); e("  s_mul_i32 s34, s29, 1152"); e("  s_add_u32 s32, s32, s34")
e("  v_mul_u32_u24 v3, 0x1c72, v0"); e("  v_lshrrev_b32 v3, 16, v3", "lane / 9"); e("  v_mul_u32_u24 v4, 9, v3"); e("  v_sub_u32 v4, v0, v4")
e("  v_mul_u32_u24 v3, 9216, v3"); e("  v_lshl_add_u32 v3, v4, 7, v3")
if HA:
    cm("the column block whose lines fill only half of a CU's L1 (byte column 384 mod 1024): all its rows first")
    e("  s_and_b32 s36, s3, 1"); e("  s_lshl1_add_u32 s36, s28, s36"); e(f"  s_mul_i32 s36, s36, {21*9216}")
    e("  s_cmp_ge_u32 s29, 4"); e("  s_addc_u32 s37, s29, 0"); e("  s_lshl_b32 s37, s37, 10"); e("  s_add_u32 s36, s36, s37"); e("  s_add_u32 s36, s36, 384")
    e("  v_cmp_lt_u32 vcc, 20, v0"); e("  v_mul_u32_u24 v5, 9216, v0"); e(f"  v_subrev_u32 v6, {21*9216 - 1024}, v5"); e("  v_cndmask_b32 v5, v5, v6, vcc")
    e("  s_cmp_eq_u32 s29, 3"); e("  s_cselect_b32 s37, 42, 21")
e("  s_lshl2_add_u32 s28, s28, s3")
e(f"  s_mul_i32 s29, s29, {5184*128}")
if RP: e(f"  s_add_u32 s29, s29, {RP*8192}")
e("  v_lshlrev_b32 v2, 7, v0")
nr = -(-(288 - 32*N0) // (NH*HR)) - O("hskip", 0)
assert nr - HG >= 1
e(f"  s_mov_b32 s30, {nr-HG}")
e("  s_cmp_ge_u32 s3, 2"); e("  s_waitcnt lgkmcnt(0)")
e("  s_cselect_b32 s8, s26, s24"); e("  s_cselect_b32 s9, s27, s25")
if O("tw", 0):
    e("  s_load_dword s40, s[12:13], 0", "first touch of w_down and d_out: address translation only")
    e("  s_load_dword s41, s[20:21], 0")
if BAR0: e("  s_barrier")
if HA:
    e("  s_bfm_b64 exec, s37, 0"); e(f"  buffer_load_dword v{DUM}, v5, s[8:11], s36 offen")
e(f"  s_bfm_b64 exec, {9*HR}, 0")
for r in range(HG):
    e(f"  buffer_load_dword v{DUM}, v3, s[8:11], s32 offen" + GNT); e(f"  s_add_u32 s32, s32, {NH*HR*9216}")
CPS = 9 - 2*RP
def wchunk(wait):
    if O("wil", 0):
        e(f"  s_mul_hi_u32 s31, s28, {(2**32 + 17)//18}"); e("  s_mul_i32 s35, s31, 18"); e("  s_sub_u32 s35, s28, s35")
    else:
        e(f"  s_mul_hi_u32 s35, s28, {(2**32 + CPS - 1)//CPS}"); e(f"  s_mul_i32 s31, s35, {CPS}"); e("  s_sub_u32 s31, s28, s31")
    e("  s_mul_i32 s35, s35, 36864"); e("  s_lshl_b32 s31, s31, 12"); e("  s_add_u32 s35, s35, s31"); e("  s_add_u32 s35, s35, s29")
    if wait: e(f"  s_waitcnt vmcnt({HT-1})")
    e(f"  buffer_load_dword v{DUM}, v2, s[12:15], s35 offen" + PNT)
    e("  s_add_u32 s28, s28, 56")
if not UNG: e("  s_barrier")
stamp(1)
if HWF:
    e("  s_bfm_b64 exec, 32, 0")
    for _ in range(HWF): wchunk(False)
    e(f"  s_bfm_b64 exec, {9*HR}, 0")
e("L_HGL:"); e(f"  s_waitcnt vmcnt({HT-1+HX})"); e(f"  buffer_load_dword v{DUM}, v3, s[8:11], s32 offen" + GNT)
e(f"  s_add_u32 s32, s32, {NH*HR*9216}"); e("  s_sub_u32 s30, s30, 1"); e("  s_cmp_lg_u32 s30, 0"); e("  s_cbranch_scc1 L_HGL")
if O("gul", 0): e("  s_waitcnt vmcnt(0)")
stamp(2)
if WE == 4:
    e("  s_bfm_b64 exec, 36, 0")
    e("L_HWL:")
    e("  s_mul_i32 s35, s28, 9216"); e("  s_add_u32 s35, s35, s29"); e("  s_add_u32 s35, s35, 4608")
    e(f"  s_waitcnt vmcnt({HT-1})"); e(f"  buffer_load_dword v{DUM}, v2, s[12:15], s35 offen" + PNT)
    e("  s_add_u32 s28, s28, 56"); e("  s_cmp_lt_u32 s28, 72"); e("  s_cbranch_scc1 L_HWL")
elif WE < 8:
    e("  s_bfm_b64 exec, 32, 0")
    e("L_HWL:")
    wchunk(not O("hwn", 0))
    e(f"  s_cmp_lt_u32 s28, {18*CPS}"); e("  s_cbranch_scc1 L_HWL")
if UNG: e("  s_barrier")
e("  s_waitcnt vmcnt(0)"); e("  s_barrier"); e("  s_branch L_FIN")
e("#MARK H1"); e("L_CODE_END:")
cm("rare path: x + x*0 turns an infinity into a NaN")
for n in range(1, ncopy+1):
    e(f"L_FIX{n}:"); e(f"  s_mov_b32 s98, {n}"); e("  s_branch L_FIX")
e("L_FIX:"); e("  s_mov_b32 s29, 0x07060302")
for j in range(36):
    r = XR + j
    e(f"  v_lshlrev_b32 v12, 16, v{r}"); e(f"  v_and_b32 v13, 0xffff0000, v{r}"); e("  v_fma_f32 v12, v12, 0, v12"); e("  v_fma_f32 v13, v13, 0, v13")
    e(f"  v_perm_b32 v{r}, v13, v12, s29")
e("  s_cmp_eq_u32 s98, 1"); e("  s_cbranch_scc1 L_FIXR1"); e("  s_branch L_FIXR2")
e('.section .rodata,"a"'); e(".p2align 6"); e(f".amdhsa_kernel {K}")
e("  .amdhsa_next_free_vgpr 200"); e("  .amdhsa_next_free_sgpr 102"); e("  .amdhsa_accum_offset 200")
e("  .amdhsa_group_segment_fixed_size 0"); e("  .amdhsa_kernarg_size 64"); e("  .amdhsa_user_sgpr_count 2")
e("  .amdhsa_user_sgpr_kernarg_segment_ptr 1"); e("  .amdhsa_system_sgpr_workgroup_id_x 1"); e("  .amdhsa_float_denorm_mode_32 3")
e(".end_amdhsa_kernel")
def cut(a, b):
    i = out.index("#MARK " + a); j = out.index("#MARK " + b)
    blk = out[i+1:j]; del out[i:j+1]; return blk
blk = []
if NEAR & 2:
    h = cut("H0", "H1")
    if not NEAR & 1:
        pass
    blk += h
if NEAR & 1: blk = cut("C0", "C1") + blk
i = out.index("#MARK XINIT"); out[i:i+1] = blk
out = [l for l in out if not l.startswith("#MARK")]
if not NEAR: out = [l for l in out if l not in ("L_X2:", "L_C2:")]
open(sys.argv[1], "w").write("\n".join(out) + "\n")
```

```python
import sys
NAME = "standalone__moe_arch_mod__prompt"
S, D, F = 2048, 576, 4608
XB = S*D*2
WB = D*F*2
opts = dict(a.split("=") for a in sys.argv[2:] if "=" in a)
def O(k, d): return int(opts.get(k, d))
STAMP = O("stamp", 0); AMP = opts.get("amp"); FINE = O("fine", 0)
if AMP: STAMP = 1
GS = O("gs", 64); REP = O("rep", 4); RS = 256*GS
LG = {16: 0, 32: 1, 64: 2}[GS]; LR = {1: 0, 2: 1, 4: 2, 8: 3}[REP]; NL = REP*GS//16
assert NL <= 16
WS_E = 0; WS_GRAN = 4096; WS_SLAB = 4096 + REP*RS; WS_SIZE = 1 << 20; WS_STAMP = 1 << 21
N0 = O("n0", 4); W1 = O("w1", 3); W2 = O("w2", 4); WE = O("we", 0); PB = O("pb", 7); RP = O("rp", 0)
HR = O("hr", 4); HT = O("ht", 3); HG = O("hg", 1)
PSL = O("psl", 2); SPIN = O("spin", 200000); RSL = O("rsl", 0)
CFN = {0: "", 1: " sc1", 2: " sc0 sc1"}[O("cf", 0)]; WNT = " nt" if O("wnt", 0) else ""; PNT = " nt" if O("pnt", 0) else ""; GNT = " nt" if O("gnt", 0) else ""; XNT = " nt" if O("xnt", 0) else ""; LATEC = O("latec", 1); FL = {0: "", 1: " sc1", 2: " sc0 sc1", 3: " sc1 nt", 4: " nt"}; HS = FL[O("hs", 1)]; HL = FL[O("hl", 1)]; CW = FL[O("cw", 1)]; CH = FL[O("ch", 1)]; WD4E = O("wd4e", 1); BAR0 = O("bar0", 0); C3 = O("c3", 0); NEAR = O("near", 3); UNG = O("ung", 0); HA = O("ha", 0); HWF = O("hwf", 0); HX = O("hx", 0); EFS = O("efs", 1); LOWP = O("lowp", 1); CPRIO = O("cprio", 0)
NWT = 144; NH = 14
out = []
def e(s="", c=None): out.append(s if c is None else f"{s:<72}; {c}")
def cm(s): out.append("; " + s)
def stamp(i, wait=False):
    if STAMP and (i in (0, 7) or not (FINE or (AMP and int(AMP.split(",")[0]) >= 40))):
        e(f"  s_memrealtime s[{64+2*i}:{65+2*i}]")
        if wait: e("  s_waitcnt lgkmcnt(0)")
def fs(i, wait=False):
    if FINE:
        e(f"  s_memtime s[{64+2*i}:{65+2*i}]")
        if wait: e("  s_waitcnt lgkmcnt(0)")
def stamp_flush():
    if AMP:
        A, B, KK, WV, WG = map(int, AMP.split(","))
        if A >= 40:
            e("  s_cmp_lg_u32 s3, 4"); e("  s_cbranch_scc1 L_AMPX")
            e("  s_waitcnt vmcnt(0)"); stamp(7, True)
            e("  s_mov_b64 exec, 1"); e("  v_mov_b32 v24, s78"); e("  v_mov_b32 v25, s64"); e("  v_mov_b32 v26, s47"); e("  v_mov_b32 v27, 0")
            e("  s_lshl_b32 s92, s2, 4"); e("  s_add_u32 s92, s92, 0xe0000")
            e("  buffer_store_dwordx4 v[24:27], v27, s[16:19], s92 offen sc1")
            e(f"  s_cmp_lg_u32 s2, {WG}"); e("  s_cbranch_scc1 L_AMPX")
            e("  s_sleep 100"); e("  s_mov_b64 exec, -1"); e("  v_lshlrev_b32 v1, 4, v0")
            for i in range(4):
                e(f"  s_mov_b32 s92, {0xe0000 + 1024*i}")
                e(f"  buffer_load_dwordx4 v[{24+4*i}:{27+4*i}], v1, s[16:19], s92 offen sc1")
            e("  s_waitcnt vmcnt(0)")
            for i in range(4):
                e(f"  v_subrev_u32 v{24+4*i}, s64, v{24+4*i}"); e(f"  v_subrev_u32 v{25+4*i}, s64, v{25+4*i}")
            for col, dst in ((24, 60), (25, 61)):
                e(f"  v_max3_i32 v3, v{col}, v{col+4}, v{col+8}"); e(f"  v_max_i32 v3, v3, v{col+12}")
                for ctl in ("quad_perm:[1,0,3,2] row_mask:0xf bank_mask:0xf", "quad_perm:[2,3,0,1] row_mask:0xf bank_mask:0xf", "row_ror:4 row_mask:0xf bank_mask:0xf", "row_ror:8 row_mask:0xf bank_mask:0xf",
                            "row_bcast:15 row_mask:0xa bank_mask:0xf", "row_bcast:31 row_mask:0xc bank_mask:0xf"):
                    e("  s_nop 1"); e(f"  v_max_i32_dpp v3, v3, v3 {ctl}")
                e("  s_nop 1"); e(f"  v_readlane_b32 s{dst}, v3, 63")
            if A == 40: e("  s_sub_u32 s60, s60, s61")
            e("  s_memrealtime s[78:79]"); e("  s_waitcnt lgkmcnt(0)")
            e(f"  s_mul_i32 s60, s60, {KK}")
            e("L_AMP:"); e("  s_memrealtime s[62:63]"); e("  s_waitcnt lgkmcnt(0)"); e("  s_sub_u32 s62, s62, s78")
            e("  s_cmp_lt_u32 s62, s60"); e("  s_cbranch_scc1 L_AMP"); e("L_AMPX:")
            return
        if O("endw", 0): e("  s_waitcnt vmcnt(0)")
        stamp(7, True)
        e(f"  s_cmp_lg_u32 s2, {WG}"); e("  s_cbranch_scc1 L_AMPX")
        e(f"  s_cmp_lg_u32 s3, {WV}"); e("  s_cbranch_scc1 L_AMPX")
        if A >= 30:
            e("  s_sleep 60"); e("  s_mov_b64 exec, -1"); e("  v_lshlrev_b32 v1, 4, v0"); e("  v_mov_b32 v2, 0x80000000"); e("  v_mov_b32 v3, 0")
            for i in range(18):
                e(f"  s_mov_b32 s92, {0xd0000 + 1024*i}")
                e("  buffer_load_dwordx4 v[24:27], v1, s[16:19], s92 offen sc1"); e("  s_waitcnt vmcnt(0)")
                if A in (30, 31, 32, 35): e("  v_subrev_u32 v24, s64, v24")
                elif A == 33: e("  v_sub_u32 v24, v24, v25")
                else: e("  v_subrev_u32 v24, s64, v25")
                e("  v_lshlrev_b32 v24, 12, v24"); e(f"  v_add_u32 v25, {64*i}, v0"); e("  v_or_b32 v24, v24, v25")
                e("  v_cmp_eq_u32 vcc, s47, v26"); e("  s_nop 1"); e("  v_cndmask_b32 v24, v2, v24, vcc"); e("  v_max_i32 v3, v3, v24" if i else "  v_mov_b32 v3, v24")
            for ctl in ("quad_perm:[1,0,3,2] row_mask:0xf bank_mask:0xf", "quad_perm:[2,3,0,1] row_mask:0xf bank_mask:0xf", "row_ror:4 row_mask:0xf bank_mask:0xf", "row_ror:8 row_mask:0xf bank_mask:0xf",
                        "row_bcast:15 row_mask:0xa bank_mask:0xf", "row_bcast:31 row_mask:0xc bank_mask:0xf"):
                e("  s_nop 1"); e(f"  v_max_i32_dpp v3, v3, v3 {ctl}")
            e("  s_nop 1"); e("  v_readlane_b32 s60, v3, 63")
            if A in (30, 33, 34): e("  s_ashr_i32 s60, s60, 12")
            elif A == 31: e("  s_bfe_u32 s60, s60, 0x30003")
            elif A == 32: e("  s_and_b32 s60, s60, 7")
            else: e("  s_bfe_u32 s60, s60, 0x50006")
            e("  s_memrealtime s[78:79]"); e("  s_waitcnt lgkmcnt(0)")
        else:
            e(f"  s_sub_u32 s60, s{64+2*B}, s{64+2*A}")
        e(f"  s_mul_i32 s60, s60, {KK}")
        e("L_AMP:"); e("  s_memrealtime s[62:63]"); e("  s_waitcnt lgkmcnt(0)"); e("  s_sub_u32 s62, s62, s78")
        e("  s_cmp_lt_u32 s62, s60"); e("  s_cbranch_scc1 L_AMP"); e("L_AMPX:")
    elif STAMP:
        if FINE: e("  s_memtime s[78:79]"); e("  s_waitcnt lgkmcnt(0)")
        else: stamp(7, True)
        e("  s_mov_b64 exec, 1")
        e("  s_lshl_b32 s60, s2, 3"); e("  s_add_u32 s60, s60, s3"); e("  s_lshl_b32 s60, s60, 6")
        e(f"  s_add_u32 s60, s60, {WS_STAMP}"); e("  s_mov_b32 s18, 0x1000000"); e("  v_mov_b32 v1, 0")
        for j in range(4):
            for k in range(4): e(f"  v_mov_b32 v{4+k}, s{64+4*j+k}")
            e(f"  buffer_store_dwordx4 v[4:7], v1, s[16:19], s60 offen offset:{16*j}"); e("  s_nop 1")

hdr = open('cdna_kernels/%s.s.ref' % NAME).read().split('\n')
for l in hdr:
    if l.startswith('; @launch'): break
    e(l)
XIMG = 73728; TAGL = XIMG + 2304; TEX = XIMG + 3072; WRIMG = TEX + 1024; LDS = 83968
e(f"; @launch grid=(256,1,1) block=(320,1,1) lds={LDS}")
DOC = """
One launch, 256 workgroups of 5 waves, one per CU (LDS and VGPR use allow one).
 role 4 (wave 0), every WG : 8 rows of x -> router scores -> local top-2 -> tagged granule in d_ws,
                             later the copy of its rows that were not routed.
 WGs 0..143, roles 0..3    : 32 columns of w_gate / w_up (LDS-DMA, transposing LDS reads, MFMA),
                             SwiGLU, the matching 32 rows of w_down (MFMA), tagged partial sums in d_ws.
 WGs 0..143, role 4        : gathers the 256 granules, global top-2, brings both rows into LDS;
                             72 of them add up the 144 partial sums of 8 columns and write the routed rows.
 WGs 144..255, roles 0..3  : pull weight lines into the L2 that the weight WGs with the same id mod 8
                             are expected to share (speed only, nothing depends on it).
 Hand-offs between WGs are 16-byte pieces that carry a tag, written and read with sc1.
 tag = d_ws[0] + 0x01010101; d_ws[0] is set to the tag at the end, so it differs from launch to launch.
"""
for l in DOC.strip("\n").split("\n"): cm(l)
e('.amdgcn_target "amdgcn-amd-amdhsa--gfx950"'); e(".text")
K = NAME + "_kernel"
e(f".globl {K}"); e(".p2align 8"); e(f".type {K},@function"); e(f"{K}:")
DPPM = "row_mask:0xf bank_mask:0xf"
AF = 12; BF = 48; ACC = 120; WD = 128; AD = 160; XR = 84; WR = 48; R0 = 48
VXW = 192; VA2 = 193; VTAG = 194; DUMC = 196; DUM = 197
QS = 16*9216

def slice_calc():
    e("  s_and_b32 s45, s2, 7"); e("  s_mul_i32 s45, s45, 18"); e("  s_lshr_b32 s44, s2, 3")
    e("  s_add_u32 s45, s45, s44", "slice: neighbours are 8 ids apart")
def setup0():
    e("  v_and_b32 v2, 15, v0"); e("  v_lshrrev_b32 v3, 4, v0")
    e("  v_mul_u32_u24 v4, 9216, v3"); e("  v_lshl_add_u32 v4, v2, 4, v4", "w_down: row 8g, 16-byte chunk c")
    e(f"  s_mul_i32 s34, s45, {32*1152}"); e("  s_lshl_b32 s35, s3, 8"); e("  s_add_u32 s34, s34, s35"); e("  s_add_u32 s35, s34, 4608")
def setup1():
    e("  v_lshrrev_b32 v5, 2, v2"); e("  v_lshl_add_u32 v5, v3, 3, v5"); e("  v_and_b32 v6, 1, v0"); e("  v_lshl_add_u32 v5, v6, 2, v5")
    e("  v_lshlrev_b32 v5, 3, v5"); e("  v_and_b32 v6, 2, v0"); e("  v_lshl_add_u32 v5, v6, 1, v5")
    e(f"  v_add_u32 v5, {TEX}, v5", "exchange table: this lane's (f, token)")
    e("  v_and_b32 v6, 1, v0"); e("  v_cmp_eq_u32 vcc, 1, v6"); e("  v_mov_b32 v6, 0xffff"); e("  v_mov_b32 v7, 0xffff0000")
    e("  v_cndmask_b32 v6, v6, v7, vcc", "half-word mask by lane parity")
    e("  v_lshlrev_b32 v7, 6, v2"); e("  v_lshl_add_u32 v7, v3, 4, v7", "partial-sum piece of this lane")
    e("  s_mul_i32 s36, s45, 4608"); e("  s_lshl_b32 s37, s3, 10"); e("  s_add_u32 s36, s36, s37"); e(f"  s_add_u32 s36, s36, {WS_SLAB}")
    e(f"  v_mov_b32 v{VTAG}, {TAGL}")
    e("  s_mov_b32 s56, 0x07060501"); e("  s_mov_b32 s57, 0x07060502"); e("  s_mov_b32 s58, 0x07060503")
    for j in range(0, 32, 2): e(f"  v_mov_b64 v[{AD+j}:{AD+j+1}], 0")
def wd_load(mp): e(f"  buffer_load_dwordx4 v[{WD+4*mp}:{WD+4*mp+3}], v4, s[12:15], s{34+(mp>>2)} offen offset:{1152*(mp&3)}" + WNT)
ncopy = 0
def copy_stores(fl=""):
    global ncopy
    ncopy += 1
    e("  s_and_b32 s38, s32, 0xffff"); e("  s_and_b32 s39, s33, 0xffff")
    e("  v_cmp_ne_u32 s[52:53], s38, v11"); e("  v_cmp_ne_u32 s[54:55], s39, v11")
    e("  s_and_b64 exec, s[52:53], s[54:55]", "rows that are not routed")
    e("  s_cmp_lg_u64 s[96:97], 0"); e(f"  s_cbranch_scc1 L_FIX{ncopy}"); e(f"L_FIXR{ncopy}:")
    for i in range(9): e(f"  buffer_store_dwordx4 v[{XR+4*i}:{XR+4*i+3}], v10, s[20:23], s28 offen offset:{128*i}{fl}")

if STAMP:
    for i in range(2, 16): e(f"  s_mov_b32 s{64+i}, 0")
stamp(0)
cm("SRDs: x s[4:7], w_r or w_gate/w_up s[8:11], w_down s[12:15], d_ws s[16:19], d_out s[20:23]")
e("  s_load_dwordx2 s[4:5], s[0:1], 0"); e("  s_load_dwordx2 s[8:9], s[0:1], 8"); e("  s_load_dwordx2 s[16:17], s[0:1], 56")
e("  s_load_dwordx4 s[24:27], s[0:1], 16"); e("  s_load_dwordx2 s[12:13], s[0:1], 32"); e("  s_load_dwordx2 s[20:21], s[0:1], 40")
e("  s_getpc_b64 s[28:29]", "read one word of every line of the code: it lands in L2"); e("L_PC:")
e("  v_lshlrev_b32 v2, 7, v0"); e("  v_cmp_gt_u32 vcc, (L_CODE_END-L_PC+127)/128, v0")
e("  s_and_saveexec_b64 s[30:31], vcc"); e("  s_cbranch_execz L_NOPF")
e(f"  global_load_dword v{DUMC}, v2, s[28:29]"); e("L_NOPF:"); e("  s_mov_b64 exec, -1")
e("  v_lshrrev_b32 v1, 6, v0"); e("  v_and_b32 v0, 63, v0"); e("  v_readfirstlane_b32 s3, v1")
e("  s_cmp_ge_u32 s2, 256"); e("  s_cbranch_scc1 L_END")
e("  s_sub_u32 s3, s3, 1", "role: wave 0 -> 4, wave k -> k-1"); e("  s_cselect_b32 s3, 4, s3")
TRIM = O("trim", 1)
def srdw(which):
    for r, v in ((6, XB), (7, "0x20000"), (11, "0x20000"), (14, WB), (15, "0x20000"), (18, WS_SIZE), (19, "0x20000"), (22, XB), (23, "0x20000")):
        if r in which: e(f"  s_mov_b32 s{r}, {v}")
srdw([11] if TRIM else [6, 7, 11, 14, 15, 18, 19, 22, 23])
if NEAR == 2:
    e(f"  s_mov_b32 s10, {WB}"); e("  s_cmp_eq_u32 s3, 4"); e("  s_cbranch_scc1 L_X1")
    e(f"  s_cmp_ge_u32 s2, {NWT}"); e("  s_cbranch_scc1 L_HELP"); e("  s_branch L_NOTX"); e("L_X1:")
else:
    e("  s_cmp_lg_u32 s3, 4"); e("  s_cbranch_scc1 L_NOTX")
cm("---------------------------------------------------------------- role 4: router scores of 8 rows")
e("  s_setprio 3")
if TRIM: srdw([6, 7])
e(f"  s_mov_b32 s10, {D*2}"); e(f"  s_mov_b32 m0, {WRIMG}")
e("  v_lshlrev_b32 v8, 4, v0"); e("  v_and_b32 v1, 0x70, v8"); e("  v_lshrrev_b32 v9, 3, v0")
e("  v_mul_u32_u24 v10, 1152, v9"); e("  v_add_u32 v10, v10, v1", "8 lanes per row"); e("  s_mul_i32 s28, s2, 9216")
e("  s_waitcnt lgkmcnt(0)")
e(f"  s_load_dword s47, s[16:17], {WS_E}")
e("  buffer_load_dwordx4 v8, s[8:11], 0 offen lds", "w_r -> LDS"); e("  s_mov_b64 exec, 0xff")
e("  buffer_load_dwordx4 v8, s[8:11], 0 offen offset:1024 lds"); e("  s_mov_b64 exec, -1")
for i in range(9): e(f"  buffer_load_dwordx4 v[{XR+4*i}:{XR+4*i+3}], v10, s[4:7], s28 offen offset:{128*i}" + XNT)
if BAR0: e("  s_barrier", "x goes first in this CU's queue")
if NEAR: e("  s_branch L_X2")
e("#MARK XINIT"); e("L_X2:")
if TRIM: srdw([14, 15, 18, 19, 22, 23])
e(f"  v_add_u32 v1, {WRIMG}, v1")
e("  s_lshl_b32 s29, s2, 3"); e("  s_sub_u32 s29, 2047, s29"); e("  v_sub_u32 v11, s29, v9", "2047 - row"); e("  s_mov_b32 s30, 0xffff0000")
e(f"  s_and_b32 s29, s2, {REP-1}"); e(f"  s_mul_i32 s27, s29, {RS}"); e(f"  s_add_u32 s27, s27, {WS_GRAN}", "the copy of the granules this WG reads")
for j in range(1, 4): e(f"  s_add_u32 s{47+j}, s27, {64*GS*j}")
e("  s_and_b32 s29, s2, 7"); e("  s_lshl_b32 s29, s29, 5"); e("  s_lshr_b32 s31, s2, 3"); e("  s_add_u32 s29, s29, s31")
e(f"  s_mul_i32 s29, s29, {GS}"); e(f"  s_add_u32 s31, s29, {WS_GRAN}", "own granule")
e(f"  v_mul_u32_u24 v44, {GS}, v0")
for j in range(4): e(f"  v_mov_b32 v{12+j}, 0")
e("  v_bfrev_b32 v22, 1")
e(f"  v_bfe_u32 v21, v0, {LG}, {LR}"); e(f"  v_mul_u32_u24 v21, {RS}, v21"); e(f"  v_and_b32 v19, {GS//16-1}, v0"); e("  v_lshl_add_u32 v21, v19, 4, v21")
e(f"  s_mov_b32 s61, {SPIN}"); e(f"  v_mov_b32 v45, {TAGL}")
e("  s_waitcnt vmcnt(9) lgkmcnt(0)")
for i in range(9): e(f"  ds_read_b128 v[{WR+4*i}:{WR+4*i+3}], v1 offset:{128*i}")
e("  s_add_u32 s47, s47, 0x01010101", "tag of this launch"); e("  v_mov_b32 v18, s47")
for i in range(9):
    e(f"  s_waitcnt vmcnt({8-i}) lgkmcnt({8-i})")
    for j in range(4): e(f"  v_dot2c_f32_bf16 v{12+j}, v{XR+4*i+j}, v{WR+4*i+j}")
e("  s_nop 1")
e("  v_add_f32 v12, v12, v13"); e("  v_add_f32 v14, v14, v15"); e("  v_add_f32 v12, v12, v14")
e("  s_movk_i32 s29, 0x207"); e("  v_cmp_class_f32 s[96:97], v12, s29", "lanes that hold an inf or a NaN")
e(f"  v_add_f32_dpp v12, v12, v12 quad_perm:[1,0,3,2] {DPPM}"); e("  s_nop 1")
e(f"  v_add_f32_dpp v12, v12, v12 quad_perm:[2,3,0,1] {DPPM}"); e("  s_nop 1")
e(f"  v_add_f32_dpp v12, v12, v12 row_half_mirror {DPPM}")
cm("key = order-preserving bf16 score << 16 | 2047 - row; NaN sorts last")
e("  v_cvt_pk_bf16_f32 v13, v12, v12"); e("  v_cmp_u_f32 vcc, v12, v12"); e("  v_ashrrev_i32 v14, 31, v13")
e("  v_bitop3_b32 v13, v13, v14, v22 bitop3:0x1e"); e("  v_cndmask_b32 v13, v13, 0, vcc"); e("  v_and_or_b32 v13, v13, s30, v11")
e("  s_nop 1")
e(f"  v_max_u32_dpp v16, v13, v13 row_ror:8 {DPPM}"); e(f"  v_min_u32_dpp v17, v13, v13 row_ror:8 {DPPM}"); e("  s_nop 0")
for ctl in ("row_bcast:15 row_mask:0xa bank_mask:0xf", "row_bcast:31 row_mask:0xc bank_mask:0xf"):
    e(f"  v_min_u32_dpp v14, v16, v16 {ctl}"); e(f"  v_max_u32_dpp v16, v16, v16 {ctl}")
    e(f"  v_max_u32_dpp v15, v17, v17 {ctl}"); e("  v_max_u32 v17, v14, v15")
e(f"  s_lshl_b64 exec, {hex((1 << NL) - 1)}, 48", f"lanes 48..63 hold the pair: {REP} copies x {GS} bytes")
e("  buffer_store_dwordx4 v[16:19], v21, s[16:19], s31 offen" + HS)
stamp(3)
e(f"  s_cmp_lt_u32 s2, {NWT}"); e("  s_cbranch_scc1 L_XG"); e("  s_barrier", "prefetch WG: let the other waves fill the queue"); e("L_XG:")
e("  ds_write_b32 v45, v18"); e("  s_mov_b64 exec, -1")
slice_calc(); setup0(); setup1()
e(f"  s_cmp_ge_u32 s2, {NWT}"); e("  s_cbranch_scc1 L_XH")
def wd4():
    e("  s_mov_b32 exec_lo, 0x00ff00ff", "columns 512..575 of w_down"); e("  s_mov_b32 exec_hi, 0x00ff00ff")
    for mp in range(8): wd_load(mp)
    e("  s_mov_b64 exec, -1")
if WD4E: wd4()
if RP:
    e("  v_lshlrev_b32 v46, 7, v0"); e(f"  s_mul_i32 s29, s45, {32*1152}")
    for r in range(RP):
        e(f"  buffer_load_dword v{DUM}, v46, s[12:15], s29 offen" + PNT)
        if r < RP-1: e("  s_add_u32 s29, s29, 8192")
e("  s_waitcnt vmcnt(0)")
if O("nored5", 0): stamp(5)
e("L_P1:")
if O("lsl", 0): e(f"  s_sleep {O('lsl', 0)}", "back off before every read of the granules")
b = 48
for j in range(4): e(f"  buffer_load_dwordx4 v[{b+4*j}:{b+3+4*j}], v44, s[16:19], s{27 if j == 0 else 47+j} offen" + HL)
e("  s_waitcnt vmcnt(0)")
e(f"  v_cmp_ne_u32 vcc, s47, v{b+2}"); e(f"  v_cmp_ne_u32 s[32:33], s47, v{b+6}")
e(f"  v_cmp_ne_u32 s[38:39], s47, v{b+10}"); e(f"  v_cmp_ne_u32 s[40:41], s47, v{b+14}")
e("  s_or_b64 vcc, vcc, s[32:33]"); e("  s_or_b64 s[38:39], s[38:39], s[40:41]"); e("  s_or_b64 vcc, vcc, s[38:39]")
e("  s_cbranch_scc0 L_PT")
if not O("lsl", 0): e(f"  s_sleep {PSL}", "some granule is missing: back off and read again")
e("  s_sub_u32 s61, s61, 1"); e("  s_cbranch_scc0 L_P1")
e("  .p2align 3"); e("L_PT:")
def merge(a1, a2, b1, b2, o1, o2, t):
    e(f"  v_min_u32 v{t}, v{a1}, v{b1}"); e(f"  v_max_u32 v{o1}, v{a1}, v{b1}"); e(f"  v_max3_u32 v{o2}, v{t}, v{a2}, v{b2}")
merge(b, b+1, b+4, b+5, 40, 41, 12); merge(b+8, b+9, b+12, b+13, 42, 43, 13); merge(40, 41, 42, 43, 40, 41, 12)
e("  s_nop 0")
for ctl in (f"quad_perm:[1,0,3,2] {DPPM}", f"quad_perm:[2,3,0,1] {DPPM}", f"row_ror:4 {DPPM}", f"row_ror:8 {DPPM}",
            "row_bcast:15 row_mask:0xa bank_mask:0xf", "row_bcast:31 row_mask:0xc bank_mask:0xf"):
    e(f"  v_min_u32_dpp v12, v40, v40 {ctl}"); e(f"  v_max_u32_dpp v40, v40, v40 {ctl}")
    e(f"  v_max_u32_dpp v13, v41, v41 {ctl}"); e("  v_max_u32 v41, v12, v13")
e("  v_cmp_gt_u32 vcc, 8, v0"); e("  v_readlane_b32 s32, v40, 63", "global top-2 keys"); e("  v_readlane_b32 s33, v41, 63")
e(f"  s_cmp_ge_u32 s2, {NWT}"); e("  s_cbranch_scc1 L_XH2")
e("  s_and_b32 s38, s32, 0x7ff"); e("  s_and_b32 s39, s33, 0x7ff"); e("  s_sub_u32 s38, 2047, s38"); e("  s_sub_u32 s39, 2047, s39")
e("  s_mul_i32 s38, s38, 1152"); e("  s_mul_i32 s39, s39, 1152"); e(f"  s_mov_b32 m0, {XIMG}"); e("  s_sub_u32 s40, s39, 128")
e("  buffer_load_dwordx4 v8, s[4:7], s38 offen lds", "both routed rows -> LDS [2][1152 B]")
e("  s_add_u32 s41, s38, 1024"); e("  v_mov_b32 v12, s40"); e("  v_mov_b32 v13, s41"); e("  s_addk_i32 m0, 0x400")
e("  v_cndmask_b32 v12, v12, v13, vcc"); e("  v_add_u32 v12, v12, v8")
e("  buffer_load_dwordx4 v12, s[4:7], 0 offen lds")
e("  s_addk_i32 m0, 0x400"); e("  s_add_u32 s40, s39, 896"); e("  s_mov_b64 exec, 0xffff")
e("  buffer_load_dwordx4 v8, s[4:7], s40 offen lds"); e("  s_mov_b64 exec, -1")
stamp(1)
def final_setup():
    cm("last stage: lane row r = lane>>4 holds token r>>1, column 8u + 2(lane&3) + (r&1)")
    e("  v_cmp_gt_u32 vcc, 32, v0"); e("  v_mov_b32 v28, s33"); e("  v_mov_b32 v29, s32"); e("  v_and_b32 v31, 3, v0")
    e("  v_cndmask_b32 v28, v28, v29, vcc"); e("  v_and_b32 v29, 0xffff, v28"); e("  v_sub_u32 v29, 2047, v29")
    e("  v_mul_u32_u24 v29, 1152, v29"); e("  v_bfe_u32 v30, v0, 4, 1"); e("  v_lshlrev_b32 v30, 1, v30")
    e("  v_lshl_add_u32 v30, v31, 2, v30"); e("  v_add_u32 v29, v29, v30")
    e("  v_not_b32 v32, v28"); e("  v_ashrrev_i32 v32, 31, v32"); e("  v_or_b32 v32, 0x80000000, v32")
    e("  v_xor_b32 v32, v32, v28"); e("  v_and_b32 v32, 0xffff0000, v32", "the bf16 score back from the key"); e("  v_mul_f32 v32, 0xbfb8aa3b, v32")
    e("  v_exp_f32 v32, v32"); e("  v_lshrrev_b32 v33, 5, v0"); e("  v_add_f32 v32, 1.0, v32"); e("  v_rcp_f32 v32, v32")
    e("  v_mul_u32_u24 v33, 1152, v33"); e("  v_cvt_pk_bf16_f32 v32, v32, v32"); e("  v_and_b32 v32, 0xffff0000, v32", "sigmoid, rounded to bf16")
    e("  s_sub_u32 s46, s45, 72", "unit u = slice - 72"); e("  s_lshl_b32 s50, s46, 4"); e(f"  s_add_u32 s51, s50, {XIMG}"); e("  v_add3_u32 v33, v33, v30, s51")
    e("  v_lshrrev_b32 v34, 2, v0"); e("  v_mul_u32_u24 v34, 4608, v34"); e("  v_lshl_add_u32 v34, v31, 4, v34")
    e("  s_lshl_b32 s80, s46, 6"); e(f"  s_add_u32 s80, s80, {WS_SLAB}")
    for t in range(1, 9): e(f"  s_add_u32 s{80+t}, s80, {16*4608*t}")
    e("  s_mov_b32 s41, 0x0c04000c"); e("  s_mov_b32 s42, 0x04020100"); e("  v_mov_b32 v35, 0")
if EFS == 2: final_setup()
e("  s_barrier", "A: the rows are requested")
if not WD4E: wd4()
if EFS == 1: final_setup()
e(f"  s_waitcnt vmcnt({0 if WD4E else 8}) lgkmcnt(0)")
stamp(4, True)
e("  s_barrier", "B: the rows are in LDS")
if LOWP: e("  s_setprio 0")
if not LATEC: copy_stores(CW); e("  s_mov_b64 exec, -1")
if EFS == 0: final_setup()
if LOWP == 2: e("  s_setprio 3")
e("  s_branch L_JOIN")
e("L_XH:"); e("  s_barrier", "the prefetch is done"); e("  s_branch L_P1")
e("L_XH2:"); copy_stores(CH); e("  s_branch L_FIN")
cm("---------------------------------------------------------------- roles 0..3: (matrix, half of K)")
e("#MARK C0"); e("L_NOTX:")
e(f"  s_mov_b32 s10, {WB}")
e(f"  s_cmp_ge_u32 s2, {NWT}"); e("  s_cbranch_scc1 L_HELP")
slice_calc()
if not TRIM or WE: setup0()
if TRIM and WE: srdw([14, 15])
e("  v_lshrrev_b32 v8, 2, v0"); e("  v_mul_u32_u24 v8, 9216, v8"); e("  v_lshrrev_b32 v9, 4, v0"); e("  v_and_b32 v9, 2, v9")
e("  v_xor_b32 v9, v9, v0"); e("  v_and_b32 v9, 3, v9"); e("  v_lshl_add_u32 v8, v9, 4, v8", "16 rows x 64 B, halves swapped in rows 8..15")
e("  s_and_b32 s28, s3, 1"); e(f"  s_mul_i32 s28, s28, {288*9216}"); e("  s_lshl_b32 s29, s45, 6"); e("  s_add_u32 s28, s28, s29")
e("  s_and_b32 s42, s45, 1", "the two WGs that share the lines start on different rows")
e(f"  s_mul_i32 s29, s42, {N0*QS}"); e(f"  s_add_u32 s46, s28, {2*N0*QS}"); e(f"  s_add_u32 s43, s28, {N0*QS}")
e("  s_sub_u32 s43, s43, s29"); e("  s_add_u32 s28, s28, s29")
e("  s_mul_i32 s30, s3, 18432"); e("  s_mov_b32 m0, s30")
e("  s_cmp_ge_u32 s3, 2"); e("  s_waitcnt lgkmcnt(0)")
e("  s_cselect_b32 s8, s26, s24"); e("  s_cselect_b32 s9, s27, s25")
stamp(1)
ops = [("W", i) for i in range(WE)] + [("D", i) for i in range(18)] + [("W", i) for i in range(WE, 8)]
pos = {op: n for n, op in enumerate(ops)}
nis = 0
def issue():
    global nis
    if nis >= len(ops): return False
    k, i = ops[nis]
    if k == "D":
        if N0 and i == N0: e("  s_mov_b32 s28, s43")
        if N0 and i == 2*N0: e("  s_mov_b32 s28, s46")
        e("  buffer_load_dwordx4 v8, s[8:11], s28 offen lds")
        if i < 17: e("  s_addk_i32 m0, 0x400"); e(f"  s_add_u32 s28, s28, {QS}")
    else: wd_load(i)
    nis += 1
    return True
def vwait(op): e(f"  s_waitcnt vmcnt({nis - pos[op] - 1})")
if BAR0: e("  s_barrier")
while nis < WE + min(N0, W1):
    if C3 and nis == WE + 2:
        e("  s_and_b32 s29, s45, 14"); e("  s_cmp_lg_u32 s29, 6"); e("  s_cbranch_scc1 L_NC3")
        e("  s_waitcnt vmcnt(1)", "these columns fill only half of the L1"); e("L_NC3:")
    issue()
if NEAR & 1: e("  s_branch L_C2")
e("#MARK C1"); e("L_C2:")
if TRIM:
    srdw([6, 7, 14, 15, 18, 19, 22, 23])
    if not WE: setup0()
setup1()
e("  v_lshlrev_b32 v9, 9, v3"); e("  v_bfe_u32 v10, v0, 2, 2"); e("  v_lshl_add_u32 v9, v10, 6, v9"); e("  v_and_b32 v10, 3, v0")
e("  v_lshl_add_u32 v9, v10, 3, v9"); e("  v_and_b32 v10, 1, v3"); e("  v_lshl_add_u32 v9, v10, 5, v9")
e("  v_add_u32 v9, s30, v9", "transposing reads, columns 0..15"); e("  v_xor_b32 v10, 32, v9", "columns 16..31")
e("  v_and_b32 v11, 1, v0"); e("  v_mul_u32_u24 v11, 1152, v11"); e("  v_lshl_add_u32 v11, v3, 4, v11")
e("  s_and_b32 s29, s3, 1"); e("  s_mul_i32 s29, s29, 576"); e(f"  s_add_u32 s29, s29, {XIMG}")
e(f"  s_mul_i32 s31, s42, {32*N0}")
e(f"  v_add_u32 v{VA2}, s29, v11", "x fragments"); e(f"  v_add_u32 v11, s31, v{VA2}"); e(f"  v_subrev_u32 v1, s31, v{VA2}")
e("  s_lshl_b32 s29, s3, 8"); e(f"  s_add_u32 s29, s29, {TEX}"); e(f"  v_lshl_add_u32 v{VXW}, v2, 3, s29")
def trreads(s):
    for hh in range(2):
        for u in range(2):
            r = BF + 8*s + 4*hh + 2*u
            e(f"  ds_read_b64_tr_b16 v[{r}:{r+1}], v{9+hh} offset:{2048*s+256*u}")
def mfmas(s):
    for hh in range(2):
        c = "0" if s == 0 else f"v[{ACC+4*hh}:{ACC+4*hh+3}]"
        r = BF + 8*s + 4*hh
        e(f"  v_mfma_f32_16x16x32_bf16 v[{ACC+4*hh}:{ACC+4*hh+3}], v[{AF+4*s}:{AF+4*s+3}], v[{r}:{r+3}], {c}")
E0 = N0 // 2
if N0 == 0:
    e(f"  s_waitcnt vmcnt({O('dsw', 0)})", "w_down is in; the prefetch is far enough ahead by now")
    stamp(2)
    while nis < WE + W2: issue()
for s in range(PB):
    for h in range(2):
        need = 2*s + h
        def ok():
            if nis >= len(ops) or ops[nis][0] != "D": return False
            i = ops[nis][1]
            return i < need + 1 + W1 if i < N0 else (need >= N0 - 1 and i < need + 1 + W2)
        if ok() or h == 1: vwait(("D", need))
        while ok(): issue()
    if s == 0 and N0: stamp(2)
    trreads(s)
while nis < len(ops) and ops[nis][0] == "D": issue()
stamp(5)
e("  s_barrier", "A")
while issue(): pass
e("  s_waitcnt lgkmcnt(0)"); e("  s_barrier", "B")
stamp(4, True); fs(1, True)
if CPRIO: e(f"  s_setprio {CPRIO}")
order = []
for s in range(9):
    ar = 11 if s < E0 else (1 if s < 2*E0 else VA2)
    e(f"  ds_read_b128 v[{AF+4*s}:{AF+4*s+3}], v{ar} offset:{64*s}"); order.append(f"A{s}")
late = list(range(PB, 9))
for s in range(9):
    if late and late[0] <= s + 1:
        t = late.pop(0); vwait(("D", 2*t+1)); trreads(t); order += [f"T{t}"]*4
    tag = f"A{s}" if s < PB else f"T{s}"
    need = len(order) - 1 - order[::-1].index(tag)
    e(f"  s_waitcnt lgkmcnt({min(15, len(order) - need - 1)})")
    mfmas(s)
stamp(3); fs(2)
e("  s_mov_b64 exec, 0xffff"); e("  s_nop 6")
e(f"  ds_write2_b64 v{VXW}, v[{ACC}:{ACC+1}], v[{ACC+4}:{ACC+5}] offset0:0 offset1:16")
e("  s_mov_b64 exec, -1")
cm("---------------------------------------------------------------- all 5 waves: SwiGLU, 128 columns of w_down each")
e("L_JOIN:")
e("  s_waitcnt lgkmcnt(0)"); fs(3, True); e("  s_barrier", "C: the four partial pre-activations are in LDS"); fs(4)
if O("gst", -1) == 21: e("  s_memrealtime s[94:95]")
e("  ds_read2_b32 v[12:13], v5 offset0:0 offset1:64"); e("  ds_read2_b32 v[14:15], v5 offset0:128 offset1:192")
e(f"  ds_read_b32 v23, v{VTAG}")
e("  s_cmp_eq_u32 s3, 4"); e("  s_waitcnt lgkmcnt(0)")
e("  v_add_f32 v12, v12, v13"); e("  v_add_f32 v14, v14, v15")
e("  v_cvt_pk_bf16_f32 v12, v12, v14"); e("  v_lshlrev_b32 v13, 16, v12"); e("  v_mul_f32 v15, 0xbfb8aa3b, v13"); e("  v_exp_f32 v15, v15")
e("  v_and_b32 v14, 0xffff0000, v12"); e("  v_add_f32 v15, 1.0, v15"); e("  v_rcp_f32 v15, v15"); e("  s_nop 0")
e("  v_mul_f32 v13, v13, v15"); e("  v_cvt_pk_bf16_f32 v13, v13, v13"); e("  v_and_b32 v13, 0xffff0000, v13")
e("  v_mul_f32 v13, v13, v14"); e("  v_cvt_pk_bf16_f32 v13, v13, v13", "h = bf16(bf16(silu(a)) * u), in both halves")
fs(5)
if O("gst", -1) == 20: e("  s_memrealtime s[92:93]")
e("  s_cbranch_scc1 L_W4"); e("  s_waitcnt vmcnt(0)"); e("L_W4:")
if O("gst", -1) in (20, 23): e("  s_memrealtime s[94:95]"); fs(6); e("  s_nop 0" if WD4E else f"  s_waitcnt vmcnt({0 if LATEC else 9})")
e(f"  v_and_b32_dpp v12, v13, v6 quad_perm:[0,0,2,2] {DPPM}"); e(f"  v_and_b32_dpp v16, v13, v6 quad_perm:[1,1,3,3] {DPPM}")
e("  s_nop 0"); e("  .p2align 3")
cm("A = h on a diagonal: D[token, column parity and pair][chunk] sums 4 rows of w_down per MFMA")
for mp in range(8):
    src = 12 if mp < 4 else 16; qq = mp & 3
    for r in range(4):
        n = (4*(r-qq)) % 16
        ctl = "quad_perm:[0,1,2,3]" if n == 0 else f"row_ror:{n}"
        e(f"  v_mov_b32_dpp v{AD+4*mp+r}, v{src} {ctl} row_mask:0xf bank_mask:{hex(1<<r)}")
    if mp >= 1:
        m = mp - 1; c = "0" if m == 0 else f"v[{ACC}:{ACC+3}]"
        e(f"  v_mfma_f32_16x16x32_bf16 v[{ACC}:{ACC+3}], v[{AD+4*m}:{AD+4*m+3}], v[{WD+4*m}:{WD+4*m+3}], {c}")
e("  s_nop 0")
e(f"  v_mfma_f32_16x16x32_bf16 v[{ACC}:{ACC+3}], v[{AD+28}:{AD+31}], v[{WD+28}:{WD+31}], v[{ACC}:{ACC+3}]")
e("  s_cselect_b32 exec_lo, 0x00ff00ff, -1"); e("  s_cselect_b32 exec_hi, 0x00ff00ff, -1"); e("  s_nop 5")
cm("4 sums (top 24 bits each) + tag in 16 bytes")
for j in range(3): e(f"  v_perm_b32 v{20+j}, v{ACC+j}, v{ACC+3}, s{56+j}")
if O("gst", -1) == 22: e("  s_memrealtime s[94:95]")
e("  buffer_store_dwordx4 v[20:23], v7, s[16:19], s36 offen" + HS)
GATH = AMP and 30 <= int(AMP.split(",")[0]) < 40
if GATH:
    e("  s_memrealtime s[90:91]"); e("  s_waitcnt lgkmcnt(0)")
    GS_ = O("gst", -1); GR_ = O("grole", -1)
    if GS_ == 20: e("  s_sub_u32 s90, s94, s92"); e("  s_add_u32 s90, s90, s64")
    elif GS_ >= 21: e("  s_mov_b32 s90, s94")
    elif GS_ >= 0: e(f"  s_mov_b32 s90, s{64+2*GS_}")
    if GR_ == 4: e("  s_cmp_eq_u32 s3, 4"); e("  s_cselect_b32 s90, s90, s64")
    if GR_ == 0: e("  s_cmp_lg_u32 s3, 4"); e("  s_cselect_b32 s90, s90, s64")
    e("  s_mov_b64 exec, 1"); e("  v_mov_b32 v24, s90"); e("  v_mov_b32 v25, s64"); e("  v_mov_b32 v26, v23"); e("  v_mov_b32 v27, 0")
    e("  s_lshl_b32 s92, s2, 3"); e("  s_add_u32 s92, s92, s3"); e("  s_lshl_b32 s92, s92, 4"); e("  s_add_u32 s92, s92, 0xd0000")
    e("  buffer_store_dwordx4 v[24:27], v27, s[16:19], s92 offen sc1")
    e("  s_cmp_eq_u32 s3, 4")
if STAMP:
    e("  s_cbranch_scc1 L_S6"); stamp(6); e("  s_branch L_FIN"); e("L_S6:"); stamp(2)
else: e("  s_cbranch_scc0 L_FIN")
if LATEC and O("cb", 1): e("  s_barrier", "released when the other four waves have ended: their sums are on the way")
if LATEC == 1: e("  s_mov_b64 exec, -1"); copy_stores(CW)
e("  s_cmp_ge_u32 s46, 72"); e(f"  s_cbranch_scc1 {'L_WC' if LATEC == 2 else 'L_FIN'}")
cm("---------------------------------------------------------------- 72 waves: sum over the 144 WGs, write the routed rows")
e("  s_mov_b64 exec, -1"); e("  ds_read_u16_d16_hi v35, v33"); e(f"  s_mov_b32 s61, {SPIN}")
e("  s_waitcnt vmcnt(0)")
stamp(6)
if RSL: e(f"  s_sleep {RSL}")
def rload(t): e(f"  buffer_load_dwordx4 v[{R0+4*t}:{R0+3+4*t}], v34, s[16:19], s{80+t} offen" + HL)
def racc(t):
    r = R0 + 4*t
    e(f"  v_perm_b32 v{r+3}, v{r+1}, v{r}, s41"); e(f"  v_perm_b32 v{r+3}, v{r+2}, v{r+3}, s42")
    if t:
        e(f"  v_pk_add_f32 v[{R0}:{R0+1}], v[{R0}:{R0+1}], v[{r}:{r+1}]"); e(f"  v_pk_add_f32 v[{R0+2}:{R0+3}], v[{R0+2}:{R0+3}], v[{r+2}:{r+3}]")
def rchain(extra, lab):
    for t in range(9):
        if lab: e(f"L_R{t}:")
        e(f"  s_waitcnt vmcnt({8-t+extra})"); e(f"  v_cmp_ne_u32 vcc, s47, v{R0+4*t+3}"); e(f"  s_cbranch_vccnz L_RR{t}")
        if lab: e(f"L_RA{t}:")
        racc(t)
for t in range(9): rload(t)
if LATEC == 2:
    copy_stores(CW); e("  s_mov_b64 exec, -1")
    rchain(9, False)
    e("L_RD:")
else:
    rchain(0, True)
if not O("nored5", 0): stamp(5)
e("  s_nop 1"); e(f"  v_permlane32_swap_b32 v{R0}, v{R0+2}"); e(f"  v_permlane32_swap_b32 v{R0+1}, v{R0+3}")
e(f"  v_add_f32 v{R0}, v{R0}, v{R0+2}"); e(f"  v_add_f32 v{R0+1}, v{R0+1}, v{R0+3}"); e("  s_nop 1")
e(f"  v_permlane16_swap_b32 v{R0}, v{R0+1}"); e(f"  v_add_f32 v{R0}, v{R0}, v{R0+1}"); e("  s_nop 1")
e(f"  v_add_f32_dpp v{R0}, v{R0}, v{R0} row_ror:4 {DPPM}"); e("  s_nop 1"); e(f"  v_add_f32_dpp v{R0}, v{R0}, v{R0} row_ror:8 {DPPM}")
e(f"  v_cvt_pk_bf16_f32 v16, v{R0}, v{R0}"); e("  v_and_b32 v16, 0xffff0000, v16"); e("  v_mul_f32 v16, v16, v32")
e("  v_cvt_pk_bf16_f32 v16, v16, v16"); e("  v_and_b32 v16, 0xffff0000, v16"); e("  s_waitcnt lgkmcnt(0)")
e("  v_add_f32 v16, v16, v35"); e("  v_cvt_pk_bf16_f32 v16, v16, v16")
e("  s_mov_b32 exec_lo, 0x000f000f"); e("  s_mov_b32 exec_hi, 0x000f000f")
e("  buffer_store_short v16, v29, s[20:23], s50 offen" + CFN)
e("  s_cmp_lg_u32 s46, 0"); e("  s_cbranch_scc1 L_FIN")
e("  s_mov_b64 exec, 1", "every reader of d_ws[0] is behind the sums seen here"); e("  v_mov_b32 v16, s47"); e(f"  v_mov_b32 v17, {WS_E}")
e("  buffer_store_dword v16, v17, s[16:19], 0 offen" + CFN)
e("L_FIN:"); stamp_flush(); e("L_END:"); e("  s_endpgm")
if LATEC == 2:
    e("L_WC:"); e("  s_mov_b64 exec, -1"); e("  s_branch L_XH2")
    rchain(0, True); e("  s_branch L_RD")
for t in range(9):
    e(f"L_RR{t}:"); e("  s_sub_u32 s61, s61, 1"); e(f"  s_cbranch_scc1 L_RA{t}")
    for t2 in range(t, 9): rload(t2)
    e(f"  s_branch L_R{t}")
cm("---------------------------------------------------------------- prefetch waves: one word per 128-byte line")
e("#MARK H0"); e("L_HELP:")
e(f"  s_sub_u32 s28, s2, {NWT}"); e("  s_and_b32 s29, s28, 7"); e("  s_lshr_b32 s28, s28, 3")
e("  s_and_b32 s33, s3, 1"); e("  s_mul_i32 s33, s33, 288"); e(f"  s_mul_i32 s32, s28, {HR}"); e("  s_add_u32 s32, s32, s33")
e(f"  s_add_u32 s32, s32, {32*N0}"); e("  s_mul_i32 s32, s32, 9216"); e("  s_mul_i32 s34, s29, 1152"); e("  s_add_u32 s32, s32, s34")
e("  v_mul_u32_u24 v3, 0x1c72, v0"); e("  v_lshrrev_b32 v3, 16, v3", "lane / 9"); e("  v_mul_u32_u24 v4, 9, v3"); e("  v_sub_u32 v4, v0, v4")
e("  v_mul_u32_u24 v3, 9216, v3"); e("  v_lshl_add_u32 v3, v4, 7, v3")
if HA:
    cm("the column block whose lines fill only half of a CU's L1 (byte column 384 mod 1024): all its rows first")
    e("  s_and_b32 s36, s3, 1"); e("  s_lshl1_add_u32 s36, s28, s36"); e(f"  s_mul_i32 s36, s36, {21*9216}")
    e("  s_cmp_ge_u32 s29, 4"); e("  s_addc_u32 s37, s29, 0"); e("  s_lshl_b32 s37, s37, 10"); e("  s_add_u32 s36, s36, s37"); e("  s_add_u32 s36, s36, 384")
    e("  v_cmp_lt_u32 vcc, 20, v0"); e("  v_mul_u32_u24 v5, 9216, v0"); e(f"  v_subrev_u32 v6, {21*9216 - 1024}, v5"); e("  v_cndmask_b32 v5, v5, v6, vcc")
    e("  s_cmp_eq_u32 s29, 3"); e("  s_cselect_b32 s37, 42, 21")
e("  s_lshl2_add_u32 s28, s28, s3")
e(f"  s_mul_i32 s29, s29, {5184*128}")
if RP: e(f"  s_add_u32 s29, s29, {RP*8192}")
e("  v_lshlrev_b32 v2, 7, v0")
nr = -(-(288 - 32*N0) // (NH*HR)) - O("hskip", 0)
assert nr - HG >= 1
e(f"  s_mov_b32 s30, {nr-HG}")
e("  s_cmp_ge_u32 s3, 2"); e("  s_waitcnt lgkmcnt(0)")
e("  s_cselect_b32 s8, s26, s24"); e("  s_cselect_b32 s9, s27, s25")
if O("tw", 0):
    e("  s_load_dword s40, s[12:13], 0", "first touch of w_down and d_out: address translation only")
    e("  s_load_dword s41, s[20:21], 0")
if BAR0: e("  s_barrier")
if HA:
    e("  s_bfm_b64 exec, s37, 0"); e(f"  buffer_load_dword v{DUM}, v5, s[8:11], s36 offen")
e(f"  s_bfm_b64 exec, {9*HR}, 0")
for r in range(HG):
    e(f"  buffer_load_dword v{DUM}, v3, s[8:11], s32 offen" + GNT); e(f"  s_add_u32 s32, s32, {NH*HR*9216}")
CPS = 9 - 2*RP
def wchunk(wait):
    if O("wil", 0):
        e(f"  s_mul_hi_u32 s31, s28, {(2**32 + 17)//18}"); e("  s_mul_i32 s35, s31, 18"); e("  s_sub_u32 s35, s28, s35")
    else:
        e(f"  s_mul_hi_u32 s35, s28, {(2**32 + CPS - 1)//CPS}"); e(f"  s_mul_i32 s31, s35, {CPS}"); e("  s_sub_u32 s31, s28, s31")
    e("  s_mul_i32 s35, s35, 36864"); e("  s_lshl_b32 s31, s31, 12"); e("  s_add_u32 s35, s35, s31"); e("  s_add_u32 s35, s35, s29")
    if wait: e(f"  s_waitcnt vmcnt({HT-1})")
    e(f"  buffer_load_dword v{DUM}, v2, s[12:15], s35 offen" + PNT)
    e("  s_add_u32 s28, s28, 56")
if TRIM: srdw([14, 15, 18, 19])
if not UNG: e("  s_barrier")
stamp(1)
if HWF:
    e("  s_bfm_b64 exec, 32, 0")
    for _ in range(HWF): wchunk(False)
    e(f"  s_bfm_b64 exec, {9*HR}, 0")
e("L_HGL:"); e(f"  s_waitcnt vmcnt({HT-1+HX})"); e(f"  buffer_load_dword v{DUM}, v3, s[8:11], s32 offen" + GNT)
e(f"  s_add_u32 s32, s32, {NH*HR*9216}"); e("  s_sub_u32 s30, s30, 1"); e("  s_cmp_lg_u32 s30, 0"); e("  s_cbranch_scc1 L_HGL")
if O("gul", 0): e("  s_waitcnt vmcnt(0)")
stamp(2)
if WE == 4:
    e("  s_bfm_b64 exec, 36, 0")
    e("L_HWL:")
    e("  s_mul_i32 s35, s28, 9216"); e("  s_add_u32 s35, s35, s29"); e("  s_add_u32 s35, s35, 4608")
    e(f"  s_waitcnt vmcnt({HT-1})"); e(f"  buffer_load_dword v{DUM}, v2, s[12:15], s35 offen" + PNT)
    e("  s_add_u32 s28, s28, 56"); e("  s_cmp_lt_u32 s28, 72"); e("  s_cbranch_scc1 L_HWL")
elif WE < 8:
    e("  s_bfm_b64 exec, 32, 0")
    e("L_HWL:")
    wchunk(not O("hwn", 1))
    e(f"  s_cmp_lt_u32 s28, {18*CPS}"); e("  s_cbranch_scc1 L_HWL")
if UNG: e("  s_barrier")
e("  s_waitcnt vmcnt(0)"); e("  s_barrier"); e("  s_branch L_FIN")
e("#MARK H1"); e("L_CODE_END:")
cm("rare path: x + x*0 turns an infinity into a NaN")
for n in range(1, ncopy+1):
    e(f"L_FIX{n}:"); e(f"  s_mov_b32 s98, {n}"); e("  s_branch L_FIX")
e("L_FIX:"); e("  s_mov_b32 s29, 0x07060302")
for j in range(36):
    r = XR + j
    e(f"  v_lshlrev_b32 v12, 16, v{r}"); e(f"  v_and_b32 v13, 0xffff0000, v{r}"); e("  v_fma_f32 v12, v12, 0, v12"); e("  v_fma_f32 v13, v13, 0, v13")
    e(f"  v_perm_b32 v{r}, v13, v12, s29")
e("  s_cmp_eq_u32 s98, 1"); e("  s_cbranch_scc1 L_FIXR1"); e("  s_branch L_FIXR2")
e('.section .rodata,"a"'); e(".p2align 6"); e(f".amdhsa_kernel {K}")
e("  .amdhsa_next_free_vgpr 200"); e("  .amdhsa_next_free_sgpr 102"); e("  .amdhsa_accum_offset 200")
e("  .amdhsa_group_segment_fixed_size 0"); e("  .amdhsa_kernarg_size 64"); e("  .amdhsa_user_sgpr_count 2")
e("  .amdhsa_user_sgpr_kernarg_segment_ptr 1"); e("  .amdhsa_system_sgpr_workgroup_id_x 1"); e("  .amdhsa_float_denorm_mode_32 3")
e(".end_amdhsa_kernel")
def cut(a, b):
    i = out.index("#MARK " + a); j = out.index("#MARK " + b)
    blk = out[i+1:j]; del out[i:j+1]; return blk
blk = []
if NEAR & 2:
    h = cut("H0", "H1")
    if not NEAR & 1:
        pass
    blk += h
if NEAR & 1: blk = cut("C0", "C1") + blk
i = out.index("#MARK XINIT"); out[i:i+1] = blk
out = [l for l in out if not l.startswith("#MARK")]
if not NEAR: out = [l for l in out if l not in ("L_X2:", "L_C2:")]
open(sys.argv[1], "w").write("\n".join(out) + "\n")
```

```python
import sys
NAME = "standalone__moe_arch_mod__prompt"
S, D, F = 2048, 576, 4608
XB = S*D*2
WB = D*F*2
opts = dict(a.split("=") for a in sys.argv[2:] if "=" in a)
def O(k, d): return int(opts.get(k, d))
STAMP = O("stamp", 0); AMP = opts.get("amp"); FINE = O("fine", 0)
if AMP: STAMP = 1
GS = O("gs", 64); REP = O("rep", 4); RS = 256*GS
LG = {16: 0, 32: 1, 64: 2}[GS]; LR = {1: 0, 2: 1, 4: 2, 8: 3}[REP]; NL = REP*GS//16
assert NL <= 16
WS_E = 0; WS_GRAN = 4096; WS_SLAB = 4096 + REP*RS; WS_SIZE = 1 << 20; WS_STAMP = 1 << 21
N0 = O("n0", 4); W1 = O("w1", 3); W2 = O("w2", 4); WE = O("we", 0); PB = O("pb", 7); RP = O("rp", 0)
HR = O("hr", 4); HT = O("ht", 3); HG = O("hg", 1)
PSL = O("psl", 2); SPIN = O("spin", 200000); RSL = O("rsl", 0)
CFN = {0: "", 1: " sc1", 2: " sc0 sc1"}[O("cf", 0)]; WNT = " nt" if O("wnt", 0) else ""; PNT = " nt" if O("pnt", 0) else ""; GNT = " nt" if O("gnt", 0) else ""; XNT = " nt" if O("xnt", 0) else ""; LATEC = O("latec", 1); FL = {0: "", 1: " sc1", 2: " sc0 sc1", 3: " sc1 nt", 4: " nt"}; HS = FL[O("hs", 1)]; HL = FL[O("hl", 1)]; CW = FL[O("cw", 1)]; CH = FL[O("ch", 1)]; WD4E = O("wd4e", 1); BAR0 = O("bar0", 0); C3 = O("c3", 0); NEAR = O("near", 3); UNG = O("ung", 0); HA = O("ha", 0); HWF = O("hwf", 0); HX = O("hx", 0); EFS = O("efs", 1); LOWP = O("lowp", 1); CPRIO = O("cprio", 0)
NWT = 144; NH = 14
out = []
def e(s="", c=None): out.append(s if c is None else f"{s:<72}; {c}")
def cm(s): out.append("; " + s)
def stamp(i, wait=False):
    if STAMP and (i in (0, 7) or not (FINE or (AMP and int(AMP.split(",")[0]) >= 40))):
        e(f"  s_memrealtime s[{64+2*i}:{65+2*i}]")
        if wait: e("  s_waitcnt lgkmcnt(0)")
def fs(i, wait=False):
    if FINE:
        e(f"  s_memtime s[{64+2*i}:{65+2*i}]")
        if wait: e("  s_waitcnt lgkmcnt(0)")
def stamp_flush():
    if AMP:
        A, B, KK, WV, WG = map(int, AMP.split(","))
        if A >= 40:
            e("  s_cmp_lg_u32 s3, 4"); e("  s_cbranch_scc1 L_AMPX")
            e("  s_waitcnt vmcnt(0)"); stamp(7, True)
            e("  s_mov_b64 exec, 1"); e("  v_mov_b32 v24, s78"); e("  v_mov_b32 v25, s64"); e("  v_mov_b32 v26, s47"); e("  v_mov_b32 v27, 0")
            e("  s_lshl_b32 s92, s2, 4"); e("  s_add_u32 s92, s92, 0xe0000")
            e("  buffer_store_dwordx4 v[24:27], v27, s[16:19], s92 offen sc1")
            e(f"  s_cmp_lg_u32 s2, {WG}"); e("  s_cbranch_scc1 L_AMPX")
            e("  s_sleep 100"); e("  s_mov_b64 exec, -1"); e("  v_lshlrev_b32 v1, 4, v0")
            for i in range(4):
                e(f"  s_mov_b32 s92, {0xe0000 + 1024*i}")
                e(f"  buffer_load_dwordx4 v[{24+4*i}:{27+4*i}], v1, s[16:19], s92 offen sc1")
            e("  s_waitcnt vmcnt(0)")
            for i in range(4):
                e(f"  v_subrev_u32 v{24+4*i}, s64, v{24+4*i}"); e(f"  v_subrev_u32 v{25+4*i}, s64, v{25+4*i}")
            for col, dst in ((24, 60), (25, 61)):
                e(f"  v_max3_i32 v3, v{col}, v{col+4}, v{col+8}"); e(f"  v_max_i32 v3, v3, v{col+12}")
                for ctl in ("quad_perm:[1,0,3,2] row_mask:0xf bank_mask:0xf", "quad_perm:[2,3,0,1] row_mask:0xf bank_mask:0xf", "row_ror:4 row_mask:0xf bank_mask:0xf", "row_ror:8 row_mask:0xf bank_mask:0xf",
                            "row_bcast:15 row_mask:0xa bank_mask:0xf", "row_bcast:31 row_mask:0xc bank_mask:0xf"):
                    e("  s_nop 1"); e(f"  v_max_i32_dpp v3, v3, v3 {ctl}")
                e("  s_nop 1"); e(f"  v_readlane_b32 s{dst}, v3, 63")
            if A == 40: e("  s_sub_u32 s60, s60, s61")
            e("  s_memrealtime s[78:79]"); e("  s_waitcnt lgkmcnt(0)")
            e(f"  s_mul_i32 s60, s60, {KK}")
            e("L_AMP:"); e("  s_memrealtime s[62:63]"); e("  s_waitcnt lgkmcnt(0)"); e("  s_sub_u32 s62, s62, s78")
            e("  s_cmp_lt_u32 s62, s60"); e("  s_cbranch_scc1 L_AMP"); e("L_AMPX:")
            return
        if O("endw", 0): e("  s_waitcnt vmcnt(0)")
        stamp(7, True)
        e(f"  s_cmp_lg_u32 s2, {WG}"); e("  s_cbranch_scc1 L_AMPX")
        e(f"  s_cmp_lg_u32 s3, {WV}"); e("  s_cbranch_scc1 L_AMPX")
        if A >= 30:
            e("  s_sleep 60"); e("  s_mov_b64 exec, -1"); e("  v_lshlrev_b32 v1, 4, v0"); e("  v_mov_b32 v2, 0x80000000"); e("  v_mov_b32 v3, 0")
            for i in range(18):
                e(f"  s_mov_b32 s92, {0xd0000 + 1024*i}")
                e("  buffer_load_dwordx4 v[24:27], v1, s[16:19], s92 offen sc1"); e("  s_waitcnt vmcnt(0)")
                if A in (30, 31, 32, 35): e("  v_subrev_u32 v24, s64, v24")
                elif A == 33: e("  v_sub_u32 v24, v24, v25")
                else: e("  v_subrev_u32 v24, s64, v25")
                e("  v_lshlrev_b32 v24, 12, v24"); e(f"  v_add_u32 v25, {64*i}, v0"); e("  v_or_b32 v24, v24, v25")
                e("  v_cmp_eq_u32 vcc, s47, v26"); e("  s_nop 1"); e("  v_cndmask_b32 v24, v2, v24, vcc"); e("  v_max_i32 v3, v3, v24" if i else "  v_mov_b32 v3, v24")
            for ctl in ("quad_perm:[1,0,3,2] row_mask:0xf bank_mask:0xf", "quad_perm:[2,3,0,1] row_mask:0xf bank_mask:0xf", "row_ror:4 row_mask:0xf bank_mask:0xf", "row_ror:8 row_mask:0xf bank_mask:0xf",
                        "row_bcast:15 row_mask:0xa bank_mask:0xf", "row_bcast:31 row_mask:0xc bank_mask:0xf"):
                e("  s_nop 1"); e(f"  v_max_i32_dpp v3, v3, v3 {ctl}")
            e("  s_nop 1"); e("  v_readlane_b32 s60, v3, 63")
            if A in (30, 33, 34): e("  s_ashr_i32 s60, s60, 12")
            elif A == 31: e("  s_bfe_u32 s60, s60, 0x30003")
            elif A == 32: e("  s_and_b32 s60, s60, 7")
            else: e("  s_bfe_u32 s60, s60, 0x50006")
            e("  s_memrealtime s[78:79]"); e("  s_waitcnt lgkmcnt(0)")
        else:
            e(f"  s_sub_u32 s60, s{64+2*B}, s{64+2*A}")
        e(f"  s_mul_i32 s60, s60, {KK}")
        e("L_AMP:"); e("  s_memrealtime s[62:63]"); e("  s_waitcnt lgkmcnt(0)"); e("  s_sub_u32 s62, s62, s78")
        e("  s_cmp_lt_u32 s62, s60"); e("  s_cbranch_scc1 L_AMP"); e("L_AMPX:")
    elif STAMP:
        if FINE: e("  s_memtime s[78:79]"); e("  s_waitcnt lgkmcnt(0)")
        else: stamp(7, True)
        e("  s_mov_b64 exec, 1")
        e("  s_lshl_b32 s60, s2, 3"); e("  s_add_u32 s60, s60, s3"); e("  s_lshl_b32 s60, s60, 6")
        e(f"  s_add_u32 s60, s60, {WS_STAMP}"); e("  s_mov_b32 s18, 0x1000000"); e("  v_mov_b32 v1, 0")
        for j in range(4):
            for k in range(4): e(f"  v_mov_b32 v{4+k}, s{64+4*j+k}")
            e(f"  buffer_store_dwordx4 v[4:7], v1, s[16:19], s60 offen offset:{16*j}"); e("  s_nop 1")

hdr = open('cdna_kernels/%s.s.ref' % NAME).read().split('\n')
for l in hdr:
    if l.startswith('; @launch'): break
    e(l)
XIMG = 73728; TAGL = XIMG + 2304; TEX = XIMG + 3072; WRIMG = TEX + 1024; LDS = 83968
e(f"; @launch grid=(256,1,1) block=(320,1,1) lds={LDS}")
DOC = """
One launch, 256 workgroups of 5 waves, one per CU (LDS and VGPR use allow one).
 role 4 (wave 0), every WG : 8 rows of x -> router scores -> local top-2 -> tagged granule in d_ws,
                             later the copy of its rows that were not routed.
 WGs 0..143, roles 0..3    : 32 columns of w_gate / w_up (LDS-DMA, transposing LDS reads, MFMA),
                             SwiGLU, the matching 32 rows of w_down (MFMA), tagged partial sums in d_ws.
 WGs 0..143, role 4        : gathers the 256 granules, global top-2, brings both rows into LDS;
                             72 of them add up the 144 partial sums of 8 columns and write the routed rows.
 WGs 144..255, roles 0..3  : pull weight lines into the L2 that the weight WGs with the same id mod 8
                             are expected to share (speed only, nothing depends on it).
 Hand-offs between WGs are 16-byte pieces that carry a tag, written and read with sc1.
 tag = d_ws[0] + 0x01010101; d_ws[0] is set to the tag at the end, so it differs from launch to launch.
"""
for l in DOC.strip("\n").split("\n"): cm(l)
e('.amdgcn_target "amdgcn-amd-amdhsa--gfx950"'); e(".text")
K = NAME + "_kernel"
e(f".globl {K}"); e(".p2align 8"); e(f".type {K},@function"); e(f"{K}:")
DPPM = "row_mask:0xf bank_mask:0xf"
AF = 12; BF = 48; ACC = 120; WD = 128; AD = 160; XR = 84; WR = 48; R0 = 48
VXW = 192; VA2 = 193; VTAG = 194; DUMC = 196; DUM = 197
QS = 16*9216

def slice_calc():
    e("  s_and_b32 s45, s2, 7"); e("  s_mul_i32 s45, s45, 18"); e("  s_lshr_b32 s44, s2, 3")
    e("  s_add_u32 s45, s45, s44", "slice: neighbours are 8 ids apart")
def setup0():
    e("  v_and_b32 v2, 15, v0"); e("  v_lshrrev_b32 v3, 4, v0")
    e("  v_mul_u32_u24 v4, 9216, v3"); e("  v_lshl_add_u32 v4, v2, 4, v4", "w_down: row 8g, 16-byte chunk c")
    e(f"  s_mul_i32 s34, s45, {32*1152}"); e("  s_lshl_b32 s35, s3, 8"); e("  s_add_u32 s34, s34, s35"); e("  s_add_u32 s35, s34, 4608")
def setup1():
    e("  v_lshrrev_b32 v5, 2, v2"); e("  v_lshl_add_u32 v5, v3, 3, v5"); e("  v_and_b32 v6, 1, v0"); e("  v_lshl_add_u32 v5, v6, 2, v5")
    e("  v_lshlrev_b32 v5, 3, v5"); e("  v_and_b32 v6, 2, v0"); e("  v_lshl_add_u32 v5, v6, 1, v5")
    e(f"  v_add_u32 v5, {TEX}, v5", "exchange table: this lane's (f, token)")
    e("  v_and_b32 v6, 1, v0"); e("  v_cmp_eq_u32 vcc, 1, v6"); e("  v_mov_b32 v6, 0xffff"); e("  v_mov_b32 v7, 0xffff0000")
    e("  v_cndmask_b32 v6, v6, v7, vcc", "half-word mask by lane parity")
    e("  v_lshlrev_b32 v7, 6, v2"); e("  v_lshl_add_u32 v7, v3, 4, v7", "partial-sum piece of this lane")
    e("  s_mul_i32 s36, s45, 4608"); e("  s_lshl_b32 s37, s3, 10"); e("  s_add_u32 s36, s36, s37"); e(f"  s_add_u32 s36, s36, {WS_SLAB}")
    e(f"  v_mov_b32 v{VTAG}, {TAGL}")
    e("  s_mov_b32 s56, 0x07060501"); e("  s_mov_b32 s57, 0x07060502"); e("  s_mov_b32 s58, 0x07060503")
    for j in range(0, 32, 2): e(f"  v_mov_b64 v[{AD+j}:{AD+j+1}], 0")
def wd_load(mp): e(f"  buffer_load_dwordx4 v[{WD+4*mp}:{WD+4*mp+3}], v4, s[12:15], s{34+(mp>>2)} offen offset:{1152*(mp&3)}" + WNT)
ncopy = 0
def copy_stores(fl=""):
    global ncopy
    ncopy += 1
    e("  s_and_b32 s38, s32, 0xffff"); e("  s_and_b32 s39, s33, 0xffff")
    e("  v_cmp_ne_u32 s[52:53], s38, v11"); e("  v_cmp_ne_u32 s[54:55], s39, v11")
    e("  s_and_b64 exec, s[52:53], s[54:55]", "rows that are not routed")
    e("  s_cmp_lg_u64 s[96:97], 0"); e(f"  s_cbranch_scc1 L_FIX{ncopy}"); e(f"L_FIXR{ncopy}:")
    for i in range(9): e(f"  buffer_store_dwordx4 v[{XR+4*i}:{XR+4*i+3}], v10, s[20:23], s28 offen offset:{128*i}{fl}")

if STAMP:
    for i in range(2, 16): e(f"  s_mov_b32 s{64+i}, 0")
stamp(0)
cm("SRDs: x s[4:7], w_r or w_gate/w_up s[8:11], w_down s[12:15], d_ws s[16:19], d_out s[20:23]")
e("  s_load_dwordx2 s[4:5], s[0:1], 0"); e("  s_load_dwordx2 s[8:9], s[0:1], 8"); e("  s_load_dwordx2 s[16:17], s[0:1], 56")
e("  s_load_dwordx4 s[24:27], s[0:1], 16"); e("  s_load_dwordx2 s[12:13], s[0:1], 32"); e("  s_load_dwordx2 s[20:21], s[0:1], 40")
e("  s_getpc_b64 s[28:29]", "read one word of every line of the code: it lands in L2"); e("L_PC:")
e("  v_lshlrev_b32 v2, 7, v0"); e("  v_cmp_gt_u32 vcc, (L_CODE_END-L_PC+127)/128, v0")
e("  s_and_saveexec_b64 s[30:31], vcc"); e("  s_cbranch_execz L_NOPF")
e(f"  global_load_dword v{DUMC}, v2, s[28:29]"); e("L_NOPF:"); e("  s_mov_b64 exec, -1")
e("  v_lshrrev_b32 v1, 6, v0"); e("  v_and_b32 v0, 63, v0"); e("  v_readfirstlane_b32 s3, v1")
e("  s_cmp_ge_u32 s2, 256"); e("  s_cbranch_scc1 L_END")
e("  s_sub_u32 s3, s3, 1", "role: wave 0 -> 4, wave k -> k-1"); e("  s_cselect_b32 s3, 4, s3")
TRIM = O("trim", 1)
def srdw(which):
    for r, v in ((6, XB), (7, "0x20000"), (11, "0x20000"), (14, WB), (15, "0x20000"), (18, WS_SIZE), (19, "0x20000"), (22, XB), (23, "0x20000")):
        if r in which: e(f"  s_mov_b32 s{r}, {v}")
srdw([11] if TRIM else [6, 7, 11, 14, 15, 18, 19, 22, 23])
if NEAR == 2:
    e(f"  s_mov_b32 s10, {WB}"); e("  s_cmp_eq_u32 s3, 4"); e("  s_cbranch_scc1 L_X1")
    e(f"  s_cmp_ge_u32 s2, {NWT}"); e("  s_cbranch_scc1 L_HELP"); e("  s_branch L_NOTX"); e("L_X1:")
else:
    e("  s_cmp_lg_u32 s3, 4"); e("  s_cbranch_scc1 L_NOTX")
cm("---------------------------------------------------------------- role 4: router scores of 8 rows")
e("  s_setprio 3")
if TRIM: srdw([6, 7])
e(f"  s_mov_b32 s10, {D*2}"); e(f"  s_mov_b32 m0, {WRIMG}")
e("  v_lshlrev_b32 v8, 4, v0"); e("  v_and_b32 v1, 0x70, v8"); e("  v_lshrrev_b32 v9, 3, v0")
e("  v_mul_u32_u24 v10, 1152, v9"); e("  v_add_u32 v10, v10, v1", "8 lanes per row"); e("  s_mul_i32 s28, s2, 9216")
e("  s_waitcnt lgkmcnt(0)")
e(f"  s_load_dword s47, s[16:17], {WS_E}")
e("  buffer_load_dwordx4 v8, s[8:11], 0 offen lds", "w_r -> LDS"); e("  s_mov_b64 exec, 0xff")
e("  buffer_load_dwordx4 v8, s[8:11], 0 offen offset:1024 lds"); e("  s_mov_b64 exec, -1")
for i in range(9): e(f"  buffer_load_dwordx4 v[{XR+4*i}:{XR+4*i+3}], v10, s[4:7], s28 offen offset:{128*i}" + XNT)
if BAR0: e("  s_barrier", "x goes first in this CU's queue")
if NEAR: e("  s_branch L_X2")
e("#MARK XINIT"); e("L_X2:")
if TRIM: srdw([14, 15, 18, 19, 22, 23])
e(f"  v_add_u32 v1, {WRIMG}, v1")
e("  s_lshl_b32 s29, s2, 3"); e("  s_sub_u32 s29, 2047, s29"); e("  v_sub_u32 v11, s29, v9", "2047 - row"); e("  s_mov_b32 s30, 0xffff0000")
e(f"  s_and_b32 s29, s2, {REP-1}"); e(f"  s_mul_i32 s27, s29, {RS}"); e(f"  s_add_u32 s27, s27, {WS_GRAN}", "the copy of the granules this WG reads")
for j in range(1, 4): e(f"  s_add_u32 s{47+j}, s27, {64*GS*j}")
e("  s_and_b32 s29, s2, 7"); e("  s_lshl_b32 s29, s29, 5"); e("  s_lshr_b32 s31, s2, 3"); e("  s_add_u32 s29, s29, s31")
e(f"  s_mul_i32 s29, s29, {GS}"); e(f"  s_add_u32 s31, s29, {WS_GRAN}", "own granule")
e(f"  v_mul_u32_u24 v44, {GS}, v0")
for j in range(4): e(f"  v_mov_b32 v{12+j}, 0")
e("  v_bfrev_b32 v22, 1")
e(f"  v_bfe_u32 v21, v0, {LG}, {LR}"); e(f"  v_mul_u32_u24 v21, {RS}, v21"); e(f"  v_and_b32 v19, {GS//16-1}, v0"); e("  v_lshl_add_u32 v21, v19, 4, v21")
e(f"  s_mov_b32 s61, {SPIN}"); e(f"  v_mov_b32 v45, {TAGL}")
e("  s_waitcnt vmcnt(9) lgkmcnt(0)")
for i in range(9): e(f"  ds_read_b128 v[{WR+4*i}:{WR+4*i+3}], v1 offset:{128*i}")
e("  s_add_u32 s47, s47, 0x01010101", "tag of this launch"); e("  v_mov_b32 v18, s47")
for i in range(9):
    e(f"  s_waitcnt vmcnt({8-i}) lgkmcnt({8-i})")
    for j in range(4): e(f"  v_dot2c_f32_bf16 v{12+j}, v{XR+4*i+j}, v{WR+4*i+j}")
e("  s_nop 1")
e("  v_add_f32 v12, v12, v13"); e("  v_add_f32 v14, v14, v15"); e("  v_add_f32 v12, v12, v14")
e("  s_movk_i32 s29, 0x207"); e("  v_cmp_class_f32 s[96:97], v12, s29", "lanes that hold an inf or a NaN")
e(f"  v_add_f32_dpp v12, v12, v12 quad_perm:[1,0,3,2] {DPPM}"); e("  s_nop 1")
e(f"  v_add_f32_dpp v12, v12, v12 quad_perm:[2,3,0,1] {DPPM}"); e("  s_nop 1")
e(f"  v_add_f32_dpp v12, v12, v12 row_half_mirror {DPPM}")
cm("key = order-preserving bf16 score << 16 | 2047 - row; NaN sorts last")
e("  v_cvt_pk_bf16_f32 v13, v12, v12"); e("  v_cmp_u_f32 vcc, v12, v12"); e("  v_ashrrev_i32 v14, 31, v13")
e("  v_bitop3_b32 v13, v13, v14, v22 bitop3:0x1e"); e("  v_cndmask_b32 v13, v13, 0, vcc"); e("  v_and_or_b32 v13, v13, s30, v11")
e("  s_nop 1")
e(f"  v_max_u32_dpp v16, v13, v13 row_ror:8 {DPPM}"); e(f"  v_min_u32_dpp v17, v13, v13 row_ror:8 {DPPM}"); e("  s_nop 0")
for ctl in ("row_bcast:15 row_mask:0xa bank_mask:0xf", "row_bcast:31 row_mask:0xc bank_mask:0xf"):
    e(f"  v_min_u32_dpp v14, v16, v16 {ctl}"); e(f"  v_max_u32_dpp v16, v16, v16 {ctl}")
    e(f"  v_max_u32_dpp v15, v17, v17 {ctl}"); e("  v_max_u32 v17, v14, v15")
e(f"  s_lshl_b64 exec, {hex((1 << NL) - 1)}, 48", f"lanes 48..63 hold the pair: {REP} copies x {GS} bytes")
e("  buffer_store_dwordx4 v[16:19], v21, s[16:19], s31 offen" + HS)
stamp(3)
e(f"  s_cmp_lt_u32 s2, {NWT}"); e("  s_cbranch_scc1 L_XG"); e("  s_barrier", "prefetch WG: let the other waves fill the queue"); e("L_XG:")
e("  ds_write_b32 v45, v18"); e("  s_mov_b64 exec, -1")
slice_calc(); setup0(); setup1()
e(f"  s_cmp_ge_u32 s2, {NWT}"); e("  s_cbranch_scc1 L_XH")
def wd4():
    e("  s_mov_b32 exec_lo, 0x00ff00ff", "columns 512..575 of w_down"); e("  s_mov_b32 exec_hi, 0x00ff00ff")
    for mp in range(8): wd_load(mp)
    e("  s_mov_b64 exec, -1")
if WD4E: wd4()
if RP:
    e("  v_lshlrev_b32 v46, 7, v0"); e(f"  s_mul_i32 s29, s45, {32*1152}")
    for r in range(RP):
        e(f"  buffer_load_dword v{DUM}, v46, s[12:15], s29 offen" + PNT)
        if r < RP-1: e("  s_add_u32 s29, s29, 8192")
e("  s_waitcnt vmcnt(0)")
if O("nored5", 0): stamp(5)
e("L_P1:")
if O("lsl", 0): e(f"  s_sleep {O('lsl', 0)}", "back off before every read of the granules")
b = 48
for j in range(4): e(f"  buffer_load_dwordx4 v[{b+4*j}:{b+3+4*j}], v44, s[16:19], s{27 if j == 0 else 47+j} offen" + HL)
e("  s_waitcnt vmcnt(0)")
e(f"  v_cmp_ne_u32 vcc, s47, v{b+2}"); e(f"  v_cmp_ne_u32 s[32:33], s47, v{b+6}")
e(f"  v_cmp_ne_u32 s[38:39], s47, v{b+10}"); e(f"  v_cmp_ne_u32 s[40:41], s47, v{b+14}")
e("  s_or_b64 vcc, vcc, s[32:33]"); e("  s_or_b64 s[38:39], s[38:39], s[40:41]"); e("  s_or_b64 vcc, vcc, s[38:39]")
e("  s_cbranch_scc0 L_PT")
if not O("lsl", 0): e(f"  s_sleep {PSL}", "some granule is missing: back off and read again")
e("  s_sub_u32 s61, s61, 1"); e("  s_cbranch_scc0 L_P1")
e("  .p2align 3"); e("L_PT:")
def merge(a1, a2, b1, b2, o1, o2, t):
    e(f"  v_min_u32 v{t}, v{a1}, v{b1}"); e(f"  v_max_u32 v{o1}, v{a1}, v{b1}"); e(f"  v_max3_u32 v{o2}, v{t}, v{a2}, v{b2}")
merge(b, b+1, b+4, b+5, 40, 41, 12); merge(b+8, b+9, b+12, b+13, 42, 43, 13); merge(40, 41, 42, 43, 40, 41, 12)
e("  s_nop 0")
for ctl in (f"quad_perm:[1,0,3,2] {DPPM}", f"quad_perm:[2,3,0,1] {DPPM}", f"row_ror:4 {DPPM}", f"row_ror:8 {DPPM}",
            "row_bcast:15 row_mask:0xa bank_mask:0xf", "row_bcast:31 row_mask:0xc bank_mask:0xf"):
    e(f"  v_min_u32_dpp v12, v40, v40 {ctl}"); e(f"  v_max_u32_dpp v40, v40, v40 {ctl}")
    e(f"  v_max_u32_dpp v13, v41, v41 {ctl}"); e("  v_max_u32 v41, v12, v13")
e("  v_cmp_gt_u32 vcc, 8, v0"); e("  v_readlane_b32 s32, v40, 63", "global top-2 keys"); e("  v_readlane_b32 s33, v41, 63")
e(f"  s_cmp_ge_u32 s2, {NWT}"); e("  s_cbranch_scc1 L_XH2")
e("  s_and_b32 s38, s32, 0x7ff"); e("  s_and_b32 s39, s33, 0x7ff"); e("  s_sub_u32 s38, 2047, s38"); e("  s_sub_u32 s39, 2047, s39")
e("  s_mul_i32 s38, s38, 1152"); e("  s_mul_i32 s39, s39, 1152"); e(f"  s_mov_b32 m0, {XIMG}"); e("  s_sub_u32 s40, s39, 128")
e("  buffer_load_dwordx4 v8, s[4:7], s38 offen lds", "both routed rows -> LDS [2][1152 B]")
e("  s_add_u32 s41, s38, 1024"); e("  v_mov_b32 v12, s40"); e("  v_mov_b32 v13, s41"); e("  s_addk_i32 m0, 0x400")
e("  v_cndmask_b32 v12, v12, v13, vcc"); e("  v_add_u32 v12, v12, v8")
e("  buffer_load_dwordx4 v12, s[4:7], 0 offen lds")
e("  s_addk_i32 m0, 0x400"); e("  s_add_u32 s40, s39, 896"); e("  s_mov_b64 exec, 0xffff")
e("  buffer_load_dwordx4 v8, s[4:7], s40 offen lds"); e("  s_mov_b64 exec, -1")
stamp(1)
def final_setup():
    cm("last stage: lane row r = lane>>4 holds token r>>1, column 8u + 2(lane&3) + (r&1)")
    e("  v_cmp_gt_u32 vcc, 32, v0"); e("  v_mov_b32 v28, s33"); e("  v_mov_b32 v29, s32"); e("  v_and_b32 v31, 3, v0")
    e("  v_cndmask_b32 v28, v28, v29, vcc"); e("  v_and_b32 v29, 0xffff, v28"); e("  v_sub_u32 v29, 2047, v29")
    e("  v_mul_u32_u24 v29, 1152, v29"); e("  v_bfe_u32 v30, v0, 4, 1"); e("  v_lshlrev_b32 v30, 1, v30")
    e("  v_lshl_add_u32 v30, v31, 2, v30"); e("  v_add_u32 v29, v29, v30")
    e("  v_not_b32 v32, v28"); e("  v_ashrrev_i32 v32, 31, v32"); e("  v_or_b32 v32, 0x80000000, v32")
    e("  v_xor_b32 v32, v32, v28"); e("  v_and_b32 v32, 0xffff0000, v32", "the bf16 score back from the key"); e("  v_mul_f32 v32, 0xbfb8aa3b, v32")
    e("  v_exp_f32 v32, v32"); e("  v_lshrrev_b32 v33, 5, v0"); e("  v_add_f32 v32, 1.0, v32"); e("  v_rcp_f32 v32, v32")
    e("  v_mul_u32_u24 v33, 1152, v33"); e("  v_cvt_pk_bf16_f32 v32, v32, v32"); e("  v_and_b32 v32, 0xffff0000, v32", "sigmoid, rounded to bf16")
    e("  s_sub_u32 s46, s45, 72", "unit u = slice - 72"); e("  s_lshl_b32 s50, s46, 4"); e(f"  s_add_u32 s51, s50, {XIMG}"); e("  v_add3_u32 v33, v33, v30, s51")
    e("  v_lshrrev_b32 v34, 2, v0"); e("  v_mul_u32_u24 v34, 4608, v34"); e("  v_lshl_add_u32 v34, v31, 4, v34")
    e("  s_lshl_b32 s80, s46, 6"); e(f"  s_add_u32 s80, s80, {WS_SLAB}")
    for t in range(1, 9): e(f"  s_add_u32 s{80+t}, s80, {16*4608*t}")
    e("  s_mov_b32 s41, 0x0c04000c"); e("  s_mov_b32 s42, 0x04020100"); e("  v_mov_b32 v35, 0")
if EFS == 2: final_setup()
e("  s_barrier", "A: the rows are requested")
if not WD4E: wd4()
if EFS == 1: final_setup()
e(f"  s_waitcnt vmcnt({0 if WD4E else 8}) lgkmcnt(0)")
stamp(4, True)
e("  s_barrier", "B: the rows are in LDS")
if LOWP: e("  s_setprio 0")
if not LATEC: copy_stores(CW); e("  s_mov_b64 exec, -1")
if EFS == 0: final_setup()
if LOWP == 2: e("  s_setprio 3")
e("  s_branch L_JOIN")
e("L_XH:"); e("  s_barrier", "the prefetch is done"); e("  s_branch L_P1")
e("L_XH2:"); copy_stores(CH); e("  s_branch L_FIN")
cm("---------------------------------------------------------------- roles 0..3: (matrix, half of K)")
e("#MARK C0"); e("L_NOTX:")
e(f"  s_mov_b32 s10, {WB}")
e(f"  s_cmp_ge_u32 s2, {NWT}"); e("  s_cbranch_scc1 L_HELP")
slice_calc()
if not TRIM or WE: setup0()
if TRIM and WE: srdw([14, 15])
e("  v_lshrrev_b32 v8, 2, v0"); e("  v_mul_u32_u24 v8, 9216, v8"); e("  v_lshrrev_b32 v9, 4, v0"); e("  v_and_b32 v9, 2, v9")
e("  v_xor_b32 v9, v9, v0"); e("  v_and_b32 v9, 3, v9"); e("  v_lshl_add_u32 v8, v9, 4, v8", "16 rows x 64 B, halves swapped in rows 8..15")
e("  s_and_b32 s28, s3, 1"); e(f"  s_mul_i32 s28, s28, {288*9216}"); e("  s_lshl_b32 s29, s45, 6"); e("  s_add_u32 s28, s28, s29")
e("  s_and_b32 s42, s45, 1", "the two WGs that share the lines start on different rows")
e(f"  s_mul_i32 s29, s42, {N0*QS}"); e(f"  s_add_u32 s46, s28, {2*N0*QS}"); e(f"  s_add_u32 s43, s28, {N0*QS}")
e("  s_sub_u32 s43, s43, s29"); e("  s_add_u32 s28, s28, s29")
e("  s_mul_i32 s30, s3, 18432"); e("  s_mov_b32 m0, s30")
e("  s_cmp_ge_u32 s3, 2"); e("  s_waitcnt lgkmcnt(0)")
e("  s_cselect_b32 s8, s26, s24"); e("  s_cselect_b32 s9, s27, s25")
stamp(1)
ops = [("W", i) for i in range(WE)] + [("D", i) for i in range(18)] + [("W", i) for i in range(WE, 8)]
pos = {op: n for n, op in enumerate(ops)}
nis = 0
def issue():
    global nis
    if nis >= len(ops): return False
    k, i = ops[nis]
    if k == "D":
        if N0 and i == N0: e("  s_mov_b32 s28, s43")
        if N0 and i == 2*N0: e("  s_mov_b32 s28, s46")
        e("  buffer_load_dwordx4 v8, s[8:11], s28 offen lds")
        if i < 17: e("  s_addk_i32 m0, 0x400"); e(f"  s_add_u32 s28, s28, {QS}")
    else: wd_load(i)
    nis += 1
    return True
def vwait(op): e(f"  s_waitcnt vmcnt({nis - pos[op] - 1})")
if BAR0: e("  s_barrier")
while nis < WE + min(N0, W1):
    if C3 and nis == WE + 2:
        e("  s_and_b32 s29, s45, 14"); e("  s_cmp_lg_u32 s29, 6"); e("  s_cbranch_scc1 L_NC3")
        e("  s_waitcnt vmcnt(1)", "these columns fill only half of the L1"); e("L_NC3:")
    issue()
if NEAR & 1: e("  s_branch L_C2")
e("#MARK C1"); e("L_C2:")
if TRIM:
    srdw([6, 7, 14, 15, 18, 19, 22, 23])
    if not WE: setup0()
setup1()
e("  v_lshlrev_b32 v9, 9, v3"); e("  v_bfe_u32 v10, v0, 2, 2"); e("  v_lshl_add_u32 v9, v10, 6, v9"); e("  v_and_b32 v10, 3, v0")
e("  v_lshl_add_u32 v9, v10, 3, v9"); e("  v_and_b32 v10, 1, v3"); e("  v_lshl_add_u32 v9, v10, 5, v9")
e("  v_add_u32 v9, s30, v9", "transposing reads, columns 0..15"); e("  v_xor_b32 v10, 32, v9", "columns 16..31")
e("  v_and_b32 v11, 1, v0"); e("  v_mul_u32_u24 v11, 1152, v11"); e("  v_lshl_add_u32 v11, v3, 4, v11")
e("  s_and_b32 s29, s3, 1"); e("  s_mul_i32 s29, s29, 576"); e(f"  s_add_u32 s29, s29, {XIMG}")
e(f"  s_mul_i32 s31, s42, {32*N0}")
e(f"  v_add_u32 v{VA2}, s29, v11", "x fragments"); e(f"  v_add_u32 v11, s31, v{VA2}"); e(f"  v_subrev_u32 v1, s31, v{VA2}")
e("  s_lshl_b32 s29, s3, 8"); e(f"  s_add_u32 s29, s29, {TEX}"); e(f"  v_lshl_add_u32 v{VXW}, v2, 3, s29")
def trreads(s):
    for hh in range(2):
        for u in range(2):
            r = BF + 8*s + 4*hh + 2*u
            e(f"  ds_read_b64_tr_b16 v[{r}:{r+1}], v{9+hh} offset:{2048*s+256*u}")
def mfmas(s):
    for hh in range(2):
        c = "0" if s == 0 else f"v[{ACC+4*hh}:{ACC+4*hh+3}]"
        r = BF + 8*s + 4*hh
        e(f"  v_mfma_f32_16x16x32_bf16 v[{ACC+4*hh}:{ACC+4*hh+3}], v[{AF+4*s}:{AF+4*s+3}], v[{r}:{r+3}], {c}")
E0 = N0 // 2
if N0 == 0:
    e(f"  s_waitcnt vmcnt({O('dsw', 0)})", "w_down is in; the prefetch is far enough ahead by now")
    stamp(2)
    while nis < WE + W2: issue()
for s in range(PB):
    for h in range(2):
        need = 2*s + h
        def ok():
            if nis >= len(ops) or ops[nis][0] != "D": return False
            i = ops[nis][1]
            return i < need + 1 + W1 if i < N0 else (need >= N0 - 1 and i < need + 1 + W2)
        if ok() or h == 1: vwait(("D", need))
        while ok(): issue()
    if s == 0 and N0: stamp(2)
    trreads(s)
while nis < len(ops) and ops[nis][0] == "D": issue()
stamp(5)
e("  s_barrier", "A")
while issue(): pass
e("  s_waitcnt lgkmcnt(0)"); e("  s_barrier", "B")
stamp(4, True); fs(1, True)
if CPRIO: e(f"  s_setprio {CPRIO}")
order = []
for s in range(9):
    ar = 11 if s < E0 else (1 if s < 2*E0 else VA2)
    e(f"  ds_read_b128 v[{AF+4*s}:{AF+4*s+3}], v{ar} offset:{64*s}"); order.append(f"A{s}")
late = list(range(PB, 9))
for s in range(9):
    if late and late[0] <= s + 1:
        t = late.pop(0); vwait(("D", 2*t+1)); trreads(t); order += [f"T{t}"]*4
    tag = f"A{s}" if s < PB else f"T{s}"
    need = len(order) - 1 - order[::-1].index(tag)
    e(f"  s_waitcnt lgkmcnt({min(15, len(order) - need - 1)})")
    mfmas(s)
stamp(3); fs(2)
e("  s_mov_b64 exec, 0xffff"); e("  s_nop 6")
e(f"  ds_write2_b64 v{VXW}, v[{ACC}:{ACC+1}], v[{ACC+4}:{ACC+5}] offset0:0 offset1:16")
e("  s_mov_b64 exec, -1")
cm("---------------------------------------------------------------- all 5 waves: SwiGLU, 128 columns of w_down each")
e("L_JOIN:")
e("  s_waitcnt lgkmcnt(0)"); fs(3, True); e("  s_barrier", "C: the four partial pre-activations are in LDS"); fs(4)
if O("gst", -1) == 21: e("  s_memrealtime s[94:95]")
e("  ds_read2_b32 v[12:13], v5 offset0:0 offset1:64"); e("  ds_read2_b32 v[14:15], v5 offset0:128 offset1:192")
e(f"  ds_read_b32 v23, v{VTAG}")
e("  s_cmp_eq_u32 s3, 4"); e("  s_waitcnt lgkmcnt(0)")
e("  v_add_f32 v12, v12, v13"); e("  v_add_f32 v14, v14, v15")
e("  v_cvt_pk_bf16_f32 v12, v12, v14"); e("  v_lshlrev_b32 v13, 16, v12"); e("  v_mul_f32 v15, 0xbfb8aa3b, v13"); e("  v_exp_f32 v15, v15")
e("  v_and_b32 v14, 0xffff0000, v12"); e("  v_add_f32 v15, 1.0, v15"); e("  v_rcp_f32 v15, v15"); e("  s_nop 0")
e("  v_mul_f32 v13, v13, v15"); e("  v_cvt_pk_bf16_f32 v13, v13, v13"); e("  v_and_b32 v13, 0xffff0000, v13")
e("  v_mul_f32 v13, v13, v14"); e("  v_cvt_pk_bf16_f32 v13, v13, v13", "h = bf16(bf16(silu(a)) * u), in both halves")
fs(5)
if O("gst", -1) == 20: e("  s_memrealtime s[92:93]")
if LATEC:
    e("  s_waitcnt vmcnt(0)")
else:
    e("  s_cbranch_scc1 L_W4"); e("  s_waitcnt vmcnt(0)"); e("L_W4:")
if O("gst", -1) in (20, 23): e("  s_memrealtime s[94:95]")
fs(6)
e("  s_nop 0" if (WD4E or LATEC) else "  s_waitcnt vmcnt(9)")
e(f"  v_and_b32_dpp v12, v13, v6 quad_perm:[0,0,2,2] {DPPM}"); e(f"  v_and_b32_dpp v16, v13, v6 quad_perm:[1,1,3,3] {DPPM}")
e("  s_nop 0"); e("  .p2align 3")
cm("A = h on a diagonal: D[token, column parity and pair][chunk] sums 4 rows of w_down per MFMA")
for mp in range(8):
    src = 12 if mp < 4 else 16; qq = mp & 3
    for r in range(4):
        n = (4*(r-qq)) % 16
        ctl = "quad_perm:[0,1,2,3]" if n == 0 else f"row_ror:{n}"
        e(f"  v_mov_b32_dpp v{AD+4*mp+r}, v{src} {ctl} row_mask:0xf bank_mask:{hex(1<<r)}")
    if mp >= 1:
        m = mp - 1; c = "0" if m == 0 else f"v[{ACC}:{ACC+3}]"
        e(f"  v_mfma_f32_16x16x32_bf16 v[{ACC}:{ACC+3}], v[{AD+4*m}:{AD+4*m+3}], v[{WD+4*m}:{WD+4*m+3}], {c}")
e("  s_nop 0")
e(f"  v_mfma_f32_16x16x32_bf16 v[{ACC}:{ACC+3}], v[{AD+28}:{AD+31}], v[{WD+28}:{WD+31}], v[{ACC}:{ACC+3}]")
e("  s_cselect_b32 exec_lo, 0x00ff00ff, -1"); e("  s_cselect_b32 exec_hi, 0x00ff00ff, -1"); e("  s_nop 5")
cm("4 sums (top 24 bits each) + tag in 16 bytes")
for j in range(3): e(f"  v_perm_b32 v{20+j}, v{ACC+j}, v{ACC+3}, s{56+j}")
if O("gst", -1) == 22: e("  s_memrealtime s[94:95]")
e("  buffer_store_dwordx4 v[20:23], v7, s[16:19], s36 offen" + HS)
GATH = AMP and 30 <= int(AMP.split(",")[0]) < 40
if GATH:
    e("  s_memrealtime s[90:91]"); e("  s_waitcnt lgkmcnt(0)")
    GS_ = O("gst", -1); GR_ = O("grole", -1)
    if GS_ == 20: e("  s_sub_u32 s90, s94, s92"); e("  s_add_u32 s90, s90, s64")
    elif GS_ >= 21: e("  s_mov_b32 s90, s94")
    elif GS_ >= 0: e(f"  s_mov_b32 s90, s{64+2*GS_}")
    if GR_ == 4: e("  s_cmp_eq_u32 s3, 4"); e("  s_cselect_b32 s90, s90, s64")
    if GR_ == 0: e("  s_cmp_lg_u32 s3, 4"); e("  s_cselect_b32 s90, s90, s64")
    e("  s_mov_b64 exec, 1"); e("  v_mov_b32 v24, s90"); e("  v_mov_b32 v25, s64"); e("  v_mov_b32 v26, v23"); e("  v_mov_b32 v27, 0")
    e("  s_lshl_b32 s92, s2, 3"); e("  s_add_u32 s92, s92, s3"); e("  s_lshl_b32 s92, s92, 4"); e("  s_add_u32 s92, s92, 0xd0000")
    e("  buffer_store_dwordx4 v[24:27], v27, s[16:19], s92 offen sc1")
    e("  s_cmp_eq_u32 s3, 4")
if STAMP:
    e("  s_cbranch_scc1 L_S6"); stamp(6); e("  s_branch L_FIN"); e("L_S6:"); stamp(2)
else: e("  s_cbranch_scc0 L_FIN")
if LATEC and O("cb", 1): e("  s_barrier", "released when the other four waves have ended: their sums are on the way")
if LATEC == 1: e("  s_mov_b64 exec, -1"); copy_stores(CW)
e("  s_cmp_ge_u32 s46, 72"); e(f"  s_cbranch_scc1 {'L_WC' if LATEC == 2 else 'L_FIN'}")
cm("---------------------------------------------------------------- 72 waves: sum over the 144 WGs, write the routed rows")
e("  s_mov_b64 exec, -1"); e("  ds_read_u16_d16_hi v35, v33"); e(f"  s_mov_b32 s61, {SPIN}")
e("  s_waitcnt vmcnt(0)")
stamp(6)
if RSL: e(f"  s_sleep {RSL}")
def rload(t): e(f"  buffer_load_dwordx4 v[{R0+4*t}:{R0+3+4*t}], v34, s[16:19], s{80+t} offen" + HL)
def racc(t):
    r = R0 + 4*t
    e(f"  v_perm_b32 v{r+3}, v{r+1}, v{r}, s41"); e(f"  v_perm_b32 v{r+3}, v{r+2}, v{r+3}, s42")
    if t:
        e(f"  v_pk_add_f32 v[{R0}:{R0+1}], v[{R0}:{R0+1}], v[{r}:{r+1}]"); e(f"  v_pk_add_f32 v[{R0+2}:{R0+3}], v[{R0+2}:{R0+3}], v[{r+2}:{r+3}]")
def rchain(extra, lab):
    for t in range(9):
        if lab: e(f"L_R{t}:")
        e(f"  s_waitcnt vmcnt({8-t+extra})"); e(f"  v_cmp_ne_u32 vcc, s47, v{R0+4*t+3}"); e(f"  s_cbranch_vccnz L_RR{t}")
        if lab: e(f"L_RA{t}:")
        racc(t)
for t in range(9): rload(t)
if LATEC == 2:
    copy_stores(CW); e("  s_mov_b64 exec, -1")
    rchain(9, False)
    e("L_RD:")
else:
    rchain(0, True)
if not O("nored5", 0): stamp(5)
e("  s_nop 1"); e(f"  v_permlane32_swap_b32 v{R0}, v{R0+2}"); e(f"  v_permlane32_swap_b32 v{R0+1}, v{R0+3}")
e(f"  v_add_f32 v{R0}, v{R0}, v{R0+2}"); e(f"  v_add_f32 v{R0+1}, v{R0+1}, v{R0+3}"); e("  s_nop 1")
e(f"  v_permlane16_swap_b32 v{R0}, v{R0+1}"); e(f"  v_add_f32 v{R0}, v{R0}, v{R0+1}"); e("  s_nop 1")
e(f"  v_add_f32_dpp v{R0}, v{R0}, v{R0} row_ror:4 {DPPM}"); e("  s_nop 1"); e(f"  v_add_f32_dpp v{R0}, v{R0}, v{R0} row_ror:8 {DPPM}")
e(f"  v_cvt_pk_bf16_f32 v16, v{R0}, v{R0}"); e("  v_and_b32 v16, 0xffff0000, v16"); e("  v_mul_f32 v16, v16, v32")
e("  v_cvt_pk_bf16_f32 v16, v16, v16"); e("  v_and_b32 v16, 0xffff0000, v16"); e("  s_waitcnt lgkmcnt(0)")
e("  v_add_f32 v16, v16, v35"); e("  v_cvt_pk_bf16_f32 v16, v16, v16")
e("  s_mov_b32 exec_lo, 0x000f000f"); e("  s_mov_b32 exec_hi, 0x000f000f")
e("  buffer_store_short v16, v29, s[20:23], s50 offen" + CFN)
e("  s_cmp_lg_u32 s46, 0"); e("  s_cbranch_scc1 L_FIN")
e("  s_mov_b64 exec, 1", "every reader of d_ws[0] is behind the sums seen here"); e("  v_mov_b32 v16, s47"); e(f"  v_mov_b32 v17, {WS_E}")
e("  buffer_store_dword v16, v17, s[16:19], 0 offen" + CFN)
e("L_FIN:"); stamp_flush(); e("L_END:"); e("  s_endpgm")
if LATEC == 2:
    e("L_WC:"); e("  s_mov_b64 exec, -1"); e("  s_branch L_XH2")
    rchain(0, True); e("  s_branch L_RD")
for t in range(9):
    e(f"L_RR{t}:"); e("  s_sub_u32 s61, s61, 1"); e(f"  s_cbranch_scc1 L_RA{t}")
    for t2 in range(t, 9): rload(t2)
    e(f"  s_branch L_R{t}")
cm("---------------------------------------------------------------- prefetch waves: one word per 128-byte line")
e("#MARK H0"); e("L_HELP:")
e(f"  s_sub_u32 s28, s2, {NWT}"); e("  s_and_b32 s29, s28, 7"); e("  s_lshr_b32 s28, s28, 3")
e("  s_and_b32 s33, s3, 1"); e("  s_mul_i32 s33, s33, 288"); e(f"  s_mul_i32 s32, s28, {HR}"); e("  s_add_u32 s32, s32, s33")
e(f"  s_add_u32 s32, s32, {32*N0}"); e("  s_mul_i32 s32, s32, 9216"); e("  s_mul_i32 s34, s29, 1152"); e("  s_add_u32 s32, s32, s34")
e("  v_mul_u32_u24 v3, 0x1c72, v0"); e("  v_lshrrev_b32 v3, 16, v3", "lane / 9"); e("  v_mul_u32_u24 v4, 9, v3"); e("  v_sub_u32 v4, v0, v4")
e("  v_mul_u32_u24 v3, 9216, v3"); e("  v_lshl_add_u32 v3, v4, 7, v3")
if HA:
    cm("the column block whose lines fill only half of a CU's L1 (byte column 384 mod 1024): all its rows first")
    e("  s_and_b32 s36, s3, 1"); e("  s_lshl1_add_u32 s36, s28, s36"); e(f"  s_mul_i32 s36, s36, {21*9216}")
    e("  s_cmp_ge_u32 s29, 4"); e("  s_addc_u32 s37, s29, 0"); e("  s_lshl_b32 s37, s37, 10"); e("  s_add_u32 s36, s36, s37"); e("  s_add_u32 s36, s36, 384")
    e("  v_cmp_lt_u32 vcc, 20, v0"); e("  v_mul_u32_u24 v5, 9216, v0"); e(f"  v_subrev_u32 v6, {21*9216 - 1024}, v5"); e("  v_cndmask_b32 v5, v5, v6, vcc")
    e("  s_cmp_eq_u32 s29, 3"); e("  s_cselect_b32 s37, 42, 21")
e("  s_lshl2_add_u32 s28, s28, s3")
e(f"  s_mul_i32 s29, s29, {5184*128}")
if RP: e(f"  s_add_u32 s29, s29, {RP*8192}")
e("  v_lshlrev_b32 v2, 7, v0")
nr = -(-(288 - 32*N0) // (NH*HR)) - O("hskip", 0)
assert nr - HG >= 1
e(f"  s_mov_b32 s30, {nr-HG}")
e("  s_cmp_ge_u32 s3, 2"); e("  s_waitcnt lgkmcnt(0)")
e("  s_cselect_b32 s8, s26, s24"); e("  s_cselect_b32 s9, s27, s25")
if O("tw", 0):
    e("  s_load_dword s40, s[12:13], 0", "first touch of w_down and d_out: address translation only")
    e("  s_load_dword s41, s[20:21], 0")
if BAR0: e("  s_barrier")
if HA:
    e("  s_bfm_b64 exec, s37, 0"); e(f"  buffer_load_dword v{DUM}, v5, s[8:11], s36 offen")
e(f"  s_bfm_b64 exec, {9*HR}, 0")
for r in range(HG):
    e(f"  buffer_load_dword v{DUM}, v3, s[8:11], s32 offen" + GNT); e(f"  s_add_u32 s32, s32, {NH*HR*9216}")
CPS = 9 - 2*RP
def wchunk(wait):
    if O("wil", 0):
        e(f"  s_mul_hi_u32 s31, s28, {(2**32 + 17)//18}"); e("  s_mul_i32 s35, s31, 18"); e("  s_sub_u32 s35, s28, s35")
    else:
        e(f"  s_mul_hi_u32 s35, s28, {(2**32 + CPS - 1)//CPS}"); e(f"  s_mul_i32 s31, s35, {CPS}"); e("  s_sub_u32 s31, s28, s31")
    e("  s_mul_i32 s35, s35, 36864"); e("  s_lshl_b32 s31, s31, 12"); e("  s_add_u32 s35, s35, s31"); e("  s_add_u32 s35, s35, s29")
    if wait: e(f"  s_waitcnt vmcnt({HT-1})")
    e(f"  buffer_load_dword v{DUM}, v2, s[12:15], s35 offen" + PNT)
    e("  s_add_u32 s28, s28, 56")
if TRIM: srdw([14, 15, 18, 19])
if not UNG: e("  s_barrier")
stamp(1)
if HWF:
    e("  s_bfm_b64 exec, 32, 0")
    for _ in range(HWF): wchunk(False)
    e(f"  s_bfm_b64 exec, {9*HR}, 0")
e("L_HGL:"); e(f"  s_waitcnt vmcnt({HT-1+HX})"); e(f"  buffer_load_dword v{DUM}, v3, s[8:11], s32 offen" + GNT)
e(f"  s_add_u32 s32, s32, {NH*HR*9216}"); e("  s_sub_u32 s30, s30, 1"); e("  s_cmp_lg_u32 s30, 0"); e("  s_cbranch_scc1 L_HGL")
if O("gul", 0): e("  s_waitcnt vmcnt(0)")
stamp(2)
if WE == 4:
    e("  s_bfm_b64 exec, 36, 0")
    e("L_HWL:")
    e("  s_mul_i32 s35, s28, 9216"); e("  s_add_u32 s35, s35, s29"); e("  s_add_u32 s35, s35, 4608")
    e(f"  s_waitcnt vmcnt({HT-1})"); e(f"  buffer_load_dword v{DUM}, v2, s[12:15], s35 offen" + PNT)
    e("  s_add_u32 s28, s28, 56"); e("  s_cmp_lt_u32 s28, 72"); e("  s_cbranch_scc1 L_HWL")
elif WE < 8:
    e("  s_bfm_b64 exec, 32, 0")
    e("L_HWL:")
    wchunk(not O("hwn", 1))
    e(f"  s_cmp_lt_u32 s28, {18*CPS}"); e("  s_cbranch_scc1 L_HWL")
if UNG: e("  s_barrier")
e("  s_waitcnt vmcnt(0)"); e("  s_barrier"); e("  s_branch L_FIN")
e("#MARK H1"); e("L_CODE_END:")
cm("rare path: x + x*0 turns an infinity into a NaN")
for n in range(1, ncopy+1):
    e(f"L_FIX{n}:"); e(f"  s_mov_b32 s98, {n}"); e("  s_branch L_FIX")
e("L_FIX:"); e("  s_mov_b32 s29, 0x07060302")
for j in range(36):
    r = XR + j
    e(f"  v_lshlrev_b32 v12, 16, v{r}"); e(f"  v_and_b32 v13, 0xffff0000, v{r}"); e("  v_fma_f32 v12, v12, 0, v12"); e("  v_fma_f32 v13, v13, 0, v13")
    e(f"  v_perm_b32 v{r}, v13, v12, s29")
e("  s_cmp_eq_u32 s98, 1"); e("  s_cbranch_scc1 L_FIXR1"); e("  s_branch L_FIXR2")
e('.section .rodata,"a"'); e(".p2align 6"); e(f".amdhsa_kernel {K}")
e("  .amdhsa_next_free_vgpr 200"); e("  .amdhsa_next_free_sgpr 102"); e("  .amdhsa_accum_offset 200")
e("  .amdhsa_group_segment_fixed_size 0"); e("  .amdhsa_kernarg_size 64"); e("  .amdhsa_user_sgpr_count 2")
e("  .amdhsa_user_sgpr_kernarg_segment_ptr 1"); e("  .amdhsa_system_sgpr_workgroup_id_x 1"); e("  .amdhsa_float_denorm_mode_32 3")
e(".end_amdhsa_kernel")
def cut(a, b):
    i = out.index("#MARK " + a); j = out.index("#MARK " + b)
    blk = out[i+1:j]; del out[i:j+1]; return blk
blk = []
if NEAR & 2:
    h = cut("H0", "H1")
    if not NEAR & 1:
        pass
    blk += h
if NEAR & 1: blk = cut("C0", "C1") + blk
i = out.index("#MARK XINIT"); out[i:i+1] = blk
out = [l for l in out if not l.startswith("#MARK")]
if not NEAR: out = [l for l in out if l not in ("L_X2:", "L_C2:")]
open(sys.argv[1], "w").write("\n".join(out) + "\n")
```
